```python
import torch

def _softmax(x, axis=-1):
    return torch.softmax(x, dim=axis)

def _gelu(x):
    return torch.nn.functional.gelu(x, approximate='tanh')

def _silu(x):
    return torch.nn.functional.silu(x)

def _sigmoid(x):
    return torch.sigmoid(x)

def _layernorm(x, axis=-1, eps=1e-05):
    m = x.mean(dim=axis, keepdim=True)
    v = x.var(dim=axis, keepdim=True, unbiased=False)
    return (x - m) / torch.sqrt(v + eps)

def _scatter_add(tgt, idx, src, axis=0):
    return tgt.clone().index_add_(axis, idx, src)

def _segment_sum(src, seg, n):
    out = torch.zeros((n,) + src.shape[1:], dtype=src.dtype)
    return out.index_add_(0, seg, src)

def _pad(x, pw):
    flat = tuple((v for pair in reversed(pw) for v in pair))
    return torch.nn.functional.pad(x, flat)
kernel_name = 'interleave_layers__memory_aug_recurrent_mem_tr__mha_block__prompt'

def setup_inputs():

    _w = lambda a: (lambda t: t.to(torch.bfloat16) if t.is_floating_point() else t)(torch.as_tensor(a))

    def _A_setup():
        B, S, Dm = (1, 2048, 576)
        H, Dh = (32, 128)
        M, seg = (8, 32)
        seg = min(seg, S)
        S = S // seg * seg
        return {'x': _w((lambda *s: torch.randn(*s, dtype=torch.bfloat16) * 0.05)(B, S, Dm)), 'mem0': _w((lambda *s: torch.randn(*s, dtype=torch.bfloat16) * 0.2)(B, M, Dm)), 'Wq': _w((lambda *s: torch.randn(*s, dtype=torch.bfloat16) * 1.6)(Dm, H, Dh) * Dm ** (-0.5)), 'Wk': _w((lambda *s: torch.randn(*s, dtype=torch.bfloat16) * 1.6)(Dm, H, Dh) * Dm ** (-0.5)), 'Wv': _w((lambda *s: torch.randn(*s, dtype=torch.bfloat16) * 0.2)(Dm, H, Dh) * Dm ** (-0.5)), 'Wo': _w((lambda *s: torch.randn(*s, dtype=torch.bfloat16) * 0.2)(H, Dh, Dm) * (H * Dh) ** (-0.5)), 'seg_len': seg}
    _A_in = _A_setup()

    def _B_setup():
        B, S, D, H = (1, 2048, 576, 32)
        return {'x': _w((lambda *s: torch.randn(*s, dtype=torch.bfloat16) * 0.05)(B, S, D)), 'wqkv': _w((lambda *s: torch.randn(*s, dtype=torch.bfloat16) * 0.05)(D, 3 * D)), 'wo': _w((lambda *s: torch.randn(*s, dtype=torch.bfloat16) * 0.05)(D, D))}
    _B_in = _B_setup()
    return {'A_x': _A_in['x'], 'A_mem0': _A_in['mem0'], 'A_Wq': _A_in['Wq'], 'A_Wk': _A_in['Wk'], 'A_Wv': _A_in['Wv'], 'A_Wo': _A_in['Wo'], 'A_seg_len': _A_in['seg_len'], 'B_x': _B_in['x'], 'B_wqkv': _B_in['wqkv'], 'B_wo': _B_in['wo']}

def reference(A_x, A_mem0, A_Wq, A_Wk, A_Wv, A_Wo, A_seg_len, B_x, B_wqkv, B_wo):

    def _A_ref(x, mem0, Wq, Wk, Wv, Wo, seg_len):
        B, S, Dm = x.shape
        H, Dh = (Wq.shape[1], Wq.shape[2])
        M = mem0.shape[1]
        scale = Dh ** (-0.5)
        n_seg = S // seg_len
        L = M + seg_len
        idx = torch.arange(L)
        mask = (idx[:, None] < M) | (idx[:, None] >= idx[None, :])
        mem = mem0
        outs = []
        for s in range(n_seg):
            xs = x[:, s * seg_len:(s + 1) * seg_len, :].clone()
            h = torch.concatenate([mem, xs], axis=1)
            q = torch.einsum('btd,dhe->bhte', h, Wq)
            k = torch.einsum('btd,dhe->bhte', h, Wk)
            v = torch.einsum('btd,dhe->bhte', h, Wv)
            scores = torch.einsum('bhqe,bhke->bhqk', q, k) * scale
            scores = torch.where(mask[None, None], scores, -1000000000.0)
            p = _softmax(scores, axis=-1)
            o = torch.einsum('bhqk,bhke->bhqe', p, v)
            o = torch.einsum('bhte,hed->btd', o, Wo)
            mem = o[:, :M, :].clone()
            outs.append(o[:, M:, :])
        return torch.concatenate(outs, axis=1)

    def _B_ref(x, wqkv, wo):
        B, S, D = x.shape
        H = 32
        Dh = D // H
        qkv = (lambda x, *d: x.permute(*d))((x @ wqkv).reshape(B, S, 3, H, Dh), 2, 0, 3, 1, 4)
        q, k, v = (qkv[0], qkv[1], qkv[2])
        scores = torch.einsum('bhqd,bhkd->bhqk', q, k) * Dh ** (-0.5)
        p = _softmax(scores, axis=-1)
        o = torch.einsum('bhqk,bhkd->bhqd', p, v)
        return (lambda x, *d: x.permute(*d))(o, 0, 2, 1, 3).reshape(B, S, D) @ wo
    x = A_x
    x = x + _A_ref(_layernorm(x, axis=-1), A_mem0, A_Wq, A_Wk, A_Wv, A_Wo, A_seg_len)
    x = x + _B_ref(_layernorm(x, axis=-1), B_wqkv, B_wo)
    x = x + _A_ref(_layernorm(x, axis=-1), A_mem0, A_Wq, A_Wk, A_Wv, A_Wo, A_seg_len)
    x = x + _B_ref(_layernorm(x, axis=-1), B_wqkv, B_wo)
    return x
```

```python
from wk import *
sHd,sSeg,sSrc,sKVo,sQo="s25","s26","s27","s28","s29"
FR=Frags(80)
def fi(mu,t,k): return ("kvq".index(mu)*2+t)*18+k
vSrc,vRaw,vDst,vRd,vL16,vKst,vTr,vWa=[f"v{i}" for i in range(1,9)]
RAW=XF_BYTES; WST=81920
def load_qkv(a, mats):
    srd(a,sA,P_WQ,4718592); srd(a,sB,P_WK,4718592); srd(a,sC_,P_WV,4718592)
    tr_addr(a,vTr,"v10","v11",WST)
    a(f"""
    v_lshrrev_b32 v10, 2, v0
    v_and_b32 v11, 3, v0
    v_lshlrev_b32 v11, 4, v11
    v_lshl_add_u32 {vWa}, v10, 13, v11
    s_lshl_b32 {T2}, {sHd}, 8
    s_lshl_b32 {T1}, {sW}, 6
    s_add_u32 {T2}, {T2}, {T1}
    """)
    blocks=[]
    for mu in mats:
        for b in range(9):
            blocks.append(([(vWa,{"q":sA,"k":sB,"v":sC_}[mu],T2,(64*b+16*i)*8192,16) for i in range(4)],
                           [(t,)+FR.reg(fi(mu,t,2*b)) for t in range(2)]))
    load_blocks(a,blocks,WST,vTr)
def consts(a):
    ln_consts(a,vSrc,vRaw,vDst,vRd,"v10","v11",RAW,0)
    a(f"""
    v_lshlrev_b32 {vL16}, 4, v0
    v_lshrrev_b32 v10, 2, v0
    v_lshlrev_b32 v10, 5, v10
    v_and_b32 v11, 1, v0
    v_lshl_add_u32 v10, v11, 4, v10
    v_bfe_u32 v11, v0, 1, 1
    v_lshl_add_u32 {vKst}, v11, 11, v10
    """)
ACC=16; XB=64
def gemm(a, mats):
    acc=lambda mu,t,T: ACC+("kvq".index(mu)*4+t*2+T)*4
    rd=lambda k: [f"ds_read_b128 {q(XB+(k&1)*8+4*T)}, {vRd} offset:{xfrag(k,T)}" for T in range(2)]
    for x in rd(0): a(x)
    for k in range(18):
        pend=rd(k+1) if k<17 else []
        a("s_waitcnt lgkmcnt(0)")
        for mu in mats:
            for t in range(2):
                for T in range(2):
                    d=q(acc(mu,t,T)); W=FR.op(fi(mu,t,k)); X=q(XB+(k&1)*8+4*T)
                    a(mf(d,X,W,d if k else 0) if mu=="v" else mf(d,W,X,d if k else 0))
                    if pend: a(pend.pop(0))
    return acc
def segment(a, lo, nxt, signal):
    a("s_waitcnt vmcnt(0)")
    ln_stage(a,vRaw,vDst,ACC,pre_write=lambda: (a("s_barrier"),signal(1)))
    a(f"""s_lshl_b32 {T0}, {sSeg}, 5
    s_add_u32 {T0}, {T0}, {sHd}
    s_lshl_b32 {sKVo}, {T0}, 14
    s_add_u32 {sKVo}, {sKVo}, {lo+OFF_KV}
    s_lshl_b32 {sQo}, {T0}, 13
    s_add_u32 {sQo}, {sQo}, {lo+OFF_QX}
    s_waitcnt lgkmcnt(0)
    s_barrier""")
    nxt()
    acc=gemm(a,"kv")
    a(f"s_lshl_b32 {T0}, {sW}, 9\ns_add_u32 {T0}, {T0}, {sKVo}\ns_add_u32 {T1}, {T0}, 4096\ns_lshl_b32 {T2}, {sW}, 11\ns_add_u32 {T2}, {T2}, {sKVo}\ns_add_u32 {T2}, {T2}, 8192")
    def pack(d,x,y):
        a(cv(d,x,x+1)); a(cv(d+1,x+2,x+3)); a(cv(d+2,y,y+1)); a(cv(d+3,y+2,y+3))
    for T in range(2):
        d=acc("k",0,T); pack(d,d,acc("k",1,T)); a(f"buffer_store_dwordx4 {q(d)}, {vKst}, {sWS}, {(T0,T1)[T]} offen sc1")
    for t in range(2):
        d=acc("v",t,0); pack(d,d,acc("v",t,1)); a(f"buffer_store_dwordx4 {q(d)}, {vL16}, {sWS}, {T2} offen offset:{1024*t} sc1")
    gemm(a,"q")
    signal(0)
    a(f"s_lshl_b32 {T0}, {sW}, 10\ns_add_u32 {T0}, {T0}, {sQo}\ns_add_u32 {T1}, {T0}, 4096")
    for T in range(2):
        d=acc("q",0,T); pack(d,d,acc("q",1,T)); a(f"buffer_store_dwordx4 {q(d)}, {vL16}, {sWS}, {(T0,T1)[T]} offen sc1")
def fetch(a, sg):
    a(f"s_mul_i32 {sSrc}, {sg}, {32*1152}")
    ln_fetch(a,vSrc,sX,sSrc,RAW)
```

```python
from wk import *
import a1
from a1 import FR, fi, sHd, sSeg, vL16, vKst
sKVo,sQo,sMo,sOo,sCc,sW1k="s28","s29","s30","s31","s32","s33"
MASK=["s[40:41]","s[42:43]","s[44:45]","s[46:47]"]
vSab,vSc,vKx="v2","v3","v4"
L_MF=0; L_KX=18432
Q,K,V,S0_,MB_=112,144,176,184,196
SM=208; KK=144; ACC=16; XB=32; ONES=40; PX=44; PM=52; VD=56; O=60; LL=216; TMP=224
def consts(a):
    a(f"""
    v_and_b32 v10, 15, v0                  ; m
    v_lshrrev_b32 v11, 4, v0               ; gA
    v_and_b32 v12, 13, v10
    v_lshlrev_b32 v12, 4, v12              ; (m&~2)*16
    v_bfe_u32 v13, v10, 1, 1               ; half
    v_lshrrev_b32 v14, 1, v11
    v_lshl_add_u32 v12, v14, 10, v12
    v_and_b32 v14, 1, v11
    v_lshl_add_u32 v15, v14, 8, v12
    v_lshl_add_u32 v15, v13, 3, v15
    s_lshl_b32 {T0}, {sW}, 11
    v_add_u32 {vSab}, {T0}, v15
    v_lshl_add_u32 v14, v14, 1, v13
    v_lshl_add_u32 {vSc}, v14, 8, v12
    s_lshl_b32 {sW1k}, {sW}, 10
    v_add_u32 {vKx}, {sW1k}, {vL16}
    v_lshlrev_b32 v11, 2, v11
    s_mov_b32 {sCc}, {f2u(128**-0.5*math.log2(math.e))}
    s_mov_b32 s34, 0x05040100
    s_mov_b32 s35, 0x07060302
    """)
    for r in range(4): a(f"v_add_u32 v12, {r}, v11\nv_cmp_le_u32 {MASK[r]}, v12, v10")
    for i in range(4): a(f"v_mov_b32 v{12+i}, 0")
    a("s_barrier")
    for i in range(5): a(f"ds_write_b128 {vKx}, v[12:15] offset:{4096*i}")
    a("s_waitcnt lgkmcnt(0)\ns_barrier")
def pre(a, lo, mh):
    a(f"""s_lshl_b32 {T0}, {sSeg}, 5
    s_add_u32 {T0}, {T0}, {sHd}
    s_lshl_b32 {sKVo}, {T0}, 14
    s_add_u32 {sKVo}, {sKVo}, {lo+OFF_KV}
    s_lshl_b32 {sQo}, {T0}, 13
    s_add_u32 {sQo}, {sQo}, {lo+OFF_QX}
    s_lshl_b32 {sMo}, {sSeg}, 14
    s_add_u32 {sMo}, {sMo}, {mh}
    s_lshl_b32 {T0}, {sSeg}, 6
    s_add_u32 {T0}, {T0}, {sHd}
    s_lshl_b32 {sOo}, {T0}, 12
    s_add_u32 {sOo}, {sOo}, {sW1k}
    s_add_u32 {sOo}, {sOo}, {lo+OFF_O}
    s_add_u32 {T0}, {sQo}, 4096
    s_add_u32 {T1}, {sKVo}, 4096
    s_lshl_b32 {T2}, {sW}, 11
    s_add_u32 {T2}, {T2}, {sKVo}
    s_add_u32 {T2}, {T2}, 8192""")
    for T in range(2):
        for b in range(4):
            a(f"buffer_load_dwordx4 {q(Q+16*T+4*b)}, {vL16}, {sWS}, {(sQo,T0)[T]} offen offset:{1024*b} sc1")
            a(f"buffer_load_dwordx4 {q(K+16*T+4*b)}, {vKst}, {sWS}, {(sKVo,T1)[T]} offen offset:{512*b} sc1")
    for t in range(2): a(f"buffer_load_dwordx4 {q(V+4*t)}, {vL16}, {sWS}, {T2} offen offset:{1024*t} sc1")
    for i in range(4): a(f"v_mov_b32 v{ONES+i}, 0x3f803f80")
    for r in (PX+2,PX+3,PM+1,PM+3): a(f"v_mov_b32 v{r}, 0")
    a(f"v_mov_b32 v{TMP}, {hex(f2u(-1e30))}\ns_waitcnt vmcnt(0)")
    for i,(kt,qt) in enumerate(((0,0),(0,1),(1,1))):
        d=q(S0_+4*i)
        for b in range(4): a(mf(d,q(K+16*kt+4*b),q(Q+16*qt+4*b),d if b else 0))
    for i in (0,2):
        for r in range(4): a(f"v_cndmask_b32 v{S0_+4*i+r}, v{TMP}, v{S0_+4*i+r}, {MASK[r]}")
def post(a, fail, sCnt, spin_max):
    lp=a.lab("a2poll")
    a(f"s_add_u32 {T0}, {sMo}, {sW1k}\ns_add_u32 {T1}, {T0}, 4096\ns_add_u32 {T2}, {sMo}, 8192")
    a(f"{lp}:")
    for i in range(3): a(f"buffer_load_dwordx4 {q(MB_+4*i)}, {vL16}, {sWS}, {(T0,T1,T2)[i]} offen sc1")
    a(f"""s_add_u32 {sCnt}, {sCnt}, 1
    s_cmp_gt_u32 {sCnt}, {spin_max}
    s_cbranch_scc1 {fail}
    s_waitcnt vmcnt(0)
    v_max3_u32 v{TMP}, v{MB_}, v{MB_+4}, v{MB_+8}
    v_cmp_eq_u32 vcc, -1, v{TMP}
    s_cbranch_vccnz {lp}""")
    for i in range(2):
        r=MB_+4*i; t=TMP+4*i
        a(f"""v_perm_b32 v{t}, v{r+1}, v{r}, s34
        v_perm_b32 v{t+1}, v{r+3}, v{r+2}, s34
        v_perm_b32 v{t+2}, v{r+1}, v{r}, s35
        v_perm_b32 v{t+3}, v{r+3}, v{r+2}, s35
        ds_write2st64_b64 {vSab}, v[{t}:{t+1}], v[{t+2}:{t+3}] offset0:{16*i} offset1:{16*i+1}""")
    a(f"ds_write_b128 {vSc}, {q(MB_+8)} offset:16384\ns_waitcnt lgkmcnt(0)\ns_barrier")
    rd=lambda k: f"ds_read_b128 {q(XB+4*(k&1))}, {vL16} offset:{1024*k}"
    a(rd(0))
    for k in range(18):
        a("s_waitcnt lgkmcnt(0)"); X=q(XB+4*(k&1))
        for n,(mu,t) in enumerate((("k",0),("k",1),("v",0),("v",1))):
            d=q(ACC+4*n); W=FR.op(fi(mu,t,k))
            a(mf(d,X,W,d if k else 0) if mu=="v" else mf(d,W,X,d if k else 0))
            if n==0 and k<17: a(rd(k+1))
    for i in range(4): a(cv(ACC+i,ACC+2*i,ACC+2*i+1))
    a(f"ds_write_b128 {vKx}, {q(ACC)} offset:{L_KX}")
    for t in range(2):
        for i in range(2): a(cv(VD+2*t+i,ACC+8+4*t+2*i,ACC+8+4*t+2*i+1))
    a("s_waitcnt lgkmcnt(0)\ns_barrier")
    for b in range(4): a(f"ds_read_b128 {q(KK+4*b)}, {vL16} offset:{L_KX+1024*b}")
    for b in range(4):
        a(f"s_waitcnt lgkmcnt({3-b})")
        for qt in range(2):
            d=q(SM+4*qt); a(mf(d,q(KK+4*b),q(Q+16*qt+4*b),d if b else 0))
    vals=[[S0_+r for r in range(4)]+[SM,SM+1],[S0_+4+r for r in range(8)]+[SM+4,SM+5]]
    for qt in range(2):
        v=vals[qt]; mx=TMP+2*qt
        a(f"v_max_f32 v{mx}, v{v[0]}, v{v[1]}")
        for i in range(2,len(v),2): a(f"v_max3_f32 v{mx}, v{mx}, v{v[i]}, v{v[i+1]}")
    for sw in ("v_permlane16_swap_b32","v_permlane32_swap_b32"):
        for qt in range(2): a(f"v_mov_b32 v{TMP+2*qt+1}, v{TMP+2*qt}")
        for qt in range(2): a(f"{sw} v{TMP+2*qt}, v{TMP+2*qt+1}")
        for qt in range(2): a(f"v_max_f32 v{TMP+2*qt}, v{TMP+2*qt}, v{TMP+2*qt+1}")
    for qt in range(2):
        v=vals[qt]; mx=TMP+2*qt
        a(f"v_mul_f32 v{mx}, {sCc}, v{mx}")
        for r in v: a(f"v_fma_f32 v{r}, v{r}, {sCc}, -v{mx}")
        for r in v: a(f"v_exp_f32 v{r}, v{r}")
        for i in range(0,len(v)-2,2): a(cv(PX+4*qt+i//2,v[i],v[i+1]))
        a(cv(PM+2*qt,v[-2],v[-1]))
    m16=lambda d,A,B: f"v_mfma_f32_16x16x16_bf16 {q(d)}, v[{A}:{A+1}], v[{B}:{B+1}], {q(d)}"
    for qt in range(2):
        a(mf(q(LL+4*qt),q(ONES),q(PX+4*qt),0))
        for t in range(2): a(mf(q(O+8*qt+4*t),q(V+4*t),q(PX+4*qt),0))
    for qt in range(2):
        a(m16(LL+4*qt,ONES,PM+2*qt))
        for t in range(2): a(m16(O+8*qt+4*t,VD+2*t,PM+2*qt))
    a(f"s_add_u32 {T0}, {sOo}, {32*4096}")
    for qt in range(2):
        a(f"v_rcp_f32 v{TMP}, v{LL+4*qt}")
        o=O+8*qt
        for i in range(8): a(f"v_mul_f32 v{o+i}, v{o+i}, v{TMP}")
        for i in range(4): a(cv(o+i,o+2*i,o+2*i+1))
        a(f"buffer_store_dwordx4 {q(o)}, {vL16}, {sWS}, {(sOo,T0)[qt]} offen sc1")
```

```python
import re, sys

REG_RE = re.compile(r'^(-|abs\(|\|)?([vas])(?:(\d+)|\[(\d+):(\d+)\])(\)|\|)?$')
TRANS = ("v_exp_f32","v_log_f32","v_rcp_f32","v_rsq_f32","v_sqrt_f32","v_sin_f32","v_cos_f32","v_rcp_iflag_f32")

def regs_of(op):
    op = op.strip()
    if op == "vcc": return {("s","vcc")}
    if op in ("vcc_lo","vcc_hi"): return {("s","vcc")}
    if op == "exec" or op in ("exec_lo","exec_hi"): return {("s","exec")}
    if op == "m0": return {("s","m0")}
    m = REG_RE.match(op)
    if not m: return set()
    k = m.group(2)
    if m.group(3) is not None: return {(k,int(m.group(3)))}
    return {(k,i) for i in range(int(m.group(4)), int(m.group(5))+1)}

class Ins:
    __slots__=("text","op","ops","mods","label","defs","uses","kind","srcC","srcAB","passes","data","target","nstates")
    def __init__(self, text):
        self.text = text; self.label=None; self.defs=set(); self.uses=set(); self.kind=None
        self.srcC=set(); self.srcAB=set(); self.passes=0; self.data=set(); self.target=None; self.nstates=1
        t = text.split(";")[0].strip()
        if not t: self.kind="none"; self.op=""; self.nstates=0; return
        if t.endswith(":"):
            self.label=t[:-1]; self.kind="label"; self.op=""; self.nstates=0; return
        if t.startswith("."):
            self.kind="none"; self.op=""; self.nstates=0; return
        p = t.split(None,1); self.op=p[0]
        rest = p[1] if len(p)>1 else ""
        ops=[]; cur=""; d=0
        for ch in rest:
            if ch in "[(": d+=1
            if ch in "])": d-=1
            if ch=="," and d==0: ops.append(cur.strip()); cur=""
            else: cur+=ch
        if cur.strip(): ops.append(cur.strip())
        self.mods=""
        if ops:
            q = ops[-1].split(None,1)
            if len(q)>1 and not ops[-1].startswith("hwreg"): ops[-1]=q[0]; self.mods=q[1]
        self.ops=ops
        self.classify()
    def classify(self):
        op=self.op; o=self.ops; R=regs_of
        allr=lambda l: set().union(*[R(x) for x in l]) if l else set()
        if op.startswith("v_mfma"):
            self.kind="mfma"; self.defs=R(o[0]); self.srcAB=R(o[1])|R(o[2]); self.srcC=R(o[3]); self.uses=self.srcAB|self.srcC
            self.passes = 8 if "32x32" in op else 4
        elif op.startswith("v_smfmac"):
            self.kind="mfma"; self.defs=R(o[0]); self.srcAB=R(o[1])|R(o[2])|R(o[3]); self.srcC=R(o[0]); self.uses=self.srcAB|self.srcC
            self.passes = 8 if "32x32" in op else 4
        elif op.startswith("v_"):
            self.kind="valu"
            if op.startswith("v_nop"): return
            if op.startswith("v_permlane") and "swap" in op or op.startswith("v_swap"):
                self.defs=allr(o); self.uses=allr(o)
            elif "_co_" in op or op.startswith("v_div_scale") or op.startswith("v_mad_u64"):
                self.defs=R(o[0])|R(o[1]); self.uses=allr(o[2:])
            else:
                self.defs=R(o[0]); self.uses=allr(o[1:])
                if op.startswith(("v_fmac","v_dot2c","v_pk_fmac","v_writelane")) or "dpp" in op or "sdwa" in op: self.uses|=R(o[0])
        elif op.startswith("ds_"):
            self.kind="ds"
            if op.startswith(("ds_read","ds_bpermute","ds_permute","ds_swizzle")) or "_rtn" in op:
                self.defs=R(o[0]); self.uses=allr(o[1:])
            else: self.uses=allr(o)
        elif op.startswith(("global_","buffer_","flat_")):
            self.kind="vmem"
            lds = op.startswith("global_load_lds") or re.search(r'\blds\b', self.mods or "") is not None
            if op.startswith(("buffer_wbl2","buffer_inv")): return
            if lds: self.uses=allr(o)|{("s","m0")}; self.kind="vmem"
            elif "load" in op: self.defs=R(o[0]); self.uses=allr(o[1:])
            elif "atomic" in op:
                if re.search(r'\bsc0\b', self.mods or ""):
                    self.defs=R(o[0]); self.uses=allr(o[1:]) if op.startswith("global") else allr(o)
                else: self.uses=allr(o)
            else:
                self.uses=allr(o)
                if op.endswith(("x3","x4")): self.data = R(o[1]) if op.startswith(("global","flat")) else R(o[0])
        elif op.startswith("s_"):
            self.kind="salu"
            if op=="s_nop": self.nstates=int(o[0],0)+1; self.kind="nop"
            elif op.startswith(("s_branch","s_cbranch")): self.kind="branch"; self.target=o[0]
            elif op.startswith(("s_waitcnt","s_barrier","s_endpgm","s_sleep","s_setprio")): self.kind="misc"
            elif op.startswith(("s_load","s_buffer_load","s_memtime","s_memrealtime","s_atomic")): self.kind="smem"; self.defs=R(o[0]); self.uses=allr(o[1:])
            elif op.startswith(("s_cmp","s_bitcmp")): self.uses=allr(o)
            elif op.startswith(("s_setpc",)): self.kind="jump"; self.uses=allr(o)
            elif op.startswith(("s_swappc","s_call")): self.kind="call"; self.defs=R(o[0])
            else:
                self.defs=R(o[0]); self.uses=allr(o[1:])
                if "saveexec" in op: self.defs|={("s","exec")}
        else:
            raise ValueError("unknown instruction: "+self.text)

def vec(s): return {r for r in s if r[0] in "va"}
def sca(s): return {r for r in s if r[0]=="s"}

def need(p, c):
    n=0
    if p.kind=="valu":
        dv=vec(p.defs); ds=sca(p.defs)
        if c.kind=="mfma" and dv & c.uses: n=max(n,2)
        if c.kind=="valu":
            if dv & c.uses:
                if "dpp" in c.op or c.op.startswith("v_permlane"): n=max(n,2)
                if c.op.startswith(("v_readlane","v_readfirstlane")): n=max(n,1)
                if p.op.startswith(TRANS) and not c.op.startswith(TRANS): n=max(n,1)
                if "sdwa" in p.op or "op_sel" in (p.mods or ""): n=max(n,1)
            if ds & c.uses:
                n=max(n, 4 if c.op.startswith(("v_readlane","v_writelane")) else 2)
        if c.kind=="vmem" and ds & c.uses: n=max(n,5)
        if c.kind in("ds","vmem") and p.op.startswith(TRANS) and dv & c.uses: n=max(n,1)
    if p.kind=="mfma":
        big={4:8,8:12}[p.passes]
        if c.kind=="mfma":
            if p.defs & c.srcAB: n=max(n,big)
            if p.defs & c.srcC:
                if not (p.defs==c.srcC and p.op==c.op): n=max(n,{4:6,8:10}[p.passes])
            elif p.defs & c.defs and not (p.defs==c.defs and p.passes==c.passes): n=max(n,{4:6,8:10}[p.passes])
        elif c.kind in("valu","ds","vmem"):
            if p.defs & (c.uses|c.defs): n=max(n,big)
            if c.kind=="valu" and p.srcC & c.defs: n=max(n,{4:3,8:7}[p.passes])
    if p.kind=="vmem" and p.data and p.data & c.defs: n=max(n, 2 if c.kind in("valu","mfma") else 1)
    if p.kind=="salu" and ("s","m0") in p.defs and c.kind in("vmem","ds") and ("s","m0") in c.uses: n=max(n,1)
    return n

class Asm:
    def __init__(self): self.lines=[]; self.uid=0
    def __call__(self, s=""):
        for l in s.split("\n"):
            l=l.strip()
            if l: self.lines.append(l)
    def lab(self, p="L"):
        self.uid+=1; return f"{p}_{self.uid}"
    def finish(self, verbose=False, check=True, align=True):
        ins=[Ins(l) for l in self.lines]
        added=0; i=0
        labels={x.label:k for k,x in enumerate(ins) if x.label}
        srcs={}
        for k,x in enumerate(ins):
            if x.kind=="branch":
                if x.target not in labels: raise ValueError("unknown label "+x.target)
                srcs.setdefault(labels[x.target],[]).append(k)
        pad=[0]*len(ins)
        MAXD=12
        def elapsed(path, extra):
            t=0; mf=0; vf=0
            for n,(j,pd) in enumerate(path):
                x=ins[j]
                if n:
                    t+=pd
                    if n==len(path)-1: t+=extra
                    if x.kind=="mfma": t=max(t,mf,vf)
                    elif x.kind=="valu": t=max(t,vf)
                    if n==len(path)-1: return t-1
                if x.kind=="mfma":
                    mf=t+x.passes; vf=t+(3 if x.op.startswith("v_smfmac") else 2)
                t+=x.nstates
        for k,c in enumerate(ins):
            if c.kind not in("valu","mfma","ds","vmem"): continue
            worst=0
            stack=[(k,0,((k,0),))]
            while stack:
                j,d,path=stack.pop()
                preds=[]
                if j>0 and not (ins[j-1].op in("s_branch","s_endpgm") or ins[j-1].kind=="jump"): preds.append(j-1)
                if ins[j].kind=="label": preds+=srcs.get(j,[])
                for p in preds:
                    x=ins[p]
                    n=need(x,c) if x.nstates else 0
                    np_=((p,pad[p]),)+path
                    if n>d:
                        e=0
                        while elapsed(np_,e)<n: e+=1
                        worst=max(worst,e)
                    nd=d+x.nstates+pad[p]
                    if nd<MAXD and len(np_)<40: stack.append((p,nd,np_))
            pad[k]=worst
        out=[]
        for k,x in enumerate(ins):
            if pad[k]:
                out.append(f"s_nop {pad[k]-1}"); added+=1
                if verbose: print(f"nop {pad[k]} before: {x.text}", file=sys.stderr)
            out.append(x.text)
        if check: check_counters(ins, labels)
        if align: out=align_pass(out)
        return "\n".join(("" if l.endswith(":") else "    ")+l for l in out)+"\n"

WAIT_RE=re.compile(r'(vmcnt|lgkmcnt)\((\d+)\)')
def check_counters(ins, labels, limit=400000):
    errs=set(); seen=set(); stack=[(0,(),())]; steps=0
    starts=[k for k,x in enumerate(ins) if x.label and x.label.endswith("_kernel")]
    stack=[(k,(),()) for k in (starts or [0])]
    while stack:
        k,vm,lg=stack.pop()
        while k<len(ins):
            x=ins[k]; steps+=1
            if steps>limit*50: print("counter check: gave up", file=sys.stderr); return
            if x.kind=="label":
                key=(k,vm,lg)
                if key in seen: break
                seen.add(key)
                if len(seen)>limit: print("counter check: too many states", file=sys.stderr); return
            if x.nstates:
                touch=x.uses|x.defs
                isload_v = x.kind=="vmem";
                for q,same in ((vm,x.kind=="vmem"),(lg,x.kind=="ds")):
                    for (j) in q:
                        d=ins[j].defs
                        if not d: continue
                        t = x.uses if (same and ins[j].kind==x.kind) else touch
                        if d & t and "nochk" not in x.text: errs.add((j,k))
                if x.op=="s_waitcnt":
                    for nm,n in WAIT_RE.findall(x.text.split(";")[0]):
                        n=int(n)
                        if nm=="vmcnt": vm=vm[len(vm)-n:] if n and len(vm)>n else (vm if n else ())
                        else:
                            if n==0: lg=()
                            else:
                                dsl=[j for j in lg if ins[j].kind=="ds"][-n:]
                                lg=tuple(j for j in lg if ins[j].kind=="smem" or j in dsl)
                elif x.kind=="vmem": vm=(vm+(k,))[-64:]
                elif x.kind in("ds","smem"): lg=(lg+(k,))[-40:]
                elif x.kind=="branch":
                    if x.op=="s_branch": k=labels[x.target]; continue
                    stack.append((labels[x.target],vm,lg))
                elif x.op=="s_endpgm" or x.kind=="jump": break
            k+=1
    for j,k in sorted(errs)[:40]:
        print(f"COUNTER HAZARD: [{j}] {ins[j].text}  ->  [{k}] {ins[k].text}", file=sys.stderr)
    if errs: raise SystemExit("counter hazards found")


import subprocess, tempfile, os
def sizes_of(lines):
    uniq={}
    for l in lines:
        t=l.split(";")[0].strip()
        if not t or t.endswith(":") or t.startswith("."): continue
        op=t.split()[0]
        if op.startswith(("s_branch","s_cbranch")): uniq[t]=4; continue
        uniq.setdefault(t,None)
    todo=[t for t,v in uniq.items() if v is None]
    r=subprocess.run(["llvm-mc","-triple=amdgcn-amd-amdhsa","-mcpu=gfx950","-show-encoding"],input="\n".join(todo)+"\n",capture_output=True,text=True)
    enc=[x for x in r.stdout.split("\n") if "encoding:" in x]
    if len(enc)!=len(todo): raise SystemExit("llvm-mc failed: "+r.stderr[:2000])
    for t,e in zip(todo,enc): uniq[t]=e.split("encoding:")[1].count("0x")
    return [uniq.get(l.split(";")[0].strip(),0) for l in lines]

PROMOTE=("v_mov_b32","v_add_f32","v_sub_f32","v_mul_f32","v_max_f32","v_min_f32","v_exp_f32","v_rcp_f32","v_and_b32","v_or_b32","v_xor_b32","v_add_u32","v_sub_u32","v_subrev_u32",
         "v_lshlrev_b32","v_lshrrev_b32","v_cmp_eq_u32","v_cmp_ne_u32","v_cmp_f_u32","v_fmac_f32","v_max_u32","v_min_u32","v_rsq_f32")
def align_pass(lines):
    sz=sizes_of(lines); out=list(lines); pos=0; cand=None; left=0
    for k,l in enumerate(lines):
        t=l.split(";")[0].strip()
        if t.startswith(".p2align"):
            al=1<<int(t.split()[1].rstrip(",")); pos=(pos+al-1)//al*al; cand=None; continue
        if t.endswith("_kernel:"): pos=0; cand=None
        if not sz[k]: continue
        if pos%32==0: cand=None
        if sz[k]==8 and pos%32==28:
            if cand is not None:
                p=out[cand].split(None,1); out[cand]=p[0]+"_e64 "+p[1]; pos+=4
            else: left+=1
            cand=None
        elif sz[k]==4 and t.split()[0] in PROMOTE: cand=k
        pos+=sz[k]
    return out
```

```python
from wk import *
FR=Frags(128)
sCg,sTask,sOo,sXo="s25","s26","s27","s28"
vL16,vXa,vTr,vWa,vWb,vRed="v1","v2","v3","v4","v5","v6"
WST=16384
fi=lambda t,ks: t*32+ks
def load_w(a):
    srd(a,sA,P_WO,4718592)
    tr_addr(a,vTr,"v10","v11",WST)
    a(f"""
    v_bfe_u32 v10, v0, 2, 2                ; kk&3
    v_bfe_u32 v11, v0, 4, 1
    v_lshl_add_u32 v10, v11, 4, v10
    v_lshrrev_b32 v11, 5, v0
    v_lshl_add_u32 v10, v11, 2, v10        ; row
    v_mul_u32_u24 v10, 1152, v10
    v_and_b32 v11, 3, v0
    v_lshl_add_u32 {vWa}, v11, 4, v10
    v_bfe_u32 v11, v0, 1, 1
    v_mul_u32_u24 v11, {64*1152}, v11
    v_and_b32 v12, 1, v0
    v_lshl_add_u32 v11, v12, 4, v11
    v_add_u32 {vWb}, v10, v11
    s_mul_i32 {T2}, {sW}, {1024*1152}
    s_mul_i32 {T1}, {sCg}, 96
    s_add_u32 {T2}, {T2}, {T1}
    """)
    blocks=[]
    for hh in range(8):
        for hf in range(2):
            blocks.append(([(vWa,sA,T2,(128*hh+64*hf+32*(i>>1)+8*(i&1))*1152,16) for i in range(4)],[(t,)+FR.reg(fi(t,4*hh+2*hf)) for t in range(2)]))
        blocks.append(([(vWb,sA,T2,(128*hh+32*(i>>1)+8*(i&1))*1152+64,16) for i in range(4)],[(hf,)+FR.reg(fi(2,4*hh+2*hf)) for hf in range(2)]))
    load_blocks(a,blocks,WST,vTr)
def consts(a):
    a(f"""
    v_lshlrev_b32 {vL16}, 4, v0
    v_and_b32 v10, 15, v0
    v_mul_u32_u24 v10, 1152, v10
    v_lshrrev_b32 v11, 4, v0
    v_lshl_add_u32 {vXa}, v11, 3, v10
    s_mul_i32 {T0}, {sW}, 3072
    v_add_u32 {vRed}, {T0}, {vL16}
    """)
ACC=16; RING=32; NR=23; XR=28
def resid(a, y, x, t):
    for i in range(2):
        a(f"""v_lshlrev_b32 v{t}, 16, v{x+i}
        v_and_b32 v{t+1}, 0xffff0000, v{x+i}
        v_add_f32 v{t}, v{t}, v{y+2*i}
        v_add_f32 v{t+1}, v{t+1}, v{y+2*i+1}
        v_cvt_pk_bf16_f32 v{y+i}, v{t}, v{t+1}""")
def task(a, lo):
    a(f"""s_lshl_b32 {sOo}, {sTask}, 17
    s_lshl_b32 {T0}, {sW}, 15
    s_add_u32 {sOo}, {sOo}, {T0}
    s_add_u32 {sOo}, {sOo}, {lo+OFF_O}
    s_mul_i32 {sXo}, {sTask}, {16*1152}
    s_mul_i32 {T0}, {sCg}, 96
    s_add_u32 {sXo}, {sXo}, {T0}
    s_lshl_b32 {T0}, {sW}, 5
    s_add_u32 {sXo}, {sXo}, {T0}
    buffer_load_dwordx2 v[{XR}:{XR+1}], {vXa}, {sX}, {sXo} offen sc1""")
    def ld(ks):
        if ks%4==0: a(f"s_add_u32 {T1}, {sOo}, {1024*ks}")
        a(f"buffer_load_dwordx4 {q(RING+4*(ks%NR))}, {vL16}, {sWS}, {T1} offen offset:{1024*(ks%4)} sc1")
    for ks in range(NR): ld(ks)
    for ks in range(32):
        a(f"s_waitcnt vmcnt({min(32,ks+NR)-ks-1})")
        for t in range(3):
            d=q(ACC+4*t); a(mf(d,FR.op(fi(t,ks)),q(RING+4*(ks%NR)),d if ks else 0))
        if ks+NR<32: ld(ks+NR)
    a("s_barrier")
    for t in range(3): a(f"ds_write_b128 {vRed}, {q(ACC+4*t)} offset:{1024*t}")
    sk=a.lab("awo_skip")
    a(f"s_lshl_b32 {T0}, {sW}, 10\nv_add_u32 v10, {T0}, {vL16}\ns_add_u32 {T1}, {sXo}, {lo+OFF_X1}\ns_cmp_eq_u32 {sW}, 3\ns_waitcnt lgkmcnt(0)\ns_barrier\ns_cbranch_scc1 {sk}")
    for w in range(4): a(f"ds_read_b128 {q(RING+4*w)}, v10 offset:{3072*w}")
    a("s_waitcnt lgkmcnt(0)")
    for i in range(4): a(f"v_add_f32 v{RING+i}, v{RING+i}, v{RING+4+i}\nv_add_f32 v{RING+8+i}, v{RING+8+i}, v{RING+12+i}")
    for i in range(4): a(f"v_add_f32 v{RING+i}, v{RING+i}, v{RING+8+i}")
    resid(a,RING,XR,RING+4)
    a(f"buffer_store_dwordx2 v[{RING}:{RING+1}], {vXa}, {sWS}, {T1} offen sc1")
    a(f"{sk}:")
```

```python
from wk import *
sHd,sJ,sKm,sKr,sV,sQm,sQr,sIt,sQb,sLlo="s25","s26","s27","s28","s29","s30","s31","s32","s33","s34"
VM="s[40:41]"
vL16,vQm,vQr,vKm,vKr,vV,vOr,vMg="v1","v2","v3","v4","v5","v6","v7","v8"
S=[32,48]; P=64; KV=[72,88]; QB=104
def m32(d,A,B,C): return f"v_mfma_f32_32x32x16_bf16 {d}, {A}, {B}, {C}"
def consts(a, lo):
    a(f"""
    v_lshlrev_b32 {vL16}, 4, v0
    v_and_b32 v10, 31, v0                  ; m
    v_lshrrev_b32 v11, 5, v0               ; hi
    v_lshlrev_b32 v12, 4, v11
    v_lshl_add_u32 {vQm}, v10, 5, v12
    v_lshlrev_b32 {vQr}, 3, v10
    v_lshl_add_u32 {vV}, v10, 6, v12
    v_lshlrev_b32 {vOr}, 2, v10
    v_and_b32 v13, 7, v10                  ; 4hi' + r
    v_bfe_u32 v14, v10, 3, 1
    v_lshl_add_u32 v13, v14, 4, v13
    v_lshrrev_b32 v14, 4, v10
    v_lshl_add_u32 v13, v14, 3, v13
    v_lshl_add_u32 {vKm}, v13, 5, v12
    v_lshlrev_b32 v13, 3, v13
    v_lshl_add_u32 {vKr}, v11, 30, v13
    s_mul_i32 {T0}, {sW}, 3072
    v_add_u32 {vMg}, {T0}, {vL16}
    s_mov_b32 s40, 0x3ffff
    s_mov_b32 s41, 0x3ffff
    s_lshl_b32 {T0}, {sHd}, 16
    s_add_u32 {sQm}, {T0}, {lo+OFF_BQ}
    s_lshr_b32 {T0}, {sHd}, 1
    s_lshl_b32 {T0}, {T0}, 14
    s_and_b32 {T1}, {sHd}, 1
    s_lshl_b32 {T1}, {T1}, 2
    s_add_u32 {T0}, {T0}, {T1}
    s_add_u32 {sQr}, {T0}, {lo+OFF_BQR}
    s_mov_b32 {sLlo}, {(127-60)<<23}
    """)
    for b in KV:
        for i in (4,5,7): a(f"v_mov_b32 v{b+i}, 0")
        for i in range(8,16): a(f"v_mov_b32 v{b+i}, 0x3f803f80")
def kv_ptr(a, lo, kb):
    a(f"""s_lshl_b32 {T0}, {kb}, 10
    s_add_u32 {sKm}, {sQm}, {T0}
    s_add_u32 {sKm}, {sKm}, {OFF_BK-OFF_BQ}
    s_lshl_b32 {T0}, {kb}, 8
    s_add_u32 {sKr}, {sQr}, {T0}
    s_add_u32 {sKr}, {sKr}, {OFF_BKR-OFF_BQR}
    s_mul_i32 {T0}, {kb}, {576*64}
    s_mul_i32 {T1}, {sHd}, {18*64}
    s_add_u32 {T0}, {T0}, {T1}
    s_add_u32 {sV}, {T0}, {lo+OFF_BV}""")
def kv_load(b, step):
    return [f"buffer_load_dwordx4 {q(b)}, {vKm}, {sWS}, {sKm} offen sc1", f"buffer_load_dword v{b+6}, {vKr}, {sWS}, {sKr} offen sc1",
            f"s_mov_b64 exec, {VM}\nbuffer_load_dwordx4 {q(b+8)}, {vV}, {sWS}, {sV} offen sc1\ns_mov_b64 exec, -1",
            f"s_mov_b64 exec, {VM}\nbuffer_load_dwordx4 {q(b+12)}, {vV}, {sWS}, {sV} offen offset:32 sc1\ns_mov_b64 exec, -1",
            f"s_add_u32 {sKm}, {sKm}, {1024*step}", f"s_add_u32 {sKr}, {sKr}, {256*step}", f"s_add_u32 {sV}, {sV}, {576*64*step}"]
def q_load(a, r, qb):
    a(f"""s_lshl_b32 {T0}, {qb}, 10
    s_add_u32 {T0}, {T0}, {sQm}
    s_lshl_b32 {T1}, {qb}, 8
    s_add_u32 {T1}, {T1}, {sQr}
    buffer_load_dwordx4 {q(r)}, {vQm}, {sWS}, {T0} offen sc1
    buffer_load_dword v{r+4}, {vQr}, {sWS}, {T1} offen sc1
    v_mov_b32 v{r+5}, 0""")
def qk(s,b,r,C=0): return [m32(q(s,16),q(b),q(r),C), m32(q(s,16),q(b+4),q(r+2),q(s,16))]
def quarter(s,i): return [f"v_exp_f32 v{s+4*i+j}, v{s+4*i+j}" for j in range(4)]+[cv(P+2*i,s+4*i,s+4*i+1),cv(P+2*i+1,s+4*i+2,s+4*i+3)]
def run(a, lo, NQ, J, lrange=120<<23):
    L=lambda s: a.lab("ba_"+s)
    assert NQ%2==0
    kv_ptr(a,lo,sW)
    for x in kv_load(KV[0],4): a(x)
    for i in range(NQ):
        a(f"s_add_u32 {T2}, {sJ}, {J*i}\ns_min_u32 {T2}, {T2}, 63"); q_load(a,QB+6*i,T2)
    for i in range(16*NQ): a(f"v_accvgpr_write_b32 a{i}, 0")
    for i in range(4,8): a(f"v_mov_b32 v{P+i}, 0")
    a(f"s_mov_b32 {sIt}, 0\ns_waitcnt vmcnt(0)")
    for x in qk(S[0],KV[0],QB): a(x)
    O=lambda i: q(16*i,16,"a")
    lp=L("loop"); a(f"{lp}:")
    for half in range(2):
        b=KV[half]; nb=KV[half^1]; ld=kv_load(nb,4)
        for i in range(NQ):
            s=S[i&1]; ns=S[(i+1)&1]
            last=i==NQ-1
            nq=qk(ns,nb if last else b,QB+6*((i+1)%NQ))
            pv1=m32(O((i-1)%NQ),q((nb if i==0 else b)+12),q(P+4),O((i-1)%NQ)); pv0=m32(O(i),q(b+8),q(P),O(i))
            if last: a("s_waitcnt vmcnt(0)")
            for k,mm in enumerate((nq[0],nq[1],pv1,pv0)):
                a(mm)
                if i>=1 and ld: a(ld.pop(0))
                for x in quarter(s,k): a(x)
    a(f"s_add_u32 {sIt}, {sIt}, 1\ns_cmp_lt_u32 {sIt}, 8\ns_cbranch_scc1 {lp}")
    a(m32(O(NQ-1),q(KV[1]+12),q(P+4),O(NQ-1)))
    a(f"v_add_u32 v10, 0xf000, {vMg}\ns_barrier")
    for i in range(NQ):
        for t in range(3): a(f"ds_write_b128 {vMg if i<5 else 'v10'}, a[{16*i+4*t}:{16*i+4*t+3}] offset:{(i%5)*12288+1024*t}")
    a(f"s_mov_b32 {sIt}, {sW}\ns_waitcnt lgkmcnt(0)\ns_barrier")
    fin,done,slow,norm=L("fin"),L("done"),L("slow"),L("norm")
    R=160
    a(f"""{fin}:
    s_mul_i32 {sQb}, {sIt}, {J}
    s_add_u32 {sQb}, {sQb}, {sJ}
    s_cmp_ge_u32 {sQb}, 64
    s_cbranch_scc1 {done}
    s_mul_i32 {T0}, {sIt}, 12288
    v_add_u32 v10, {T0}, {vL16}""")
    for k in range(12): a(f"ds_read_b128 {q(R+4*k)}, v10 offset:{1024*k}")
    a("s_waitcnt lgkmcnt(0)")
    for i in range(11): a(f"v_add_f32 v{R+i}, v{R+i}, v{R+12+i}\nv_add_f32 v{R+24+i}, v{R+24+i}, v{R+36+i}")
    for i in range(11): a(f"v_add_f32 v{R+i}, v{R+i}, v{R+24+i}")
    a(f"""v_mov_b32 v{R+11}, v{R+10}
    v_permlane32_swap_b32 v{R+10}, v{R+11}
    v_subrev_u32 v{R+12}, {sLlo}, v{R+10}
    v_cmp_lt_u32 vcc, {hex(lrange)}, v{R+12}
    s_cbranch_vccnz {slow}
    {norm}:
    v_rcp_f32 v{R+10}, v{R+10}
    s_lshl_b32 {T0}, {sQb}, 10
    s_add_u32 {T0}, {T0}, {sQm}
    s_add_u32 {T0}, {T0}, {OFF_BO-OFF_BQ}
    s_lshl_b32 {T1}, {sHd}, 6
    s_add_u32 {T1}, {T1}, {sQb}
    s_lshl_b32 {T1}, {T1}, 7
    s_add_u32 {T1}, {T1}, {lo+OFF_BOR}""")
    for i in range(10): a(f"v_mul_f32 v{R+i}, v{R+i}, v{R+10}")
    for i in range(5): a(cv(R+i,R+2*i,R+2*i+1))
    a(f"""buffer_store_dwordx4 {q(R)}, {vQm}, {sWS}, {T0} offen sc1
    s_mov_b64 exec, 0xffffffff
    buffer_store_dword v{R+4}, {vOr}, {sWS}, {T1} offen sc1
    s_mov_b64 exec, -1
    s_add_u32 {sIt}, {sIt}, 4
    s_cmp_lt_u32 {sIt}, {NQ}
    s_cbranch_scc1 {fin}
    s_branch {done}""")
    p1,p2=L("p1"),L("p2"); s=S[0]; CM=S[1]; b=KV[0]; mx=R+16
    a(f"{slow}:"); q_load(a,QB,sQb); kv_ptr(a,lo,0)
    a(f"v_mov_b32 v{mx}, 0xff800000\ns_mov_b32 {T2}, 0\n{p1}:")
    for x in kv_load(b,1): a(x)
    a("s_waitcnt vmcnt(0)")
    for x in qk(s,b,QB): a(x)
    for i in range(0,16,2): a(f"v_max3_f32 v{mx}, v{mx}, v{s+i}, v{s+i+1}")
    a(f"""s_add_u32 {T2}, {T2}, 1
    s_cmp_lt_u32 {T2}, 64
    s_cbranch_scc1 {p1}
    v_mov_b32 v{mx+1}, v{mx}
    v_permlane32_swap_b32 v{mx}, v{mx+1}
    v_max_f32 v{mx}, v{mx}, v{mx+1}""")
    for i in range(16): a(f"v_sub_f32 v{CM+i}, 0, v{mx}\nv_mov_b32 v{R+i}, 0")
    kv_ptr(a,lo,0); a(f"s_mov_b32 {T2}, 0\n{p2}:")
    for x in kv_load(b,1): a(x)
    a("s_waitcnt vmcnt(0)")
    for x in qk(s,b,QB,q(CM,16)): a(x)
    for k in range(4):
        for x in quarter(s,k): a(x)
    a(m32(q(R,16),q(b+8),q(P),q(R,16))); a(m32(q(R,16),q(b+12),q(P+4),q(R,16)))
    a(f"""s_add_u32 {T2}, {T2}, 1
    s_cmp_lt_u32 {T2}, 64
    s_cbranch_scc1 {p2}
    v_mov_b32 v{R+11}, v{R+10}
    v_permlane32_swap_b32 v{R+10}, v{R+11}
    s_branch {norm}
    {done}:""")
```

```python
from wk import *
import a1
from a1 import vSrc,vRaw,vDst,vRd,vL16,vTr,RAW,WST,sSeg,sSrc
FR=Frags(80)
sU,sQb,sStr="s25","s28","s29"
vQst,vWa,vWb,vVst="v6","v8","v80","v9"
fi=lambda m,k: m*18+k
def load_w(a):
    srd(a,sA,P_BQKV,576*3456)
    tr_addr(a,vTr,"v12","v13",WST)
    lr,le=a.lab("bq_rem"),a.lab("bq_e")
    a(f"""
    s_lshl_b32 {sU}, {sU}, 2
    s_add_u32 {sU}, {sU}, {sW}
    v_lshrrev_b32 v12, 4, v0
    v_mul_u32_u24 v12, 3456, v12
    v_bfe_u32 v13, v0, 3, 1
    v_mul_u32_u24 v13, 1152, v13
    v_add_u32 v12, v12, v13
    v_and_b32 v13, 7, v0
    v_and_b32 v14, 15, v0
    v_lshrrev_b32 v15, 4, v0
    v_lshlrev_b32 v11, 4, v15
    v_lshl_add_u32 {vVst}, v14, 6, v11
    s_cmp_ge_u32 {sU}, 32
    s_cbranch_scc1 {lr}
    v_lshl_add_u32 {vWa}, v13, 2, v12
    s_mul_i32 {T2}, {sU}, 36
    v_lshlrev_b32 v15, 3, v15
    v_lshl_add_u32 {vQst}, v14, 5, v15
    s_lshl_b32 {sQb}, {sU}, 16
    s_add_u32 {sQb}, {sQb}, {OFF_BQ}
    s_mov_b32 {sStr}, 512
    s_branch {le}
    {lr}:
    v_mul_u32_u24 v13, 36, v13
    v_add_u32 {vWa}, v13, v12
    s_sub_u32 {T1}, {sU}, 32
    s_mul_i32 {T2}, {T1}, 288
    s_add_u32 {T2}, {T2}, 32
    v_lshlrev_b32 v15, 14, v15
    v_lshl_add_u32 {vQst}, v14, 3, v15
    s_lshl_b32 {sQb}, {T1}, 16
    s_add_u32 {sQb}, {sQb}, {OFF_BQR}
    s_mov_b32 {sStr}, 128
    {le}:
    v_lshrrev_b32 v12, 2, v0
    v_bfe_u32 v13, v0, 1, 1
    v_lshl_add_u32 v12, v13, 6, v12
    v_mul_u32_u24 v12, 3456, v12
    v_and_b32 v13, 1, v0
    v_lshl_add_u32 {vWb}, v13, 4, v12
    s_lshl_b32 {T1}, {sU}, 5
    """)
    blocks=[]
    for b in range(9):
        blocks.append(([(vWa,sA,T2,(64*b+4*i)*3456,4) for i in range(16)],[(t,)+FR.reg(fi(t,2*b)) for t in range(2)]))
    for b in range(0,9,2):
        blocks.append(([(vWb,sA,T1,(64*b+16*i)*3456+2304,16) for i in range(4)],[(hf,)+FR.reg(fi(2,2*(b+hf))) for hf in range(2) if b+hf<9]))
    load_blocks(a,blocks,WST,vTr)
ACC=16; XB=64
assert OFF_BK-OFF_BQ==2*MB and OFF_BKR-OFF_BQR==MB
def segment(a, lo, nxt):
    a("s_waitcnt vmcnt(0)")
    ln_stage(a,vRaw,vDst,ACC,pre_write=lambda: a("s_barrier"))
    a("s_waitcnt lgkmcnt(0)\ns_barrier")
    nxt()
    acc=lambda m,T: ACC+(2*m+T)*4
    rd=lambda k: [f"ds_read_b128 {q(XB+(k&1)*8+4*T)}, {vRd} offset:{xfrag(k,T)}" for T in range(2)]
    for x in rd(0): a(x)
    for k in range(18):
        pend=rd(k+1) if k<17 else []
        a("s_waitcnt lgkmcnt(0)")
        for m in range(3):
            for T in range(2):
                d=q(acc(m,T)); W=FR.op(fi(m,k)); X=q(XB+(k&1)*8+4*T)
                a(mf(d,X,W,d if k else 0) if m==2 else mf(d,W,X,d if k else 0))
                if pend: a(pend.pop(0))
    a(f"""s_mul_i32 {T0}, {sSeg}, {sStr}
    s_lshl_b32 {T0}, {T0}, 1
    s_add_u32 {T0}, {T0}, {sQb}
    s_add_u32 {T0}, {T0}, {lo}
    s_cmp_ge_u32 {sU}, 32
    s_cselect_b32 {T2}, 1, 2
    s_lshl_b32 {T2}, {T2}, 20""")
    for i in range(8): a(f"v_mul_f32 v{ACC+i}, {hex(f2u(18**-0.5*math.log2(math.e)))}, v{ACC+i}")
    for m in range(2):
        for T in range(2):
            d=acc(m,T); a(cv(d,d,d+1)); a(cv(d+1,d+2,d+3))
            if T: a(f"s_add_u32 {T1}, {T0}, {sStr}")
            a(f"buffer_store_dwordx2 v[{d}:{d+1}], {vQst}, {sWS}, {T1 if T else T0} offen sc1")
        if m==0: a(f"s_add_u32 {T0}, {T0}, {T2}")
    d=acc(2,0)
    for i in range(4): a(cv(d+i,d+2*i,d+2*i+1))
    a(f"""s_mul_i32 {T0}, {sSeg}, 36
    s_add_u32 {T0}, {T0}, {sU}
    s_lshl_b32 {T0}, {T0}, 10
    s_add_u32 {T0}, {T0}, {lo+OFF_BV}
    buffer_store_dwordx4 {q(d)}, {vVst}, {sWS}, {T0} offen sc1""")
```

```python
from wk import *
from awo import resid
FR=Frags(128)
sCg,sSeg,sXo="s25","s26","s28"
vL16,vXa,vTr,vWa,vWb,vWc,vOm,vOr="v1","v2","v3","v4","v5","v6","v7","v8"
WST=81920
fi=lambda t,k: t*18+k
def load_w(a):
    srd(a,sA,P_BWO,576*1152)
    tr_addr(a,vTr,"v10","v11",WST)
    a(f"""
    v_bfe_u32 v10, v0, 2, 2
    v_bfe_u32 v11, v0, 4, 1
    v_lshl_add_u32 v10, v11, 3, v10
    v_lshrrev_b32 v11, 5, v0
    v_lshl_add_u32 v10, v11, 2, v10
    v_mul_u32_u24 v10, 1152, v10
    v_and_b32 v11, 3, v0
    v_lshlrev_b32 v11, 4, v11
    v_add_u32 {vWa}, v11, v10
    v_bfe_u32 v12, v0, 1, 1
    v_mul_u32_u24 v12, {72*1152}, v12
    v_and_b32 v13, 1, v0
    v_lshl_add_u32 v12, v13, 4, v12
    v_add_u32 {vWb}, v10, v12
    v_lshrrev_b32 v12, 3, v0
    v_mul_u32_u24 v12, 18, v12
    v_bfe_u32 v13, v0, 2, 1
    v_add_u32 v12, v12, v13
    v_mul_u32_u24 v12, 1152, v12
    v_add_u32 {vWc}, v11, v12
    s_lshl_b32 {T2}, {sCg}, 2
    s_add_u32 {T2}, {T2}, {sW}
    s_mul_i32 {T2}, {T2}, 96
    """)
    blocks=[]
    for b in range(8): blocks.append(([(vWa,sA,T2,(72*b+18*i)*1152,16) for i in range(4)],[(t,)+FR.reg(fi(t,2*b)) for t in range(2)]))
    for b in range(0,8,2): blocks.append(([(vWb,sA,T2,(72*b+18*i)*1152+64,16) for i in range(4)],[(hf,)+FR.reg(fi(2,2*(b+hf))) for hf in range(2)]))
    blocks.append(([(vWc,sA,T2,(144*i+16)*1152,16) for i in range(4)],[(t,)+FR.reg(fi(t,16)) for t in range(2)]))
    blocks.append(([(vWc,sA,T2,(144*i+16)*1152+64,16) for i in range(4)],[(0,)+FR.reg(fi(2,16))]))
    load_blocks(a,blocks,WST,vTr)
def consts(a):
    a(f"""
    v_lshlrev_b32 {vL16}, 4, v0
    v_and_b32 v10, 15, v0
    v_lshrrev_b32 v11, 4, v0
    v_mul_u32_u24 v12, 1152, v10
    v_lshl_add_u32 {vXa}, v11, 3, v12
    v_lshlrev_b32 v12, 2, v10
    v_lshl_add_u32 {vOr}, v11, 15, v12
    v_lshlrev_b32 v12, 5, v10
    v_and_b32 v13, 1, v11
    v_lshl_add_u32 v12, v13, 4, v12
    v_lshrrev_b32 v13, 1, v11
    v_lshl_add_u32 {vOm}, v13, 16, v12
    """)
ACC=16; XB=40; RM=56; XR=72
def task(a, lo, dst, dst_off, fl):
    a(f"""s_lshl_b32 {T1}, {sSeg}, 10
    s_lshl_b32 {T0}, {sW}, 19
    s_add_u32 {T1}, {T1}, {T0}
    s_lshl_b32 {T2}, {sW}, 13
    s_barrier""")
    for i in range(8):
        a(f"s_add_u32 {T0}, {T1}, {lo+OFF_BO+(i>>1)*131072+(i&1)*512}\ns_add_u32 m0, {T2}, {1024*i}\nbuffer_load_dwordx4 {vOm}, {sWS}, {T0} offen sc1 lds")
    a(f"s_lshl_b32 {T1}, {sSeg}, 7")
    for k in range(2):
        for i in range(4):
            a(f"s_add_u32 {T0}, {T1}, {lo+OFF_BOR+(16*k+i)*8192}")
            for T in range(2): a(f"buffer_load_dword v{RM+8*k+4*T+i}, {vOr}, {sWS}, {T0} offen offset:{64*T} sc1")
    a(f"""s_mul_i32 {sXo}, {sSeg}, {32*1152}
    s_lshl_b32 {T0}, {sCg}, 2
    s_add_u32 {T0}, {T0}, {sW}
    s_mul_i32 {T0}, {T0}, 96
    s_add_u32 {sXo}, {sXo}, {T0}
    s_add_u32 {T1}, {sXo}, {16*1152}""")
    for T in range(2):
        for t in range(3): a(f"buffer_load_dwordx2 v[{XR+6*T+2*t}:{XR+6*T+2*t+1}], {vXa}, {sX}, {(sXo,T1)[T]} offen offset:{32*t} sc1")
    a("s_waitcnt vmcnt(22)\ns_barrier")
    rd=lambda k: [f"ds_read_b128 {q(XB+(k&1)*8+4*T)}, {vL16} offset:{(2*k+T)*1024}" for T in range(2)]
    for x in rd(0): a(x)
    for k in range(18):
        pend=rd(k+1) if k<15 else []
        if k<16: a("s_waitcnt lgkmcnt(0)")
        if k==16: a("s_waitcnt vmcnt(0)")
        for t in range(3):
            for T in range(2):
                d=q(ACC+(2*t+T)*4); X=q(XB+(k&1)*8+4*T) if k<16 else q(RM+8*(k-16)+4*T)
                a(mf(d,FR.op(fi(t,k)),X,d if k else 0))
                if pend: a(pend.pop(0))
    a(f"s_add_u32 {T0}, {sXo}, {dst_off}\ns_add_u32 {T1}, {T0}, {16*1152}")
    for t in range(3):
        for T in range(2):
            d=ACC+(2*t+T)*4; resid(a,d,XR+6*T+2*t,XB)
            a(f"buffer_store_dwordx2 v[{d}:{d+1}], {vXa}, {dst}, {(T0,T1)[T]} offen offset:{32*t} {fl}")
```

```python
from asmgen import Asm
from layout import *
import math, struct

def f2u(x): return struct.unpack("<I", struct.pack("<f", x))[0]

vL16, vL8, vPsc, vW, vXr, vIdx, vPst, vMst, vAux, vOa = [f"v{i}" for i in range(10)]
vOr = "v10"
MEM0 = 12
POOL = 48
WV0 = 88
def q(base, n=4): return f"v[{base}:{base+n-1}]"
def m(k): return MEM0+4*k
def p(i): return POOL+i
LW = 19*2048
L_SCR = 0
L_W0 = 8192
L_PM = 0
L_PX = 512
L_SEL = 1024
L_O = 2048
L_XS = 4096
BIAS = 0
sWS = "s[8:11]"
sH, sSeg, sPar, sM0, sM1, sM2, sMst, sMpo, sKV, sPub, sPA, sPB, sPC, sPld, sCnt, sT0, sT1, sSlot, sC, sLayer, sFlg, sTch = [f"s{i}" for i in range(24,46)]
sK, sPubX, sLlo, sC2, sHint, sSig = "s56","s57","s58","s[22:23]","s59","s20"
sPld1 = sTch; sPA1, sPB1 = sSlot, sFlg; sMtc = sTch; sMst1 = sMpo
sOne = "s18"; sDis = "s19"; sRdy2 = "s[16:17]"
sHalf1 = "s[46:47]"; sHalf0 = "s[48:49]"; sRdy="s[50:51]"
import os
NREP = int(os.environ.get('NREP',2))
SPIN_MAX = 2000000

KORDER = [8,0,1,2,3,4,5,6,7]
def kap(k): return (k+1)%9

class Plan:
    def __init__(self, w):
        self.loc={}
        qk=[]
        for j,k in enumerate(KORDER[:7]):
            qk+=[("q",0,k),("k",0,k),("q",1,k),("k",1,k)]
            if j<2: qk+=[("v",0,k),("v",1,k)]
        ka,kb=KORDER[7:]
        qk+=[("q",0,ka),("q",1,ka),("q",0,kb),("q",1,kb),("k",0,ka),("k",0,kb),("k",1,ka),("k",1,kb)]
        vv=[("v",t,k) for k in KORDER[2:] for t in range(2)]
        oth=[x for x in range(4) if x!=w]
        self.oth=oth
        pairs=[("A",0),("A",1),("B",0),("B",1)]
        self.wo1=[("o",ty,pi,w) for ty,pi in pairs]
        self.wo2=[("o",ty,pi,x) for ty,pi in pairs for x in oth]
        woc=[("o","C",0),("o","C",1)]
        self.qk, self.vv = qk, vv
        self.qk_lds=list(range(0,37,3))
        self.wo_lds=[self.wo1[0],self.wo1[1],self.wo2[5],self.wo2[7],self.wo2[9],self.wo2[11]]
        slot=0
        for i in self.qk_lds: self.loc[qk[i]]=("l",slot); slot+=1
        for f in self.wo_lds: self.loc[f]=("l",slot); slot+=1
        r=0
        for f in qk+vv+self.wo1+self.wo2+woc:
            if f in self.loc: continue
            self.loc[f]=("a",8*r) if r<32 else ("v",WV0+8*(r-32)); r+=1
        assert r==53 and slot==19
    def reg(self,f):
        k,b=self.loc[f]; return f"{k}[{b}:{b+7}]"
    def regC(self,x):
        k,b=self.loc[("o","C",x>>1)]; b+=4*(x&1); return f"{k}[{b}:{b+3}]"
PLANS=[Plan(w) for w in range(4)]

def prologue_consts(a, w):
    a(f"""
    v_mov_b32 v10, v0
    v_and_b32 v11, 15, v10                 ; n
    v_lshrrev_b32 v12, 4, v10              ; g
    v_lshlrev_b32 v13, 4, v10
    v_add_u32 {vW}, {L_W0+w*LW}, v13
    v_add_u32 {vL16}, {BIAS}, v13
    v_lshlrev_b32 v13, 3, v10
    v_add_u32 {vL8}, {BIAS}, v13
    v_lshlrev_b32 v13, 2, v11
    v_lshl_add_u32 {vPsc}, v12, 11, v13
    v_and_b32 v13, 3, v10                  ; c = n&3
    v_lshrrev_b32 v14, 2, v10              ; l>>2 = 4g + r
    v_lshlrev_b32 v15, 7, v13
    v_lshl_add_u32 v15, v14, 3, v15
    v_add_u32 {vXr}, {BIAS}, v15
    v_and_b32 v15, 1, v10
    v_lshlrev_b32 v15, 4, v15
    v_lshl_add_u32 {vOa}, v14, 5, v15
    s_mov_b32 s46, 0xcccccccc
    s_mov_b32 s47, 0xcccccccc
    s_mov_b32 s48, 0x33333333
    s_mov_b32 s49, 0x33333333
    v_mov_b32 v15, 0x4444
    v_mov_b32 v16, 0xeeee
    v_cndmask_b32 {vIdx}, v15, v16, {sHalf1}
    v_lshrrev_b32 v15, 3, v11              ; n>>3
    v_lshl_add_u32 v15, v15, 2, v12
    v_lshlrev_b32 v15, 11, v15
    v_and_b32 v17, 7, v11
    v_lshl_add_u32 {vPst}, v17, 3, v15
    v_and_b32 v15, 2, v11                  ; 2half
    v_lshrrev_b32 v16, 1, v12              ; p
    v_add_u32 v15, v15, v16
    v_lshlrev_b32 v15, 4, v15
    v_and_b32 v16, 1, v11                  ; piece
    v_and_b32 v17, 1, v12                  ; g2
    v_lshl_add_u32 v16, v16, 1, v17
    v_lshl_add_u32 {vMst}, v16, 2, v15
    v_lshlrev_b32 {vAux}, 7, v10
    """)
    if w==0:
        a(f"""
        v_lshrrev_b32 v15, 2, v11              ; gamma
        v_and_b32 v16, 1, v15
        v_lshl_add_u32 v16, v16, 1, v13        ; tau = 2*g2 + r   (r = n&3)
        v_mov_b32 v17, 99
        v_cmp_gt_u32 vcc, 2, v13
        v_cndmask_b32 v16, v17, v16, vcc
        v_mov_b32 v17, 0x3f80
        v_mov_b32 v18, 0x3f800000
        v_cmp_lt_u32 vcc, 1, v15
        v_cndmask_b32 v17, v17, v18, vcc
        """)
        for t in range(4):
            a(f"v_cmp_eq_u32 vcc, {t}, v16\nv_cndmask_b32 v{20+t}, 0, v17, vcc")
        a(f"ds_write_b128 {vL16}, v[20:23] offset:{L_SEL-BIAS}")

def load_weights(a, w, srd):
    vA,vC,vO,vOC,vTr = "v11","v12","v13","v14","v15"
    T=80
    a(f"""
    v_and_b32 v16, 3, v10                  ; c
    v_lshlrev_b32 v21, 4, v16              ; c*16
    v_bfe_u32 v17, v10, 2, 1               ; i0
    v_bfe_u32 v18, v10, 3, 1               ; half
    v_bfe_u32 v19, v10, 4, 1               ; g2
    v_bfe_u32 v20, v10, 5, 1               ; piece
    v_lshl_add_u32 v17, v19, 1, v17        ; tau
    v_lshl_add_u32 v19, v18, 1, v20        ; 2half+piece
    v_bfe_u32 v22, v10, 2, 1               ; i0
    v_lshl_add_u32 v22, v22, 3, v19
    v_bfe_u32 v23, v10, 4, 1               ; g2
    v_lshl_add_u32 v22, v22, 1, v23
    v_lshl_add_u32 {vA}, v22, 13, v21
    v_lshl_add_u32 v22, v19, 2, v17
    v_lshl_add_u32 {vC}, v22, 13, v21
    v_lshl_add_u32 v22, v20, 4, v17        ; 16piece+tau
    v_mul_u32_u24 v23, 1152, v22
    v_lshrrev_b32 v24, 1, v16              ; t = c>>1
    v_and_b32 v25, 1, v16
    v_lshlrev_b32 v25, 4, v25              ; (c&1)*16
    v_lshl_add_u32 v22, v24, 3, v18        ; 8t+half
    v_lshl_add_u32 v22, v22, 5, v25
    v_add_u32 {vO}, v23, v22
    v_bfe_u32 v22, v10, 2, 2               ; kk&3
    v_bfe_u32 v23, v10, 4, 1
    v_lshl_add_u32 v22, v23, 4, v22
    v_lshl_add_u32 v22, v20, 2, v22
    v_lshl_add_u32 v22, v24, 6, v22
    v_mul_u32_u24 v22, 1152, v22
    v_add_u32 {vOC}, v22, v25
    v_lshrrev_b32 v22, 4, v10
    v_bfe_u32 v23, v10, 2, 2
    v_lshl_add_u32 v22, v22, 3, v23
    v_lshlrev_b32 v22, 6, v22
    v_lshl_add_u32 v22, v16, 3, v22
    v_add_u32 {vTr}, {L_W0+w*LW+11*2048}, v22
    s_lshl_b32 {sT0}, {sH}, 8
    s_mul_i32 {sT1}, {sH}, {128*1152}
    """)
    blocks=[]
    for k in KORDER:
        for mu in "qkv":
            blocks.append(([(mu,0,k),(mu,1,k)], srd[mu], vC if kap(k)==8 else vA, sT0,
                           [((64*kap(k)+(16*i if kap(k)==8 else 32*(i>>1)+8*(i&1)))*8192 + w*64) for i in range(4)]))
    for ty,b in (("A",0),("B",1)):
        for x in range(4):
            blocks.append(([("o",ty,0,x),("o",ty,1,x)], srd["o"], vO, sT1, [(32*x+4*i)*1152 + 512*b + 64*w for i in range(4)]))
    blocks.append(([("o","C",0),("o","C",1)], srd["o"], vOC, sT1, [(32*(i>>1)+8*(i&1))*1152+(512+16*w)*2 for i in range(4)]))
    assert len(blocks)==36
    NB=4
    def issue(bi):
        fr,s,va,sb,offs=blocks[bi]
        for i in range(4):
            a(f"s_add_u32 s60, {sb}, {offs[i]}")
            a(f"s_mov_b32 m0, {L_W0+w*LW+11*2048+(bi%NB)*4096+i*1024}")
            a(f"buffer_load_dwordx4 {va}, {s}, s60 offen lds")
    for bi in range(NB-1): issue(bi)
    for bi in range(36):
        if bi+NB-1<36:
            a("s_waitcnt lgkmcnt(0)")
            issue(bi+NB-1)
        left=min(36,bi+NB)-bi-1
        a(f"s_waitcnt vmcnt({4*left})")
        for t,f in enumerate(blocks[bi][0]):
            kind,b=PLANS[w].loc[f]
            if kind=="l":
                rk,rb=("v",T) if b<11 else ("v",16+8*(b-11))
            else: rk,rb=kind,b
            for qd in range(4):
                a(f"ds_read_b64_tr_b16 {rk}[{rb+2*qd}:{rb+2*qd+1}], {vTr} offset:{(bi%NB)*4096+t*32+(qd&1)*256+(qd>>1)*2048}")
            if kind=="l" and b<11:
                a("s_waitcnt lgkmcnt(0)")
                a(f"ds_write_b128 {vW}, v[{T}:{T+3}] offset:{b*2048}")
                a(f"ds_write_b128 {vW}, v[{T+4}:{T+7}] offset:{b*2048+1024}")
    a("s_waitcnt lgkmcnt(0)")
    for b in range(11,19):
        rb=16+8*(b-11)
        a(f"ds_write_b128 {vW}, v[{rb}:{rb+3}] offset:{b*2048}")
        a(f"ds_write_b128 {vW}, v[{rb+4}:{rb+7}] offset:{b*2048+1024}")
    a("s_waitcnt lgkmcnt(0)")

TW = 1
GROUPS = [[0],[1,4],[2],[3]]

def mso(i): return (sMst,sMst1)[i]
def store_mem0(a, w, srd_mem, lane):
    for i,g in enumerate(GROUPS[w]):
        a(f"""
        v_and_b32 v12, 3, {lane}               ; 2half+piece
        v_bfe_u32 v14, {lane}, 4, 1            ; g2
        v_lshrrev_b32 v13, 5, {lane}           ; p
        v_mul_u32_u24 v13, 1152, v13
        v_lshl_add_u32 v12, v12, 1, v14        ; 2(2half+piece)+g2
        v_lshl_add_u32 v13, v12, {2 if g==4 else 1}, v13
        s_and_b32 {sT0}, {sH}, 3
        s_mul_i32 {sT0}, {sT0}, {2*1152}
        """)
        if g<4:
            a(f"""s_lshr_b32 {sT1}, {sH}, 3
            s_lshl_b32 {sT1}, {sT1}, 6
            s_add_u32 {sT0}, {sT0}, {sT1}
            s_bfe_u32 {sT1}, {sH}, 0x10002
            s_lshl_b32 {sT1}, {sT1}, 4
            s_add_u32 {sT0}, {sT0}, {sT1}""")
        else:
            a(f"""s_lshr_b32 {sT1}, {sH}, 2
            s_lshl_b32 {sT1}, {sT1}, 5
            s_add_u32 {sT0}, {sT0}, {sT1}""")
        a(f"""buffer_load_ushort v14, v13, {srd_mem}, {sT0} offen offset:{256*g}
        buffer_load_ushort v15, v13, {srd_mem}, {sT0} offen offset:{256*g+(2 if g==4 else 32)}
        s_waitcnt vmcnt(0)
        v_lshl_or_b32 v{16+i}, v15, 16, v14
        v_min_u32 v{16+i}, -2, v{16+i}
        buffer_store_dword v{16+i}, {vMst}, {sWS}, {mso(i)} offen""")

def next_slots(w):
    return [f"s_add_u32 {x}, {x}, 0x4000" for x in [sM0,sM1,sM2,sMst]+([sMst1] if w==TW else [])+([sMtc] if w==3 else [])]

def mload(k, fl=""):
    b=kap(k); s=[sM0,sM1,sM2][b>>2]
    return f"buffer_load_dwordx4 {q(m(k))}, {vL16}, {sWS}, {s} offen offset:{(b&3)*1024} {fl}".rstrip()
def zero(base, n): return [f"v_mov_b32 v{base+i}, 0" for i in range(n)]
def delay(a, clks):
    n=clks//4
    while n>0:
        k=min(n,5); a("v_nop")
        if k>1: a(f"s_nop {k-2}")
        n-=k
def weave(v, o):
    v=list(v); o=list(o); r=[]
    while v or o:
        if v: r.append(v.pop(0))
        r.append(o.pop(0) if o else "s_nop 0")
    return r
def spin_guard(a, fail):
    a(f"s_add_u32 {sCnt}, {sCnt}, 1\ns_cmp_gt_u32 {sCnt}, {SPIN_MAX}\ns_cbranch_scc1 {fail}")
DPP="row_mask:0xf bank_mask:0xf"

def step_loop(a, w, cfg, hooks):
    P=PLANS[w]; L=lambda s: f"{hooks.get('prefix',f'ch{w}')}_{s}"
    def E(lst):
        for x in lst: a(x)
    def stage(buf,f):
        b=P.loc[f][1]
        return [f"ds_read_b128 {q(buf)}, {vW} offset:{b*2048}", f"ds_read_b128 {q(buf+4)}, {vW} offset:{b*2048+1024}"]
    def sm(acc,A,B): return f"v_smfmac_f32_16x16x64_bf16 {q(acc)}, {q(A)}, {B}, {vIdx}"
    def mf(d,A,B,C): return f"v_mfma_f32_16x16x32_bf16 {q(d)}, {A}, {B}, {C}"
    def fold(base,dst):
        return [f"v_add_f32 v{base}, v{base}, v{base+2}", f"v_add_f32 v{base+1}, v{base+1}, v{base+3}", f"v_cvt_pk_bf16_f32 v{dst}, v{base}, v{base+1}"]
    def younger(x, since):
        vm=[y for y in a.lines[since:] if y.startswith("buffer")]
        return len(vm)-1-max(k for k,y in enumerate(vm) if y==x)
    S0,S1=p(16),p(24); ST=[S0,S1]; VA=p(32)
    acc={("q",0):p(0),("q",1):p(4),("k",0):p(8),("k",1):p(12),("v",0):VA,("v",1):VA+4}
    KX=[m(8),m(0)]; VX=[S1,S1+4]
    fail=L("fail"); late=[]
    prep_qk=zero(p(0),16)+stage(S0,P.qk[P.qk_lds[0]])+stage(S1,P.qk[P.qk_lds[1]])
    a(f"{L('entry')}:")
    a(f"v_and_b32 {vOr}, 8, {vPsc}\nv_add_u32 {vOr}, {vOa}, {vOr}")
    E(prep_qk); E(zero(VA,8))
    NPRE=4
    for k in KORDER[:NPRE]: a(mload(k))
    a("s_waitcnt vmcnt(0)")
    if w==0: a(f"v_lshrrev_b32 v11, 2, {vL16}\nv_and_b32 v11, 127, v11")
    nm=0; PW=0
    issued=list(range(nm))+["s"]+list(range(nm,NPRE))
    CMPM="v_cmp_f_u32" if cfg.get("nocheck") else "v_cmp_eq_u32"
    CMPP="v_cmp_f_u32" if cfg.get("nocheck") else "v_cmp_ne_u32"
    a(f"{L('top')}:")
    top=len(a.lines)
    def retry(j, inflight, back):
        lb=L(f"retry{j}")
        late.append((lb,[KORDER[x] for x in inflight],back)); return lb
    a(f"s_waitcnt vmcnt({len(issued)-1-issued.index(0)}) lgkmcnt(2)\n{CMPM} vcc, -1, v{m(8)}\ns_cbranch_vccnz {retry(0,range(NPRE),L('ok0'))}\n{L('ok0')}:")
    n=len(P.qk)
    first={}
    for i,f in enumerate(P.qk): first.setdefault(KORDER.index(f[2]),i)
    islds=lambda i: i in P.qk_lds
    brpos={j:((first[j]-3)//3)*3+2 for j in range(1,9)}
    assert len(set(brpos.values()))==8
    gapx={}
    def put(g,x): gapx.setdefault(g,[]).append(x)
    for j,g in zip(range(NPRE,9),cfg["vpos"]): put(g,(j,mload(KORDER[j])))
    kl=[f"buffer_load_dwordx4 {q(KX[t])}, v{m(0)}, {sWS}, {sK} offen offset:{t*1024} sc1" for t in range(2)]
    vxl=[f"buffer_load_dwordx4 {q(VX[t])}, {vL16}, {sWS}, {sKV} offen offset:{t*1024} sc1" for t in range(2)]
    for g,x in hooks["pre_k"](w): put(g,x)
    put(13,(None,f"v_and_b32 v{m(0)}, 32, {vL16}")); put(14,(None,f"v_lshl_add_u32 v{m(0)}, v{m(0)}, 4, {vOa}"))
    for t in range(2): put(cfg["kpos"][t],("k",kl[t])); put(cfg["vxpos"][t],("vx",vxl[t]))
    for g,x in hooks["qk"](w): put(g,x)
    foldq=fold(p(0),p(2))+fold(p(4),p(6))
    nl=0; pend=[]
    for i,f in enumerate(P.qk):
        B=f"v[{ST[nl&1]}:{ST[nl&1]+7}]" if islds(i) else P.reg(f)
        a(sm(acc[f[:2]],m(f[2]),B))
        if islds(i):
            if nl+2<len(P.qk_lds): pend=stage(ST[nl&1],P.qk[P.qk_lds[nl+2]])
            nl+=1
        if pend: a(pend.pop(0))
        val=[]
        for j,x in gapx.get(i,[]):
            if x.startswith("v_"): val.append(x); continue
            a(x)
            if x.startswith("buffer"): issued.append(j)
        for j in range(1,9):
            if brpos[j]==i:
                infl=[x for x in issued if isinstance(x,int) and x>=j]
                a(f"s_cbranch_vccnz {retry(j,infl,L(f'ok{j}'))}\n{L(f'ok{j}')}:")
        wt=""
        for j in range(1,9):
            if brpos[j]-3==i: wt+=f" vmcnt({len(issued)-1-issued.index(j)})"
            if brpos[j]-2==i: val.append(f"{CMPM} vcc, -1, v{m(KORDER[j])}")
        if islds(i+1): wt+=f" lgkmcnt({0 if nl==len(P.qk_lds)-1 else 2})"
        if wt: a("s_waitcnt"+wt)
        E(val)
        if i>=n-4: a(foldq.pop(0))
    vi=[0]
    def V(fl=()):
        f=P.vv[vi[0]]; a(sm(acc[f[:2]],m(f[2]),P.reg(f))); vi[0]+=1; E(fl)
    xs=L_XS+w*1024
    E(foldq); E(fold(p(8),p(3))); E(fold(p(12),p(7)))
    a(f"ds_write2st64_b64 {vL8}, v[{p(2)}:{p(3)}], v[{p(6)}:{p(7)}] offset0:{xs//512} offset1:{xs//512+1}")
    mid=hooks["mid"](w)
    NEG=p(20)
    pois=[f"s_add_u32 {sT1}, {mso(i)}, 0x8000\nbuffer_store_dword v{NEG}, {vMst}, {sWS}, {sT1} offen" for i,g in enumerate(GROUPS[w])]
    if w==3: mid=mid+["s_mov_b64 exec, 15",f"buffer_load_dword v11, {vAux}, {sWS}, {sMtc} offen sc1\ns_mov_b64 exec, -1"]
    Sa,Sb,Sm,ONES=p(16),p(20),m(1),m(2)
    PX,PM=p(8),p(12)
    misc=[f"v_mov_b32 v{ONES+i}, {sOne}" for i in range(4)]+zero(m(3),4)+zero(m(8),4)+zero(m(0),4)
    def take(k):
        o=misc[:k]; del misc[:k]; return o
    V(mid[:2]+[f"v_mov_b32 v{NEG}, -1"]); mid=mid[2:]+pois
    for _ in range(cfg["nV"][0]-1): V(mid[:2]+take(1 if vi[0]>=3 else 0)); mid=mid[2:]
    assert not mid and vi[0]>=4
    a("s_waitcnt lgkmcnt(0)\ns_barrier")
    X=[p(4*i) for i in range(4)]
    for x in range(4):
        rd=[f"ds_read_b64_tr_b16 v[{X[x]+2*i}:{X[x]+2*i+1}], {vXr} offset:{L_XS+x*1024+i*512}" for i in range(2)]
        if x>=4-cfg["nV"][1]: V(rd)
        else: E(rd)
    assert vi[0]>=6
    for x in range(4):
        if x==0: a(f"s_waitcnt lgkmcnt(6) vmcnt({younger(kl[1],top)})")
        d=(Sa,Sb)[x&1]
        a(mf(d,q(KX[x>>1]),q(X[x]),q(d) if x>1 else 0))
        if x<3: a(f"s_waitcnt lgkmcnt({4-2*x})")
        E(take(cfg["sfill"]))
    a(mf(Sm,q(X[0]),q(X[0]),0))
    for i in range(2): a(f"v_mul_f32 v{Sa+i}, {sC}, v{Sa+i}")
    if cfg["sm2"]: a(mf(Sm,q(X[1]),q(X[1]),q(Sm)))
    for i in range(2): a(f"v_fmac_f32 v{Sa+i}, {sC}, v{Sb+2+i}")
    for i in range(2): a(f"v_exp_f32 v{Sa+2+i}, v{Sa+i}")
    a(f"s_mov_b64 exec, {sHalf0}\nv_cvt_pk_bf16_f32 v{Sa+2}, v{Sa+2}, v{Sa+3}")
    a(f"ds_write_b32 {vOa}, v{Sa+2} offset:{L_PX+4*w}")
    a("s_mov_b64 exec, -1")
    for x in range(2 if cfg["sm2"] else 1,4): a(mf(Sm,q(X[x]),q(X[x]),q(Sm))); E(take(2))
    pmq=[f"v_mul_f32 v{Sm+2}, {sC}, v{Sm+2}",f"v_mul_f32 v{Sm+3}, {sC}, v{Sm+3}",f"v_exp_f32 v{Sm}, v{Sm+2}",f"v_exp_f32 v{Sm+1}, v{Sm+3}",
         f"v_mov_b32 v{PM+1}, 0",f"v_cvt_pk_bf16_f32 v{Sm}, v{Sm}, v{Sm+1}",f"v_mov_b32 v{PM+2}, 0",
         f"v_mov_b32_dpp v{PM}, v{Sm} quad_perm:[0,1,0,1] {DPP}",f"v_mov_b32_dpp v{PM+3}, v{Sm} quad_perm:[0,1,0,1] {DPP}"]
    for _ in range(cfg["nV"][2]): V(take(1))
    a("s_waitcnt lgkmcnt(0)\ns_barrier")
    a(f"ds_read_b128 {q(PX)}, {vOa} offset:{L_PX}")
    misc[:0]=pmq
    for _ in range(cfg["nV"][3]): V(take(1))
    DL,D0,D1=p(0),p(4),p(20); VD=VA+2; OW=p(12); OP=p(10)
    T=[m(4),m(6),p(16),p(24)]
    st=stage(T[0],P.wo_lds[0])+stage(T[1],P.wo_lds[1])
    fv=fold(VA,VD)+fold(VA+4,VD+1)
    m16=lambda d,A,B: f"v_mfma_f32_16x16x16_bf16 {q(d)}, v[{A}:{A+1}], v[{B}:{B+1}], {q(d)}"
    rl,r0,r1,tc=p(18),p(0),p(2),p(19)
    def scale_o(chk):
        a(f"v_rcp_f32 v{rl}, v{DL}")
        a(f"v_subrev_u32 v{tc}, {sLlo}, v{DL}" if chk else "s_nop 0")
        a(f"v_cndmask_b32 v{r0}, 0, v{rl}, {sHalf0}\nv_cndmask_b32 v{r1}, 0, v{rl}, {sHalf1}")
        for i in range(4): a(f"v_mul_f32 v{D0+i}, v{D0+i}, v{r0}")
        if chk: a(f"v_cmp_lt_u32 vcc, {hex(cfg.get('lrange',120<<23))}, v{tc}")
        for i in (0,2): a(f"v_pk_fma_f32 v[{D0+i}:{D0+i+1}], v[{D1+i}:{D1+i+1}], v[{r1}:{r1+1}], v[{D0+i}:{D0+i+1}] op_sel_hi:[1,0,1]")
        a(f"v_cvt_pk_bf16_f32 v{OP}, v{D0}, v{D0+1}\nv_cvt_pk_bf16_f32 v{OP+1}, v{D0+2}, v{D0+3}")
        if cfg["keepalive"]: a(mf(D1,q(ONES),q(ONES),0))
        a(f"ds_write_b64 {vOr}, v[{OP}:{OP+1}] offset:{L_O+w*512}")
    while vi[0]<14: V(take(1))
    npm=max([k+1 for k,x in enumerate(misc) if x in pmq]+[0])
    misc[npm:npm]=fv
    a(f"s_waitcnt vmcnt({younger(vxl[1],top)}) lgkmcnt(0)")
    a(mf(DL,q(ONES),q(PX),0)); a(st.pop(0)); E(take(2))
    a(mf(D0,q(VX[0]),q(PX),0)); a(st.pop(0)); E(take(2))
    a(mf(D1,q(VX[1]),q(PX),0)); a(st.pop(0)); E(take(2))
    while any(x in pmq for x in misc): E(take(1))
    while sum(x in fv for x in misc)>1: E(take(1))
    a(m16(DL,ONES,PM)); a(st.pop(0)); E(take(2))
    misc+=zero(VA+4,4)
    a(m16(D0,VD,PM)); E(take(2))
    a(m16(D1,VD,PM+2))
    scale_o(True)
    a(f"s_cbranch_vccnz {L('slowsm')}\n{L('smdone')}:")
    a(f"v_mov_b32_dpp v{OW}, v{OP} quad_perm:[0,1,0,1] {DPP}\nv_mov_b32_dpp v{OW+1}, v{OP+1} quad_perm:[0,1,0,1] {DPP}")
    a(f"v_mov_b32_dpp v{OW+2}, v{OP} quad_perm:[2,3,2,3] {DPP}\nv_mov_b32_dpp v{OW+3}, v{OP+1} quad_perm:[2,3,2,3] {DPP}")
    aC=m(1); aP={("A",0):m(8),("A",1):m(0),("B",0):m(3),("B",1):VA+4}
    while len(misc)>4: a(misc.pop(0))
    tb={f:T[[0,1,0,1,2,3][i]] for i,f in enumerate(P.wo_lds)}
    def wB(f): return f"v[{tb[f]}:{tb[f]+7}]" if f in tb else P.reg(f)
    OA={x:p(4*n_) for n_,x in enumerate(P.oth)}
    ph1=[mf(aC,q(OW),P.regC(w),0)]+[sm(aP[f[1:3]],OW,wB(f)) for f in P.wo1]
    a("s_waitcnt lgkmcnt(1)")
    ord_=[f"ds_read_b128 {q(OA[x])}, {vOa} offset:{L_O+x*512}" for x in P.oth]
    for i,x in enumerate(ph1):
        if i==cfg["bar3"]: a("s_waitcnt lgkmcnt(0)\ns_barrier"); E(ord_)
        a(x); E(take(2 if i==0 else 1))
    assert not misc
    SEL,DR=VA,VA+4
    lds=[]
    for i in range(2,6): lds+=stage(tb[P.wo_lds[i]],P.wo_lds[i])
    lds.append(f"ds_read_b128 {q(SEL)}, {vL16} offset:{L_SEL}")
    dsq=list(ord_)
    def ds(k):
        for _ in range(k):
            if lds: x=lds.pop(0); a(x); dsq.append(x)
    def lgw(x): return f"s_waitcnt lgkmcnt({len(dsq)-1-dsq.index(x)})"
    ds(cfg["nst0"])
    def cv(d,b): return f"v_cvt_pk_bf16_f32 v{d}, v{b}, v{b+1}"
    A0,A1,B0,B1=aP[("A",0)],aP[("A",1)],aP[("B",0)],aP[("B",1)]
    pld=[f"buffer_load_dwordx4 {q(m(4+i))}, {vL16}, {sWS}, {(sPld,sPld1)[i>>1]} offen offset:{1024*(i&1)} sc1" for i in range(2*len(GROUPS[w]))]
    def pst(r,so): return f"buffer_store_dwordx2 v[{r}:{r+1}], {vPst}, {sWS}, {so} offen"
    def tag(r): return f"v_and_or_b32 v{r}, v{r}, -2, {sPar}"
    pk=lambda r,d=None: [cv(d or r,r),cv((d or r)+1,r+2),tag(d or r)]
    after={4:pk(A0),5:[pst(A0,sPA)],7:pk(A1)[:1],8:pk(A1)[1:],9:[pst(A1,sPA1)],10:pk(B0)[:1],11:pk(B0)[1:2],12:pk(B0)[2:],13:pk(B1,B0+2)[:2],14:pk(B1,B0+2)[2:]}
    ph2=[(sm(aP[f[1:3]],OA[f[3]],wB(f)),f) for f in P.wo2]+[(mf(aC,q(OA[x]),P.regC(x),q(aC)),None) for x in P.oth]
    mark=len(a.lines)
    for i,(x,f) in enumerate(ph2):
        if i<3: a(lgw(ord_[i]))
        a(x)
        vm=[y for y in after.get(i,[]) if y.startswith("buffer")]
        E(vm)
        if not vm: ds(1)
        if i+1<12 and P.wo2[i+1] in tb: a(lgw(stage(tb[P.wo2[i+1]],P.wo2[i+1])[1]))
        E([y for y in after.get(i,[]) if not y.startswith("buffer")])
    assert not lds
    sal=[f"s_add_u32 {sSeg}, {sSeg}, 1",f"s_add_u32 {sKV}, {sKV}, {cfg.get('kvstep',32*16384)}",f"s_add_u32 {sK}, {sK}, {cfg.get('kvstep',32*16384)}"]+hooks["sal"](w)+next_slots(w)+([f"s_add_u32 {sSig}, {sSig}, 1"] if w==PW else [])
    cpk=tag(aC)
    work=prep_qk[16:]+weave(prep_qk[:2]+[cv(aC,aC),cpk]+prep_qk[2:16],sal)
    now=[0]
    def spend(clks):
        k=clks//4
        o=work[:k]; del work[:k]; E(o); delay(a,4*(k-len(o))); now[0]+=4*k
    def at(t, ops):
        spend(max(0,t-now[0]))
        while ops[0].endswith(f"{sPC} offen") and cpk in work: spend(4)
        E(ops); now[0]+=10*len(ops)
    def reduce(u, mark):
        r0_,r1_=m(4+2*u),m(5+2*u); ld=pld[2*u:2*u+2]
        def body(w0,w1):
            a(f"s_waitcnt vmcnt({w0}) lgkmcnt(0)"); a(mf(DR,q(SEL),q(r0_),0)); a(f"v_xor_b32 v{r0_}, {sPar}, v{r0_}")
            a(f"s_waitcnt vmcnt({w1})"); a(mf(DR,q(SEL),q(r1_),q(DR)))
        body(younger(ld[0],mark),younger(ld[1],mark))
        a(f"{L(f'okP{u}')}:")
        a(f"v_bitop3_b32 v{r0_}, v{r0_}, v{r1_}, {sPar} bitop3:0xf6\nv_and_b32 v{r0_}, 1, v{r0_}\n{CMPP} vcc, 0, v{r0_}")
        for ror in (4,8):
            for i in range(2): a(f"v_add_f32_dpp v{DR+i}, v{DR+i}, v{DR+i} row_ror:{ror} {DPP}")
        a(f"v_cvt_pk_bf16_f32 v{r0_}, v{DR}, v{DR+1}")
        a(f"s_cbranch_vccnz {L(f'pollP{u}')}")
        if w==PW: E(hsend)
        a(f"buffer_store_dword v{r0_}, {vMst}, {sWS}, {mso(u)} offen")
        def slow():
            a(f"{L(f'pollP{u}')}:")
            if cfg.get("cnt"): a(f"s_add_u32 s{93+u}, s{93+u}, 1")
            E(ld); spin_guard(a,fail); body(1,0); a(f"s_branch {L(f'okP{u}')}")
        outl.append(slow)
    outl=[]
    def gather(k0,k1=NPRE):
        for k in range(k0,k1):
            if k and k!=nm: spend(cfg["dm"][k-1])
            a(mload(KORDER[k]))
    def close():
        E(work); work.clear()
        a(f"s_xor_b32 {sPar}, {sPar}, 1")
        hooks["end"](a,w)
        a(f"s_branch {L('top')}")
    ev=[(cfg["tB"][0],[pst(B0,sPB)]),(cfg["tB"][1],[pst(B0+2,sPB1)]),(cfg["tB"][2],[f"buffer_store_dword v{aC}, {vPsc}, {sWS}, {sPC} offen"])]
    ev.append((cfg["tP"][w],pld[:2]))
    if w==TW: ev.append((cfg["tP"][4],pld[2:]))
    ev.sort(key=lambda x:x[0])
    split=w==TW and cfg["tP"][4]>cfg["tP"][w]+300
    if split: last=ev.pop()
    for t,ops in ev: at(t,ops)
    if w==PW: work+=[f"v_mov_b32 v{m(2)}, {sSig}",f"v_mov_b32 v{m(2)+1}, 0"]
    spend(max(4*len(work),cfg["tP"][w]+170-now[0]))
    hsend=[f"s_mov_b64 exec, {(1<<NREP)-1}",f"buffer_store_dword v{m(2)}, {vAux}, {sWS}, {sPubX} offen","s_mov_b64 exec, -1"]
    reduce(0,mark)
    if w==TW:
        a(f"s_cmp_ge_u32 {sH}, 16\ns_cbranch_scc1 {L('nored')}")
        if split: now[0]=cfg["tP"][w]+340; at(*last); delay(a,150)
        reduce(1,mark)
        a(f"{L('nored')}:")
    work+=weave(zero(VA,8),[])
    if w==PW:
        HV=f"v{m(2)+1}"; poll=f"buffer_load_dword {HV}, v11, {sWS}, {sHint} offen sc1"
        E(work); work.clear(); delay(a,cfg["dpoll"])
        a(f"{L('hpoll')}:")
        for u in range(4):
            a(f"{CMPP} vcc, {sSig}, {HV} ; nochk"); a(poll)
            if cfg.get("cnt"): a("s_add_u32 s94, s94, 1")
            if cfg["pollgap"]: a(f"s_nop {cfg['pollgap']-1}")
            if u==3: a(f"s_add_u32 {sCnt}, {sCnt}, 1\ns_cmp_gt_u32 {sCnt}, {SPIN_MAX}")
            a(f"s_cbranch_vccz {L('hok')}")
        a(f"s_cbranch_scc0 {L('hpoll')}\ns_branch {fail}\n{L('hok')}:")
    else: spend(cfg["dkeep"][w])
    a("s_barrier")
    gather(0); close()
    for f_ in outl: f_()
    a(f"{L('slowsm')}:")
    a(f"s_mov_b64 exec, {sHalf0}\nds_write_b64 {vOa}, v[{Sa}:{Sa+1}] offset:{L_XS+512*(w>>1)+8*(w&1)}\ns_mov_b64 exec, -1")
    a("s_waitcnt lgkmcnt(0)\ns_barrier")
    s_=[p(i) for i in range(8)]+[Sm,Sm+1]; mx,tt=p(20),p(21)
    a(f"""ds_read_b128 {q(p(0))}, {vOa} offset:{L_XS}
    ds_read_b128 {q(p(4))}, {vOa} offset:{L_XS+512}
    v_mov_b32_dpp v{Sm}, v{Sm+2} quad_perm:[0,1,0,1] {DPP}
    v_mov_b32_dpp v{Sm+1}, v{Sm+3} quad_perm:[0,1,0,1] {DPP}
    s_waitcnt lgkmcnt(0)
    v_max_f32 v{mx}, v{s_[0]}, v{s_[1]}""")
    for i in range(2,10,2): a(f"v_max3_f32 v{mx}, v{mx}, v{s_[i]}, v{s_[i+1]}")
    a(f"""v_mov_b32 v{tt}, v{mx}
    v_permlane16_swap_b32 v{mx}, v{tt}
    v_max_f32 v{mx}, v{mx}, v{tt}
    v_mov_b32 v{tt}, v{mx}
    v_permlane32_swap_b32 v{mx}, v{tt}
    v_max_f32 v{mx}, v{mx}, v{tt}""")
    for i in range(10): a(f"v_sub_f32 v{s_[i]}, v{s_[i]}, v{mx}\nv_exp_f32 v{s_[i]}, v{s_[i]}")
    for i in range(4): a(cv(PX+i,p(2*i)))
    a(cv(PM,Sm)); a(cv(PM+3,Sm))
    a(mf(DL,q(ONES),q(PX),0)); a(mf(D0,q(VX[0]),q(PX),0)); a(mf(D1,q(VX[1]),q(PX),0))
    a(m16(DL,ONES,PM)); a(m16(D0,VD,PM)); a(m16(D1,VD,PM+2))
    scale_o(False)
    a(f"s_branch {L('smdone')}")
    for lb,ks,back in late:
        a(f"{lb}:")
        if cfg.get("cnt"): a(f"s_add_u32 s{84+KORDER.index(ks[0])}, s{84+KORDER.index(ks[0])}, 1")
        for k in ks: a(mload(k,'sc1'))
        spin_guard(a,fail)
        a(f"s_waitcnt vmcnt(0)\nv_cmp_eq_u32 vcc, -1, v{m(ks[0])}\ns_cbranch_vccnz {lb}\ns_branch {back}")

def init_comm(a, w, srd_mem):
    g0=GROUPS[w][0]
    a(f"""
    s_lshl_b32 {sT0}, {sH}, 6
    s_add_u32 {sPA}, {sT0}, {OFF_P+w*16384}
    s_add_u32 {sPA1}, {sPA}, {65536}
    s_add_u32 {sPB}, {sPA}, {2*65536}
    s_add_u32 {sPB1}, {sPA}, {3*65536}
    s_add_u32 {sPC}, {sT0}, {OFF_P+4*65536+w*8192}
    s_add_u32 {sMst}, {sT0}, {OFF_M+2048*g0}
    s_add_u32 {sMst1}, {sMst}, {(4-g0)*2048}
    s_mov_b32 {sM0}, {OFF_M}
    s_mov_b32 {sM1}, {OFF_M+4096}
    s_mov_b32 {sM2}, {OFF_M+8192}
    s_lshl_b32 {sT0}, {sH}, 11
    s_add_u32 {sPld}, {sT0}, {OFF_P+65536*g0}
    s_mov_b32 {sPar}, 0
    s_mov_b32 {sC}, {f2u(128**-0.5*math.log2(math.e))}
    s_mov_b32 {sOne}, 0x3f803f80
    s_mov_b32 {sLlo}, {(127-60)<<23}
    v_mov_b32 v20, -1
    v_mov_b32 v21, -1
    v_mov_b32 v22, -1
    v_mov_b32 v23, -1
    """)
    if w==TW: a(f"s_add_u32 {sPld1}, {sPld}, {(4-g0)*65536}")
    if w==0: a(f"""s_mov_b32 {sSig}, 0
    s_lshl_b32 {sT0}, {sH}, 2
    s_add_u32 {sPubX}, {sT0}, {OFF_H}
    s_and_b32 {sT0}, {sH}, {NREP-1}
    s_lshl_b32 {sT0}, {sT0}, 7
    s_add_u32 {sHint}, {sT0}, {OFF_H}
    s_mov_b64 exec, {(1<<NREP)-1}
    buffer_store_dword v20, {vAux}, {sWS}, {sPubX} offen
    buffer_load_dword v24, {vAux}, {sWS}, {sPubX} offen sc1
    s_mov_b64 exec, -1""")
    if w==TW: a(f"s_cmp_ge_u32 {sH}, 16\ns_cselect_b32 {sPld1}, 0x40000000, {sPld1}")
    if w==3: a(f"s_lshl_b32 {sMtc}, {sH}, 9\ns_add_u32 {sMtc}, {sMtc}, {OFF_M+0x8000}")
    for i,g in enumerate(GROUPS[w]):
        for j in range(2):
            a(f"buffer_store_dwordx4 v[20:23], {vL16}, {sWS}, {(sPld,sPld1)[i]} offen offset:{1024*j}")
            a(f"buffer_load_dwordx4 v[24:27], {vL16}, {sWS}, {(sPld,sPld1)[i]} offen offset:{1024*j} sc1")
        a(f"s_add_u32 {sT0}, {mso(i)}, 0x4000\nbuffer_store_dword v20, {vMst}, {sWS}, {sT0} offen")
        a(f"buffer_load_dword v24, {vMst}, {sWS}, {sT0} offen sc1\nbuffer_load_dword v24, {vMst}, {sWS}, {mso(i)} offen sc1")
    store_mem0(a,w,srd_mem,"v10")

def set_layer(a, w, layer):
    a(f"""
    s_mov_b32 {sSeg}, 0
    s_lshl_b32 {sT0}, {sH}, 14
    s_add_u32 {sKV}, {sT0}, {layer*LAYER_STRIDE+OFF_KV+8192+w*2048}
    s_add_u32 {sK}, {sT0}, {layer*LAYER_STRIDE+OFF_KV+w*2048}
    s_mov_b32 {sCnt}, 0
    """)
```

```python
MB = 1<<20
WS_BYTES = 256*MB
OFF_P    = 0x000000
OFF_H    = 0x0b0000
OFF_FLAG = 0x0c0000
OFF_M    = 240*MB
LAYER_STRIDE = 112*MB
OFF_KV   = 1*MB
OFF_QX   = 33*MB
OFF_MH   = 49*MB
OFF_MKV  = OFF_MH
OFF_O    = 65*MB
OFF_X1   = 81*MB
OFF_X2   = 84*MB
OFF_BQ   = 87*MB
OFF_BK   = 89*MB
OFF_BQR  = 91*MB
OFF_BKR  = 92*MB
OFF_BV   = 93*MB
OFF_BO   = 96*MB
OFF_BOR  = 98*MB
```

```python
from asmgen import Asm
from layout import *
import math, struct
def f2u(x): return struct.unpack("<I", struct.pack("<f", x))[0]
def q(base, n=4, k="v"): return f"{k}[{base}:{base+n-1}]"
DPP="row_mask:0xf bank_mask:0xf"
sWS="s[8:11]"; sX="s[12:15]"; sA="s[76:79]"; sB="s[80:83]"; sC_="s[84:87]"; sD="s[88:91]"
sW="s21"; sI="s24"
T0,T1,T2,T3="s60","s61","s62","s63"
P_X,P_MEM,P_WQ,P_WK,P_WV,P_WO,P_BQKV,P_BWO,P_OUT=64,66,68,70,72,74,92,94,96
def srd(a, d, ptr, size, off=0):
    d=int(d[2:d.index(":")])
    if off: a(f"s_add_u32 s{d}, s{ptr}, {off}\ns_addc_u32 s{d+1}, s{ptr+1}, 0")
    else: a(f"s_mov_b32 s{d}, s{ptr}\ns_mov_b32 s{d+1}, s{ptr+1}")
    a(f"s_mov_b32 s{d+2}, {size}\ns_mov_b32 s{d+3}, 0x20000")
def entry(a):
    a(f"""
    s_load_dwordx8 s[64:71], s[0:1], 0
    s_load_dwordx4 s[72:75], s[0:1], 32
    s_load_dwordx4 s[92:95], s[0:1], 64
    s_load_dwordx2 s[96:97], s[0:1], 80
    s_load_dwordx4 s[4:7], s[0:1], 88
    v_lshrrev_b32 v1, 6, v0
    v_readfirstlane_b32 {sW}, v1
    v_and_b32 v0, 63, v0
    s_waitcnt lgkmcnt(0)
    """)
    srd(a,sWS,6,WS_BYTES)
def mf(d,A,B,C): return f"v_mfma_f32_16x16x32_bf16 {d}, {A}, {B}, {C}"
def cv(d,x,y): return f"v_cvt_pk_bf16_f32 v{d}, v{x}, v{y}"

class Frags:
    def __init__(self, vbase): self.vbase=vbase
    def reg(self,i,n=4):
        b=4*i
        return (("a",b) if b<256 else ("v",self.vbase+b-256))
    def op(self,i):
        k,b=self.reg(i); return f"{k}[{b}:{b+3}]"

def load_blocks(a, blocks, lds_base, vtr, ring=4):
    nd=[len(b[0]) for b in blocks]
    def issue(bi):
        pos=0
        for (va,s,sb,c,bl) in blocks[bi][0]:
            a(f"s_add_u32 {T0}, {sb}, {c}\ns_add_u32 m0, {T3}, {(bi%ring)*4096+pos}")
            a(f"buffer_load_dword{'x4' if bl==16 else ''} {va}, {s}, {T0} offen lds")
            pos+=64*bl
        assert pos<=4096
    n=len(blocks)
    for bi in range(min(ring-1,n)): issue(bi)
    for bi in range(n):
        if bi+ring-1<n:
            a("s_waitcnt lgkmcnt(0)"); issue(bi+ring-1)
        left=sum(nd[bi+1:min(n,bi+ring)])
        a(f"s_waitcnt vmcnt({min(left,63)})")
        for (t,k,rb) in blocks[bi][1]:
            for qd in range(4):
                a(f"ds_read_b64_tr_b16 {k}[{rb+2*qd}:{rb+2*qd+1}], {vtr} offset:{(bi%ring)*4096+t*32+(qd&1)*256+(qd>>1)*2048}")
    a("s_waitcnt lgkmcnt(0)")
def tr_addr(a, vtr, t0, t1, lds_base):
    a(f"""
    s_lshl_b32 {T3}, {sW}, 14
    s_add_u32 {T3}, {T3}, {lds_base}
    v_lshrrev_b32 {t0}, 4, v0
    v_bfe_u32 {t1}, v0, 2, 2
    v_lshl_add_u32 {t0}, {t0}, 3, {t1}
    v_lshlrev_b32 {t0}, 6, {t0}
    v_and_b32 {t1}, 3, v0
    v_lshl_add_u32 {t0}, {t1}, 3, {t0}
    v_add_u32 {vtr}, {T3}, {t0}
    """)

XF_T=1088
def xfrag(k,T): return (2*k+T)*XF_T
XF_BYTES=36*XF_T
def ln_consts(a, vSrc, vRaw, vDst, vRd, t0, t1, raw_base, xf_base):
    a(f"""
    v_lshrrev_b32 {t0}, 3, v0
    v_and_b32 {t1}, 7, v0                  ; chunk
    s_lshl_b32 {T0}, {sW}, 3
    v_add_u32 {t0}, {T0}, {t0}             ; token 0..31
    v_mul_u32_u24 {vSrc}, 1152, {t0}
    v_lshl_add_u32 {vSrc}, {t1}, 4, {vSrc}
    s_mul_i32 {T0}, {sW}, 9216
    s_add_u32 {T0}, {T0}, {raw_base}
    v_lshlrev_b32 {vRaw}, 4, v0
    v_add_u32 {vRaw}, {T0}, {vRaw}
    v_and_b32 {vDst}, 15, {t0}
    v_lshlrev_b32 {vDst}, 4, {vDst}
    v_lshrrev_b32 {t0}, 4, {t0}            ; T
    v_lshrrev_b32 {vRd}, 2, {t1}
    v_lshl_add_u32 {t0}, {vRd}, 1, {t0}
    v_mul_u32_u24 {t0}, {XF_T}, {t0}
    v_and_b32 {t1}, 3, {t1}
    v_mul_u32_u24 {t1}, 272, {t1}
    v_add3_u32 {vDst}, {vDst}, {t0}, {t1}
    v_add_u32 {vDst}, {xf_base}, {vDst}
    v_lshrrev_b32 {t0}, 4, v0
    v_mul_u32_u24 {t0}, 272, {t0}
    v_and_b32 {t1}, 15, v0
    v_lshl_add_u32 {t0}, {t1}, 4, {t0}
    v_add_u32 {vRd}, {xf_base}, {t0}
    """)
def ln_fetch(a, vSrc, srd_, sOff, raw_base, fl="sc1"):
    a(f"s_mul_i32 {T1}, {sW}, 9216\ns_add_u32 {T1}, {T1}, {raw_base}")
    for i in range(9):
        a(f"s_add_u32 {T0}, {sOff}, {128*i}\ns_add_u32 m0, {T1}, {1024*i}")
        a(f"buffer_load_dwordx4 {vSrc}, {srd_}, {T0} offen {fl} lds")
def ln_stage(a, vRaw, vDst, R, pre_write=None):
    for i in range(9): a(f"ds_read_b128 {q(R+4*i)}, {vRaw} offset:{1024*i}")
    s1,s2,s3,s4,one,lo,hi=[R+36+i for i in range(7)]
    a(f"v_mov_b32 v{one}, 0x3f803f80")
    for r in (s1,s2,s3,s4): a(f"v_mov_b32 v{r}, 0")
    for i in range(9):
        a(f"s_waitcnt lgkmcnt({8-i})")
        for j in range(4):
            r=R+4*i+j
            a(f"v_dot2c_f32_bf16 v{(s1,s3)[j&1]}, v{r}, v{one}\nv_dot2c_f32_bf16 v{(s2,s4)[j&1]}, v{r}, v{r}")
    a("s_nop 2")
    a(f"v_add_f32 v{s1}, v{s1}, v{s3}\nv_add_f32 v{s2}, v{s2}, v{s4}")
    for pat in ("quad_perm:[1,0,3,2]","quad_perm:[2,3,0,1]","row_half_mirror"):
        for r in (s1,s2): a(f"v_add_f32_dpp v{r}, v{r}, v{r} {pat} {DPP}")
    a(f"""
    v_mul_f32 v{s1}, {hex(f2u(1/576))}, v{s1}          ; mean
    v_mul_f32 v{s3}, v{s1}, v{s1}
    v_mul_f32 v{s2}, {hex(f2u(1/576))}, v{s2}
    v_sub_f32 v{s2}, v{s2}, v{s3}
    v_max_f32 v{s2}, 0, v{s2}
    v_add_f32 v{s2}, {hex(f2u(1e-5))}, v{s2}
    v_rsq_f32 v{s2}, v{s2}
    s_nop 0
    v_mul_f32 v{s3}, v{s1}, v{s2}
    v_sub_f32 v{s3}, 0, v{s3}
    """)
    if pre_write: pre_write()
    for i in range(9):
        for j in range(4):
            r=R+4*i+j
            a(f"""v_lshlrev_b32 v{lo}, 16, v{r}
            v_and_b32 v{hi}, 0xffff0000, v{r}
            v_fma_f32 v{lo}, v{lo}, v{s2}, v{s3}
            v_fma_f32 v{hi}, v{hi}, v{s2}, v{s3}
            v_cvt_pk_bf16_f32 v{r}, v{lo}, v{hi}""")
        a(f"ds_write_b128 {vDst}, {q(R+4*i)} offset:{4*i*XF_T}")

sXc="s3"
def announce(a):
    sk=a.lab("ann")
    a(f"""s_waitcnt vmcnt(0)
    s_barrier
    s_cmp_eq_u32 {sW}, 0
    s_cbranch_scc0 {sk}
    v_mov_b32 v10, s2
    v_mov_b32 v11, {sXc}
    s_mov_b64 exec, 1
    global_store_byte v10, v11, s[4:5] sc1
    s_mov_b64 exec, -1
    {sk}:""")
def elect(a, fail, out, t=("v10","v11","v12","v13","v14","v15"), lane="v0"):
    lp,wl,wd,ch=a.lab("el"),a.lab("elw"),a.lab("eld"),a.lab("elc")
    ad,dv,b=t[0],t[1],t[2:6]
    a(f"v_lshlrev_b32 {ad}, 2, {lane}\ns_mov_b32 {T3}, 0\n{lp}:\nglobal_load_dword {dv}, {ad}, s[4:5] sc1")
    a(f"s_add_u32 {T3}, {T3}, 1\ns_cmp_gt_u32 {T3}, 4000000\ns_cbranch_scc1 {fail}\ns_waitcnt vmcnt(0)")
    for i in range(4): a(f"v_bfe_u32 {b[i]}, {dv}, {8*i}, 8")
    a(f"v_min_u32 {dv}, {b[0]}, {b[1]}\nv_min3_u32 {dv}, {dv}, {b[2]}, {b[3]}\nv_cmp_eq_u32 vcc, 0, {dv}\ns_cbranch_vccnz {lp}")
    a(f"s_mov_b32 {T2}, 0\n{wl}:\ns_add_u32 {T2}, {T2}, 1\ns_mov_b32 {T1}, 0")
    for i in range(4): a(f"v_cmp_eq_u32 vcc, {T2}, {b[i]}\ns_bcnt1_i32_b64 {T0}, vcc\ns_add_u32 {T1}, {T1}, {T0}")
    a(f"s_cmp_ge_u32 {T2}, 16\ns_cbranch_scc1 {fail}\ns_cmp_lt_u32 {T1}, 32\ns_cbranch_scc1 {wl}")
    a(f"s_mov_b32 {T1}, 0\ns_mov_b32 {T3}, 0")
    for i in range(4):
        a(f"""v_cmp_gt_u32 vcc, {sXc}, {b[i]}
        s_bcnt1_i32_b64 {T0}, vcc
        s_add_u32 {T3}, {T3}, {T0}
        v_add_u32 {dv}, {i}, {ad}
        v_cmp_gt_u32 s[16:17], s2, {dv}
        v_cmp_eq_u32 vcc, {sXc}, {b[i]}
        s_and_b64 vcc, vcc, s[16:17]
        s_bcnt1_i32_b64 {T0}, vcc
        s_add_u32 {T1}, {T1}, {T0}""")
    a(f"""s_add_u32 {out}, {T1}, {T3}
    s_cmp_gt_u32 {T2}, {sXc}
    s_cselect_b32 {T0}, 32, 0
    s_add_u32 {out}, {out}, {T0}
    s_cmp_lg_u32 {T2}, {sXc}
    s_cbranch_scc1 {wd}
    s_cmp_lt_u32 {T1}, 32
    s_cselect_b32 {out}, {T1}, {out}
    {wd}:""")
```

```python
from wk import *
import a1, a2, awo, bqkv, batt, bwo
XB_=2048*1152
def src_x(a, layer, which):
    if which==0 and layer==0: srd(a,sX,P_X,XB_)
    elif which==0: srd(a,sX,6,XB_,OFF_X2)
    else: srd(a,sX,6,XB_,layer*LAYER_STRIDE+OFF_X1)
def k_a1(a, layer, name):
    lo=layer*LAYER_STRIDE; L=lambda s:f"{name}_{s}"
    a(f"{name}:\ns_cmp_ge_u32 s2, 256\ns_cbranch_scc1 {L('end')}"); entry(a); src_x(a,layer,0)
    a(f"s_and_b32 {a1.sHd}, s2, 31\ns_lshr_b32 {a1.sSeg}, s2, 5")
    a1.consts(a); a1.fetch(a,a1.sSeg); a1.load_qkv(a,"kvq")
    a(f"{L('loop')}:")
    def nxt():
        a(f"s_add_u32 {T2}, {a1.sSeg}, 8\ns_min_u32 {T2}, {T2}, 63"); a1.fetch(a,T2)
    a1.segment(a,lo,nxt,lambda i:None)
    a(f"s_add_u32 {a1.sSeg}, {a1.sSeg}, 8\ns_cmp_lt_u32 {a1.sSeg}, 64\ns_cbranch_scc1 {L('loop')}\ns_waitcnt vmcnt(0)\n{L('end')}:\ns_endpgm")
def k_a2(a, layer, name):
    lo=layer*LAYER_STRIDE; L=lambda s:f"{name}_{s}"
    a(f"{name}:\ns_cmp_ge_u32 s2, 256\ns_cbranch_scc1 {L('end')}"); entry(a)
    a(f"s_and_b32 {a1.sHd}, s2, 31\ns_lshr_b32 {a1.sSeg}, s2, 5\ns_mov_b32 s38, 0")
    a1.consts(a); a1.load_qkv(a,"kv"); a2.consts(a)
    a(f"{L('loop')}:")
    a2.pre(a,lo,OFF_M); a2.post(a,L('end'),"s38",100000)
    a(f"s_add_u32 {a1.sSeg}, {a1.sSeg}, 8\ns_cmp_lt_u32 {a1.sSeg}, 64\ns_cbranch_scc1 {L('loop')}\n{L('end')}:\ns_waitcnt vmcnt(0)\ns_endpgm")
def k_awo(a, layer, name):
    lo=layer*LAYER_STRIDE; L=lambda s:f"{name}_{s}"
    a(f"{name}:\ns_cmp_ge_u32 s2, 252\ns_cbranch_scc1 {L('end')}"); entry(a); src_x(a,layer,0)
    a(f"s_mul_i32 {awo.sTask}, s2, 43691\ns_lshr_b32 {awo.sTask}, {awo.sTask}, 19\ns_mul_i32 {T0}, {awo.sTask}, 12\ns_sub_u32 {awo.sCg}, s2, {T0}")
    awo.consts(a); awo.load_w(a)
    a(f"{L('loop')}:")
    awo.task(a,lo)
    a(f"s_add_u32 {awo.sTask}, {awo.sTask}, 21\ns_cmp_lt_u32 {awo.sTask}, 128\ns_cbranch_scc1 {L('loop')}\ns_waitcnt vmcnt(0)\n{L('end')}:\ns_endpgm")
def k_bqkv(a, layer, name):
    lo=layer*LAYER_STRIDE; L=lambda s:f"{name}_{s}"
    a(f"{name}:\ns_cmp_ge_u32 s2, 252\ns_cbranch_scc1 {L('end')}"); entry(a); src_x(a,layer,1)
    a(f"s_mul_i32 {a1.sSeg}, s2, 58255\ns_lshr_b32 {a1.sSeg}, {a1.sSeg}, 19\ns_mul_i32 {T0}, {a1.sSeg}, 9\ns_sub_u32 {bqkv.sU}, s2, {T0}")
    a1.consts(a); a1.fetch(a,a1.sSeg); bqkv.load_w(a)
    a(f"{L('loop')}:")
    def nxt():
        a(f"s_add_u32 {T2}, {a1.sSeg}, 28\ns_min_u32 {T2}, {T2}, 63"); a1.fetch(a,T2)
    bqkv.segment(a,lo,nxt)
    a(f"s_add_u32 {a1.sSeg}, {a1.sSeg}, 28\ns_cmp_lt_u32 {a1.sSeg}, 64\ns_cbranch_scc1 {L('loop')}\ns_waitcnt vmcnt(0)\n{L('end')}:\ns_endpgm")
def k_batt(a, layer, name, lrange=120<<23):
    lo=layer*LAYER_STRIDE; L=lambda s:f"{name}_{s}"
    a(f"{name}:\ns_cmp_ge_u32 s2, 256\ns_cbranch_scc1 {L('end')}"); entry(a)
    a(f"s_and_b32 {batt.sHd}, s2, 31\ns_lshr_b32 {batt.sJ}, s2, 5")
    batt.consts(a,lo); batt.run(a,lo,8,8,lrange)
    a(f"s_waitcnt vmcnt(0)\n{L('end')}:\ns_endpgm")
def k_bwo(a, layer, name):
    lo=layer*LAYER_STRIDE; L=lambda s:f"{name}_{s}"
    a(f"{name}:\ns_cmp_ge_u32 s2, 192\ns_cbranch_scc1 {L('end')}"); entry(a); src_x(a,layer,1)
    a(f"s_and_b32 {bwo.sSeg}, s2, 63\ns_lshr_b32 {bwo.sCg}, s2, 6")
    bwo.consts(a); bwo.load_w(a)
    if layer==0: bwo.task(a,lo,sWS,OFF_X2,"sc1")
    else: srd(a,sB,P_OUT,XB_); bwo.task(a,lo,sB,0,"")
    a(f"s_waitcnt vmcnt(0)\n{L('end')}:\ns_endpgm")
import chain as C
CH_CFG=dict(vpos=[1,4,7,10,13], kpos=[16,19], vxpos=[34,35], nV=[5,4,2,3], sm2=1, sfill=2, keepalive=1, bar3=2, nst0=2, dm=[36,36,36],
   tP=[200,240,340,380,380], tB=[0,0,0], dpoll=40, dkeep=[0,0,0,0], pollgap=0)
def k_chain(a, layer, name):
    L=lambda s:f"{name}_{s}"
    a(f"{name}:\ns_cmp_ge_u32 s2, 256\ns_cbranch_scc1 {L('end')}\ns_getreg_b32 {sXc}, hwreg(HW_REG_XCC_ID, 0, 4)\ns_add_u32 {sXc}, {sXc}, 1"); entry(a)
    a(f"v_mov_b32 v10, 0\ns_mov_b32 {T0}, {OFF_FLAG}\ns_cmp_eq_u32 s2, 0\ns_cselect_b32 {T0}, {T0}, 0x40000000\nbuffer_store_dword v10, v10, {sWS}, {T0} offen sc1")
    announce(a); elect(a,L('end'),C.sH)
    a(f"s_cmp_lt_u32 {C.sH}, 32\ns_cbranch_scc0 {L('end')}")
    srd(a,sX,P_MEM,9216); srd(a,sA,P_WQ,4718592); srd(a,sB,P_WK,4718592); srd(a,sC_,P_WV,4718592); srd(a,sD,P_WO,4718592)
    for w in (1,2,3): a(f"s_cmp_eq_u32 {sW}, {w}\ns_cbranch_scc1 {L(f'w{w}')}")
    for w in range(4):
        a(f"{L(f'w{w}')}:")
        C.prologue_consts(a,w); C.init_comm(a,w,sX)
        a("s_waitcnt vmcnt(0)\ns_barrier")
        if w==0: a(f"v_mov_b32 v12, 0\nv_mov_b32 v13, 1\ns_mov_b32 {T0}, {OFF_FLAG}\ns_mov_b64 exec, 1\nbuffer_atomic_add v13, v12, {sWS}, {T0} offen\ns_mov_b64 exec, -1")
        C.load_weights(a,w,{"q":sA,"k":sB,"v":sC_,"o":sD})
        C.set_layer(a,w,layer*LAYER_STRIDE)
        pre=f"{name}{w}"
        if w==0:
            a(f"v_mov_b32 v12, 0\ns_mov_b32 {T0}, {OFF_FLAG}\n{L('arr')}:\nbuffer_load_dword v13, v12, {sWS}, {T0} offen sc1")
            C.spin_guard(a,f"{pre}_fail")
            a(f"s_waitcnt vmcnt(0)\nv_readfirstlane_b32 {T1}, v13\ns_cmp_ge_u32 {T1}, 32\ns_cbranch_scc0 {L('arr')}")
        a("s_barrier")
        def mid(w):
            if w!=3: return []
            return [f"s_add_u32 {C.sT0}, {C.sK}, {32*16384-3*2048+8192}", f"buffer_load_dword v11, {C.vAux}, {sWS}, {C.sT0} offen sc1",
                    f"s_sub_u32 {C.sT0}, {C.sT0}, 8192", f"buffer_load_dword v11, {C.vAux}, {sWS}, {C.sT0} offen sc1"]
        hooks=dict(mid=mid, end=lambda a,w: a(f"s_cmp_eq_u32 {C.sSeg}, 63\ns_cbranch_scc1 {pre}_fail"), qk=lambda w:[], pre_k=lambda w:[], sal=lambda w:[], prefix=pre)
        C.step_loop(a,w,CH_CFG,hooks)
        a(f"{pre}_fail:\ns_waitcnt vmcnt(0) lgkmcnt(0)\ns_endpgm")
    a(f"{L('end')}:\ns_endpgm")
def full_list():
    fns=[]
    for l in range(2):
        for nm,f in (("a1",k_a1),("ch",k_chain),("a2",k_a2),("aw",k_awo),("bq",k_bqkv),("ba",k_batt),("bw",k_bwo)):
            n=f"{nm}{l}_kernel"; fns.append((n,(lambda a,f=f,l=l,n=n: f(a,l,n))))
    return build_list(fns)
KD="""
.section .rodata,"a"
.p2align 6
.amdhsa_kernel {name}
  .amdhsa_next_free_vgpr 512
  .amdhsa_next_free_sgpr 102
  .amdhsa_accum_offset 256
  .amdhsa_group_segment_fixed_size 0
  .amdhsa_kernarg_size 104
  .amdhsa_user_sgpr_count 2
  .amdhsa_user_sgpr_kernarg_segment_ptr 1
  .amdhsa_system_sgpr_workgroup_id_x 1
.end_amdhsa_kernel
"""
def compact(t):
    o=[]
    for l in t.split("\n"):
        l=l.split(";")[0].strip().replace(", ",",").replace(" offset:0 "," ")
        if l.endswith(" offset:0"): l=l[:-9]
        if l: o.append(l)
    return "\n".join(o)+"\n"
def build_list(fns):
    head="".join(f"; @launch kernel={n} grid=(256,1,1) block=(256,1,1) lds=163840\n" for n,_ in fns)
    body='.amdgcn_target "amdgcn-amd-amdhsa--gfx950"\n.text\n'
    for n,f in fns:
        a=Asm(); a.uid=1000*len(body); f(a)
        body+=f".globl {n}\n.p2align 8\n.type {n},@function\n"+compact(a.finish())
    return head+body+"".join(KD.format(name=n) for n,_ in fns)
if __name__=="__main__":
    t=full_list()
    ref=open("interleave_layers__memory_aug_recurrent_mem_tr__mha_block__prompt.s.ref").read()
    hdr="".join(l+"\n" for l in ref.split("\n")[:14])
    open("interleave_layers__memory_aug_recurrent_mem_tr__mha_block__prompt.s","w").write(hdr+t)
    print(len(t))
```

```python
from wk import *
sHd,sJ,sKm,sKr,sV,sQm,sQr,sIt,sQb,sLlo="s25","s26","s27","s28","s29","s30","s31","s32","s33","s34"
VM="s[40:41]"
vL16,vQm,vQr,vKm,vKr,vV,vOr,vMg="v1","v2","v3","v4","v5","v6","v7","v8"
S=[192,208]; P=24; KV=[224,240]; QB=32
def m32(d,A,B,C): return f"v_mfma_f32_32x32x16_bf16 {d}, {A}, {B}, {C}"
def consts(a, lo):
    a(f"""
    v_lshlrev_b32 {vL16}, 4, v0
    v_and_b32 v10, 31, v0                  ; m
    v_lshrrev_b32 v11, 5, v0               ; hi
    v_lshlrev_b32 v12, 4, v11
    v_lshl_add_u32 {vQm}, v10, 5, v12
    v_lshlrev_b32 {vQr}, 3, v10
    v_lshl_add_u32 {vV}, v10, 6, v12
    v_lshlrev_b32 {vOr}, 2, v10
    v_and_b32 v13, 7, v10                  ; 4hi' + r
    v_bfe_u32 v14, v10, 3, 1
    v_lshl_add_u32 v13, v14, 4, v13
    v_lshrrev_b32 v14, 4, v10
    v_lshl_add_u32 v13, v14, 3, v13
    v_lshl_add_u32 {vKm}, v13, 5, v12
    v_lshlrev_b32 v13, 3, v13
    v_lshl_add_u32 {vKr}, v11, 30, v13
    s_mul_i32 {T0}, {sW}, 3072
    v_add_u32 {vMg}, {T0}, {vL16}
    s_mov_b32 s40, 0x3ffff
    s_mov_b32 s41, 0x3ffff
    s_lshl_b32 {T0}, {sHd}, 16
    s_add_u32 {sQm}, {T0}, {lo+OFF_BQ}
    s_lshr_b32 {T0}, {sHd}, 1
    s_lshl_b32 {T0}, {T0}, 14
    s_and_b32 {T1}, {sHd}, 1
    s_lshl_b32 {T1}, {T1}, 2
    s_add_u32 {T0}, {T0}, {T1}
    s_add_u32 {sQr}, {T0}, {lo+OFF_BQR}
    s_mov_b32 {sLlo}, {(127-60)<<23}
    """)
    for b in KV:
        for i in (4,5,7): a(f"v_mov_b32 v{b+i}, 0")
        for i in range(8,16): a(f"v_mov_b32 v{b+i}, 0x3f803f80")
def kv_ptr(a, lo, kb):
    a(f"""s_lshl_b32 {T0}, {kb}, 10
    s_add_u32 {sKm}, {sQm}, {T0}
    s_add_u32 {sKm}, {sKm}, {OFF_BK-OFF_BQ}
    s_lshl_b32 {T0}, {kb}, 8
    s_add_u32 {sKr}, {sQr}, {T0}
    s_add_u32 {sKr}, {sKr}, {OFF_BKR-OFF_BQR}
    s_mul_i32 {T0}, {kb}, {576*64}
    s_mul_i32 {T1}, {sHd}, {18*64}
    s_add_u32 {T0}, {T0}, {T1}
    s_add_u32 {sV}, {T0}, {lo+OFF_BV}""")
def kv_load(b, step):
    return [f"buffer_load_dwordx4 {q(b)}, {vKm}, {sWS}, {sKm} offen sc1", f"buffer_load_dword v{b+6}, {vKr}, {sWS}, {sKr} offen sc1",
            f"s_mov_b64 exec, {VM}\nbuffer_load_dwordx4 {q(b+8)}, {vV}, {sWS}, {sV} offen sc1\ns_mov_b64 exec, -1",
            f"s_mov_b64 exec, {VM}\nbuffer_load_dwordx4 {q(b+12)}, {vV}, {sWS}, {sV} offen offset:32 sc1\ns_mov_b64 exec, -1",
            f"s_add_u32 {sKm}, {sKm}, {1024*step}", f"s_add_u32 {sKr}, {sKr}, {256*step}", f"s_add_u32 {sV}, {sV}, {576*64*step}"]
def q_load(a, r, qb):
    a(f"""s_lshl_b32 {T0}, {qb}, 10
    s_add_u32 {T0}, {T0}, {sQm}
    s_lshl_b32 {T1}, {qb}, 8
    s_add_u32 {T1}, {T1}, {sQr}
    buffer_load_dwordx4 {q(r)}, {vQm}, {sWS}, {T0} offen sc1
    buffer_load_dword v{r+4}, {vQr}, {sWS}, {T1} offen sc1
    v_mov_b32 v{r+5}, 0""")
def qk(s,b,r,C=0): return [m32(q(s,16),q(b),q(r),C), m32(q(s,16),q(b+4),q(r+2),q(s,16))]
def quarter(s,i): return [f"v_exp_f32 v{s+4*i+j}, v{s+4*i+j}" for j in range(4)]+[cv(P+2*i,s+4*i,s+4*i+1),cv(P+2*i+1,s+4*i+2,s+4*i+3)]
def run(a, lo, NQ, J, lrange=120<<23, stored=None):
    L=lambda s: a.lab("ba_"+s)
    assert NQ%2==0
    kv_ptr(a,lo,sW)
    for x in kv_load(KV[0],4): a(x)
    for i in range(NQ):
        a(f"s_add_u32 {T2}, {sJ}, {J*i}\ns_min_u32 {T2}, {T2}, 63"); q_load(a,QB+6*i,T2)
    for i in range(16*NQ): a(f"v_accvgpr_write_b32 a{i}, 0")
    for i in range(4,8): a(f"v_mov_b32 v{P+i}, 0")
    a(f"s_mov_b32 {sIt}, 0\ns_waitcnt vmcnt(0)")
    for x in qk(S[0],KV[0],QB): a(x)
    O=lambda i: q(16*i,16,"a")
    lp=L("loop"); a(f"{lp}:")
    for half in range(2):
        b=KV[half]; nb=KV[half^1]; ld=kv_load(nb,4)
        for i in range(NQ):
            s=S[i&1]; ns=S[(i+1)&1]
            last=i==NQ-1
            nq=qk(ns,nb if last else b,QB+6*((i+1)%NQ))
            pv1=m32(O((i-1)%NQ),q((nb if i==0 else b)+12),q(P+4),O((i-1)%NQ)); pv0=m32(O(i),q(b+8),q(P),O(i))
            if last: a("s_waitcnt vmcnt(0)")
            for k,mm in enumerate((nq[0],nq[1],pv1,pv0)):
                a(mm)
                if i>=1 and ld: a(ld.pop(0))
                for x in quarter(s,k): a(x)
    a(f"s_add_u32 {sIt}, {sIt}, 1\ns_cmp_lt_u32 {sIt}, 8\ns_cbranch_scc1 {lp}")
    a(m32(O(NQ-1),q(KV[1]+12),q(P+4),O(NQ-1)))
    a(f"v_add_u32 v10, 0xf000, {vMg}\ns_barrier")
    for i in range(NQ):
        for t in range(3): a(f"ds_write_b128 {vMg if i<5 else 'v10'}, a[{16*i+4*t}:{16*i+4*t+3}] offset:{(i%5)*12288+1024*t}")
    a(f"s_mov_b32 {sIt}, {sW}\ns_waitcnt lgkmcnt(0)\ns_barrier")
    fin,done,slow,norm=L("fin"),L("done"),L("slow"),L("norm")
    R=160
    a(f"""{fin}:
    s_mul_i32 {sQb}, {sIt}, {J}
    s_add_u32 {sQb}, {sQb}, {sJ}
    s_cmp_ge_u32 {sQb}, 64
    s_cbranch_scc1 {done}
    s_mul_i32 {T0}, {sIt}, 12288
    v_add_u32 v10, {T0}, {vL16}""")
    for k in range(12): a(f"ds_read_b128 {q(R+4*k)}, v10 offset:{1024*k}")
    a("s_waitcnt lgkmcnt(0)")
    for i in range(11): a(f"v_add_f32 v{R+i}, v{R+i}, v{R+12+i}\nv_add_f32 v{R+24+i}, v{R+24+i}, v{R+36+i}")
    for i in range(11): a(f"v_add_f32 v{R+i}, v{R+i}, v{R+24+i}")
    a(f"""v_mov_b32 v{R+11}, v{R+10}
    v_permlane32_swap_b32 v{R+10}, v{R+11}
    v_subrev_u32 v{R+12}, {sLlo}, v{R+10}
    v_cmp_lt_u32 vcc, {hex(lrange)}, v{R+12}
    s_cbranch_vccnz {slow}
    {norm}:
    v_rcp_f32 v{R+10}, v{R+10}
    s_lshl_b32 {T0}, {sQb}, 10
    s_add_u32 {T0}, {T0}, {sQm}
    s_add_u32 {T0}, {T0}, {OFF_BO-OFF_BQ}
    s_lshl_b32 {T1}, {sHd}, 6
    s_add_u32 {T1}, {T1}, {sQb}
    s_lshl_b32 {T1}, {T1}, 7
    s_add_u32 {T1}, {T1}, {lo+OFF_BOR}""")
    for i in range(10): a(f"v_mul_f32 v{R+i}, v{R+i}, v{R+10}")
    for i in range(5): a(cv(R+i,R+2*i,R+2*i+1))
    a(f"""buffer_store_dwordx4 {q(R)}, {vQm}, {sWS}, {T0} offen sc1
    s_mov_b64 exec, 0xffffffff
    buffer_store_dword v{R+4}, {vOr}, {sWS}, {T1} offen sc1
    s_mov_b64 exec, -1""")
    if stored: stored()
    a(f"""s_add_u32 {sIt}, {sIt}, 4
    s_cmp_lt_u32 {sIt}, {NQ}
    s_cbranch_scc1 {fin}
    s_branch {done}""")
    p1,p2=L("p1"),L("p2"); s=S[0]; CM=S[1]; b=KV[0]; mx=R+16
    a(f"{slow}:"); q_load(a,QB,sQb); kv_ptr(a,lo,0)
    a(f"v_mov_b32 v{mx}, 0xff800000\ns_mov_b32 {T2}, 0\n{p1}:")
    for x in kv_load(b,1): a(x)
    a("s_waitcnt vmcnt(0)")
    for x in qk(s,b,QB): a(x)
    for i in range(0,16,2): a(f"v_max3_f32 v{mx}, v{mx}, v{s+i}, v{s+i+1}")
    a(f"""s_add_u32 {T2}, {T2}, 1
    s_cmp_lt_u32 {T2}, 64
    s_cbranch_scc1 {p1}
    v_mov_b32 v{mx+1}, v{mx}
    v_permlane32_swap_b32 v{mx}, v{mx+1}
    v_max_f32 v{mx}, v{mx}, v{mx+1}""")
    for i in range(16): a(f"v_sub_f32 v{CM+i}, 0, v{mx}\nv_mov_b32 v{R+i}, 0")
    kv_ptr(a,lo,0); a(f"s_mov_b32 {T2}, 0\n{p2}:")
    for x in kv_load(b,1): a(x)
    a("s_waitcnt vmcnt(0)")
    for x in qk(s,b,QB,q(CM,16)): a(x)
    for k in range(4):
        for x in quarter(s,k): a(x)
    a(m32(q(R,16),q(b+8),q(P),q(R,16))); a(m32(q(R,16),q(b+12),q(P+4),q(R,16)))
    a(f"""s_add_u32 {T2}, {T2}, 1
    s_cmp_lt_u32 {T2}, 64
    s_cbranch_scc1 {p2}
    v_mov_b32 v{R+11}, v{R+10}
    v_permlane32_swap_b32 v{R+10}, v{R+11}
    s_branch {norm}
    {done}:""")
```

```python
from asmgen import Asm
from layout import *
import math, struct

def f2u(x): return struct.unpack("<I", struct.pack("<f", x))[0]

vL16, vL8, vPsc, vW, vXr, vIdx, vPst, vMst, vAux, vOa = [f"v{i}" for i in range(10)]
vOr = "v10"
MEM0 = 12
POOL = 48
WV0 = 88
def q(base, n=4): return f"v[{base}:{base+n-1}]"
def m(k): return MEM0+4*k
def p(i): return POOL+i
LW = 19*2048
L_SCR = 0
L_W0 = 8192
L_PM = 0
L_PX = 512
L_SEL = 1024
L_O = 2048
L_XS = 4096
BIAS = 0
sWS = "s[8:11]"
sH, sSeg, sPar, sM0, sM1, sM2, sMst, sMpo, sKV, sPub, sPA, sPB, sPC, sPld, sCnt, sT0, sT1, sSlot, sC, sLayer, sFlg, sTch = [f"s{i}" for i in range(24,46)]
sK, sPubX, sLlo, sC2, sHint, sSig = "s56","s57","s58","s[22:23]","s59","s20"
sPld1 = sTch; sPA1, sPB1 = sSlot, sFlg; sMtc = sTch; sMst1 = sMpo
sOne = "s18"; sDis = "s19"; sRdy2 = "s[16:17]"
sHalf1 = "s[46:47]"; sHalf0 = "s[48:49]"; sRdy="s[50:51]"
import os
NREP = int(os.environ.get('NREP',2))
SPIN_MAX = 2000000

KORDER = [8,0,1,2,3,4,5,6,7]
def kap(k): return (k+1)%9

class Plan:
    def __init__(self, w):
        self.loc={}
        qk=[]
        for j,k in enumerate(KORDER[:7]):
            qk+=[("q",0,k),("k",0,k),("q",1,k),("k",1,k)]
            if j<2: qk+=[("v",0,k),("v",1,k)]
        ka,kb=KORDER[7:]
        qk+=[("q",0,ka),("q",1,ka),("q",0,kb),("q",1,kb),("k",0,ka),("k",0,kb),("k",1,ka),("k",1,kb)]
        vv=[("v",t,k) for k in KORDER[2:] for t in range(2)]
        oth=[x for x in range(4) if x!=w]
        self.oth=oth
        pairs=[("A",0),("A",1),("B",0),("B",1)]
        self.wo1=[("o",ty,pi,w) for ty,pi in pairs]
        self.wo2=[("o",ty,pi,x) for ty,pi in pairs for x in oth]
        woc=[("o","C",0),("o","C",1)]
        self.qk, self.vv = qk, vv
        self.qk_lds=list(range(0,37,3))
        self.wo_lds=[self.wo1[0],self.wo1[1],self.wo2[5],self.wo2[7],self.wo2[9],self.wo2[11]]
        slot=0
        for i in self.qk_lds: self.loc[qk[i]]=("l",slot); slot+=1
        for f in self.wo_lds: self.loc[f]=("l",slot); slot+=1
        r=0
        for f in qk+vv+self.wo1+self.wo2+woc:
            if f in self.loc: continue
            self.loc[f]=("a",8*r) if r<32 else ("v",WV0+8*(r-32)); r+=1
        assert r==53 and slot==19
    def reg(self,f):
        k,b=self.loc[f]; return f"{k}[{b}:{b+7}]"
    def regC(self,x):
        k,b=self.loc[("o","C",x>>1)]; b+=4*(x&1); return f"{k}[{b}:{b+3}]"
PLANS=[Plan(w) for w in range(4)]

def prologue_consts(a, w):
    a(f"""
    v_mov_b32 v10, v0
    v_and_b32 v11, 15, v10                 ; n
    v_lshrrev_b32 v12, 4, v10              ; g
    v_lshlrev_b32 v13, 4, v10
    v_add_u32 {vW}, {L_W0+w*LW}, v13
    v_add_u32 {vL16}, {BIAS}, v13
    v_lshlrev_b32 v13, 3, v10
    v_add_u32 {vL8}, {BIAS}, v13
    v_lshlrev_b32 v13, 2, v11
    v_lshl_add_u32 {vPsc}, v12, 11, v13
    v_and_b32 v13, 3, v10                  ; c = n&3
    v_lshrrev_b32 v14, 2, v10              ; l>>2 = 4g + r
    v_lshlrev_b32 v15, 7, v13
    v_lshl_add_u32 v15, v14, 3, v15
    v_add_u32 {vXr}, {BIAS}, v15
    v_and_b32 v15, 1, v10
    v_lshlrev_b32 v15, 4, v15
    v_lshl_add_u32 {vOa}, v14, 5, v15
    s_mov_b32 s46, 0xcccccccc
    s_mov_b32 s47, 0xcccccccc
    s_mov_b32 s48, 0x33333333
    s_mov_b32 s49, 0x33333333
    v_mov_b32 v15, 0x4444
    v_mov_b32 v16, 0xeeee
    v_cndmask_b32 {vIdx}, v15, v16, {sHalf1}
    v_lshrrev_b32 v15, 3, v11              ; n>>3
    v_lshl_add_u32 v15, v15, 2, v12
    v_lshlrev_b32 v15, 11, v15
    v_and_b32 v17, 7, v11
    v_lshl_add_u32 {vPst}, v17, 3, v15
    v_and_b32 v15, 2, v11                  ; 2half
    v_lshrrev_b32 v16, 1, v12              ; p
    v_add_u32 v15, v15, v16
    v_lshlrev_b32 v15, 4, v15
    v_and_b32 v16, 1, v11                  ; piece
    v_and_b32 v17, 1, v12                  ; g2
    v_lshl_add_u32 v16, v16, 1, v17
    v_lshl_add_u32 {vMst}, v16, 2, v15
    v_lshlrev_b32 {vAux}, 7, v10
    """)
    if w==0:
        a(f"""
        v_lshrrev_b32 v15, 2, v11              ; gamma
        v_and_b32 v16, 1, v15
        v_lshl_add_u32 v16, v16, 1, v13        ; tau = 2*g2 + r   (r = n&3)
        v_mov_b32 v17, 99
        v_cmp_gt_u32 vcc, 2, v13
        v_cndmask_b32 v16, v17, v16, vcc
        v_mov_b32 v17, 0x3f80
        v_mov_b32 v18, 0x3f800000
        v_cmp_lt_u32 vcc, 1, v15
        v_cndmask_b32 v17, v17, v18, vcc
        """)
        for t in range(4):
            a(f"v_cmp_eq_u32 vcc, {t}, v16\nv_cndmask_b32 v{20+t}, 0, v17, vcc")
        a(f"ds_write_b128 {vL16}, v[20:23] offset:{L_SEL-BIAS}")

def load_weights(a, w, srd):
    vA,vC,vO,vOC,vTr = "v11","v12","v13","v14","v15"
    T=80
    a(f"""
    v_and_b32 v16, 3, v10                  ; c
    v_lshlrev_b32 v21, 4, v16              ; c*16
    v_bfe_u32 v17, v10, 2, 1               ; i0
    v_bfe_u32 v18, v10, 3, 1               ; half
    v_bfe_u32 v19, v10, 4, 1               ; g2
    v_bfe_u32 v20, v10, 5, 1               ; piece
    v_lshl_add_u32 v17, v19, 1, v17        ; tau
    v_lshl_add_u32 v19, v18, 1, v20        ; 2half+piece
    v_bfe_u32 v22, v10, 2, 1               ; i0
    v_lshl_add_u32 v22, v22, 3, v19
    v_bfe_u32 v23, v10, 4, 1               ; g2
    v_lshl_add_u32 v22, v22, 1, v23
    v_lshl_add_u32 {vA}, v22, 13, v21
    v_lshl_add_u32 v22, v19, 2, v17
    v_lshl_add_u32 {vC}, v22, 13, v21
    v_lshl_add_u32 v22, v20, 4, v17        ; 16piece+tau
    v_mul_u32_u24 v23, 1152, v22
    v_lshrrev_b32 v24, 1, v16              ; t = c>>1
    v_and_b32 v25, 1, v16
    v_lshlrev_b32 v25, 4, v25              ; (c&1)*16
    v_lshl_add_u32 v22, v24, 3, v18        ; 8t+half
    v_lshl_add_u32 v22, v22, 5, v25
    v_add_u32 {vO}, v23, v22
    v_bfe_u32 v22, v10, 2, 2               ; kk&3
    v_bfe_u32 v23, v10, 4, 1
    v_lshl_add_u32 v22, v23, 4, v22
    v_lshl_add_u32 v22, v20, 2, v22
    v_lshl_add_u32 v22, v24, 6, v22
    v_mul_u32_u24 v22, 1152, v22
    v_add_u32 {vOC}, v22, v25
    v_lshrrev_b32 v22, 4, v10
    v_bfe_u32 v23, v10, 2, 2
    v_lshl_add_u32 v22, v22, 3, v23
    v_lshlrev_b32 v22, 6, v22
    v_lshl_add_u32 v22, v16, 3, v22
    v_add_u32 {vTr}, {L_W0+w*LW+11*2048}, v22
    s_lshl_b32 {sT0}, {sH}, 8
    s_mul_i32 {sT1}, {sH}, {128*1152}
    """)
    blocks=[]
    for k in KORDER:
        for mu in "qkv":
            blocks.append(([(mu,0,k),(mu,1,k)], srd[mu], vC if kap(k)==8 else vA, sT0,
                           [((64*kap(k)+(16*i if kap(k)==8 else 32*(i>>1)+8*(i&1)))*8192 + w*64) for i in range(4)]))
    for ty,b in (("A",0),("B",1)):
        for x in range(4):
            blocks.append(([("o",ty,0,x),("o",ty,1,x)], srd["o"], vO, sT1, [(32*x+4*i)*1152 + 512*b + 64*w for i in range(4)]))
    blocks.append(([("o","C",0),("o","C",1)], srd["o"], vOC, sT1, [(32*(i>>1)+8*(i&1))*1152+(512+16*w)*2 for i in range(4)]))
    assert len(blocks)==36
    NB=4
    def issue(bi):
        fr,s,va,sb,offs=blocks[bi]
        for i in range(4):
            a(f"s_add_u32 s60, {sb}, {offs[i]}")
            a(f"s_mov_b32 m0, {L_W0+w*LW+11*2048+(bi%NB)*4096+i*1024}")
            a(f"buffer_load_dwordx4 {va}, {s}, s60 offen lds")
    for bi in range(NB-1): issue(bi)
    for bi in range(36):
        if bi+NB-1<36:
            a("s_waitcnt lgkmcnt(0)")
            issue(bi+NB-1)
        left=min(36,bi+NB)-bi-1
        a(f"s_waitcnt vmcnt({4*left})")
        for t,f in enumerate(blocks[bi][0]):
            kind,b=PLANS[w].loc[f]
            if kind=="l":
                rk,rb=("v",T) if b<11 else ("v",16+8*(b-11))
            else: rk,rb=kind,b
            for qd in range(4):
                a(f"ds_read_b64_tr_b16 {rk}[{rb+2*qd}:{rb+2*qd+1}], {vTr} offset:{(bi%NB)*4096+t*32+(qd&1)*256+(qd>>1)*2048}")
            if kind=="l" and b<11:
                a("s_waitcnt lgkmcnt(0)")
                a(f"ds_write_b128 {vW}, v[{T}:{T+3}] offset:{b*2048}")
                a(f"ds_write_b128 {vW}, v[{T+4}:{T+7}] offset:{b*2048+1024}")
    a("s_waitcnt lgkmcnt(0)")
    for b in range(11,19):
        rb=16+8*(b-11)
        a(f"ds_write_b128 {vW}, v[{rb}:{rb+3}] offset:{b*2048}")
        a(f"ds_write_b128 {vW}, v[{rb+4}:{rb+7}] offset:{b*2048+1024}")
    a("s_waitcnt lgkmcnt(0)")

TW = 1
GROUPS = [[0],[1,4],[2],[3]]

def mso(i): return (sMst,sMst1)[i]
def store_mem0(a, w, srd_mem, lane):
    for i,g in enumerate(GROUPS[w]):
        a(f"""
        v_and_b32 v12, 3, {lane}               ; 2half+piece
        v_bfe_u32 v14, {lane}, 4, 1            ; g2
        v_lshrrev_b32 v13, 5, {lane}           ; p
        v_mul_u32_u24 v13, 1152, v13
        v_lshl_add_u32 v12, v12, 1, v14        ; 2(2half+piece)+g2
        v_lshl_add_u32 v13, v12, {2 if g==4 else 1}, v13
        s_and_b32 {sT0}, {sH}, 3
        s_mul_i32 {sT0}, {sT0}, {2*1152}
        """)
        if g<4:
            a(f"""s_lshr_b32 {sT1}, {sH}, 3
            s_lshl_b32 {sT1}, {sT1}, 6
            s_add_u32 {sT0}, {sT0}, {sT1}
            s_bfe_u32 {sT1}, {sH}, 0x10002
            s_lshl_b32 {sT1}, {sT1}, 4
            s_add_u32 {sT0}, {sT0}, {sT1}""")
        else:
            a(f"""s_lshr_b32 {sT1}, {sH}, 2
            s_lshl_b32 {sT1}, {sT1}, 5
            s_add_u32 {sT0}, {sT0}, {sT1}""")
        a(f"""buffer_load_ushort v14, v13, {srd_mem}, {sT0} offen offset:{256*g}
        buffer_load_ushort v15, v13, {srd_mem}, {sT0} offen offset:{256*g+(2 if g==4 else 32)}
        s_waitcnt vmcnt(0)
        v_lshl_or_b32 v{16+i}, v15, 16, v14
        v_min_u32 v{16+i}, -2, v{16+i}
        buffer_store_dword v{16+i}, {vMst}, {sWS}, {mso(i)} offen""")

def next_slots(w):
    return [f"s_add_u32 {x}, {x}, 0x4000" for x in [sM0,sM1,sM2,sMst]+([sMst1] if w==TW else [])+([sMtc] if w==3 else [])]

def mload(k, fl=""):
    b=kap(k); s=[sM0,sM1,sM2][b>>2]
    return f"buffer_load_dwordx4 {q(m(k))}, {vL16}, {sWS}, {s} offen offset:{(b&3)*1024} {fl}".rstrip()
def zero(base, n): return [f"v_mov_b32 v{base+i}, 0" for i in range(n)]
def delay(a, clks):
    n=clks//4
    while n>0:
        k=min(n,5); a("v_nop")
        if k>1: a(f"s_nop {k-2}")
        n-=k
def weave(v, o):
    v=list(v); o=list(o); r=[]
    while v or o:
        if v: r.append(v.pop(0))
        r.append(o.pop(0) if o else "s_nop 0")
    return r
def spin_guard(a, fail):
    a(f"s_add_u32 {sCnt}, {sCnt}, 1\ns_cmp_gt_u32 {sCnt}, {SPIN_MAX}\ns_cbranch_scc1 {fail}")
DPP="row_mask:0xf bank_mask:0xf"

def step_loop(a, w, cfg, hooks):
    P=PLANS[w]; L=lambda s: f"{hooks.get('prefix',f'ch{w}')}_{s}"
    def E(lst):
        for x in lst: a(x)
    def stage(buf,f):
        b=P.loc[f][1]
        return [f"ds_read_b128 {q(buf)}, {vW} offset:{b*2048}", f"ds_read_b128 {q(buf+4)}, {vW} offset:{b*2048+1024}"]
    def sm(acc,A,B): return f"v_smfmac_f32_16x16x64_bf16 {q(acc)}, {q(A)}, {B}, {vIdx}"
    def mf(d,A,B,C): return f"v_mfma_f32_16x16x32_bf16 {q(d)}, {A}, {B}, {C}"
    def fold(base,dst):
        return [f"v_add_f32 v{base}, v{base}, v{base+2}", f"v_add_f32 v{base+1}, v{base+1}, v{base+3}", f"v_cvt_pk_bf16_f32 v{dst}, v{base}, v{base+1}"]
    def younger(x, since):
        vm=[y for y in a.lines[since:] if y.startswith("buffer")]
        return len(vm)-1-max(k for k,y in enumerate(vm) if y==x)
    S0,S1=p(16),p(24); ST=[S0,S1]; VA=p(32)
    acc={("q",0):p(0),("q",1):p(4),("k",0):p(8),("k",1):p(12),("v",0):VA,("v",1):VA+4}
    KX=[m(8),m(0)]; VX=[S1,S1+4]
    fail=L("fail"); late=[]
    prep_qk=zero(p(0),16)+stage(S0,P.qk[P.qk_lds[0]])+stage(S1,P.qk[P.qk_lds[1]])
    a(f"{L('entry')}:")
    a(f"v_and_b32 {vOr}, 8, {vPsc}\nv_add_u32 {vOr}, {vOa}, {vOr}")
    E(prep_qk); E(zero(VA,8))
    NPRE=4
    for k in KORDER[:NPRE]: a(mload(k))
    a("s_waitcnt vmcnt(0)")
    if w==0: a(f"v_lshrrev_b32 v11, 2, {vL16}\nv_and_b32 v11, 127, v11")
    nm=0; PW=0
    issued=list(range(nm))+["s"]+list(range(nm,NPRE))
    CMPM="v_cmp_f_u32" if cfg.get("nocheck") else "v_cmp_eq_u32"
    CMPP="v_cmp_f_u32" if cfg.get("nocheck") else "v_cmp_ne_u32"
    a(f"{L('top')}:")
    top=len(a.lines)
    def retry(j, inflight, back):
        lb=L(f"retry{j}")
        late.append((lb,[KORDER[x] for x in inflight],back)); return lb
    a(f"s_waitcnt vmcnt({len(issued)-1-issued.index(0)}) lgkmcnt(2)\n{CMPM} vcc, -1, v{m(8)}\ns_cbranch_vccnz {retry(0,range(NPRE),L('ok0'))}\n{L('ok0')}:")
    n=len(P.qk)
    first={}
    for i,f in enumerate(P.qk): first.setdefault(KORDER.index(f[2]),i)
    islds=lambda i: i in P.qk_lds
    brpos={j:((first[j]-3)//3)*3+2 for j in range(1,9)}
    assert len(set(brpos.values()))==8
    gapx={}
    def put(g,x): gapx.setdefault(g,[]).append(x)
    for j,g in zip(range(NPRE,9),cfg["vpos"]): put(g,(j,mload(KORDER[j])))
    kl=[f"buffer_load_dwordx4 {q(KX[t])}, v{m(0)}, {sWS}, {sK} offen offset:{t*1024} sc1" for t in range(2)]
    vxl=[f"buffer_load_dwordx4 {q(VX[t])}, {vL16}, {sWS}, {sKV} offen offset:{t*1024} sc1" for t in range(2)]
    for g,x in hooks["pre_k"](w): put(g,x)
    put(13,(None,f"v_and_b32 v{m(0)}, 32, {vL16}")); put(14,(None,f"v_lshl_add_u32 v{m(0)}, v{m(0)}, 4, {vOa}"))
    for t in range(2): put(cfg["kpos"][t],("k",kl[t])); put(cfg["vxpos"][t],("vx",vxl[t]))
    for g,x in hooks["qk"](w): put(g,x)
    foldq=fold(p(0),p(2))+fold(p(4),p(6))
    nl=0; pend=[]
    for i,f in enumerate(P.qk):
        B=f"v[{ST[nl&1]}:{ST[nl&1]+7}]" if islds(i) else P.reg(f)
        a(sm(acc[f[:2]],m(f[2]),B))
        if islds(i):
            if nl+2<len(P.qk_lds): pend=stage(ST[nl&1],P.qk[P.qk_lds[nl+2]])
            nl+=1
        if pend: a(pend.pop(0))
        val=[]
        for j,x in gapx.get(i,[]):
            if x.startswith("v_"): val.append(x); continue
            a(x)
            if x.startswith("buffer"): issued.append(j)
        for j in range(1,9):
            if brpos[j]==i:
                infl=[x for x in issued if isinstance(x,int) and x>=j]
                a(f"s_cbranch_vccnz {retry(j,infl,L(f'ok{j}'))}\n{L(f'ok{j}')}:")
        wt=""
        for j in range(1,9):
            if brpos[j]-3==i: wt+=f" vmcnt({len(issued)-1-issued.index(j)})"
            if brpos[j]-2==i: val.append(f"{CMPM} vcc, -1, v{m(KORDER[j])}")
        if islds(i+1): wt+=f" lgkmcnt({0 if nl==len(P.qk_lds)-1 else 2})"
        if wt: a("s_waitcnt"+wt)
        E(val)
        if i>=n-4: a(foldq.pop(0))
    vi=[0]
    def V(fl=()):
        f=P.vv[vi[0]]; a(sm(acc[f[:2]],m(f[2]),P.reg(f))); vi[0]+=1; E(fl)
    xs=L_XS+w*1024
    E(foldq); E(fold(p(8),p(3))); E(fold(p(12),p(7)))
    a(f"ds_write2st64_b64 {vL8}, v[{p(2)}:{p(3)}], v[{p(6)}:{p(7)}] offset0:{xs//512} offset1:{xs//512+1}")
    mid=hooks["mid"](w)
    NEG=p(20)
    pois=[f"s_add_u32 {sT1}, {mso(i)}, 0x8000\nbuffer_store_dword v{NEG}, {vMst}, {sWS}, {sT1} offen" for i,g in enumerate(GROUPS[w])]
    if w==3: mid=mid+["s_mov_b64 exec, 15",f"buffer_load_dword v11, {vAux}, {sWS}, {sMtc} offen sc1\ns_mov_b64 exec, -1"]
    Sa,Sb,Sm,ONES=p(16),p(20),m(1),m(2)
    PX,PM=p(8),p(12)
    misc=[f"v_mov_b32 v{ONES+i}, {sOne}" for i in range(4)]+zero(m(3),4)+zero(m(8),4)+zero(m(0),4)
    def take(k):
        o=misc[:k]; del misc[:k]; return o
    V(mid[:2]+[f"v_mov_b32 v{NEG}, -1"]); mid=mid[2:]+pois
    for _ in range(cfg["nV"][0]-1): V(mid[:2]+take(1 if vi[0]>=3 else 0)); mid=mid[2:]
    assert not mid and vi[0]>=4
    if "prebar1" in hooks: hooks["prebar1"](a,w,lambda x: younger(x,top))
    a("s_waitcnt lgkmcnt(0)\ns_barrier")
    X=[p(4*i) for i in range(4)]
    for x in range(4):
        rd=[f"ds_read_b64_tr_b16 v[{X[x]+2*i}:{X[x]+2*i+1}], {vXr} offset:{L_XS+x*1024+i*512}" for i in range(2)]
        if x>=4-cfg["nV"][1]: V(rd)
        else: E(rd)
    assert vi[0]>=6
    for x in range(4):
        if x==0: a(f"s_waitcnt lgkmcnt(6) vmcnt({younger(kl[1],top)})")
        d=(Sa,Sb)[x&1]
        a(mf(d,q(KX[x>>1]),q(X[x]),q(d) if x>1 else 0))
        if x<3: a(f"s_waitcnt lgkmcnt({4-2*x})")
        E(take(cfg["sfill"]))
    a(mf(Sm,q(X[0]),q(X[0]),0))
    for i in range(2): a(f"v_mul_f32 v{Sa+i}, {sC}, v{Sa+i}")
    if cfg["sm2"]: a(mf(Sm,q(X[1]),q(X[1]),q(Sm)))
    for i in range(2): a(f"v_fmac_f32 v{Sa+i}, {sC}, v{Sb+2+i}")
    for i in range(2): a(f"v_exp_f32 v{Sa+2+i}, v{Sa+i}")
    a(f"s_mov_b64 exec, {sHalf0}\nv_cvt_pk_bf16_f32 v{Sa+2}, v{Sa+2}, v{Sa+3}")
    a(f"ds_write_b32 {vOa}, v{Sa+2} offset:{L_PX+4*w}")
    a("s_mov_b64 exec, -1")
    for x in range(2 if cfg["sm2"] else 1,4): a(mf(Sm,q(X[x]),q(X[x]),q(Sm))); E(take(2))
    pmq=[f"v_mul_f32 v{Sm+2}, {sC}, v{Sm+2}",f"v_mul_f32 v{Sm+3}, {sC}, v{Sm+3}",f"v_exp_f32 v{Sm}, v{Sm+2}",f"v_exp_f32 v{Sm+1}, v{Sm+3}",
         f"v_mov_b32 v{PM+1}, 0",f"v_cvt_pk_bf16_f32 v{Sm}, v{Sm}, v{Sm+1}",f"v_mov_b32 v{PM+2}, 0",
         f"v_mov_b32_dpp v{PM}, v{Sm} quad_perm:[0,1,0,1] {DPP}",f"v_mov_b32_dpp v{PM+3}, v{Sm} quad_perm:[0,1,0,1] {DPP}"]
    for _ in range(cfg["nV"][2]): V(take(1))
    a("s_waitcnt lgkmcnt(0)\ns_barrier")
    a(f"ds_read_b128 {q(PX)}, {vOa} offset:{L_PX}")
    misc[:0]=pmq
    for _ in range(cfg["nV"][3]): V(take(1))
    DL,D0,D1=p(0),p(4),p(20); VD=VA+2; OW=p(12); OP=p(10)
    T=[m(4),m(6),p(16),p(24)]
    st=stage(T[0],P.wo_lds[0])+stage(T[1],P.wo_lds[1])
    fv=fold(VA,VD)+fold(VA+4,VD+1)
    m16=lambda d,A,B: f"v_mfma_f32_16x16x16_bf16 {q(d)}, v[{A}:{A+1}], v[{B}:{B+1}], {q(d)}"
    rl,r0,r1,tc=p(18),p(0),p(2),p(19)
    def scale_o(chk):
        a(f"v_rcp_f32 v{rl}, v{DL}")
        a(f"v_subrev_u32 v{tc}, {sLlo}, v{DL}" if chk else "s_nop 0")
        a(f"v_cndmask_b32 v{r0}, 0, v{rl}, {sHalf0}\nv_cndmask_b32 v{r1}, 0, v{rl}, {sHalf1}")
        for i in range(4): a(f"v_mul_f32 v{D0+i}, v{D0+i}, v{r0}")
        if chk: a(f"v_cmp_lt_u32 vcc, {hex(cfg.get('lrange',120<<23))}, v{tc}")
        for i in (0,2): a(f"v_pk_fma_f32 v[{D0+i}:{D0+i+1}], v[{D1+i}:{D1+i+1}], v[{r1}:{r1+1}], v[{D0+i}:{D0+i+1}] op_sel_hi:[1,0,1]")
        a(f"v_cvt_pk_bf16_f32 v{OP}, v{D0}, v{D0+1}\nv_cvt_pk_bf16_f32 v{OP+1}, v{D0+2}, v{D0+3}")
        if cfg["keepalive"]: a(mf(D1,q(ONES),q(ONES),0))
        a(f"ds_write_b64 {vOr}, v[{OP}:{OP+1}] offset:{L_O+w*512}")
    while vi[0]<14: V(take(1))
    npm=max([k+1 for k,x in enumerate(misc) if x in pmq]+[0])
    misc[npm:npm]=fv
    a(f"s_waitcnt vmcnt({younger(vxl[1],top)}) lgkmcnt(0)")
    a(mf(DL,q(ONES),q(PX),0)); a(st.pop(0)); E(take(2))
    a(mf(D0,q(VX[0]),q(PX),0)); a(st.pop(0)); E(take(2))
    a(mf(D1,q(VX[1]),q(PX),0)); a(st.pop(0)); E(take(2))
    while any(x in pmq for x in misc): E(take(1))
    while sum(x in fv for x in misc)>1: E(take(1))
    a(m16(DL,ONES,PM)); a(st.pop(0)); E(take(2))
    misc+=zero(VA+4,4)
    a(m16(D0,VD,PM)); E(take(2))
    a(m16(D1,VD,PM+2))
    scale_o(True)
    a(f"s_cbranch_vccnz {L('slowsm')}\n{L('smdone')}:")
    a(f"v_mov_b32_dpp v{OW}, v{OP} quad_perm:[0,1,0,1] {DPP}\nv_mov_b32_dpp v{OW+1}, v{OP+1} quad_perm:[0,1,0,1] {DPP}")
    a(f"v_mov_b32_dpp v{OW+2}, v{OP} quad_perm:[2,3,2,3] {DPP}\nv_mov_b32_dpp v{OW+3}, v{OP+1} quad_perm:[2,3,2,3] {DPP}")
    aC=m(1); aP={("A",0):m(8),("A",1):m(0),("B",0):m(3),("B",1):VA+4}
    while len(misc)>4: a(misc.pop(0))
    tb={f:T[[0,1,0,1,2,3][i]] for i,f in enumerate(P.wo_lds)}
    def wB(f): return f"v[{tb[f]}:{tb[f]+7}]" if f in tb else P.reg(f)
    OA={x:p(4*n_) for n_,x in enumerate(P.oth)}
    ph1=[mf(aC,q(OW),P.regC(w),0)]+[sm(aP[f[1:3]],OW,wB(f)) for f in P.wo1]
    a("s_waitcnt lgkmcnt(1)")
    ord_=[f"ds_read_b128 {q(OA[x])}, {vOa} offset:{L_O+x*512}" for x in P.oth]
    for i,x in enumerate(ph1):
        if i==cfg["bar3"]: a("s_waitcnt lgkmcnt(0)\ns_barrier"); E(ord_)
        a(x); E(take(2 if i==0 else 1))
    assert not misc
    SEL,DR=VA,VA+4
    lds=[]
    for i in range(2,6): lds+=stage(tb[P.wo_lds[i]],P.wo_lds[i])
    lds.append(f"ds_read_b128 {q(SEL)}, {vL16} offset:{L_SEL}")
    dsq=list(ord_)
    def ds(k):
        for _ in range(k):
            if lds: x=lds.pop(0); a(x); dsq.append(x)
    def lgw(x): return f"s_waitcnt lgkmcnt({len(dsq)-1-dsq.index(x)})"
    ds(cfg["nst0"])
    def cv(d,b): return f"v_cvt_pk_bf16_f32 v{d}, v{b}, v{b+1}"
    A0,A1,B0,B1=aP[("A",0)],aP[("A",1)],aP[("B",0)],aP[("B",1)]
    pld=[f"buffer_load_dwordx4 {q(m(4+i))}, {vL16}, {sWS}, {(sPld,sPld1)[i>>1]} offen offset:{1024*(i&1)} sc1" for i in range(2*len(GROUPS[w]))]
    def pst(r,so): return f"buffer_store_dwordx2 v[{r}:{r+1}], {vPst}, {sWS}, {so} offen"
    def tag(r): return f"v_and_or_b32 v{r}, v{r}, -2, {sPar}"
    pk=lambda r,d=None: [cv(d or r,r),cv((d or r)+1,r+2),tag(d or r)]
    after={4:pk(A0),5:[pst(A0,sPA)],7:pk(A1)[:1],8:pk(A1)[1:],9:[pst(A1,sPA1)],10:pk(B0)[:1],11:pk(B0)[1:2],12:pk(B0)[2:],13:pk(B1,B0+2)[:2],14:pk(B1,B0+2)[2:]}
    ph2=[(sm(aP[f[1:3]],OA[f[3]],wB(f)),f) for f in P.wo2]+[(mf(aC,q(OA[x]),P.regC(x),q(aC)),None) for x in P.oth]
    mark=len(a.lines)
    for i,(x,f) in enumerate(ph2):
        if i<3: a(lgw(ord_[i]))
        a(x)
        vm=[y for y in after.get(i,[]) if y.startswith("buffer")]
        E(vm)
        if not vm: ds(1)
        if i+1<12 and P.wo2[i+1] in tb: a(lgw(stage(tb[P.wo2[i+1]],P.wo2[i+1])[1]))
        E([y for y in after.get(i,[]) if not y.startswith("buffer")])
    assert not lds
    sal=[f"s_add_u32 {sSeg}, {sSeg}, 1",f"s_add_u32 {sKV}, {sKV}, {cfg.get('kvstep',32*16384)}",f"s_add_u32 {sK}, {sK}, {cfg.get('kvstep',32*16384)}"]+hooks["sal"](w)+next_slots(w)+([f"s_add_u32 {sSig}, {sSig}, 1"] if w==PW else [])
    cpk=tag(aC)
    work=prep_qk[16:]+weave(prep_qk[:2]+[cv(aC,aC),cpk]+prep_qk[2:16],sal)
    now=[0]
    def spend(clks):
        k=clks//4
        o=work[:k]; del work[:k]; E(o); delay(a,4*(k-len(o))); now[0]+=4*k
    def at(t, ops):
        spend(max(0,t-now[0]))
        while ops[0].endswith(f"{sPC} offen") and cpk in work: spend(4)
        E(ops); now[0]+=10*len(ops)
    def reduce(u, mark):
        r0_,r1_=m(4+2*u),m(5+2*u); ld=pld[2*u:2*u+2]
        def body(w0,w1):
            a(f"s_waitcnt vmcnt({w0}) lgkmcnt(0)"); a(mf(DR,q(SEL),q(r0_),0)); a(f"v_xor_b32 v{r0_}, {sPar}, v{r0_}")
            a(f"s_waitcnt vmcnt({w1})"); a(mf(DR,q(SEL),q(r1_),q(DR)))
        body(younger(ld[0],mark),younger(ld[1],mark))
        a(f"{L(f'okP{u}')}:")
        a(f"v_bitop3_b32 v{r0_}, v{r0_}, v{r1_}, {sPar} bitop3:0xf6\nv_and_b32 v{r0_}, 1, v{r0_}\n{CMPP} vcc, 0, v{r0_}")
        for ror in (4,8):
            for i in range(2): a(f"v_add_f32_dpp v{DR+i}, v{DR+i}, v{DR+i} row_ror:{ror} {DPP}")
        a(f"v_cvt_pk_bf16_f32 v{r0_}, v{DR}, v{DR+1}")
        a(f"s_cbranch_vccnz {L(f'pollP{u}')}")
        if w==PW: E(hsend)
        a(f"buffer_store_dword v{r0_}, {vMst}, {sWS}, {mso(u)} offen")
        def slow():
            a(f"{L(f'pollP{u}')}:")
            if cfg.get("cnt"): a(f"s_add_u32 s{93+u}, s{93+u}, 1")
            E(ld); spin_guard(a,fail); body(1,0); a(f"s_branch {L(f'okP{u}')}")
        outl.append(slow)
    outl=[]
    def gather(k0,k1=NPRE):
        for k in range(k0,k1):
            if k and k!=nm: spend(cfg["dm"][k-1])
            a(mload(KORDER[k]))
    def close():
        E(work); work.clear()
        a(f"s_xor_b32 {sPar}, {sPar}, 1")
        hooks["end"](a,w)
        a(f"s_branch {L('top')}")
    ev=[(cfg["tB"][0],[pst(B0,sPB)]),(cfg["tB"][1],[pst(B0+2,sPB1)]),(cfg["tB"][2],[f"buffer_store_dword v{aC}, {vPsc}, {sWS}, {sPC} offen"])]
    ev.append((cfg["tP"][w],pld[:2]))
    if w==TW: ev.append((cfg["tP"][4],pld[2:]))
    ev.sort(key=lambda x:x[0])
    split=w==TW and cfg["tP"][4]>cfg["tP"][w]+300
    if split: last=ev.pop()
    for t,ops in ev: at(t,ops)
    if w==PW: work+=[f"v_mov_b32 v{m(2)}, {sSig}",f"v_mov_b32 v{m(2)+1}, 0"]
    spend(max(4*len(work),cfg["tP"][w]+170-now[0]))
    hsend=[f"s_mov_b64 exec, {(1<<NREP)-1}",f"buffer_store_dword v{m(2)}, {vAux}, {sWS}, {sPubX} offen","s_mov_b64 exec, -1"]
    reduce(0,mark)
    if w==TW:
        a(f"s_cmp_ge_u32 {sH}, 16\ns_cbranch_scc1 {L('nored')}")
        if split: now[0]=cfg["tP"][w]+340; at(*last); delay(a,150)
        reduce(1,mark)
        a(f"{L('nored')}:")
    work+=weave(zero(VA,8),[])
    if w==PW:
        HV=f"v{m(2)+1}"; poll=f"buffer_load_dword {HV}, v11, {sWS}, {sHint} offen sc1"
        E(work); work.clear(); delay(a,cfg["dpoll"])
        a(f"{L('hpoll')}:")
        for u in range(4):
            a(f"{CMPP} vcc, {sSig}, {HV} ; nochk"); a(poll)
            if cfg.get("cnt"): a("s_add_u32 s94, s94, 1")
            if cfg["pollgap"]: a(f"s_nop {cfg['pollgap']-1}")
            if u==3: a(f"s_add_u32 {sCnt}, {sCnt}, 1\ns_cmp_gt_u32 {sCnt}, {SPIN_MAX}")
            a(f"s_cbranch_vccz {L('hok')}")
        a(f"s_cbranch_scc0 {L('hpoll')}\ns_branch {fail}\n{L('hok')}:")
    else: spend(cfg["dkeep"][w])
    a("s_barrier")
    gather(0); close()
    for f_ in outl: f_()
    a(f"{L('slowsm')}:")
    a(f"s_mov_b64 exec, {sHalf0}\nds_write_b64 {vOa}, v[{Sa}:{Sa+1}] offset:{L_XS+512*(w>>1)+8*(w&1)}\ns_mov_b64 exec, -1")
    a("s_waitcnt lgkmcnt(0)\ns_barrier")
    s_=[p(i) for i in range(8)]+[Sm,Sm+1]; mx,tt=p(20),p(21)
    a(f"""ds_read_b128 {q(p(0))}, {vOa} offset:{L_XS}
    ds_read_b128 {q(p(4))}, {vOa} offset:{L_XS+512}
    v_mov_b32_dpp v{Sm}, v{Sm+2} quad_perm:[0,1,0,1] {DPP}
    v_mov_b32_dpp v{Sm+1}, v{Sm+3} quad_perm:[0,1,0,1] {DPP}
    s_waitcnt lgkmcnt(0)
    v_max_f32 v{mx}, v{s_[0]}, v{s_[1]}""")
    for i in range(2,10,2): a(f"v_max3_f32 v{mx}, v{mx}, v{s_[i]}, v{s_[i+1]}")
    a(f"""v_mov_b32 v{tt}, v{mx}
    v_permlane16_swap_b32 v{mx}, v{tt}
    v_max_f32 v{mx}, v{mx}, v{tt}
    v_mov_b32 v{tt}, v{mx}
    v_permlane32_swap_b32 v{mx}, v{tt}
    v_max_f32 v{mx}, v{mx}, v{tt}""")
    for i in range(10): a(f"v_sub_f32 v{s_[i]}, v{s_[i]}, v{mx}\nv_exp_f32 v{s_[i]}, v{s_[i]}")
    for i in range(4): a(cv(PX+i,p(2*i)))
    a(cv(PM,Sm)); a(cv(PM+3,Sm))
    a(mf(DL,q(ONES),q(PX),0)); a(mf(D0,q(VX[0]),q(PX),0)); a(mf(D1,q(VX[1]),q(PX),0))
    a(m16(DL,ONES,PM)); a(m16(D0,VD,PM)); a(m16(D1,VD,PM+2))
    scale_o(False)
    a(f"s_branch {L('smdone')}")
    for lb,ks,back in late:
        a(f"{lb}:")
        if cfg.get("cnt"): a(f"s_add_u32 s{84+KORDER.index(ks[0])}, s{84+KORDER.index(ks[0])}, 1")
        for k in ks: a(mload(k,'sc1'))
        spin_guard(a,fail)
        a(f"s_waitcnt vmcnt(0)\nv_cmp_eq_u32 vcc, -1, v{m(ks[0])}\ns_cbranch_vccnz {lb}\ns_branch {back}")

def init_comm(a, w, srd_mem):
    g0=GROUPS[w][0]
    a(f"""
    s_lshl_b32 {sT0}, {sH}, 6
    s_add_u32 {sPA}, {sT0}, {OFF_P+w*16384}
    s_add_u32 {sPA1}, {sPA}, {65536}
    s_add_u32 {sPB}, {sPA}, {2*65536}
    s_add_u32 {sPB1}, {sPA}, {3*65536}
    s_add_u32 {sPC}, {sT0}, {OFF_P+4*65536+w*8192}
    s_add_u32 {sMst}, {sT0}, {OFF_M+2048*g0}
    s_add_u32 {sMst1}, {sMst}, {(4-g0)*2048}
    s_mov_b32 {sM0}, {OFF_M}
    s_mov_b32 {sM1}, {OFF_M+4096}
    s_mov_b32 {sM2}, {OFF_M+8192}
    s_lshl_b32 {sT0}, {sH}, 11
    s_add_u32 {sPld}, {sT0}, {OFF_P+65536*g0}
    s_mov_b32 {sPar}, 0
    s_mov_b32 {sC}, {f2u(128**-0.5*math.log2(math.e))}
    s_mov_b32 {sOne}, 0x3f803f80
    s_mov_b32 {sLlo}, {(127-60)<<23}
    v_mov_b32 v20, -1
    v_mov_b32 v21, -1
    v_mov_b32 v22, -1
    v_mov_b32 v23, -1
    """)
    if w==TW: a(f"s_add_u32 {sPld1}, {sPld}, {(4-g0)*65536}")
    if w==0: a(f"""s_mov_b32 {sSig}, 0
    s_lshl_b32 {sT0}, {sH}, 2
    s_add_u32 {sPubX}, {sT0}, {OFF_H}
    s_and_b32 {sT0}, {sH}, {NREP-1}
    s_lshl_b32 {sT0}, {sT0}, 7
    s_add_u32 {sHint}, {sT0}, {OFF_H}
    s_mov_b64 exec, {(1<<NREP)-1}
    buffer_store_dword v20, {vAux}, {sWS}, {sPubX} offen
    buffer_load_dword v24, {vAux}, {sWS}, {sPubX} offen sc1
    s_mov_b64 exec, -1""")
    if w==TW: a(f"s_cmp_ge_u32 {sH}, 16\ns_cselect_b32 {sPld1}, 0x40000000, {sPld1}")
    if w==3: a(f"s_lshl_b32 {sMtc}, {sH}, 9\ns_add_u32 {sMtc}, {sMtc}, {OFF_M+0x8000}")
    for i,g in enumerate(GROUPS[w]):
        for j in range(2):
            a(f"buffer_store_dwordx4 v[20:23], {vL16}, {sWS}, {(sPld,sPld1)[i]} offen offset:{1024*j}")
            a(f"buffer_load_dwordx4 v[24:27], {vL16}, {sWS}, {(sPld,sPld1)[i]} offen offset:{1024*j} sc1")
        a(f"s_add_u32 {sT0}, {mso(i)}, 0x4000\nbuffer_store_dword v20, {vMst}, {sWS}, {sT0} offen")
        a(f"buffer_load_dword v24, {vMst}, {sWS}, {sT0} offen sc1\nbuffer_load_dword v24, {vMst}, {sWS}, {mso(i)} offen sc1")
    store_mem0(a,w,srd_mem,"v10")

def set_layer(a, w, layer):
    a(f"""
    s_mov_b32 {sSeg}, 0
    s_lshl_b32 {sT0}, {sH}, 14
    s_add_u32 {sT0}, {sT0}, {layer}
    s_add_u32 {sKV}, {sT0}, {OFF_KV+8192+w*2048}
    s_add_u32 {sK}, {sT0}, {OFF_KV+w*2048}
    s_mov_b32 {sCnt}, 0
    """)
```

```python
MB = 1<<20
WS_BYTES = 256*MB
OFF_P    = 0x000000
OFF_H    = 0x0b0000
OFF_FLAG = 0x0c0000
OFF_M    = 240*MB
LAYER_STRIDE = 112*MB
OFF_KV   = 1*MB
OFF_QX   = 33*MB
OFF_MH   = 49*MB
OFF_MKV  = OFF_MH
OFF_O    = 65*MB
OFF_X1   = 81*MB
OFF_X2   = 84*MB
OFF_BQ   = 87*MB
OFF_BK   = 89*MB
OFF_BQR  = 91*MB
OFF_BKR  = 92*MB
OFF_BV   = 93*MB
OFF_BO   = 96*MB
OFF_BOR  = 98*MB
OFF_F    = 100*MB
F_KV     = OFF_F
F_X2     = OFF_F+0x2000
F_BQ     = OFF_F+0x4000
F_CH     = OFF_F+0x5000
F_O      = OFF_F+0x8000
F_X1     = OFF_F+0x10000
F_BO     = OFF_F+0x18000
OFF_TS   = 250*MB
```

```python
from asmgen import Asm
from layout import *
import math, struct
def f2u(x): return struct.unpack("<I", struct.pack("<f", x))[0]
def q(base, n=4, k="v"): return f"{k}[{base}:{base+n-1}]"
DPP="row_mask:0xf bank_mask:0xf"
sWS="s[8:11]"; sX="s[12:15]"; sA="s[76:79]"; sB="s[80:83]"; sC_="s[84:87]"; sD="s[88:91]"
sW="s21"; sI="s24"
T0,T1,T2,T3="s60","s61","s62","s63"
P_X,P_MEM,P_WQ,P_WK,P_WV,P_WO,P_BQKV,P_BWO,P_OUT=64,66,68,70,72,74,92,94,96
def srd(a, d, ptr, size, off=0):
    d=int(d[2:d.index(":")])
    if off: a(f"s_add_u32 s{d}, s{ptr}, {off}\ns_addc_u32 s{d+1}, s{ptr+1}, 0")
    else: a(f"s_mov_b32 s{d}, s{ptr}\ns_mov_b32 s{d+1}, s{ptr+1}")
    a(f"s_mov_b32 s{d+2}, {size}\ns_mov_b32 s{d+3}, 0x20000")
def entry(a):
    a(f"""
    s_load_dwordx8 s[64:71], s[0:1], 0
    s_load_dwordx4 s[72:75], s[0:1], 32
    s_load_dwordx4 s[92:95], s[0:1], 64
    s_load_dwordx2 s[96:97], s[0:1], 80
    s_load_dwordx4 s[4:7], s[0:1], 88
    v_lshrrev_b32 v1, 6, v0
    v_readfirstlane_b32 {sW}, v1
    v_and_b32 v0, 63, v0
    s_waitcnt lgkmcnt(0)
    """)
    srd(a,sWS,6,WS_BYTES)
def mf(d,A,B,C): return f"v_mfma_f32_16x16x32_bf16 {d}, {A}, {B}, {C}"
def cv(d,x,y): return f"v_cvt_pk_bf16_f32 v{d}, v{x}, v{y}"

class Frags:
    def __init__(self, vbase): self.vbase=vbase
    def reg(self,i,n=4):
        b=4*i
        return (("a",b) if b<256 else ("v",self.vbase+b-256))
    def op(self,i):
        k,b=self.reg(i); return f"{k}[{b}:{b+3}]"

def load_blocks(a, blocks, lds_base, vtr, ring=4):
    nd=[len(b[0]) for b in blocks]
    def issue(bi):
        pos=0
        for (va,s,sb,c,bl) in blocks[bi][0]:
            a(f"s_add_u32 {T0}, {sb}, {c}\ns_add_u32 m0, {T3}, {(bi%ring)*4096+pos}")
            a(f"buffer_load_dword{'x4' if bl==16 else ''} {va}, {s}, {T0} offen lds")
            pos+=64*bl
        assert pos<=4096
    n=len(blocks)
    for bi in range(min(ring-1,n)): issue(bi)
    for bi in range(n):
        if bi+ring-1<n:
            a("s_waitcnt lgkmcnt(0)"); issue(bi+ring-1)
        left=sum(nd[bi+1:min(n,bi+ring)])
        a(f"s_waitcnt vmcnt({min(left,63)})")
        for (t,k,rb) in blocks[bi][1]:
            for qd in range(4):
                a(f"ds_read_b64_tr_b16 {k}[{rb+2*qd}:{rb+2*qd+1}], {vtr} offset:{(bi%ring)*4096+t*32+(qd&1)*256+(qd>>1)*2048}")
    a("s_waitcnt lgkmcnt(0)")
def tr_addr(a, vtr, t0, t1, lds_base):
    a(f"""
    s_lshl_b32 {T3}, {sW}, 14
    s_add_u32 {T3}, {T3}, {lds_base}
    v_lshrrev_b32 {t0}, 4, v0
    v_bfe_u32 {t1}, v0, 2, 2
    v_lshl_add_u32 {t0}, {t0}, 3, {t1}
    v_lshlrev_b32 {t0}, 6, {t0}
    v_and_b32 {t1}, 3, v0
    v_lshl_add_u32 {t0}, {t1}, 3, {t0}
    v_add_u32 {vtr}, {T3}, {t0}
    """)

XF_T=1088
def xfrag(k,T): return (2*k+T)*XF_T
XF_BYTES=36*XF_T
def ln_consts(a, vSrc, vRaw, vDst, vRd, t0, t1, raw_base, xf_base):
    a(f"""
    v_lshrrev_b32 {t0}, 3, v0
    v_and_b32 {t1}, 7, v0                  ; chunk
    s_lshl_b32 {T0}, {sW}, 3
    v_add_u32 {t0}, {T0}, {t0}             ; token 0..31
    v_mul_u32_u24 {vSrc}, 1152, {t0}
    v_lshl_add_u32 {vSrc}, {t1}, 4, {vSrc}
    s_mul_i32 {T0}, {sW}, 9216
    s_add_u32 {T0}, {T0}, {raw_base}
    v_lshlrev_b32 {vRaw}, 4, v0
    v_add_u32 {vRaw}, {T0}, {vRaw}
    v_and_b32 {vDst}, 15, {t0}
    v_lshlrev_b32 {vDst}, 4, {vDst}
    v_lshrrev_b32 {t0}, 4, {t0}            ; T
    v_lshrrev_b32 {vRd}, 2, {t1}
    v_lshl_add_u32 {t0}, {vRd}, 1, {t0}
    v_mul_u32_u24 {t0}, {XF_T}, {t0}
    v_and_b32 {t1}, 3, {t1}
    v_mul_u32_u24 {t1}, 272, {t1}
    v_add3_u32 {vDst}, {vDst}, {t0}, {t1}
    v_add_u32 {vDst}, {xf_base}, {vDst}
    v_lshrrev_b32 {t0}, 4, v0
    v_mul_u32_u24 {t0}, 272, {t0}
    v_and_b32 {t1}, 15, v0
    v_lshl_add_u32 {t0}, {t1}, 4, {t0}
    v_add_u32 {vRd}, {xf_base}, {t0}
    """)
def ln_fetch(a, vSrc, srd_, sOff, raw_base, fl="sc1"):
    a(f"s_mul_i32 {T1}, {sW}, 9216\ns_add_u32 {T1}, {T1}, {raw_base}")
    for i in range(9):
        a(f"s_add_u32 {T0}, {sOff}, {128*i}\ns_add_u32 m0, {T1}, {1024*i}")
        a(f"buffer_load_dwordx4 {vSrc}, {srd_}, {T0} offen {fl} lds")
def ln_stage(a, vRaw, vDst, R, pre_write=None):
    for i in range(9): a(f"ds_read_b128 {q(R+4*i)}, {vRaw} offset:{1024*i}")
    s1,s2,s3,s4,one,lo,hi=[R+36+i for i in range(7)]
    a(f"v_mov_b32 v{one}, 0x3f803f80")
    for r in (s1,s2,s3,s4): a(f"v_mov_b32 v{r}, 0")
    for i in range(9):
        a(f"s_waitcnt lgkmcnt({8-i})")
        for j in range(4):
            r=R+4*i+j
            a(f"v_dot2c_f32_bf16 v{(s1,s3)[j&1]}, v{r}, v{one}\nv_dot2c_f32_bf16 v{(s2,s4)[j&1]}, v{r}, v{r}")
    a("s_nop 2")
    a(f"v_add_f32 v{s1}, v{s1}, v{s3}\nv_add_f32 v{s2}, v{s2}, v{s4}")
    for pat in ("quad_perm:[1,0,3,2]","quad_perm:[2,3,0,1]","row_half_mirror"):
        for r in (s1,s2): a(f"v_add_f32_dpp v{r}, v{r}, v{r} {pat} {DPP}")
    a(f"""
    v_mul_f32 v{s1}, {hex(f2u(1/576))}, v{s1}          ; mean
    v_mul_f32 v{s3}, v{s1}, v{s1}
    v_mul_f32 v{s2}, {hex(f2u(1/576))}, v{s2}
    v_sub_f32 v{s2}, v{s2}, v{s3}
    v_max_f32 v{s2}, 0, v{s2}
    v_add_f32 v{s2}, {hex(f2u(1e-5))}, v{s2}
    v_rsq_f32 v{s2}, v{s2}
    s_nop 0
    v_mul_f32 v{s3}, v{s1}, v{s2}
    v_sub_f32 v{s3}, 0, v{s3}
    """)
    if pre_write: pre_write()
    for i in range(9):
        for j in range(4):
            r=R+4*i+j
            a(f"""v_lshlrev_b32 v{lo}, 16, v{r}
            v_and_b32 v{hi}, 0xffff0000, v{r}
            v_fma_f32 v{lo}, v{lo}, v{s2}, v{s3}
            v_fma_f32 v{hi}, v{hi}, v{s2}, v{s3}
            v_cvt_pk_bf16_f32 v{r}, v{lo}, v{hi}""")
        a(f"ds_write_b128 {vDst}, {q(R+4*i)} offset:{4*i*XF_T}")

sXc="s3"
def announce(a):
    sk=a.lab("ann")
    a(f"""s_waitcnt vmcnt(0)
    s_barrier
    s_cmp_eq_u32 {sW}, 0
    s_cbranch_scc0 {sk}
    v_mov_b32 v10, s2
    v_mov_b32 v11, {sXc}
    s_mov_b64 exec, 1
    global_store_byte v10, v11, s[4:5] sc1
    s_mov_b64 exec, -1
    {sk}:""")
def elect(a, fail, out, t=("v10","v11","v12","v13","v14","v15"), lane="v0"):
    lp,wl,wd,ch=a.lab("el"),a.lab("elw"),a.lab("eld"),a.lab("elc")
    ad,dv,b=t[0],t[1],t[2:6]
    a(f"v_lshlrev_b32 {ad}, 2, {lane}\ns_mov_b32 {T3}, 0\n{lp}:\nglobal_load_dword {dv}, {ad}, s[4:5] sc1")
    a(f"s_add_u32 {T3}, {T3}, 1\ns_cmp_gt_u32 {T3}, 4000000\ns_cbranch_scc1 {fail}\ns_waitcnt vmcnt(0)")
    for i in range(4): a(f"v_bfe_u32 {b[i]}, {dv}, {8*i}, 8")
    a(f"v_min_u32 {dv}, {b[0]}, {b[1]}\nv_min3_u32 {dv}, {dv}, {b[2]}, {b[3]}\nv_cmp_eq_u32 vcc, 0, {dv}\ns_cbranch_vccnz {lp}")
    a(f"s_mov_b32 {T2}, 0\n{wl}:\ns_add_u32 {T2}, {T2}, 1\ns_mov_b32 {T1}, 0")
    for i in range(4): a(f"v_cmp_eq_u32 vcc, {T2}, {b[i]}\ns_bcnt1_i32_b64 {T0}, vcc\ns_add_u32 {T1}, {T1}, {T0}")
    a(f"s_cmp_ge_u32 {T2}, 16\ns_cbranch_scc1 {fail}\ns_cmp_lt_u32 {T1}, 32\ns_cbranch_scc1 {wl}")
    a(f"s_mov_b32 {T1}, 0\ns_mov_b32 {T3}, 0")
    for i in range(4):
        a(f"""v_cmp_gt_u32 vcc, {sXc}, {b[i]}
        s_bcnt1_i32_b64 {T0}, vcc
        s_add_u32 {T3}, {T3}, {T0}
        v_add_u32 {dv}, {i}, {ad}
        v_cmp_gt_u32 s[16:17], s2, {dv}
        v_cmp_eq_u32 vcc, {sXc}, {b[i]}
        s_and_b64 vcc, vcc, s[16:17]
        s_bcnt1_i32_b64 {T0}, vcc
        s_add_u32 {T1}, {T1}, {T0}""")
    a(f"""s_add_u32 {out}, {T1}, {T3}
    s_cmp_gt_u32 {T2}, {sXc}
    s_cselect_b32 {T0}, 32, 0
    s_add_u32 {out}, {out}, {T0}
    s_cmp_lg_u32 {T2}, {sXc}
    s_cbranch_scc1 {wd}
    s_cmp_lt_u32 {T1}, 32
    s_cselect_b32 {out}, {T1}, {out}
    {wd}:""")

sCnt="s38"; SPIN=3000000
def wait_flags(a, so, n, shift, val, fail, every_wave=False, sleep=1, t=("v10","v11"), rows=1):
    lp,ok=a.lab("wf"),a.lab("wfo")
    if not every_wave: a(f"s_cmp_lg_u32 {sW}, 0\ns_cbranch_scc1 {ok}")
    a(f"v_min_u32 {t[0]}, {n-1}, v0\nv_lshlrev_b32 {t[0]}, {shift}, {t[0]}")
    for r in range(rows):
        l2=f"{lp}_{r}"; l3=f"{lp}_{r}f"
        a(f"s_branch {l3}\n{l2}:")
        if sleep: a(f"s_sleep {sleep}")
        a(f"""{l3}:
        buffer_load_dword {t[1]}, {t[0]}, {sWS}, {so} offen offset:{256*r} sc1
        s_add_u32 {sCnt}, {sCnt}, 1
        s_cmp_gt_u32 {sCnt}, {SPIN}
        s_cbranch_scc1 {fail}
        s_waitcnt vmcnt(0)
        v_cmp_gt_u32 vcc, {val}, {t[1]}
        s_cbranch_vccnz {l2}""")
    if not every_wave: a(f"{ok}:\ns_barrier")
def put_flag(a, so, val, t=("v10","v11")):
    a(f"v_mov_b32 {t[0]}, 0\nv_mov_b32 {t[1]}, {val}\ns_mov_b64 exec, 1\nbuffer_store_dword {t[1]}, {t[0]}, {sWS}, {so} offen sc1\ns_mov_b64 exec, -1")
def signal(a, so, val, synced=False):
    sk=a.lab("sg")
    if not synced: a("s_waitcnt vmcnt(0)\ns_barrier")
    a(f"s_cmp_lg_u32 {sW}, 0\ns_cbranch_scc1 {sk}"); put_flag(a,so,val); a(f"{sk}:")
```

```python
import sys
from wk import *
import wk, a1, a2, awo, bqkv, batt, bwo
import chain as C
from stages import compact, KD, CH_CFG
NAME="interleave_layers__memory_aug_recurrent_mem_tr__mha_block__prompt_kernel"
XB_=2048*1152
sLay,sJ,sLo="s23","s22","s20"
NW,NB=4,3
def stamp(a, cfg, k, cond_wave0=True):
    if not cfg.get("ts"): return
    sk=a.lab("ts")
    a(f"""s_cmp_lg_u32 {sW}, 0
    s_cbranch_scc1 {sk}
    s_memrealtime s[98:99]
    s_lshl_b32 s100, {sLay}, 4
    s_add_u32 s100, s100, {k}
    s_lshl_b32 s100, s100, 8
    s_add_u32 s100, s100, s101
    s_lshl_b32 s100, s100, 2
    s_add_u32 s100, s100, {OFF_TS}
    s_waitcnt lgkmcnt(0)
    v_mov_b32 v12, s100
    v_mov_b32 v13, s98
    s_mov_b64 exec, 1
    global_store_dword v12, v13, s[6:7]
    s_mov_b64 exec, -1
    {sk}:""")
def div7(a, dq, dr, x): a(f"s_mul_i32 {dq}, {x}, 9363\ns_lshr_b32 {dq}, {dq}, 16\ns_mul_i32 {T0}, {dq}, 7\ns_sub_u32 {dr}, {x}, {T0}")
def worker(a, cfg):
    F="w_fail"
    a(f"worker:\ns_sub_u32 {sI}, {sI}, 32\ns_mov_b32 {sCnt}, 0")
    srd(a,sX,P_X,XB_)
    a("w_layer:")
    a(f"s_mul_i32 {T0}, {sLay}, {LAYER_STRIDE}\ns_add_u32 s8, s6, {T0}\ns_addc_u32 s9, s7, 0\ns_mov_b32 s10, {LAYER_STRIDE}")
    div7(a,a1.sHd,sJ,sI)
    a(f"s_mov_b32 {a1.sSeg}, {sJ}\ns_barrier")
    a1.consts(a); a1.load_qkv(a,"kvq")
    stamp(a,cfg,1)
    def wait_x(sg):
        sk=a.lab("nx")
        a(f"s_cmp_eq_u32 {sLay}, 0\ns_cbranch_scc1 {sk}\ns_lshl_b32 {T3}, {sg}, 7\ns_add_u32 {T3}, {T3}, {F_X2}")
        wait_flags(a,T3,3,4,1,F,every_wave=True); a(f"{sk}:")
    wait_x(a1.sSeg); a1.fetch(a,a1.sSeg)
    a("s_mov_b32 s30, 0x40000000\nw_a1:")
    def nxt():
        a(f"s_add_u32 {T2}, {a1.sSeg}, 7\ns_min_u32 {T2}, {T2}, 63"); wait_x(T2); a1.fetch(a,T2)
    def sig(i):
        if i==1: signal(a,"s30",2,synced=True)
        else:
            a(f"s_lshl_b32 s30, {a1.sHd}, 6\ns_add_u32 s30, s30, {a1.sSeg}\ns_lshl_b32 s30, s30, 2\ns_add_u32 s30, s30, {F_KV}"); signal(a,"s30",1)
    a1.segment(a,0,nxt,sig)
    a(f"s_add_u32 {a1.sSeg}, {a1.sSeg}, 7\ns_cmp_lt_u32 {a1.sSeg}, 64\ns_cbranch_scc1 w_a1")
    signal(a,"s30",2)
    stamp(a,cfg,2)
    a(f"s_cmp_ge_u32 {sJ}, 2\ns_cbranch_scc1 w_not_a2")
    a2.consts(a)
    a(f"s_mov_b32 {a1.sSeg}, {sJ}\nw_a2:")
    a(f"s_lshl_b32 {T3}, {a1.sHd}, 6\ns_add_u32 {T3}, {T3}, {a1.sSeg}\ns_lshl_b32 {T3}, {T3}, 2\ns_add_u32 {T3}, {T3}, {F_KV}")
    wait_flags(a,T3,1,2,2,F)
    a2.pre(a,0,OFF_MH); a2.post(a,F,sCnt,SPIN)
    a(f"s_lshl_b32 {T3}, {a1.sSeg}, 5\ns_add_u32 {T3}, {T3}, {a1.sHd}\ns_lshl_b32 {T3}, {T3}, 4\ns_add_u32 {T3}, {T3}, {F_O}")
    signal(a,T3,1)
    a(f"s_add_u32 {a1.sSeg}, {a1.sSeg}, 2\ns_cmp_lt_u32 {a1.sSeg}, 64\ns_cbranch_scc1 w_a2\ns_branch w_batt")
    a(f"w_not_a2:\ns_mul_i32 {T1}, {a1.sHd}, 5\ns_add_u32 {T1}, {T1}, {sJ}\ns_sub_u32 {T1}, {T1}, 2\ns_cmp_ge_u32 {T1}, {12*NW}\ns_cbranch_scc1 w_not_awo")
    a(f"s_mul_i32 {awo.sTask}, {T1}, 43691\ns_lshr_b32 {awo.sTask}, {awo.sTask}, 19\ns_mul_i32 {T0}, {awo.sTask}, 12\ns_sub_u32 {awo.sCg}, {T1}, {T0}\ns_barrier")
    awo.consts(a); awo.load_w(a)
    a(f"w_awo:\ns_lshr_b32 {T3}, {awo.sTask}, 1\ns_lshl_b32 {T3}, {T3}, 9\ns_add_u32 {T3}, {T3}, {F_O}")
    wait_flags(a,T3,32,4,1,F)
    awo.task(a,0)
    a(f"""s_lshr_b32 {T3}, {awo.sTask}, 1
    s_lshl_b32 {T3}, {T3}, 5
    s_and_b32 {T0}, {awo.sTask}, 1
    s_mul_i32 {T0}, {T0}, 12
    s_add_u32 {T3}, {T3}, {T0}
    s_add_u32 {T3}, {T3}, {awo.sCg}
    s_lshl_b32 {T3}, {T3}, 4
    s_add_u32 {T3}, {T3}, {F_X1}""")
    signal(a,T3,1)
    a(f"s_add_u32 {awo.sTask}, {awo.sTask}, {NW}\ns_cmp_lt_u32 {awo.sTask}, 128\ns_cbranch_scc1 w_awo\ns_branch w_batt")
    a(f"w_not_awo:\ns_sub_u32 {T1}, {T1}, {12*NW}\ns_cmp_ge_u32 {T1}, {9*NB}\ns_cbranch_scc1 w_batt")
    a(f"s_mul_i32 {a1.sSeg}, {T1}, 58255\ns_lshr_b32 {a1.sSeg}, {a1.sSeg}, 19\ns_mul_i32 {T0}, {a1.sSeg}, 9\ns_sub_u32 {bqkv.sU}, {T1}, {T0}\ns_lshl_b32 s30, {bqkv.sU}, 8\ns_add_u32 s30, s30, {F_BQ}")
    srd(a,sX,8,XB_,OFF_X1)
    bqkv.load_w(a)
    a(f"w_bq:\ns_lshl_b32 {T3}, {a1.sSeg}, 9\ns_add_u32 {T3}, {T3}, {F_X1}")
    wait_flags(a,T3,24,4,1,F)
    a1.fetch(a,a1.sSeg)
    bqkv.segment(a,0,lambda:None)
    a(f"s_lshl_b32 {T3}, {a1.sSeg}, 2\ns_add_u32 {T3}, {T3}, s30")
    signal(a,T3,1)
    a(f"s_add_u32 {a1.sSeg}, {a1.sSeg}, {NB}\ns_cmp_lt_u32 {a1.sSeg}, 64\ns_cbranch_scc1 w_bq")
    a("w_batt:")
    stamp(a,cfg,3)
    div7(a,batt.sHd,batt.sJ,sI)
    batt.consts(a,0)
    a(f"s_mov_b32 {T3}, {F_BQ}")
    wait_flags(a,T3,64,2,1,F,rows=9,sleep=4)
    stamp(a,cfg,4)
    def stored():
        a(f"s_lshl_b32 {T3}, {batt.sQb}, 5\ns_add_u32 {T3}, {T3}, {batt.sHd}\ns_lshl_b32 {T3}, {T3}, 4\ns_add_u32 {T3}, {T3}, {F_BO}\ns_waitcnt vmcnt(0)")
        put_flag(a,T3,1)
    batt.run(a,0,10,7,cfg.get("lrange",120<<23),stored)
    stamp(a,cfg,5)
    a(f"s_cmp_eq_u32 {sJ}, 0\ns_cbranch_scc1 w_next")
    a(f"""s_mul_i32 {T1}, {batt.sHd}, 6
    s_add_u32 {T1}, {T1}, {sJ}
    s_sub_u32 {T1}, {T1}, 1
    s_mul_i32 {bwo.sSeg}, {T1}, 43691
    s_lshr_b32 {bwo.sSeg}, {bwo.sSeg}, 17
    s_mul_i32 {T0}, {bwo.sSeg}, 3
    s_sub_u32 {bwo.sCg}, {T1}, {T0}
    s_barrier""")
    srd(a,sX,8,XB_,OFF_X1)
    bwo.consts(a); bwo.load_w(a)
    srd(a,sB,6,XB_,OFF_X2)
    a(f"s_cmp_eq_u32 {sLay}, 0\ns_cbranch_scc1 w_bw1"); srd(a,sB,P_OUT,XB_); a("w_bw1:")
    a(f"s_lshl_b32 {T3}, {bwo.sSeg}, 9\ns_add_u32 {T3}, {T3}, {F_BO}")
    stamp(a,cfg,6)
    wait_flags(a,T3,32,4,1,F)
    stamp(a,cfg,7)
    bwo.task(a,0,sB,0,"sc1")
    a(f"s_lshl_b32 {T3}, {bwo.sSeg}, 3\ns_add_u32 {T3}, {T3}, {bwo.sCg}\ns_lshl_b32 {T3}, {T3}, 4\ns_add_u32 {T3}, {T3}, {LAYER_STRIDE+F_X2}\ns_mov_b32 s10, {2*LAYER_STRIDE}")
    a(f"s_cmp_eq_u32 {sLay}, 0\ns_cbranch_scc0 w_next")
    signal(a,T3,1)
    a("w_next:")
    stamp(a,cfg,8)
    srd(a,sX,6,XB_,OFF_X2)
    a(f"s_add_u32 {sLay}, {sLay}, 1\ns_cmp_lt_u32 {sLay}, 2\ns_cbranch_scc1 w_layer\n{F}:\ns_waitcnt vmcnt(0) lgkmcnt(0)\ns_endpgm")

def chain(a, cfg):
    cc=dict(CH_CFG); cc.update(cfg.get("chain",{}))
    sLo_,sFk,sMp,sMh="s52","s53","s54","s55"; RDY="s[50:51]"
    srd(a,sX,P_MEM,9216); srd(a,sA,P_WQ,4718592); srd(a,sB,P_WK,4718592); srd(a,sC_,P_WV,4718592); srd(a,sD,P_WO,4718592)
    a(f"s_mov_b32 {sLo_}, 0\ns_mov_b32 {C.sCnt}, 0")
    for w in (1,2,3): a(f"s_cmp_eq_u32 {sW}, {w}\ns_cbranch_scc1 c_w{w}")
    for w in range(4):
        pre=f"ch{w}"; F=f"{pre}_fail"
        a(f"c_w{w}:")
        C.prologue_consts(a,w); C.init_comm(a,w,sX)
        a("s_waitcnt vmcnt(0)\ns_barrier")
        if w==0:
            a(f"s_lshl_b32 {T3}, {C.sH}, 4\ns_add_u32 {T3}, {T3}, {F_CH}"); put_flag(a,T3,1,("v12","v13"))
        C.load_weights(a,w,{"q":sA,"k":sB,"v":sC_,"o":sD})
        stamp(a,cfg,1)
        if w==0:
            lp=a.lab("arr")
            a(f"v_and_b32 v12, 0x1ff, {C.vL16}\ns_mov_b32 {T3}, {F_CH}\n{lp}:\nbuffer_load_dword v13, v12, {sWS}, {T3} offen sc1")
            C.spin_guard(a,F); a(f"s_waitcnt vmcnt(0)\nv_cmp_eq_u32 vcc, 0, v13\ns_cbranch_vccnz {lp}")
        a(f"{pre}_layer:")
        C.set_layer(a,w,sLo_)
        fload=f"buffer_load_dword v11, v{C.p(21)}, {sWS}, {sFk} offen sc1"
        faddr=f"v_lshrrev_b32 v{C.p(21)}, 2, {C.vL16}"
        def kvwait(lbl, back, bit, sleep):
            a(f"{lbl}:"); a(faddr); a(fload); C.spin_guard(a,F)
            if sleep: a(f"s_sleep {sleep}")
            a(f"s_waitcnt vmcnt(0)\nv_cmp_ne_u32 {RDY}, 0, v11\ns_nop 0\ns_bitcmp1_b64 {RDY}, {bit}\ns_cbranch_scc0 {lbl}")
            if back: a(f"s_branch {back}")
        if w==3:
            a(f"s_lshl_b32 {sFk}, {C.sH}, 8\ns_add_u32 {sFk}, {sFk}, {sLo_}\ns_add_u32 {sFk}, {sFk}, {F_KV}")
            kvwait(f"{pre}_kv0",None,0,1)
        if w==2:
            a(f"""s_lshl_b32 {C.sT0}, {C.sH}, 10
            s_add_u32 {sMp}, {C.sM0}, {C.sT0}
            s_add_u32 {sMh}, {C.sT0}, {sLo_}
            s_add_u32 {sMh}, {sMh}, {OFF_MH}
            s_cmp_lt_u32 {C.sH}, 9
            s_cselect_b32 {sMp}, {sMp}, 0x40000000
            s_cselect_b32 {sMh}, {sMh}, 0x40000000""")
        a("s_barrier")
        stamp(a,cfg,2)
        PB=C.p(16)
        pl=f"buffer_load_dwordx4 {q(PB)}, {C.vL16}, {sWS}, {sMp} offen sc1"
        ps=f"buffer_store_dwordx4 {q(PB)}, {C.vL16}, {sWS}, {sMh} offen sc1"
        def qk(w):
            if w==2: return [(37,("m",pl))]
            if w==3: return [(31,(None,f"v_cmp_ne_u32 {RDY}, 0, v11")),(37,(None,f"s_add_u32 {C.sT1}, {C.sSeg}, 1")),(38,(None,f"s_bitcmp1_b64 {RDY}, {C.sT1}"))]
            return []
        def mid(w):
            if w!=3: return []
            return [f"s_cbranch_scc0 {pre}_kvw\n{pre}_kvok:\ns_add_u32 {C.sT0}, {C.sK}, {32*16384-3*2048+8192}", f"buffer_load_dword v11, {C.vAux}, {sWS}, {C.sT0} offen sc1",
                    f"s_sub_u32 {C.sT0}, {C.sT0}, 8192", f"buffer_load_dword v11, {C.vAux}, {sWS}, {C.sT0} offen sc1\n{faddr}"]
        def prebar1(a,w,younger):
            if w==2: a(f"s_waitcnt vmcnt({younger(pl)})"); a(ps)
            if w==3: a(fload)
        def sal(w): return [f"s_add_u32 {sMp}, {sMp}, 0x4000",f"s_add_u32 {sMh}, {sMh}, 0x4000"] if w==2 else []
        hooks=dict(mid=mid, end=lambda a,w: a(f"s_cmp_eq_u32 {C.sSeg}, 63\ns_cbranch_scc1 {pre}_done"), qk=qk, pre_k=lambda w:[], sal=sal, prefix=pre, prebar1=prebar1)
        C.step_loop(a,w,cc,hooks)
        if w==3: kvwait(f"{pre}_kvw",f"{pre}_kvok",C.sT1,0)
        a(f"{pre}_done:\ns_waitcnt lgkmcnt(0)")
        if w==2:
            lp=a.lab("pub")
            a(f"{lp}:"); a(pl); C.spin_guard(a,F); a(f"s_waitcnt vmcnt(0)\nv_cmp_eq_u32 vcc, -1, v{PB}\ns_cbranch_vccnz {lp}"); a(ps)
        a("s_waitcnt vmcnt(0)")
        stamp(a,cfg,3)
        a(f"s_cmp_lg_u32 {sLo_}, 0\ns_cbranch_scc1 {F}\ns_mov_b32 {sLo_}, {LAYER_STRIDE}\ns_mov_b32 {sLay}, 1")
        a("v_mov_b32 v20, -1")
        for i,g in enumerate(C.GROUPS[w]):
            a(f"s_add_u32 {C.sT1}, {C.mso(i)}, 0x8000\nbuffer_store_dword v20, {C.vMst}, {sWS}, {C.sT1} offen\nbuffer_load_dword v21, {C.vMst}, {sWS}, {C.sT1} offen sc1")
        for x in C.next_slots(w): a(x)
        a(f"v_lshrrev_b32 v18, 4, {C.vL16}\ns_waitcnt vmcnt(0)")
        C.store_mem0(a,w,sX,"v18")
        a(f"s_branch {pre}_layer\n{F}:\ns_waitcnt vmcnt(0) lgkmcnt(0)\ns_endpgm")

def gen(cfg={}):
    a=Asm()
    a(f"{NAME}:\ns_cmp_lt_u32 s2, 256\ns_cbranch_scc1 k_go\nk_end:\ns_endpgm\nk_go:\ns_getreg_b32 {sXc}, hwreg(HW_REG_XCC_ID, 0, 4)\ns_add_u32 {sXc}, {sXc}, 1\nv_lshlrev_b32 v2, 4, v0")
    entry(a)
    a(f"s_mov_b32 {sLay}, 0\ns_mov_b32 s101, s2")
    stamp(a,cfg,9)
    a(f"""s_lshr_b32 {T0}, s2, 7
    s_mul_i32 {T0}, {T0}, {LAYER_STRIDE}
    s_and_b32 {T1}, s2, 127
    s_lshl_b32 {T2}, {T1}, 10
    s_add_u32 {T2}, {T2}, {T0}
    s_add_u32 {T2}, {T2}, {OFF_F}
    s_lshl_b32 {T1}, {T1}, 13
    s_add_u32 {T1}, {T1}, {T0}
    s_add_u32 {T1}, {T1}, {OFF_MH}
    s_add_u32 {T0}, {T1}, 4096
    v_lshrrev_b32 v3, 2, v2
    v_mov_b32 v4, -1
    v_mov_b32 v5, -1
    v_mov_b32 v6, -1
    v_mov_b32 v7, -1
    v_mov_b32 v8, 0
    buffer_store_dword v8, v3, {sWS}, {T2} offen sc1
    buffer_store_dwordx4 v[4:7], v2, {sWS}, {T1} offen sc1
    buffer_store_dwordx4 v[4:7], v2, {sWS}, {T0} offen sc1""")
    announce(a); elect(a,"k_end",sI)
    a(f"s_mov_b32 s101, {sI}")
    stamp(a,cfg,0)
    a(f"s_cmp_lt_u32 {sI}, 32\ns_cbranch_scc1 chain")
    worker(a,cfg)
    a("chain:")
    chain(a,cfg)
    body=compact(a.finish())
    return f'; @launch grid=(256,1,1) block=(256,1,1) lds=163840\n.amdgcn_target "amdgcn-amd-amdhsa--gfx950"\n.text\n.globl {NAME}\n.p2align 8\n.type {NAME},@function\n'+body+KD.format(name=NAME)
if __name__=="__main__":
    t=gen()
    ref=open("interleave_layers__memory_aug_recurrent_mem_tr__mha_block__prompt.s.ref").read()
    hdr="".join(l+"\n" for l in ref.split("\n")[:14])
    out=sys.argv[1] if len(sys.argv)>1 else "mega.s"
    open(out,"w").write(hdr+t)
    import subprocess
    print(len(t), subprocess.run(f"clang -x assembler -target amdgcn-amd-amdhsa -mcpu=gfx950 {out} -o mega.co && python3 cdna_unwritten_srd_check.py mega.co; llvm-readelf -S mega.co | grep text",shell=True,capture_output=True,text=True))
```

```python
from wk import *
sHd,sSeg,sSrc,sKVo,sQo="s25","s26","s27","s28","s29"
FR=Frags(80)
def fi(mu,t,k): return ("kvq".index(mu)*2+t)*18+k
vSrc,vRaw,vDst,vRd,vL16,vKst,vTr,vWa=[f"v{i}" for i in range(1,9)]
RAW=XF_BYTES; WST=81920
def load_qkv(a, mats):
    srd(a,sA,P_WQ,4718592); srd(a,sB,P_WK,4718592); srd(a,sC_,P_WV,4718592)
    tr_addr(a,vTr,"v10","v11",WST)
    a(f"""
    v_lshrrev_b32 v10, 2, v0
    v_and_b32 v11, 3, v0
    v_lshlrev_b32 v11, 4, v11
    v_lshl_add_u32 {vWa}, v10, 13, v11
    s_lshl_b32 {T2}, {sHd}, 8
    s_lshl_b32 {T1}, {sW}, 6
    s_add_u32 {T2}, {T2}, {T1}
    """)
    blocks=[]
    for mu in mats:
        for b in range(9):
            blocks.append(([(vWa,{"q":sA,"k":sB,"v":sC_}[mu],T2,(64*b+16*i)*8192,16) for i in range(4)],
                           [(t,)+FR.reg(fi(mu,t,2*b)) for t in range(2)]))
    load_blocks(a,blocks,WST,vTr)
def consts(a):
    ln_consts(a,vSrc,vRaw,vDst,vRd,"v10","v11",RAW,0)
    a(f"""
    v_lshlrev_b32 {vL16}, 4, v0
    v_lshrrev_b32 v10, 2, v0
    v_lshlrev_b32 v10, 5, v10
    v_and_b32 v11, 1, v0
    v_lshl_add_u32 v10, v11, 4, v10
    v_bfe_u32 v11, v0, 1, 1
    v_lshl_add_u32 {vKst}, v11, 11, v10
    """)
ACC=16; XB=64
def gemm(a, mats, bufs):
    acc=lambda mu,t,T: ACC+("kvq".index(mu)*4+t*2+T)*4
    nb=len(bufs)
    rd=lambda k: [f"ds_read_b128 {q(bufs[k%nb]+4*T)}, {vRd} offset:{xfrag(k,T)}" for T in range(2)]
    for k in range(nb-1):
        for x in rd(k): a(x)
    for k in range(18):
        pend=rd(k+nb-1) if k+nb-1<18 else []
        a(f"s_waitcnt lgkmcnt({2*min(nb-2,17-k)})")
        for mu in mats:
            for t in range(2):
                for T in range(2):
                    d=q(acc(mu,t,T)); W=FR.op(fi(mu,t,k)); X=q(bufs[k%nb]+4*T)
                    a(mf(d,X,W,d if k else 0) if mu=="v" else mf(d,W,X,d if k else 0))
                    if pend: a(pend.pop(0))
    return acc
def segment(a, lo, nxt, signal):
    ln_stage(a,vRaw,vDst,ACC,pre_write=lambda: (a("s_waitcnt vmcnt(0)\ns_barrier"),signal(1)))
    a(f"""s_mul_i32 {T0}, {sHd}, 65
    s_add_u32 {T0}, {T0}, {sSeg}
    s_lshl_b32 {sKVo}, {T0}, 14
    s_add_u32 {sKVo}, {sKVo}, {OFF_KV}
    s_lshl_b32 {sQo}, {T0}, 13
    s_add_u32 {sQo}, {sQo}, {OFF_QX}
    s_waitcnt lgkmcnt(0)
    s_barrier""")
    nxt()
    acc=gemm(a,"kv",[XB,XB+8,ACC+32])
    a(f"s_lshl_b32 {T0}, {sW}, 9\ns_add_u32 {T0}, {T0}, {sKVo}\ns_add_u32 {T1}, {T0}, 4096\ns_lshl_b32 {T2}, {sW}, 11\ns_add_u32 {T2}, {T2}, {sKVo}\ns_add_u32 {T2}, {T2}, 8192")
    def pack(d,x,y):
        a(cv(d,x,x+1)); a(cv(d+1,x+2,x+3)); a(cv(d+2,y,y+1)); a(cv(d+3,y+2,y+3))
    for T in range(2):
        d=acc("k",0,T); pack(d,d,acc("k",1,T)); a(f"buffer_store_dwordx4 {q(d)}, {vKst}, {sD}, {(T0,T1)[T]} offen sc1")
    for t in range(2):
        d=acc("v",t,0); pack(d,d,acc("v",t,1)); a(f"buffer_store_dwordx4 {q(d)}, {vL16}, {sD}, {T2} offen offset:{1024*t} sc1")
    gemm(a,"q",[XB,XB+8,ACC+8])
    signal(0)
    a(f"s_lshl_b32 {T0}, {sW}, 10\ns_add_u32 {T0}, {T0}, {sQo}\ns_add_u32 {T1}, {T0}, 4096")
    for T in range(2):
        d=acc("q",0,T); pack(d,d,acc("q",1,T)); a(f"buffer_store_dwordx4 {q(d)}, {vL16}, {sD}, {(T0,T1)[T]} offen sc1")
def fetch(a, sg):
    a(f"s_mul_i32 {sSrc}, {sg}, {32*1152}")
    ln_fetch(a,vSrc,sX,sSrc,RAW)
```

```python
from wk import *
import a1
from a1 import FR, fi, sHd, sSeg, vL16, vKst
sKVo,sQo,sMo,sOo,sCc,sW1k="s28","s29","s30","s31","s32","s33"
MASK=["s[40:41]","s[42:43]","s[44:45]","s[46:47]"]
vSab,vSc,vKx="v2","v3","v4"
L_MF=0; L_KX=18432
Q,K,V,S0_,MB_=112,144,176,184,196
SM=208; KK=144; ACC=16; XB=32; ONES=40; PX=44; PM=52; VD=56; O=60; LL=216; TMP=224
def consts(a):
    a(f"""
    v_and_b32 v10, 15, v0                  ; m
    v_lshrrev_b32 v11, 4, v0               ; gA
    v_and_b32 v12, 13, v10
    v_lshlrev_b32 v12, 4, v12              ; (m&~2)*16
    v_bfe_u32 v13, v10, 1, 1               ; half
    v_lshrrev_b32 v14, 1, v11
    v_lshl_add_u32 v12, v14, 10, v12
    v_and_b32 v14, 1, v11
    v_lshl_add_u32 v15, v14, 8, v12
    v_lshl_add_u32 v15, v13, 3, v15
    s_lshl_b32 {T0}, {sW}, 11
    v_add_u32 {vSab}, {T0}, v15
    v_lshl_add_u32 v14, v14, 1, v13
    v_lshl_add_u32 {vSc}, v14, 8, v12
    s_lshl_b32 {sW1k}, {sW}, 10
    v_add_u32 {vKx}, {sW1k}, {vL16}
    v_lshlrev_b32 v11, 2, v11
    s_mov_b32 {sCc}, {f2u(128**-0.5*math.log2(math.e))}
    s_mov_b32 s34, 0x05040100
    s_mov_b32 s35, 0x07060302
    """)
    for r in range(4): a(f"v_add_u32 v12, {r}, v11\nv_cmp_le_u32 {MASK[r]}, v12, v10")
    for i in range(4): a(f"v_mov_b32 v{12+i}, 0")
    a("s_barrier")
    for i in range(5): a(f"ds_write_b128 {vKx}, v[12:15] offset:{4096*i}")
    a("s_waitcnt lgkmcnt(0)\ns_barrier")
def pre(a, lo, mh):
    a(f"""s_mul_i32 {T0}, {sHd}, 65
    s_add_u32 {T0}, {T0}, {sSeg}
    s_lshl_b32 {sKVo}, {T0}, 14
    s_add_u32 {sKVo}, {sKVo}, {OFF_KV}
    s_lshl_b32 {sQo}, {T0}, 13
    s_add_u32 {sQo}, {sQo}, {OFF_QX}
    s_lshl_b32 {sMo}, {sSeg}, 14
    s_add_u32 {sMo}, {sMo}, {mh}
    s_lshl_b32 {T0}, {sSeg}, 6
    s_add_u32 {T0}, {T0}, {sHd}
    s_lshl_b32 {sOo}, {T0}, 12
    s_add_u32 {sOo}, {sOo}, {sW1k}
    s_add_u32 {sOo}, {sOo}, {OFF_O}
    s_add_u32 {T0}, {sQo}, 4096
    s_add_u32 {T1}, {sKVo}, 4096
    s_lshl_b32 {T2}, {sW}, 11
    s_add_u32 {T2}, {T2}, {sKVo}
    s_add_u32 {T2}, {T2}, 8192""")
    for T in range(2):
        for b in range(4):
            a(f"buffer_load_dwordx4 {q(Q+16*T+4*b)}, {vL16}, {sD}, {(sQo,T0)[T]} offen offset:{1024*b} sc1")
            a(f"buffer_load_dwordx4 {q(K+16*T+4*b)}, {vKst}, {sD}, {(sKVo,T1)[T]} offen offset:{512*b} sc1")
    for t in range(2): a(f"buffer_load_dwordx4 {q(V+4*t)}, {vL16}, {sD}, {T2} offen offset:{1024*t} sc1")
    for i in range(4): a(f"v_mov_b32 v{ONES+i}, 0x3f803f80")
    for r in (PX+2,PX+3,PM+1,PM+3): a(f"v_mov_b32 v{r}, 0")
    a(f"v_mov_b32 v{TMP}, {hex(f2u(-1e30))}\ns_waitcnt vmcnt(0)")
    for i,(kt,qt) in enumerate(((0,0),(0,1),(1,1))):
        d=q(S0_+4*i)
        for b in range(4): a(mf(d,q(K+16*kt+4*b),q(Q+16*qt+4*b),d if b else 0))
    for i in (0,2):
        for r in range(4): a(f"v_cndmask_b32 v{S0_+4*i+r}, v{TMP}, v{S0_+4*i+r}, {MASK[r]}")
def post(a, fail, sCnt, spin_max, sleep=0):
    lp=a.lab("a2poll")
    a(f"s_add_u32 {T0}, {sMo}, {sW1k}\ns_add_u32 {T1}, {T0}, 4096\ns_add_u32 {T2}, {sMo}, 8192")
    if sleep: a(f"s_branch {lp}f\n{lp}:\ns_sleep {sleep}\n{lp}f:")
    else: a(f"{lp}:")
    for i in range(3): a(f"buffer_load_dwordx4 {q(MB_+4*i)}, {vL16}, {sWS}, {(T0,T1,T2)[i]} offen sc1")
    a(f"""s_add_u32 {sCnt}, {sCnt}, 1
    s_cmp_gt_u32 {sCnt}, {spin_max}
    s_cbranch_scc1 {fail}
    s_waitcnt vmcnt(0)
    v_max3_u32 v{TMP}, v{MB_}, v{MB_+4}, v{MB_+8}
    v_cmp_eq_u32 vcc, -1, v{TMP}
    s_cbranch_vccnz {lp}""")
    for i in range(2):
        r=MB_+4*i; t=TMP+4*i
        a(f"""v_perm_b32 v{t}, v{r+1}, v{r}, s34
        v_perm_b32 v{t+1}, v{r+3}, v{r+2}, s34
        v_perm_b32 v{t+2}, v{r+1}, v{r}, s35
        v_perm_b32 v{t+3}, v{r+3}, v{r+2}, s35
        ds_write2st64_b64 {vSab}, v[{t}:{t+1}], v[{t+2}:{t+3}] offset0:{16*i} offset1:{16*i+1}""")
    a(f"ds_write_b128 {vSc}, {q(MB_+8)} offset:16384\ns_waitcnt lgkmcnt(0)\ns_barrier")
    rd=lambda k: f"ds_read_b128 {q(XB+4*(k&1))}, {vL16} offset:{1024*k}"
    a(rd(0))
    for k in range(18):
        a("s_waitcnt lgkmcnt(0)"); X=q(XB+4*(k&1))
        for n,(mu,t) in enumerate((("k",0),("k",1),("v",0),("v",1))):
            d=q(ACC+4*n); W=FR.op(fi(mu,t,k))
            a(mf(d,X,W,d if k else 0) if mu=="v" else mf(d,W,X,d if k else 0))
            if n==0 and k<17: a(rd(k+1))
    for i in range(4): a(cv(ACC+i,ACC+2*i,ACC+2*i+1))
    a(f"ds_write_b128 {vKx}, {q(ACC)} offset:{L_KX}")
    for t in range(2):
        for i in range(2): a(cv(VD+2*t+i,ACC+8+4*t+2*i,ACC+8+4*t+2*i+1))
    a("s_waitcnt lgkmcnt(0)\ns_barrier")
    for b in range(4): a(f"ds_read_b128 {q(KK+4*b)}, {vL16} offset:{L_KX+1024*b}")
    for b in range(4):
        a(f"s_waitcnt lgkmcnt({3-b})")
        for qt in range(2):
            d=q(SM+4*qt); a(mf(d,q(KK+4*b),q(Q+16*qt+4*b),d if b else 0))
    vals=[[S0_+r for r in range(4)]+[SM,SM+1],[S0_+4+r for r in range(8)]+[SM+4,SM+5]]
    for qt in range(2):
        v=vals[qt]; mx=TMP+2*qt
        a(f"v_max_f32 v{mx}, v{v[0]}, v{v[1]}")
        for i in range(2,len(v),2): a(f"v_max3_f32 v{mx}, v{mx}, v{v[i]}, v{v[i+1]}")
    for sw in ("v_permlane16_swap_b32","v_permlane32_swap_b32"):
        for qt in range(2): a(f"v_mov_b32 v{TMP+2*qt+1}, v{TMP+2*qt}")
        for qt in range(2): a(f"{sw} v{TMP+2*qt}, v{TMP+2*qt+1}")
        for qt in range(2): a(f"v_max_f32 v{TMP+2*qt}, v{TMP+2*qt}, v{TMP+2*qt+1}")
    for qt in range(2):
        v=vals[qt]; mx=TMP+2*qt
        a(f"v_mul_f32 v{mx}, {sCc}, v{mx}")
        for r in v: a(f"v_fma_f32 v{r}, v{r}, {sCc}, -v{mx}")
        for r in v: a(f"v_exp_f32 v{r}, v{r}")
        for i in range(0,len(v)-2,2): a(cv(PX+4*qt+i//2,v[i],v[i+1]))
        a(cv(PM+2*qt,v[-2],v[-1]))
    m16=lambda d,A,B: f"v_mfma_f32_16x16x16_bf16 {q(d)}, v[{A}:{A+1}], v[{B}:{B+1}], {q(d)}"
    for qt in range(2):
        a(mf(q(LL+4*qt),q(ONES),q(PX+4*qt),0))
        for t in range(2): a(mf(q(O+8*qt+4*t),q(V+4*t),q(PX+4*qt),0))
    for qt in range(2):
        a(m16(LL+4*qt,ONES,PM+2*qt))
        for t in range(2): a(m16(O+8*qt+4*t,VD+2*t,PM+2*qt))
    a(f"s_add_u32 {T0}, {sOo}, {32*4096}")
    for qt in range(2):
        a(f"v_rcp_f32 v{TMP}, v{LL+4*qt}")
        o=O+8*qt
        for i in range(8): a(f"v_mul_f32 v{o+i}, v{o+i}, v{TMP}")
        for i in range(4): a(cv(o+i,o+2*i,o+2*i+1))
        a(f"buffer_store_dwordx4 {q(o)}, {vL16}, {sD}, {(sOo,T0)[qt]} offen sc1")
```

```python
from wk import *
from a1 import FR, fi, sHd, sSeg, vL16, vKst
sKVo,sQo,sMo,sOo,sCc,sW1k="s28","s29","s30","s31","s32","s33"
MASK=["s[40:41]","s[42:43]","s[44:45]","s[46:47]"]; SEL="s[48:49]"
vSab,vSc,vKx,vVr="v2","v3","v4","v9"
L_MF=0; L_KX=18432; L_VX=22528
Q,K=112,144; V=[176,192]; SX,SM,TMP,MB_=208,220,228,232
ACC=16; XB=32; KK=16; VD=32; O=40; PT=72; ONES=12; PX=232; PM=240; LL=244
def consts(a):
    a(f"""
    v_and_b32 v10, 15, v0                  ; m
    v_lshrrev_b32 v11, 4, v0               ; gA
    v_and_b32 v12, 13, v10
    v_lshlrev_b32 v12, 4, v12              ; (m&~2)*16
    v_bfe_u32 v13, v10, 1, 1               ; half
    v_lshrrev_b32 v14, 1, v11
    v_lshl_add_u32 v12, v14, 10, v12
    v_and_b32 v14, 1, v11
    v_lshl_add_u32 v15, v14, 8, v12
    v_lshl_add_u32 v15, v13, 3, v15
    s_lshl_b32 {T0}, {sW}, 11
    v_add_u32 {vSab}, {T0}, v15
    v_lshl_add_u32 v14, v14, 1, v13
    v_lshl_add_u32 v14, v14, 8, v12
    s_and_b32 {T0}, {sW}, 1
    s_lshl_b32 {T1}, {T0}, 5
    v_add_u32 {vSc}, {T1}, v14
    s_lshl_b32 {T1}, {T0}, 11
    v_add_u32 {vVr}, {T1}, {vL16}
    s_lshl_b32 {sW1k}, {sW}, 10
    v_add_u32 {vKx}, {sW1k}, {vL16}
    v_lshlrev_b32 v11, 2, v11
    s_mov_b32 {sCc}, {f2u(128**-0.5*math.log2(math.e))}
    s_mov_b32 s34, 0x05040100
    s_mov_b32 s35, 0x07060302
    s_cmp_ge_u32 {sW}, 2
    s_cselect_b64 {SEL}, -1, 0
    """)
    for r in range(4): a(f"v_add_u32 v12, {r}, v11\nv_cmp_le_u32 {MASK[r]}, v12, v10")
    for i in range(4): a(f"v_mov_b32 v{ONES+i}, 0x3f803f80")
def loads(a, pair, vb):
    a(f"""s_lshr_b32 {T1}, {sW}, 1
    s_add_u32 {T1}, {T1}, {pair}
    s_mul_i32 {T0}, {sHd}, 65
    s_add_u32 {T0}, {T0}, {T1}
    s_lshl_b32 {sKVo}, {T0}, 14
    s_add_u32 {sKVo}, {sKVo}, {OFF_KV}
    s_lshl_b32 {sQo}, {T0}, 13
    s_add_u32 {sQo}, {sQo}, {OFF_QX}
    s_add_u32 {T0}, {sQo}, 4096
    s_add_u32 {T1}, {sKVo}, 4096
    s_and_b32 {T2}, {sW}, 1
    s_lshl_b32 {T2}, {T2}, 12
    s_add_u32 {T2}, {T2}, {sKVo}
    s_add_u32 {T2}, {T2}, 8192""")
    for T in range(2):
        for b in range(4):
            a(f"buffer_load_dwordx4 {q(Q+16*T+4*b)}, {vL16}, {sD}, {(sQo,T0)[T]} offen offset:{1024*b} sc1")
            a(f"buffer_load_dwordx4 {q(K+16*T+4*b)}, {vKst}, {sD}, {(sKVo,T1)[T]} offen offset:{512*b} sc1")
    for t in range(4): a(f"buffer_load_dwordx4 {q(V[vb]+4*t)}, {vL16}, {sD}, {T2} offen offset:{1024*t} sc1")
def pre(a):
    a(f"v_mov_b32 v{TMP}, {hex(f2u(-1e30))}")
    for i,(kt,qt) in enumerate(((0,0),(0,1),(1,1))):
        d=q(SX+4*i)
        for b in range(4): a(mf(d,q(K+16*kt+4*b),q(Q+16*qt+4*b),d if b else 0))
    a(f"s_lshl_b32 {sMo}, {sSeg}, 14\ns_add_u32 {sMo}, {sMo}, {OFF_MH}")
    for i in (0,2):
        for r in range(4): a(f"v_cndmask_b32 v{SX+4*i+r}, v{TMP}, v{SX+4*i+r}, {MASK[r]}")
def post(a, vb, fail, nxt):
    lp=a.lab("a2poll")
    a(f"""s_add_u32 {T0}, {sMo}, {sW1k}
    s_add_u32 {T1}, {T0}, 4096
    s_add_u32 {T2}, {T0}, 16384
    s_add_u32 {T3}, {T1}, 16384
    s_and_b32 s36, {sW}, 1
    s_lshl_b32 s36, s36, 14
    s_add_u32 s36, s36, {sMo}
    s_add_u32 s36, s36, 8192
    {lp}:""")
    for i in range(5): a(f"buffer_load_dwordx4 {q(MB_+4*i)}, {vL16}, {sWS}, {(T0,T1,T2,T3,'s36')[i]} offen sc1")
    a(f"""s_add_u32 {sCnt}, {sCnt}, 1
    s_cmp_gt_u32 {sCnt}, {SPIN}
    s_cbranch_scc1 {fail}
    s_waitcnt vmcnt(0)
    v_max3_u32 v{TMP}, v{MB_}, v{MB_+4}, v{MB_+8}
    v_max3_u32 v{TMP}, v{TMP}, v{MB_+12}, v{MB_+16}
    v_cmp_eq_u32 vcc, -1, v{TMP}
    s_cbranch_vccnz {lp}""")
    for i in range(4):
        r=MB_+4*i; t=PT+4*(i&1); off=8192*(i&1)+32*(i>>1)
        a(f"""v_perm_b32 v{t}, v{r+1}, v{r}, s34
        v_perm_b32 v{t+1}, v{r+3}, v{r+2}, s34
        v_perm_b32 v{t+2}, v{r+1}, v{r}, s35
        v_perm_b32 v{t+3}, v{r+3}, v{r+2}, s35
        ds_write_b64 {vSab}, v[{t}:{t+1}] offset:{off}
        ds_write_b64 {vSab}, v[{t+2}:{t+3}] offset:{off+512}""")
    a(f"ds_write_b128 {vSc}, {q(MB_+16)} offset:16384\ns_waitcnt lgkmcnt(0)\ns_barrier")
    rd=lambda k: f"ds_read_b128 {q(XB+4*(k%3))}, {vL16} offset:{1024*k}"
    a(rd(0)); a(rd(1))
    for k in range(18):
        a(f"s_waitcnt lgkmcnt({1 if k<17 else 0})"); X=q(XB+4*(k%3))
        for n,(mu,t) in enumerate((("k",0),("k",1),("v",0),("v",1))):
            d=q(ACC+4*n); W=FR.op(fi(mu,t,k))
            a(mf(d,X,W,d if k else 0) if mu=="v" else mf(d,W,X,d if k else 0))
            if n==0 and k<16: a(rd(k+2))
    for i in range(4): a(cv(ACC+i,ACC+2*i,ACC+2*i+1))
    a(f"ds_write_b128 {vKx}, {q(ACC)} offset:{L_KX}")
    for i in range(4): a(cv(ACC+8+i,ACC+8+2*i,ACC+8+2*i+1))
    a(f"ds_write_b128 {vKx}, {q(ACC+8)} offset:{L_VX}")
    for r in (PX+2,PX+3): a(f"v_mov_b32 v{r}, 0")
    a("s_waitcnt lgkmcnt(0)\ns_barrier")
    for b in range(4): a(f"ds_read_b128 {q(KK+4*b)}, {vL16} offset:{L_KX+1024*b}")
    for b in range(2): a(f"ds_read_b128 {q(VD+4*b)}, {vVr} offset:{L_VX+1024*b}")
    for b in range(4):
        a(f"s_waitcnt lgkmcnt({5-b})")
        for qt in range(2):
            d=q(SM+4*qt); a(mf(d,q(KK+4*b),q(Q+16*qt+4*b),d if b else 0))
    a(f"""s_lshr_b32 {T0}, {sW}, 1
    s_add_u32 {T0}, {T0}, {sSeg}
    s_lshl_b32 {T0}, {T0}, 6
    s_add_u32 {T0}, {T0}, {sHd}
    s_lshl_b32 {T0}, {T0}, 1
    s_and_b32 {T1}, {sW}, 1
    s_add_u32 {T0}, {T0}, {T1}
    s_lshl_b32 {sOo}, {T0}, 11
    s_add_u32 {sOo}, {sOo}, {OFF_O}""")
    nxt()
    for qt in range(2):
        for i in range(2): a(f"v_cndmask_b32 v{SM+4*qt+i}, v{SM+4*qt+i}, v{SM+4*qt+2+i}, {SEL}")
    vals=[[SX+r for r in range(4)]+[SM,SM+1],[SX+4+r for r in range(8)]+[SM+4,SM+5]]
    for qt in range(2):
        v=vals[qt]; mx=TMP+2*qt
        a(f"v_max_f32 v{mx}, v{v[0]}, v{v[1]}")
        for i in range(2,len(v),2): a(f"v_max3_f32 v{mx}, v{mx}, v{v[i]}, v{v[i+1]}")
    for sw in ("v_permlane16_swap_b32","v_permlane32_swap_b32"):
        for qt in range(2): a(f"v_mov_b32 v{TMP+2*qt+1}, v{TMP+2*qt}")
        for qt in range(2): a(f"{sw} v{TMP+2*qt}, v{TMP+2*qt+1}")
        for qt in range(2): a(f"v_max_f32 v{TMP+2*qt}, v{TMP+2*qt}, v{TMP+2*qt+1}")
    m16=lambda d,A,B: f"v_mfma_f32_16x16x16_bf16 {q(d)}, v[{A}:{A+1}], v[{B}:{B+1}], {q(d)}"
    sm=[]
    for qt in range(2):
        v=vals[qt]; mx=TMP+2*qt
        o=[f"v_mul_f32 v{mx}, {sCc}, v{mx}"]+[f"v_fma_f32 v{r}, v{r}, {sCc}, -v{mx}" for r in v]+[f"v_exp_f32 v{r}, v{r}" for r in v]
        o+=[cv(PX+4*qt+i//2,v[i],v[i+1]) for i in range(0,len(v)-2,2)]+[cv(mx,v[-2],v[-1])]
        o+=[f"v_cndmask_b32 v{PM+2*qt}, v{mx}, 0, {SEL}",f"v_cndmask_b32 v{PM+2*qt+1}, 0, v{mx}, {SEL}"]
        sm.append(o)
    def pv(qt):
        return [mf(q(LL+4*qt),q(ONES),q(PX+4*qt),0)]+[mf(q(O+16*qt+4*t),q(V[vb]+4*t),q(PX+4*qt),0) for t in range(4)]+\
               [m16(LL+4*qt,ONES,PM+2*qt)]+[m16(O+16*qt+4*t,VD+2*t,PM+2*qt) for t in range(4)]
    def fin(qt):
        o=O+16*qt; r=[f"v_rcp_f32 v{TMP}, v{LL+4*qt}"]
        for bb in range(2):
            r+=[f"v_mul_f32 v{o+8*bb+i}, v{o+8*bb+i}, v{TMP}" for i in range(8)]+[cv(o+8*bb+i,o+8*bb+2*i,o+8*bb+2*i+1) for i in range(4)]
            r.append(f"buffer_store_dwordx4 {q(o+8*bb)}, {vL16}, {sD}, {(sOo,'s36')[qt]} offen offset:{1024*bb} sc1")
        return r
    def mix(ms,vs,k):
        for x in ms:
            a(x)
            for _ in range(k):
                if vs: a(vs.pop(0))
        for x in vs: a(x)
    for x in sm[0]: a(x)
    a(f"s_add_u32 s36, {sOo}, {32*4096}\ns_waitcnt lgkmcnt(0)")
    mix(pv(0),sm[1],3); mix(pv(1),fin(0),3)
    for x in fin(1): a(x)
```

```python
from wk import *
FR=Frags(128)
sCg,sTask,sOo,sXo="s25","s26","s27","s28"
vL16,vXa,vTr,vWa,vWb,vRed="v1","v2","v3","v4","v5","v6"
WST=16384
fi=lambda t,ks: t*32+ks
def load_w(a):
    srd(a,sA,P_WO,4718592)
    tr_addr(a,vTr,"v10","v11",WST)
    a(f"""
    v_bfe_u32 v10, v0, 2, 2                ; kk&3
    v_bfe_u32 v11, v0, 4, 1
    v_lshl_add_u32 v10, v11, 4, v10
    v_lshrrev_b32 v11, 5, v0
    v_lshl_add_u32 v10, v11, 2, v10        ; row
    v_mul_u32_u24 v10, 1152, v10
    v_and_b32 v11, 3, v0
    v_lshl_add_u32 {vWa}, v11, 4, v10
    v_bfe_u32 v11, v0, 1, 1
    v_mul_u32_u24 v11, {64*1152}, v11
    v_and_b32 v12, 1, v0
    v_lshl_add_u32 v11, v12, 4, v11
    v_add_u32 {vWb}, v10, v11
    s_mul_i32 {T2}, {sW}, {1024*1152}
    s_mul_i32 {T1}, {sCg}, 96
    s_add_u32 {T2}, {T2}, {T1}
    """)
    blocks=[]
    for hh in range(8):
        for hf in range(2):
            blocks.append(([(vWa,sA,T2,(128*hh+64*hf+32*(i>>1)+8*(i&1))*1152,16) for i in range(4)],[(t,)+FR.reg(fi(t,4*hh+2*hf)) for t in range(2)]))
        blocks.append(([(vWb,sA,T2,(128*hh+32*(i>>1)+8*(i&1))*1152+64,16) for i in range(4)],[(hf,)+FR.reg(fi(2,4*hh+2*hf)) for hf in range(2)]))
    load_blocks(a,blocks,WST,vTr)
def consts(a):
    a(f"""
    v_lshlrev_b32 {vL16}, 4, v0
    v_and_b32 v10, 15, v0
    v_mul_u32_u24 v10, 1152, v10
    v_lshrrev_b32 v11, 4, v0
    v_lshl_add_u32 {vXa}, v11, 3, v10
    s_mul_i32 {T0}, {sW}, 3072
    v_add_u32 {vRed}, {T0}, {vL16}
    """)
ACC=16; RING=48; NR=20; XR=28; RD=32
def resid(a, y, x, t):
    for i in range(2):
        a(f"""v_lshlrev_b32 v{t}, 16, v{x+i}
        v_and_b32 v{t+1}, 0xffff0000, v{x+i}
        v_add_f32 v{t}, v{t}, v{y+2*i}
        v_add_f32 v{t+1}, v{t+1}, v{y+2*i+1}
        v_cvt_pk_bf16_f32 v{y+i}, v{t}, v{t+1}""")
def ld(a, ks):
    if ks%4==0: a(f"s_add_u32 s29, {sOo}, {1024*ks}")
    a(f"buffer_load_dwordx4 {q(RING+4*(ks%NR))}, {vL16}, {sD}, s29 offen offset:{1024*(ks%4)} sc1")
def issue(a):
    a(f"""s_lshl_b32 {sOo}, {sTask}, 17
    s_lshl_b32 {T0}, {sW}, 15
    s_add_u32 {sOo}, {sOo}, {T0}
    s_add_u32 {sOo}, {sOo}, {OFF_O}
    s_mul_i32 {sXo}, {sTask}, {16*1152}
    s_mul_i32 {T0}, {sCg}, 96
    s_add_u32 {sXo}, {sXo}, {T0}
    s_lshl_b32 {T0}, {sW}, 5
    s_add_u32 {sXo}, {sXo}, {T0}""")
    for ks in range(NR): ld(a,ks)
    a(f"buffer_load_dwordx2 v[{XR}:{XR+1}], {vXa}, {sX}, {sXo} offen sc1")
def task(a, lo, extra=0, sample=None):
    for ks in range(32):
        a(f"s_waitcnt vmcnt({min(32,ks+NR)-ks-1+(1+extra if ks<NR else 0)+(1 if sample and ks+NR>32 else 0)})")
        for t in range(3):
            d=q(ACC+4*t); a(mf(d,FR.op(fi(t,ks)),q(RING+4*(ks%NR)),d if ks else 0))
        if ks+NR<32: ld(a,ks+NR)
        if ks+NR==32 and sample: sample()
    a("s_waitcnt vmcnt(0)\ns_barrier")
    for t in range(3): a(f"ds_write_b128 {vRed}, {q(ACC+4*t)} offset:{1024*t}")
    sk=a.lab("awo_skip")
    a(f"s_lshl_b32 {T0}, {sW}, 10\nv_add_u32 v10, {T0}, {vL16}\ns_add_u32 {T1}, {sXo}, {lo+OFF_X1}\ns_cmp_eq_u32 {sW}, 3\ns_waitcnt lgkmcnt(0)\ns_barrier\ns_cbranch_scc1 {sk}")
    for w in range(4): a(f"ds_read_b128 {q(RD+4*w)}, v10 offset:{3072*w}")
    a("s_waitcnt lgkmcnt(0)")
    for i in range(4): a(f"v_add_f32 v{RD+i}, v{RD+i}, v{RD+4+i}\nv_add_f32 v{RD+8+i}, v{RD+8+i}, v{RD+12+i}")
    for i in range(4): a(f"v_add_f32 v{RD+i}, v{RD+i}, v{RD+8+i}")
    resid(a,RD,XR,RD+4)
    a(f"buffer_store_dwordx2 v[{RD}:{RD+1}], {vXa}, {sWS}, {T1} offen sc1")
    a(f"{sk}:")
```

```python
from wk import *
import batt
from batt import sHd,sJ,sKm,sKr,sV,sQm,sQr,sIt,sQb,sLlo,vL16,vQm,vQr,vKm,vKr,vV,vOr,S,P,KV,m32,quarter,qk
sNk,sAv,sOwn,sN,sE="s42","s43","s44","s45","s46"
sF=["s47","s48","s49","s50"]; M1="s[52:53]"
vS1,vS2,vSr,cK,cR,cV,aK,aR,aV,vMg="v9","v12","v13","v1","v14","v15","v16","v17","v18","v19"
BLK=2368; L_MG=64*BLK; L_AV=L_MG+9216
QB=104; QT=QB+24; OT=64; R=140
J=4
def consts(a):
    batt.consts(a,0)
    a(f"""
    v_lshrrev_b32 v11, 5, v0
    v_and_b32 v10, 31, v0
    v_and_b32 {vSr}, 0xff, {vKr}
    v_lshl_add_u32 {vQr}, v11, 30, {vQr}
    v_lshlrev_b32 {cR}, 2, v10
    v_min_u32 v10, 18, v10
    v_mul_u32_u24 v11, 304, v11
    v_lshl_add_u32 {cV}, v10, 4, v11
    v_mul_u32_u24 v10, 3450, v0
    v_lshrrev_b32 v10, 16, v10                ; g = lane/19
    v_mul_u32_u24 v11, 19, v10
    v_sub_u32 v11, v0, v11                    ; d
    v_cmp_ne_u32 {M1}, 18, v11
    v_lshlrev_b32 v10, 4, v10
    v_lshl_add_u32 {vS1}, v11, 6, v10
    v_lshlrev_b32 v10, 6, v0
    v_add_u32 {vS2}, {7*64+48}, v10
    s_lshr_b32 {T0}, {sHd}, 2
    s_lshl_b32 {T0}, {T0}, 8
    s_add_u32 {sF[0]}, {T0}, {F_BQ}
    s_mov_b32 {sF[1]}, {F_BQ+8*256}
    s_mul_i32 {T0}, {sHd}, 18
    s_add_u32 {T1}, {T0}, 17
    s_lshr_b32 {T0}, {T0}, 6
    s_lshr_b32 {T1}, {T1}, 6
    s_lshl_b32 {T0}, {T0}, 8
    s_lshl_b32 {T1}, {T1}, 8
    s_add_u32 {sF[2]}, {T0}, {F_BQ}
    s_add_u32 {sF[3]}, {T1}, {F_BQ}
    s_mov_b32 {sNk}, 0
    s_mov_b32 {sN}, 0
    s_mov_b32 {sE}, 0
    s_mov_b32 {sOwn}, {sJ}
    v_mul_u32_u24 v10, {BLK}, v0
    s_mul_i32 {T0}, {sW}, 304
    v_add_u32 v10, {T0}, v10
    s_barrier
    ds_write_b128 v10, {q(KV[0]+8)} offset:{1152+18*16}
    """)
def span(a, name, slots, stride, back):
    n=len(slots); st=stride*BLK
    Kb=lambda b: KV[b]; O=lambda i: q(slots[i][0],16,"a")
    rK=lambda b,o: [f"ds_read_b128 {q(Kb(b))}, {aK} offset:{o}", f"ds_read_b32 v{Kb(b)+6}, {aR} offset:{o+1024}"]
    rV=lambda b,o: [f"ds_read_b128 {q(Kb(b)+8+4*j)}, {aV} offset:{o+1152+608*j}" for j in range(2)]
    a(f"{name}:")
    for x in rK(0,0)+rK(1,st)+rV(0,0): a(x)
    for i in range(4,8): a(f"v_mov_b32 v{P+i}, 0\nv_mov_b32 v{Kb(1)+8+i}, 0")
    a("s_waitcnt lgkmcnt(4)")
    for x in qk(S[0],Kb(0),slots[0][1]): a(x)
    a(f"s_waitcnt lgkmcnt(0)\n{name}_l:")
    t=0
    for b in range(2):
        for i in range(n):
            s=S[t&1]; ns=S[(t+1)&1]; t+=1; last=i==n-1
            nq=qk(ns,Kb(b^1) if last else Kb(b),slots[(i+1)%n][1])
            pv1=m32(O((i-1)%n),q(Kb(b^1 if i==0 else b)+12),q(P+4),O((i-1)%n)); pv0=m32(O(i),q(Kb(b)+8),q(P),O(i))
            rd=rK(b,(2+b)*st)+rV(b^1,(1+b)*st) if last else []
            for k,mm in enumerate((nq[0],nq[1],pv1,pv0)):
                a(mm)
                if rd: a(rd[k])
                if k==2 and i==0: a(f"s_waitcnt lgkmcnt({3 if n==1 else 0})")
                if k==3 and n==1: a("s_waitcnt lgkmcnt(2)") if False else None
                qq=quarter(s,k)
                if last and k==3:
                    a(f"s_sub_u32 {sIt}, {sIt}, 1")
                    if b==1: qq+=[f"v_add_u32 {r}, {2*st}, {r}" for r in (aK,aR,aV)]
                for x in qq: a(x)
            if last:
                if n==1: a("s_waitcnt lgkmcnt(2)")
                a(f"s_cbranch_scc1 {name}_x0" if b==0 else f"s_cbranch_scc0 {name}_l")
    for b in (1,0):
        if b==0: a(f"{name}_x0:")
        a("s_waitcnt lgkmcnt(0)"); a(m32(O(n-1),q(Kb(b)+12),q(P+4),O(n-1))); a(f"s_branch {back}")
def point(a, kb):
    a(f"s_mul_i32 {T0}, {kb}, {BLK}")
    for r,c in ((aK,cK),(aR,cR),(aV,cV)): a(f"v_add_u32 {r}, {T0}, {c}")
def run(a, fail, lrange, stored, sleep):
    slot=lambda i: (16*i,QB+6*i)
    a(f"""bp_loop:
    s_cmp_lg_u32 {sW}, 0
    s_cbranch_scc1 bp_got
    v_lshlrev_b32 v10, 2, v0
    s_branch bp_pf
    bp_poll:
    s_sleep {sleep}
    bp_pf:""")
    for i in range(4): a(f"buffer_load_dword v{20+i}, v10, {sWS}, {sF[i]} offen sc1")
    a(f"""s_add_u32 {sCnt}, {sCnt}, 1
    s_cmp_gt_u32 {sCnt}, {SPIN}
    s_cbranch_scc1 {fail}
    s_waitcnt vmcnt(0)
    v_min_u32 v20, v20, v21
    v_min3_u32 v20, v20, v22, v23
    v_cmp_ne_u32 vcc, 0, v20
    s_nop 0
    s_ff0_i32_b64 {sAv}, vcc
    s_min_u32 {sAv}, {sAv}, 64
    s_cmp_le_u32 {sAv}, {sNk}
    s_cbranch_scc1 bp_poll
    v_mov_b32 v10, {L_AV}
    v_mov_b32 v11, {sAv}
    ds_write_b32 v10, v11
    bp_got:
    s_waitcnt lgkmcnt(0)
    s_barrier
    v_mov_b32 v10, {L_AV}
    ds_read_b32 v11, v10
    s_add_u32 {sQb}, {sNk}, {sW}
    s_waitcnt lgkmcnt(0)
    v_readfirstlane_b32 {sAv}, v11
    s_min_u32 {sAv}, {sAv}, 64
    bp_stage:
    s_cmp_ge_u32 {sQb}, {sAv}
    s_cbranch_scc1 bp_staged""")
    batt.kv_ptr(a,0,sQb)
    a(f"""s_mul_i32 {T2}, {sQb}, {BLK}
    s_mov_b32 m0, {T2}
    s_add_u32 {sQb}, {sQb}, 4
    buffer_load_dwordx4 {vKm}, {sWS}, {sKm} offen sc1 lds
    s_add_u32 m0, {T2}, 1152
    s_mov_b64 exec, {M1}
    buffer_load_dwordx4 {vS1}, {sWS}, {sV} offen sc1 lds
    s_add_u32 m0, {T2}, {1152+1024}
    s_mov_b64 exec, 0x7ff
    buffer_load_dwordx4 {vS2}, {sWS}, {sV} offen sc1 lds
    s_add_u32 m0, {T2}, 1024
    s_mov_b64 exec, 0xffffffff
    buffer_load_dword {vSr}, {sWS}, {sKr} offen sc1 lds
    s_mov_b64 exec, -1
    s_waitcnt vmcnt(40)
    s_branch bp_stage
    bp_staged:
    s_cmp_ge_u32 {sOwn}, {sAv}
    s_cbranch_scc1 bp_noq""")
    batt.q_load(a,QT,sOwn)
    a("bp_noq:")
    point(a,sNk)
    a(f"""s_sub_u32 {sIt}, {sAv}, {sNk}
    s_sub_u32 {sIt}, {sIt}, 1
    s_mov_b32 {sNk}, {sAv}
    s_waitcnt vmcnt(0)
    s_barrier""")
    for n in range(1,5): a(f"s_cmp_eq_u32 {sN}, {n}\ns_cbranch_scc1 bp_t1_{n}")
    a(f"""bp_t2:
    s_cmp_ge_u32 {sOwn}, {sNk}
    s_cbranch_scc1 bp_next""")
    for i in range(12): a(f"v_accvgpr_write_b32 a{OT+i}, 0")
    point(a,sW)
    a(f"""s_sub_u32 {T1}, {sW}, {sE}
    s_sub_u32 {T1}, {T1}, 1
    s_and_b32 {T3}, {T1}, 3
    s_mul_i32 {T1}, {T3}, 3072
    s_add_u32 {T1}, {T1}, {L_MG}
    v_add_u32 {vMg}, {T1}, {vL16}
    s_sub_u32 {sIt}, {sNk}, {sW}
    s_sub_u32 {sIt}, {sIt}, 1
    s_ashr_i32 {sIt}, {sIt}, 2
    s_cmp_ge_i32 {sIt}, 0
    s_waitcnt vmcnt(0)
    s_cbranch_scc1 bp_cu
    bp_merge:
    s_cmp_eq_u32 {T3}, 3
    s_barrier
    s_cbranch_scc1 bp_own""")
    for t in range(3): a(f"ds_write_b128 {vMg}, a[{OT+4*t}:{OT+4*t+3}] offset:{1024*t}")
    a(f"s_waitcnt lgkmcnt(0)\ns_barrier\ns_branch bp_merged\nbp_own:")
    for i in range(11): a(f"v_accvgpr_read_b32 v{R+36+i}, a{OT+i}")
    a(f"v_add_u32 v10, {L_MG}, {vL16}\ns_barrier")
    for k in range(9): a(f"ds_read_b128 {q(R+4*k)}, v10 offset:{1024*k}")
    a("s_waitcnt lgkmcnt(0)")
    for i in range(11): a(f"v_add_f32 v{R+i}, v{R+i}, v{R+12+i}\nv_add_f32 v{R+24+i}, v{R+24+i}, v{R+36+i}")
    for i in range(11): a(f"v_add_f32 v{R+i}, v{R+i}, v{R+24+i}")
    for n in range(1,4): a(f"s_cmp_eq_u32 {sN}, {n}\ns_cbranch_scc1 bp_keep{n}")
    for n in range(4):
        a(f"bp_keep{n}:")
        for i in range(11): a(f"v_accvgpr_write_b32 a{16*n+i}, v{R+i}")
        for i in range(6): a(f"v_mov_b32 v{QB+6*n+i}, v{QT+i}")
        if n<3: a("s_branch bp_kept")
    a(f"""bp_kept:
    s_add_u32 {sN}, {sN}, 1
    bp_merged:
    s_add_u32 {sE}, {sE}, 1
    s_add_u32 {sOwn}, {sOwn}, {J}
    s_cmp_ge_u32 {sOwn}, {sNk}
    s_cbranch_scc1 bp_next""")
    batt.q_load(a,QT,sOwn)
    a(f"s_branch bp_t2\nbp_next:\ns_cmp_lt_u32 {sNk}, 64\ns_cbranch_scc1 bp_loop\ns_branch bp_fin")
    for n in range(1,5): span(a,f"bp_t1_{n}",[slot(i) for i in range(n)],1,"bp_t2")
    span(a,"bp_cu",[(OT,QT)],4,"bp_merge")
    a(f"""bp_fin:
    s_lshl_b32 {sQb}, {sW}, 2
    s_add_u32 {sQb}, {sQb}, {sJ}
    s_mov_b32 {sIt}, 0""")
    for n in range(4):
        r=R+12*n
        for i in range(11): a(f"v_accvgpr_read_b32 v{r+i}, a{16*n+i}")
        a(f"""v_subrev_u32 v{r+11}, {sLlo}, v{r+10}
        v_cmp_lt_u32 vcc, {hex(lrange)}, v{r+11}
        s_cbranch_vccnz bp_slow
        bp_norm{n}:
        v_rcp_f32 v{r+10}, v{r+10}
        s_lshl_b32 {T0}, {sQb}, 10
        s_add_u32 {T0}, {T0}, {sQm}
        s_add_u32 {T0}, {T0}, {OFF_BO-OFF_BQ}
        s_lshl_b32 {T1}, {sHd}, 6
        s_add_u32 {T1}, {T1}, {sQb}
        s_lshl_b32 {T1}, {T1}, 7
        s_add_u32 {T1}, {T1}, {OFF_BOR}""")
        for i in range(10): a(f"v_mul_f32 v{r+i}, v{r+i}, v{r+10}")
        for i in range(5): a(cv(r+i,r+2*i,r+2*i+1))
        a(f"""buffer_store_dwordx4 {q(r)}, {vQm}, {sWS}, {T0} offen sc1
        s_mov_b64 exec, 0xffffffff
        buffer_store_dword v{r+4}, {vOr}, {sWS}, {T1} offen sc1
        s_mov_b64 exec, -1
        s_add_u32 {sQb}, {sQb}, 16
        s_add_u32 {sIt}, {sIt}, 1""")
    stored()
    a("s_branch bp_done")
    s=S[0]; CM=S[1]; b=KV[0]; RR=200; mx=RR+16
    rd=[f"ds_read_b128 {q(b)}, {aK}",f"ds_read_b32 v{b+6}, {aR} offset:1024",f"ds_read_b128 {q(b+8)}, {aV} offset:1152",f"ds_read_b128 {q(b+12)}, {aV} offset:{1152+608}"]+[f"v_add_u32 {r}, {BLK}, {r}" for r in (aK,aR,aV)]+["s_waitcnt lgkmcnt(0)"]
    a("bp_slow:"); batt.q_load(a,QT,sQb); point(a,0)
    a(f"v_mov_b32 v{mx}, 0xff800000\ns_mov_b32 {T2}, 0\ns_waitcnt vmcnt(0)\nbp_p1:")
    for x in rd+qk(s,b,QT): a(x)
    for i in range(0,16,2): a(f"v_max3_f32 v{mx}, v{mx}, v{s+i}, v{s+i+1}")
    a(f"""s_add_u32 {T2}, {T2}, 1
    s_cmp_lt_u32 {T2}, 64
    s_cbranch_scc1 bp_p1
    v_mov_b32 v{mx+1}, v{mx}
    v_permlane32_swap_b32 v{mx}, v{mx+1}
    v_max_f32 v{mx}, v{mx}, v{mx+1}""")
    for i in range(16): a(f"v_sub_f32 v{CM+i}, 0, v{mx}\nv_mov_b32 v{RR+i}, 0")
    point(a,0); a(f"s_mov_b32 {T2}, 0\nbp_p2:")
    for x in rd+qk(s,b,QT,q(CM,16)): a(x)
    for k in range(4):
        for x in quarter(s,k): a(x)
    a(m32(q(RR,16),q(b+8),q(P),q(RR,16))); a(m32(q(RR,16),q(b+12),q(P+4),q(RR,16)))
    a(f"s_add_u32 {T2}, {T2}, 1\ns_cmp_lt_u32 {T2}, 64\ns_cbranch_scc1 bp_p2")
    for n in range(4):
        if n<3: a(f"s_cmp_lg_u32 {sIt}, {n}\ns_cbranch_scc1 bp_sl{n+1}")
        for i in range(11): a(f"v_mov_b32 v{R+12*n+i}, v{RR+i}")
        a(f"s_branch bp_norm{n}")
        if n<3: a(f"bp_sl{n+1}:")
    a("bp_done:")
```

```python
from asmgen import Asm
from layout import *
import math, struct

def f2u(x): return struct.unpack("<I", struct.pack("<f", x))[0]

vL16, vL8, vPsc, vW, vXr, vIdx, vPst, vMst, vAux, vOa = [f"v{i}" for i in range(10)]
vOr = "v10"
MEM0 = 12
POOL = 48
WV0 = 88
def q(base, n=4): return f"v[{base}:{base+n-1}]"
def m(k): return MEM0+4*k
def p(i): return POOL+i
LW = 19*2048
L_SCR = 0
L_W0 = 8192
L_PM = 0
L_PX = 512
L_SEL = 1024
L_O = 2048
L_XS = 4096
BIAS = 0
sWS = "s[8:11]"
sH, sSeg, sPar, sM0, sM1, sM2, sMst, sMpo, sKV, sPub, sPA, sPB, sPC, sPld, sCnt, sT0, sT1, sSlot, sC, sLayer, sFlg, sTch = [f"s{i}" for i in range(24,46)]
sK, sPubX, sLlo, sC2, sHint, sSig = "s56","s57","s58","s[22:23]","s59","s20"
sPld1 = sTch; sPA1, sPB1 = sSlot, sFlg; sMtc = sTch; sMst1 = sMpo
sMh, sMh1 = "s54","s55"
sOne = "s18"; sDis = "s19"; sRdy2 = "s[16:17]"
sHalf1 = "s[46:47]"; sHalf0 = "s[48:49]"; sRdy="s[50:51]"
import os
NREP = int(os.environ.get('NREP',2))
SPIN_MAX = 2000000

KORDER = [8,0,1,2,3,4,5,6,7]
def kap(k): return (k+1)%9

class Plan:
    def __init__(self, w):
        self.loc={}
        qk=[]
        for j,k in enumerate(KORDER[:7]):
            qk+=[("q",0,k),("k",0,k),("q",1,k),("k",1,k)]
            if j<4: qk+=[("v",0,k),("v",1,k)]
        ka,kb=KORDER[7:]
        qk+=[("q",0,ka),("q",1,ka),("q",0,kb),("q",1,kb),("k",0,ka),("k",0,kb),("k",1,ka),("k",1,kb)]
        vv=[("v",t,k) for k in KORDER[4:] for t in range(2)]
        oth=[x for x in range(4) if x!=w]
        self.oth=oth
        pairs=[("A",0),("A",1),("B",0),("B",1)]
        self.wo1=[("o",ty,pi,w) for ty,pi in pairs]
        self.wo2=[("o",ty,pi,x) for ty,pi in pairs for x in oth]
        woc=[("o","C",0),("o","C",1)]
        self.qk, self.vv = qk, vv
        self.qk_lds=list(range(0,43,3))
        self.wo_lds=[self.wo1[0],self.wo1[1],self.wo2[6],self.wo2[9]]
        slot=0
        for i in self.qk_lds: self.loc[qk[i]]=("l",slot); slot+=1
        for f in self.wo_lds: self.loc[f]=("l",slot); slot+=1
        r=0
        for f in qk+vv+self.wo1+self.wo2+woc:
            if f in self.loc: continue
            self.loc[f]=("a",8*r) if r<32 else ("v",WV0+8*(r-32)); r+=1
        assert r==53 and slot==19
    def reg(self,f):
        k,b=self.loc[f]; return f"{k}[{b}:{b+7}]"
    def regC(self,x):
        k,b=self.loc[("o","C",x>>1)]; b+=4*(x&1); return f"{k}[{b}:{b+3}]"
PLANS=[Plan(w) for w in range(4)]

def prologue_consts(a, w):
    a(f"""
    v_mov_b32 v10, v0
    v_and_b32 v11, 15, v10                 ; n
    v_lshrrev_b32 v12, 4, v10              ; g
    v_lshlrev_b32 v13, 4, v10
    v_add_u32 {vW}, {L_W0+w*LW}, v13
    v_add_u32 {vL16}, {BIAS}, v13
    v_lshlrev_b32 v13, 3, v10
    v_lshrrev_b32 v14, 5, v10
    v_lshlrev_b32 v14, 6, v14
    v_xor_b32 {vL8}, v14, v13
    v_lshlrev_b32 v13, 2, v11
    v_lshl_add_u32 {vPsc}, v12, 11, v13
    v_and_b32 v13, 3, v10                  ; c = n&3
    v_lshrrev_b32 v14, 2, v10              ; l>>2 = 4g + r
    v_lshlrev_b32 v15, 7, v13
    v_lshl_add_u32 v15, v14, 3, v15
    v_lshrrev_b32 v16, 1, v13
    v_lshlrev_b32 v16, 6, v16
    v_xor_b32 {vXr}, v16, v15
    v_and_b32 v15, 1, v10
    v_lshlrev_b32 v15, 4, v15
    v_lshl_add_u32 {vOa}, v14, 5, v15
    s_mov_b32 s46, 0xcccccccc
    s_mov_b32 s47, 0xcccccccc
    s_mov_b32 s48, 0x33333333
    s_mov_b32 s49, 0x33333333
    v_mov_b32 v15, 0x4444
    v_mov_b32 v16, 0xeeee
    v_cndmask_b32 {vIdx}, v15, v16, {sHalf1}
    v_lshrrev_b32 v15, 3, v11              ; n>>3
    v_lshl_add_u32 v15, v15, 2, v12
    v_lshlrev_b32 v15, 11, v15
    v_and_b32 v17, 7, v11
    v_lshl_add_u32 {vPst}, v17, 3, v15
    v_and_b32 v15, 2, v11                  ; 2half
    v_lshrrev_b32 v16, 1, v12              ; p
    v_add_u32 v15, v15, v16
    v_lshlrev_b32 v15, 4, v15
    v_and_b32 v16, 1, v11                  ; piece
    v_and_b32 v17, 1, v12                  ; g2
    v_lshl_add_u32 v16, v16, 1, v17
    v_lshl_add_u32 {vMst}, v16, 2, v15
    """)
    if w==0:
        a(f"""
        v_lshrrev_b32 v15, 2, v11              ; gamma
        v_and_b32 v16, 1, v15
        v_lshl_add_u32 v16, v16, 1, v13        ; tau = 2*g2 + r   (r = n&3)
        v_mov_b32 v17, 99
        v_cmp_gt_u32 vcc, 2, v13
        v_cndmask_b32 v16, v17, v16, vcc
        v_mov_b32 v17, 0x3f80
        v_mov_b32 v18, 0x3f800000
        v_cmp_lt_u32 vcc, 1, v15
        v_cndmask_b32 v17, v17, v18, vcc
        """)
        for t in range(4):
            a(f"v_cmp_eq_u32 vcc, {t}, v16\nv_cndmask_b32 v{20+t}, 0, v17, vcc")
        a(f"ds_write_b128 {vL16}, v[20:23] offset:{L_SEL-BIAS}")

def load_weights(a, w, srd, hook=None):
    vA,vC,vO,vOC,vTr = "v11","v12","v13","v14","v15"
    T=80
    a(f"""
    v_and_b32 v16, 3, v10                  ; c
    v_lshlrev_b32 v21, 4, v16              ; c*16
    v_bfe_u32 v17, v10, 2, 1               ; i0
    v_bfe_u32 v18, v10, 3, 1               ; half
    v_bfe_u32 v19, v10, 4, 1               ; g2
    v_bfe_u32 v20, v10, 5, 1               ; piece
    v_lshl_add_u32 v17, v19, 1, v17        ; tau
    v_lshl_add_u32 v19, v18, 1, v20        ; 2half+piece
    v_bfe_u32 v22, v10, 2, 1               ; i0
    v_lshl_add_u32 v22, v22, 3, v19
    v_bfe_u32 v23, v10, 4, 1               ; g2
    v_lshl_add_u32 v22, v22, 1, v23
    v_lshl_add_u32 {vA}, v22, 13, v21
    v_lshl_add_u32 v22, v19, 2, v17
    v_lshl_add_u32 {vC}, v22, 13, v21
    v_lshl_add_u32 v22, v20, 4, v17        ; 16piece+tau
    v_mul_u32_u24 v23, 1152, v22
    v_lshrrev_b32 v24, 1, v16              ; t = c>>1
    v_and_b32 v25, 1, v16
    v_lshlrev_b32 v25, 4, v25              ; (c&1)*16
    v_lshl_add_u32 v22, v24, 3, v18        ; 8t+half
    v_lshl_add_u32 v22, v22, 5, v25
    v_add_u32 {vO}, v23, v22
    v_bfe_u32 v22, v10, 2, 2               ; kk&3
    v_bfe_u32 v23, v10, 4, 1
    v_lshl_add_u32 v22, v23, 4, v22
    v_lshl_add_u32 v22, v20, 2, v22
    v_lshl_add_u32 v22, v24, 6, v22
    v_mul_u32_u24 v22, 1152, v22
    v_add_u32 {vOC}, v22, v25
    v_lshrrev_b32 v22, 4, v10
    v_bfe_u32 v23, v10, 2, 2
    v_lshl_add_u32 v22, v22, 3, v23
    v_lshlrev_b32 v22, 6, v22
    v_lshl_add_u32 v22, v16, 3, v22
    v_add_u32 {vTr}, {L_W0+w*LW+11*2048}, v22
    s_lshl_b32 {sT0}, {sH}, 8
    s_mul_i32 {sT1}, {sH}, {128*1152}
    """)
    blocks=[]
    for k in KORDER:
        for mu in "qkv":
            blocks.append(([(mu,0,k),(mu,1,k)], srd[mu], vC if kap(k)==8 else vA, sT0,
                           [((64*kap(k)+(16*i if kap(k)==8 else 32*(i>>1)+8*(i&1)))*8192 + w*64) for i in range(4)]))
    for ty,b in (("A",0),("B",1)):
        for x in range(4):
            blocks.append(([("o",ty,0,x),("o",ty,1,x)], srd["o"], vO, sT1, [(32*x+4*i)*1152 + 512*b + 64*w for i in range(4)]))
    blocks.append(([("o","C",0),("o","C",1)], srd["o"], vOC, sT1, [(32*(i>>1)+8*(i&1))*1152+(512+16*w)*2 for i in range(4)]))
    assert len(blocks)==36
    NB=4
    def issue(bi):
        fr,s,va,sb,offs=blocks[bi]
        for i in range(4):
            a(f"s_add_u32 s60, {sb}, {offs[i]}")
            a(f"s_mov_b32 m0, {L_W0+w*LW+11*2048+(bi%NB)*4096+i*1024}")
            a(f"buffer_load_dwordx4 {va}, {s}, s60 offen lds")
    for bi in range(NB-1): issue(bi)
    for bi in range(36):
        if hook and bi==hook[0]:
            for i in range(4): a(f"v_mov_b32 v{40+i}, v{12+i}")
            hook[1]()
            for i in range(4): a(f"v_mov_b32 v{12+i}, v{40+i}")
            a(f"s_lshl_b32 {sT0}, {sH}, 8\ns_mul_i32 {sT1}, {sH}, {128*1152}")
        if bi+NB-1<36:
            a("s_waitcnt lgkmcnt(0)")
            issue(bi+NB-1)
        left=min(36,bi+NB)-bi-1
        a(f"s_waitcnt vmcnt({4*left})")
        for t,f in enumerate(blocks[bi][0]):
            kind,b=PLANS[w].loc[f]
            if kind=="l":
                rk,rb=("v",T) if b<11 else ("v",16+8*(b-11))
            else: rk,rb=kind,b
            for qd in range(4):
                a(f"ds_read_b64_tr_b16 {rk}[{rb+2*qd}:{rb+2*qd+1}], {vTr} offset:{(bi%NB)*4096+t*32+(qd&1)*256+(qd>>1)*2048}")
            if kind=="l" and b<11:
                a("s_waitcnt lgkmcnt(0)")
                a(f"ds_write_b128 {vW}, v[{T}:{T+3}] offset:{b*2048}")
                a(f"ds_write_b128 {vW}, v[{T+4}:{T+7}] offset:{b*2048+1024}")
    a("s_waitcnt lgkmcnt(0)")
    for b in range(11,19):
        rb=16+8*(b-11)
        a(f"ds_write_b128 {vW}, v[{rb}:{rb+3}] offset:{b*2048}")
        a(f"ds_write_b128 {vW}, v[{rb+4}:{rb+7}] offset:{b*2048+1024}")
    a("s_waitcnt lgkmcnt(0)")

GROUPS = [[],[0,3],[1,4],[2]]

def mso(i): return (sMst,sMst1)[i]
def held(i): return (vAux,"v11")[i]
def publish(i): return f"buffer_store_dword {held(i)}, {vMst}, {sWS}, {(sMh,sMh1)[i]} offen sc1"
def store_mem0(a, w, srd_mem, lane, dst):
    for i,g in enumerate(GROUPS[w]):
        a(f"""
        v_and_b32 v12, 3, {lane}               ; 2half+piece
        v_bfe_u32 v14, {lane}, 4, 1            ; g2
        v_lshrrev_b32 v13, 5, {lane}           ; p
        v_mul_u32_u24 v13, 1152, v13
        v_lshl_add_u32 v12, v12, 1, v14        ; 2(2half+piece)+g2
        v_lshl_add_u32 v13, v12, {2 if g==4 else 1}, v13
        s_and_b32 {sT0}, {sH}, 3
        s_mul_i32 {sT0}, {sT0}, {2*1152}
        """)
        if g<4:
            a(f"""s_lshr_b32 {sT1}, {sH}, 3
            s_lshl_b32 {sT1}, {sT1}, 6
            s_add_u32 {sT0}, {sT0}, {sT1}
            s_bfe_u32 {sT1}, {sH}, 0x10002
            s_lshl_b32 {sT1}, {sT1}, 4
            s_add_u32 {sT0}, {sT0}, {sT1}""")
        else:
            a(f"""s_lshr_b32 {sT1}, {sH}, 2
            s_lshl_b32 {sT1}, {sT1}, 5
            s_add_u32 {sT0}, {sT0}, {sT1}""")
        a(f"""buffer_load_ushort v14, v13, {srd_mem}, {sT0} offen offset:{256*g}
        buffer_load_ushort v15, v13, {srd_mem}, {sT0} offen offset:{256*g+(2 if g==4 else 32)}
        s_waitcnt vmcnt(0)
        v_lshl_or_b32 v16, v15, 16, v14
        v_min_u32 {dst[i]}, -2, v16
        buffer_store_dword {dst[i]}, {vMst}, {sWS}, {mso(i)} offen""")

def next_slots(w):
    return [f"s_add_u32 {x}, {x}, 0x4000" for x in [sM0,sM1,sM2]+([sMst,sMh] if GROUPS[w] else [])+([sMst1,sMh1] if len(GROUPS[w])>1 else [])+([sMtc] if w==3 else [])]

def mload(k, fl=""):
    b=kap(k); s=[sM0,sM1,sM2][b>>2]
    return f"buffer_load_dwordx4 {q(m(k))}, {vL16}, {sWS}, {s} offen offset:{(b&3)*1024} {fl}".rstrip()
def zero(base, n): return [f"v_mov_b32 v{base+i}, 0" for i in range(n)]
KEEP=["v_nop",5]
def delay(a, clks):
    n=clks//4
    while n>0:
        k=min(n,KEEP[1]); a(KEEP[0])
        if k>1: a(f"s_nop {k-2}")
        n-=k
def weave(v, o):
    v=list(v); o=list(o); r=[]
    while v or o:
        if v: r.append(v.pop(0))
        r.append(o.pop(0) if o else "s_nop 0")
    return r
def spin_guard(a, fail):
    a(f"s_add_u32 {sCnt}, {sCnt}, 1\ns_cmp_gt_u32 {sCnt}, {SPIN_MAX}\ns_cbranch_scc1 {fail}")
DPP="row_mask:0xf bank_mask:0xf"

def step_loop(a, w, cfg, hooks):
    KEEP[:]=[("v_nop",f"v_mov_b32 {vIdx}, {vIdx}")[cfg.get("keepmov",0)],cfg.get("keepn",5)]
    P=PLANS[w]; L=lambda s: f"{hooks.get('prefix',f'ch{w}')}_{s}"
    def E(lst):
        for x in lst: a(x)
    def stage(buf,f):
        b=P.loc[f][1]
        return [f"ds_read_b128 {q(buf)}, {vW} offset:{b*2048}", f"ds_read_b128 {q(buf+4)}, {vW} offset:{b*2048+1024}"]
    def sm(acc,A,B): return f"v_smfmac_f32_16x16x64_bf16 {q(acc)}, {q(A)}, {B}, {vIdx}"
    def mf(d,A,B,C): return f"v_mfma_f32_16x16x32_bf16 {q(d)}, {A}, {B}, {C}"
    def fold(base,dst):
        return [f"v_add_f32 v{base}, v{base}, v{base+2}", f"v_add_f32 v{base+1}, v{base+1}, v{base+3}", f"v_cvt_pk_bf16_f32 v{dst}, v{base}, v{base+1}"]
    def younger(x, since):
        vm=[y for y in a.lines[since:] if y.startswith("buffer")]
        return len(vm)-1-max(k for k,y in enumerate(vm) if y==x)
    S0,S1=p(16),p(24); ST=[S0,S1]; VA=p(32)
    acc={("q",0):p(0),("q",1):p(4),("k",0):p(8),("k",1):p(12),("v",0):VA,("v",1):VA+4}
    KX=[m(8),m(0)]; VX=[m(1),m(2)]; NV=len(P.vv)
    fail=L("fail"); late=[]
    disturb=[f"ds_write_b32 {vMst}, {vIdx} offset:{L_PM}"] if cfg.get("dcons") else []
    prep_qk=zero(p(0),16)+stage(S0,P.qk[P.qk_lds[0]])+stage(S1,P.qk[P.qk_lds[1]])
    a(f"{L('entry')}:")
    a(f"v_and_b32 {vOr}, 8, {vPsc}\nv_add_u32 {vOr}, {vOa}, {vOr}")
    E(disturb); E(prep_qk); E(zero(VA,8))
    NPRE=4
    for k in KORDER[:NPRE]: a(mload(k))
    a("s_waitcnt vmcnt(0)")
    if w==0: a(f"v_lshrrev_b32 v11, 2, {vL16}\nv_and_b32 v11, 127, v11")
    nm=0; PW=0; SW=0 if cfg["tH"] is not None else 1
    issued=list(range(nm))+["s"]+list(range(nm,NPRE))
    CMPM="v_cmp_f_u32" if cfg.get("nocheck") else "v_cmp_eq_u32"
    CMPP="v_cmp_f_u32" if cfg.get("nocheck") else "v_cmp_ne_u32"
    a(f"{L('top')}:")
    top=len(a.lines)
    def retry(j, inflight, back, g=(0,)):
        lb=L(f"retry{j}")
        late.append((lb,[KORDER[x] for x in inflight],back,len(g))); return lb
    a(f"s_waitcnt vmcnt({len(issued)-1-issued.index(0)}) lgkmcnt(2)\n{CMPM} vcc, -1, v{m(8)}\ns_cbranch_vccnz {retry(0,range(NPRE),L('ok0'))}\n{L('ok0')}:")
    n=len(P.qk)
    first={}
    for i,f in enumerate(P.qk): first.setdefault(KORDER.index(f[2]),i)
    islds=lambda i: i in P.qk_lds
    CH=cfg["checks"]
    brpos={c[0]:((first[c[0]]-3)//3)*3+2 for c in CH}
    if 7 in brpos and 8 in brpos: brpos[7]-=3
    grp={c[0]:c for c in CH}
    assert len(set(brpos.values()))==len(CH)
    gapx={}
    def put(g,x): gapx.setdefault(g,[]).append(x)
    for j,g in zip(range(NPRE,9),cfg["vpos"]): put(g,(j,mload(KORDER[j])))
    kl=[f"buffer_load_dwordx4 {q(KX[t])}, v{m(0)}, {sWS}, {sK} offen offset:{t*1024} sc1" for t in range(2)]
    vxl=[f"buffer_load_dwordx4 {q(VX[t])}, {vL16}, {sWS}, {sKV} offen offset:{t*1024} sc1" for t in range(2)]
    for g,x in hooks["pre_k"](w): put(g,x)
    put(13,(None,f"v_and_b32 v{m(0)}, 32, {vL16}")); put(14,(None,f"v_lshl_add_u32 v{m(0)}, v{m(0)}, 4, {vOa}"))
    for t in range(2): put(cfg["kpos"][t],("k",kl[t])); put(cfg["vxpos"][t],("vx",vxl[t]))
    for g,x in hooks["qk"](w): put(g,x)
    if w==3 and cfg.get("touch",1):
        g=cfg["tpos"]; tl=lambda so: f"buffer_load_dword v11, v11, {sWS}, {so} offen sc1 ; nochk"
        put(g-3,(None,f"v_lshlrev_b32 v11, 3, {vL16}")); put(g-4,(None,f"s_add_u32 {sT0}, {sK}, {16384-3*2048}")); put(g-1,(None,f"s_add_u32 {sT1}, {sT0}, 8192"))
        put(g,("t",tl(sT0))); put(g+cfg["tgap"],("t",tl(sT1)))
        g+=cfg["tgap"]+2
        put(g,(None,"s_mov_b64 exec, 15")); put(g,("t",tl(sMtc))); put(g,(None,"s_mov_b64 exec, -1"))
        for x in hooks.get("after_touch",[]): put(g+1,("t",x))
    if cfg.get("pub"):
        for i in range(len(GROUPS[w])): put(cfg["ppos"]+3*i,("p",publish(i)))
    foldq=fold(p(0),p(2))+fold(p(4),p(6))
    nl=0; pend=[]
    for i,f in enumerate(P.qk):
        B=f"v[{ST[nl&1]}:{ST[nl&1]+7}]" if islds(i) else P.reg(f)
        a(sm(acc[f[:2]],m(f[2]),B))
        hascmp=any(brpos[j]-2==i for j in brpos) or any(x.startswith("v_") for _,x in gapx.get(i,[])) or i>=n-4
        if islds(i):
            if nl+2<len(P.qk_lds): pend=stage(ST[nl&1],P.qk[P.qk_lds[nl+2]])
            nl+=1
            if pend and not hascmp and cfg["ds2"]: a(pend.pop(0))
        if pend: a(pend.pop(0))
        val=[]
        for j,x in gapx.get(i,[]):
            if x.startswith("v_"): val.append(x); continue
            a(x)
            if x.startswith("buffer"): issued.append(j)
        for j in brpos:
            if brpos[j]==i:
                infl=[x for x in issued if isinstance(x,int) and x>=j]
                if len(grp[j])==2: a(f"s_or_b64 vcc, vcc, {sRdy2}\ns_cbranch_scc1 {retry(j,infl,L(f'ok{j}'),grp[j])}\n{L(f'ok{j}')}:")
                else: a(f"s_cbranch_vccnz {retry(j,infl,L(f'ok{j}'),grp[j])}\n{L(f'ok{j}')}:")
        wt=""
        for j in brpos:
            c=[f"v{m(KORDER[x])}" for x in grp[j]]
            if brpos[j]-3==i:
                wt+=f" vmcnt({len(issued)-1-issued.index(grp[j][-1])})"
                if len(c)==2: val.append(f"{CMPM} {sRdy2}, -1, {c[1]}")
            if brpos[j]-2==i: val.append(f"{CMPM} vcc, -1, {c[0]}")
            if brpos[j]==i+1 and len(c)==2: pass
        if islds(i+1): wt+=f" lgkmcnt({0 if nl==len(P.qk_lds)-1 else 2})"
        if wt: a("s_waitcnt"+wt)
        E(val)
        if i>=n-4: a(foldq.pop(0))
    vi=[0]
    def V(fl=()):
        f=P.vv[vi[0]]; a(sm(acc[f[:2]],m(f[2]),P.reg(f))); vi[0]+=1; E(fl)
    xs=L_XS+w*1024
    E(foldq); E(fold(p(8),p(3))); E(fold(p(12),p(7)))
    a(f"ds_write2st64_b64 {vL8}, v[{p(2)}:{p(3)}], v[{p(6)}:{p(7)}] offset0:{xs//512} offset1:{xs//512+1}")
    mid=hooks["mid"](w)
    Sa,Sb,Sm,ONES=p(16),p(20),p(24),p(28)
    PX,PM=p(8),p(12)
    misc=[f"v_mov_b32 v{ONES+i}, {sOne}" for i in range(4)]+zero(m(3),4)+zero(m(8),4)+zero(m(0),4)
    def take(k):
        o=misc[:k]; del misc[:k]; return o
    for _ in range(cfg["nV"][0]): V(mid[:2]+take(1)); mid=mid[2:]
    assert not mid
    if "prebar1" in hooks: hooks["prebar1"](a,w,lambda x: younger(x,top))
    a("s_waitcnt lgkmcnt(0)\ns_barrier")
    X=[p(4*i) for i in range(4)]
    for x in range(4):
        rd=[f"ds_read_b64_tr_b16 v[{X[x]+2*i}:{X[x]+2*i+1}], {vXr} offset:{L_XS+x*1024+i*512}" for i in range(2)]
        if x>=4-cfg["nV"][1]: V(rd)
        else: E(rd)
    for x in range(4):
        if x==0: a(f"s_waitcnt lgkmcnt(6) vmcnt({younger(kl[1],top)})")
        d=(Sa,Sb)[x&1]
        a(mf(d,q(KX[x>>1]),q(X[x]),q(d) if x>1 else 0))
        if x<3: a(f"s_waitcnt lgkmcnt({4-2*x})")
        E(take(cfg["sfill"]))
    a(mf(Sm,q(X[0]),q(X[0]),0))
    for i in range(2): a(f"v_mul_f32 v{Sa+i}, {sC}, v{Sa+i}")
    if cfg["sm2"]: a(mf(Sm,q(X[1]),q(X[1]),q(Sm)))
    for i in range(2): a(f"v_fmac_f32 v{Sa+i}, {sC}, v{Sb+2+i}")
    for i in range(2): a(f"v_exp_f32 v{Sa+2+i}, v{Sa+i}")
    a(f"s_mov_b64 exec, {sHalf0}\nv_cvt_pk_bf16_f32 v{Sa+2}, v{Sa+2}, v{Sa+3}")
    a(f"ds_write_b32 {vOa}, v{Sa+2} offset:{L_PX+4*w}")
    a("s_mov_b64 exec, -1")
    VD=VA+2; fv=fold(VA,VD)+fold(VA+4,VD+1)
    for _ in range(cfg["nV"][2]): V(take(1))
    early_fv=vi[0]==NV
    for x in range(2 if cfg["sm2"] else 1,4):
        a(mf(Sm,q(X[x]),q(X[x]),q(Sm)))
        if x==3 and early_fv: misc[:0]=fv
        E(take(2))
    pmq=[f"v_mul_f32 v{Sm+2}, {sC}, v{Sm+2}",f"v_mul_f32 v{Sm+3}, {sC}, v{Sm+3}",f"v_exp_f32 v{Sm}, v{Sm+2}",f"v_exp_f32 v{Sm+1}, v{Sm+3}",
         f"v_mov_b32 v{PM+1}, 0",f"v_cvt_pk_bf16_f32 v{Sm}, v{Sm}, v{Sm+1}",f"v_mov_b32 v{PM+2}, 0",
         f"v_mov_b32_dpp v{PM}, v{Sm} quad_perm:[0,1,0,1] {DPP}",f"v_mov_b32_dpp v{PM+3}, v{Sm} quad_perm:[0,1,0,1] {DPP}"]
    E(take(cfg["pfill"]))
    for _ in range(cfg.get("ka2",0)): a(mf(p(0),q(ONES),q(ONES),0))
    a("s_waitcnt lgkmcnt(0)\ns_barrier")
    a(f"ds_read_b128 {q(PX)}, {vOa} offset:{L_PX}")
    for _ in range(cfg.get("ka3",0)): a(mf(p(0),q(ONES),q(ONES),0))
    misc[:0]=pmq
    for _ in range(cfg["nV"][3]): V(take(1))
    E(take(cfg["rfill"]))
    DL,D0,D1=p(0),p(4),p(20); OW=p(12); OP=p(10)
    T=[m(4),m(6),p(16),p(24)]
    st=stage(T[0],P.wo_lds[0])+stage(T[1],P.wo_lds[1])
    m16=lambda d,A,B: f"v_mfma_f32_16x16x16_bf16 {q(d)}, v[{A}:{A+1}], v[{B}:{B+1}], {q(d)}"
    rl,r0,r1,tc=p(18),p(0),p(2),p(19)
    def scale_o(chk):
        a(f"v_rcp_f32 v{rl}, v{DL}")
        a(f"v_subrev_u32 v{tc}, {sLlo}, v{DL}" if chk else "s_nop 0")
        a(f"v_cndmask_b32 v{r0}, 0, v{rl}, {sHalf0}\nv_cndmask_b32 v{r1}, 0, v{rl}, {sHalf1}")
        for i in range(4): a(f"v_mul_f32 v{D0+i}, v{D0+i}, v{r0}")
        if chk: a(f"v_cmp_lt_u32 vcc, {hex(cfg.get('lrange',120<<23))}, v{tc}")
        for i in (0,2): a(f"v_pk_fma_f32 v[{D0+i}:{D0+i+1}], v[{D1+i}:{D1+i+1}], v[{r1}:{r1+1}], v[{D0+i}:{D0+i+1}] op_sel_hi:[1,0,1]")
        a(f"v_cvt_pk_bf16_f32 v{OP}, v{D0}, v{D0+1}\nv_cvt_pk_bf16_f32 v{OP+1}, v{D0+2}, v{D0+3}")
        if cfg["keepalive"]: a(mf(D1,q(ONES),q(ONES),0))
        a(f"ds_write_b64 {vOr}, v[{OP}:{OP+1}] offset:{L_O+w*512}")
    while vi[0]<NV: V(take(1))
    npm=max([k+1 for k,x in enumerate(misc) if x in pmq]+[0])
    if not early_fv: misc[npm:npm]=fv
    a(f"s_waitcnt vmcnt({younger(vxl[1],top)}) lgkmcnt(0)")
    a(mf(DL,q(ONES),q(PX),0)); a(st.pop(0)); E(take(2))
    a(mf(D0,q(VX[0]),q(PX),0)); a(st.pop(0)); E(take(2))
    a(mf(D1,q(VX[1]),q(PX),0)); a(st.pop(0)); E(take(2))
    while any(x in pmq for x in misc): E(take(1))
    while sum(x in fv for x in misc)>1: E(take(1))
    a(m16(DL,ONES,PM)); a(st.pop(0)); E(take(2))
    misc+=zero(VA+4,4)
    a(m16(D0,VD,PM)); E(take(2))
    a(m16(D1,VD,PM+2))
    scale_o(True)
    a(f"s_cbranch_vccnz {L('slowsm')}\n{L('smdone')}:")
    a(f"v_mov_b32_dpp v{OW}, v{OP} quad_perm:[0,1,0,1] {DPP}\nv_mov_b32_dpp v{OW+1}, v{OP+1} quad_perm:[0,1,0,1] {DPP}")
    a(f"v_mov_b32_dpp v{OW+2}, v{OP} quad_perm:[2,3,2,3] {DPP}\nv_mov_b32_dpp v{OW+3}, v{OP+1} quad_perm:[2,3,2,3] {DPP}")
    aC=m(1); aP={("A",0):m(8),("A",1):m(0),("B",0):m(3),("B",1):VA+4}
    while len(misc)>4: a(misc.pop(0))
    tb={f:T[i] for i,f in enumerate(P.wo_lds)}
    def wB(f): return f"v[{tb[f]}:{tb[f]+7}]" if f in tb else P.reg(f)
    OA={x:p(4*n_) for n_,x in enumerate(P.oth)}
    ph1=[mf(aC,q(OW),P.regC(w),0)]+[sm(aP[f[1:3]],OW,wB(f)) for f in P.wo1]
    a("s_waitcnt lgkmcnt(1)")
    ord_=[f"ds_read_b128 {q(OA[x])}, {vOa} offset:{L_O+x*512}" for x in P.oth]
    for i,x in enumerate(ph1):
        if i==cfg["bar3"]: a("s_waitcnt lgkmcnt(0)\ns_barrier"); E(ord_)
        a(x); E(take(2 if i==0 else 1))
    assert not misc
    SEL,DR=VA,VA+4
    lds=[]
    for i in range(2,4): lds+=stage(tb[P.wo_lds[i]],P.wo_lds[i])
    if GROUPS[w]: lds.append(f"ds_read_b128 {q(SEL)}, {vL16} offset:{L_SEL}")
    dsq=list(ord_)
    def ds(k):
        for _ in range(k):
            if lds: x=lds.pop(0); a(x); dsq.append(x)
    def lgw(x): return f"s_waitcnt lgkmcnt({len(dsq)-1-dsq.index(x)})"
    ds(cfg["nst0"])
    def cv(d,b): return f"v_cvt_pk_bf16_f32 v{d}, v{b}, v{b+1}"
    A0,A1,B0,B1=aP[("A",0)],aP[("A",1)],aP[("B",0)],aP[("B",1)]
    pld=[f"buffer_load_dwordx4 {q(m(4+i))}, {vL16}, {sWS}, {(sPld,sPld1)[i>>1]} offen offset:{1024*(i&1)} sc1" for i in range(2*len(GROUPS[w]))]
    def pst(r,so): return f"buffer_store_dwordx2 v[{r}:{r+1}], {vPst}, {sWS}, {so} offen"
    def tag(r): return f"v_and_or_b32 v{r}, v{r}, -2, {sPar}"
    pk=lambda r,d=None: [cv(d or r,r),cv((d or r)+1,r+2),tag(d or r)]
    after={4:pk(A0),5:[pst(A0,sPA)],7:pk(A1)[:1],8:pk(A1)[1:],9:[pst(A1,sPA1)],10:pk(B0)[:1],11:pk(B0)[1:2],12:pk(B0)[2:],13:pk(B1,B0+2)[:2],14:pk(B1,B0+2)[2:]}
    if cfg.get("bgap"):
        after={4:pk(A0),5:[pst(A0,sPA)],7:pk(A1),8:[pst(A1,sPA1)],10:pk(B0),11:[pst(B0,sPB)],13:pk(B1,B0+2),14:[pst(B0+2,sPB1)]}
    ph2=[(sm(aP[f[1:3]],OA[f[3]],wB(f)),f) for f in P.wo2]+[(mf(aC,q(OA[x]),P.regC(x),q(aC)),None) for x in P.oth]
    mark=len(a.lines)
    for i,(x,f) in enumerate(ph2):
        if i<3: a(lgw(ord_[i]))
        a(x)
        vm=[y for y in after.get(i,[]) if y.startswith("buffer")]
        E(vm)
        if not vm: ds(1)
        if i+1<12 and P.wo2[i+1] in tb: a(lgw(stage(tb[P.wo2[i+1]],P.wo2[i+1])[1]))
        E([y for y in after.get(i,[]) if not y.startswith("buffer")])
    assert not lds
    sal=[f"s_add_u32 {sSeg}, {sSeg}, 1",f"s_add_u32 {sKV}, {sKV}, {cfg.get('kvstep',16384)}",f"s_add_u32 {sK}, {sK}, {cfg.get('kvstep',16384)}"]+hooks["sal"](w)+next_slots(w)
    if w<2: sal.insert(0,f"s_add_u32 {sSig}, {sSig}, 2")
    cpk=tag(aC)
    work=prep_qk[16:]+[cv(aC,aC),cpk]+weave(prep_qk[:16],sal)
    now=[0]
    def spend(clks):
        k=clks//4
        o=work[:k]; del work[:k]; E(o); delay(a,4*(k-len(o))); now[0]+=4*k
    def at(t, ops):
        spend(max(0,t-now[0]))
        while ops[0].endswith(f"{sPC} offen") and cpk in work: spend(4)
        E(ops); now[0]+=10*len(ops)
    def reduce(u, mark):
        r0_,r1_=m(4+2*u),m(5+2*u); ld=pld[2*u:2*u+2]
        def body(w0,w1):
            a(f"s_waitcnt vmcnt({w0}) lgkmcnt(0)"); a(mf(DR,q(SEL),q(r0_),0)); a(f"v_xor_b32 v{r0_}, {sPar}, v{r0_}")
            a(f"s_waitcnt vmcnt({w1})"); a(mf(DR,q(SEL),q(r1_),q(DR)))
        body(younger(ld[0],mark),younger(ld[1],mark))
        a(f"{L(f'okP{u}')}:")
        a(f"v_bitop3_b32 v{r0_}, v{r0_}, v{r1_}, {sPar} bitop3:0xf6\nv_and_b32 v{r0_}, 1, v{r0_}\n{CMPP} vcc, 0, v{r0_}")
        for ror in (4,8):
            for i in range(2): a(f"v_add_f32_dpp v{DR+i}, v{DR+i}, v{DR+i} row_ror:{ror} {DPP}")
        a(f"v_cvt_pk_bf16_f32 {held(u)}, v{DR}, v{DR+1}")
        a(f"s_cbranch_vccnz {L(f'pollP{u}')}")
        if w==SW and u==0: E(hsend)
        a(f"buffer_store_dword {held(u)}, {vMst}, {sWS}, {mso(u)} offen")
        def slow():
            a(f"{L(f'pollP{u}')}:")
            if cfg.get("cnt"): a(f"s_add_u32 s{93+u}, s{93+u}, 1")
            E(ld); E(disturb); spin_guard(a,fail); body(1,0); a(f"s_branch {L(f'okP{u}')}")
        outl.append(slow)
    outl=[]
    def gather(k0,k1=NPRE):
        for k in range(k0,k1):
            if k and k!=nm: spend(cfg["dm"][k-1])
            a(mload(KORDER[k]))
    def close():
        E(work); work.clear()
        a(f"s_xor_b32 {sPar}, {sPar}, 1")
        hooks["end"](a,w)
        a(f"s_branch {L('top')}")
    ev=[(cfg["tB"][0],[pst(B0,sPB)]),(cfg["tB"][1],[pst(B0+2,sPB1)]),(cfg["tB"][2],[f"buffer_store_dword v{aC}, {vPsc}, {sWS}, {sPC} offen"])]
    if cfg.get("bgap"): ev=ev[2:]
    G=GROUPS[w]
    hsend=[f"s_mov_b64 exec, {(1<<NREP)-1}",f"buffer_store_dword v{m(2)}, {vXr}, {sWS}, {sPubX} offen","s_mov_b64 exec, -1"]
    if w==SW and cfg.get("dcons"):
        work[4:4]=[f"ds_read_b32 v{m(2)}, {vMst} offset:{L_PM}"]
        work[len(work)//2:len(work)//2]=["s_waitcnt lgkmcnt(0)",f"ds_write_b32 {vMst}, v{p(0)} offset:{L_PM}",f"v_min_u32 v{m(2)}, 1, v{m(2)}",f"v_add_u32 v{m(2)}, {sSig}, v{m(2)}"]
    elif w==SW: work[len(work)//2:len(work)//2]=[f"v_mov_b32 v{m(2)}, {sSig}"]
    if w==PW: work.append(f"v_mov_b32 v{m(2)+1}, 0")
    for i,g in enumerate(G): ev.append((cfg["tP"][g],pld[2*i:2*i+2]))
    ev.sort(key=lambda x:x[0])
    for t,ops in ev: at(t,ops)
    if G:
        spend(max(4*len(work),cfg["tP"][G[0]]+170-now[0]))
        reduce(0,mark)
        if len(G)>1:
            if G[1]==4: a(f"s_cmp_ge_u32 {sH}, 16\ns_cbranch_scc1 {L('nored')}")
            reduce(1,mark)
            a(f"{L('nored')}:")
    else:
        work+=weave(zero(VA,8),[])
        if SW==w:
            while any("v%d,"%m(2) in x for x in work): spend(4)
            at(cfg["tH"],hsend)
        spend(max(4*len(work),cfg["tS"]-now[0]))
    if G: work+=weave(zero(VA,8),[])
    if w==PW:
        HV=f"v{m(2)+1}"; poll=f"buffer_load_dword {HV}, v11, {sWS}, {sHint} offen sc1"
        a(f"{L('hpoll')}:")
        for u in range(4):
            a(f"v_cmp_gt_u32 vcc, {sSig}, {HV} ; nochk\nv_cmp_ne_u32 {sRdy2}, {sSig}, {HV} ; nochk"); a(poll)
            if cfg.get("cnt"): a("s_add_u32 s94, s94, 1")
            if cfg["pollgap"]: a(f"s_nop {cfg['pollgap']-1}")
            if u==3: a(f"s_add_u32 {sCnt}, {sCnt}, 1\ns_cmp_gt_u32 {sCnt}, {SPIN_MAX}")
            a(f"s_cbranch_vccz {L('hseen')}")
        a(f"s_cbranch_scc0 {L('hpoll')}\ns_branch {fail}\n{L('hslow')}:")
        if cfg.get("cnt"): a("s_add_u32 s93, s93, 1")
        delay(a,cfg.get("dcons") or 0)
        a(f"ds_write_b32 {vMst}, v{p(0)} offset:{L_PM}\ns_waitcnt lgkmcnt(0)")
        a(f"s_branch {L('hok')}\n{L('hseen')}:")
        if cfg.get("dcons"): a(f"s_cmp_lg_u64 {sRdy2}, 0\ns_cbranch_scc1 {L('hslow')}")
        a(f"{L('hok')}:")
    else: spend(cfg["dkeep"][w])
    a("s_barrier")
    gather(0); close()
    for f_ in outl: f_()
    a(f"{L('slowsm')}:"); E(disturb)
    a(f"s_mov_b64 exec, {sHalf0}\nds_write_b64 {vOa}, v[{Sa}:{Sa+1}] offset:{L_XS+512*(w>>1)+8*(w&1)}\ns_mov_b64 exec, -1")
    a("s_waitcnt lgkmcnt(0)\ns_barrier")
    s_=[p(i) for i in range(8)]+[Sm,Sm+1]; mx,tt=p(20),p(21)
    a(f"""ds_read_b128 {q(p(0))}, {vOa} offset:{L_XS}
    ds_read_b128 {q(p(4))}, {vOa} offset:{L_XS+512}
    v_mov_b32_dpp v{Sm}, v{Sm+2} quad_perm:[0,1,0,1] {DPP}
    v_mov_b32_dpp v{Sm+1}, v{Sm+3} quad_perm:[0,1,0,1] {DPP}
    s_waitcnt lgkmcnt(0)
    v_max_f32 v{mx}, v{s_[0]}, v{s_[1]}""")
    for i in range(2,10,2): a(f"v_max3_f32 v{mx}, v{mx}, v{s_[i]}, v{s_[i+1]}")
    a(f"""v_mov_b32 v{tt}, v{mx}
    v_permlane16_swap_b32 v{mx}, v{tt}
    v_max_f32 v{mx}, v{mx}, v{tt}
    v_mov_b32 v{tt}, v{mx}
    v_permlane32_swap_b32 v{mx}, v{tt}
    v_max_f32 v{mx}, v{mx}, v{tt}""")
    for i in range(10): a(f"v_sub_f32 v{s_[i]}, v{s_[i]}, v{mx}\nv_exp_f32 v{s_[i]}, v{s_[i]}")
    for i in range(4): a(cv(PX+i,p(2*i)))
    a(cv(PM,Sm)); a(cv(PM+3,Sm))
    a(mf(DL,q(ONES),q(PX),0)); a(mf(D0,q(VX[0]),q(PX),0)); a(mf(D1,q(VX[1]),q(PX),0))
    a(m16(DL,ONES,PM)); a(m16(D0,VD,PM)); a(m16(D1,VD,PM+2))
    scale_o(False)
    a(f"s_branch {L('smdone')}")
    for lb,ks,back,ng in late:
        a(f"{lb}:")
        if cfg.get("cnt"): a(f"s_add_u32 s{84+KORDER.index(ks[0])}, s{84+KORDER.index(ks[0])}, 1")
        for k in ks: a(mload(k,'sc1'))
        spin_guard(a,fail)
        E(disturb)
        a("s_waitcnt vmcnt(0)")
        for k in ks[:ng]: a(f"v_cmp_eq_u32 vcc, -1, v{m(k)}\ns_cbranch_vccnz {lb}")
        a(f"s_branch {back}")

def init_comm(a, w, srd_mem):
    g0,g1=(GROUPS[w]+[0,0])[:2]
    a(f"""
    s_lshl_b32 {sT0}, {sH}, 6
    s_add_u32 {sPA}, {sT0}, {OFF_P+w*16384}
    s_add_u32 {sPA1}, {sPA}, {65536}
    s_add_u32 {sPB}, {sPA}, {2*65536}
    s_add_u32 {sPB1}, {sPA}, {3*65536}
    s_add_u32 {sPC}, {sT0}, {OFF_P+4*65536+w*8192}
    s_add_u32 {sMst}, {sT0}, {OFF_M+2048*g0}
    s_add_u32 {sMst1}, {sT0}, {OFF_M+2048*g1}
    s_mov_b32 {sM0}, {OFF_M}
    s_mov_b32 {sM1}, {OFF_M+4096}
    s_mov_b32 {sM2}, {OFF_M+8192}
    s_lshl_b32 {sT0}, {sH}, 11
    s_add_u32 {sPld}, {sT0}, {OFF_P+65536*g0}
    s_mov_b32 {sPar}, 0
    s_mov_b32 {sC}, {f2u(128**-0.5*math.log2(math.e))}
    s_mov_b32 {sOne}, 0x3f803f80
    s_mov_b32 {sLlo}, {(127-60)<<23}
    v_mov_b32 v20, -1
    v_mov_b32 v21, -1
    v_mov_b32 v22, -1
    v_mov_b32 v23, -1
    """)
    if len(GROUPS[w])>1: a(f"s_add_u32 {sPld1}, {sPld}, {(g1-g0)*65536}")
    if w<2: a(f"""s_mov_b32 {sSig}, 0
    s_lshl_b32 {sT0}, {sH}, 2
    s_add_u32 {sPubX}, {sT0}, {OFF_H}
    s_and_b32 {sT0}, {sH}, {NREP-1}
    s_lshl_b32 {sT0}, {sT0}, 7
    s_add_u32 {sHint}, {sT0}, {OFF_H}
    s_mov_b64 exec, {(1<<NREP)-1}
    v_mov_b32 v28, 0
    buffer_store_dword v28, {vXr}, {sWS}, {sPubX} offen
    buffer_load_dword v24, {vXr}, {sWS}, {sPubX} offen sc1
    s_mov_b64 exec, -1""")
    if g1==4: a(f"s_cmp_ge_u32 {sH}, 16\ns_cselect_b32 {sPld1}, 0x40000000, {sPld1}")
    if w==3: a(f"s_lshl_b32 {sMtc}, {sH}, 9\ns_add_u32 {sMtc}, {sMtc}, {OFF_M+0x8000}")
    for i,g in enumerate(GROUPS[w]):
        for j in range(2):
            a(f"buffer_store_dwordx4 v[20:23], {vL16}, {sWS}, {(sPld,sPld1)[i]} offen offset:{1024*j}")
            a(f"buffer_load_dwordx4 v[24:27], {vL16}, {sWS}, {(sPld,sPld1)[i]} offen offset:{1024*j} sc1")
        a(f"s_add_u32 {sT0}, {mso(i)}, 0x4000")
        a(f"buffer_load_dword v24, {vMst}, {sWS}, {sT0} offen sc1\nbuffer_load_dword v24, {vMst}, {sWS}, {mso(i)} offen sc1")


def set_layer(a, w, layer):
    a(f"""
    s_mov_b32 {sSeg}, 0
    s_mul_i32 {sT0}, {sH}, {KV_H}
    s_add_u32 {sKV}, {sT0}, {OFF_KV+8192+w*2048}
    s_add_u32 {sK}, {sT0}, {OFF_KV+w*2048}
    s_lshl_b32 {sT0}, {sH}, 6
    s_add_u32 {sT0}, {sT0}, {layer}
    s_add_u32 {sMh}, {sT0}, {OFF_MH+2048*(GROUPS[w]+[0,0])[0]}
    s_add_u32 {sMh1}, {sT0}, {OFF_MH+2048*(GROUPS[w]+[0,0])[1]}
    s_mov_b32 {sCnt}, 0
    """)
```

```python
MB = 1<<20
WS_BYTES = 256*MB
OFF_P    = 0x000000
OFF_H    = 0x0b0000
OFF_FLAG = 0x0c0000
OFF_M    = 2*MB
OFF_KV   = 40*MB
KV_H     = 65*16384
QX_H     = 65*8192
OFF_QX   = 73*MB
OFF_O    = 90*MB
LAYER_STRIDE = 16*MB
OFF_F    = 6*MB
OFF_BQR  = 6*MB+MB//2
OFF_BOR  = 6*MB+3*MB//4
OFF_BKR  = OFF_BQR+MB
OFF_MH   = 8*MB
OFF_MKV  = OFF_MH
OFF_X1   = 9*MB
OFF_BV   = 11*MB+MB//2
OFF_BQ   = 14*MB
OFF_BK   = 16*MB
OFF_BO   = 18*MB
OFF_X2   = 36*MB
LAYER_SPAN = 20*MB
F_KV     = OFF_F+0x20000
F_X2     = OFF_F+0x2000
F_BQ     = OFF_F+0x4000
F_CH     = OFF_F+0x5000
F_O      = OFF_F+0x8000
F_X1     = OFF_F+0x10000
F_BO     = OFF_F+0x18000
OFF_TS   = 250*MB
```

```python
from wk import *
import a1, a2, awo, bqkv, batt, bwo
XB_=2048*1152
def src_x(a, layer, which):
    if which==0 and layer==0: srd(a,sX,P_X,XB_)
    elif which==0: srd(a,sX,6,XB_,OFF_X2)
    else: srd(a,sX,6,XB_,layer*LAYER_STRIDE+OFF_X1)
def k_a1(a, layer, name):
    lo=layer*LAYER_STRIDE; L=lambda s:f"{name}_{s}"
    a(f"{name}:\ns_cmp_ge_u32 s2, 256\ns_cbranch_scc1 {L('end')}"); entry(a); src_x(a,layer,0)
    a(f"s_and_b32 {a1.sHd}, s2, 31\ns_lshr_b32 {a1.sSeg}, s2, 5")
    a1.consts(a); a1.fetch(a,a1.sSeg); a1.load_qkv(a,"kvq")
    a(f"{L('loop')}:")
    def nxt():
        a(f"s_add_u32 {T2}, {a1.sSeg}, 8\ns_min_u32 {T2}, {T2}, 63"); a1.fetch(a,T2)
    a1.segment(a,lo,nxt,lambda i:None)
    a(f"s_add_u32 {a1.sSeg}, {a1.sSeg}, 8\ns_cmp_lt_u32 {a1.sSeg}, 64\ns_cbranch_scc1 {L('loop')}\ns_waitcnt vmcnt(0)\n{L('end')}:\ns_endpgm")
def k_a2(a, layer, name):
    lo=layer*LAYER_STRIDE; L=lambda s:f"{name}_{s}"
    a(f"{name}:\ns_cmp_ge_u32 s2, 256\ns_cbranch_scc1 {L('end')}"); entry(a)
    a(f"s_and_b32 {a1.sHd}, s2, 31\ns_lshr_b32 {a1.sSeg}, s2, 5\ns_mov_b32 s38, 0")
    a1.consts(a); a1.load_qkv(a,"kv"); a2.consts(a)
    a(f"{L('loop')}:")
    a2.pre(a,lo,OFF_M); a2.post(a,L('end'),"s38",100000)
    a(f"s_add_u32 {a1.sSeg}, {a1.sSeg}, 8\ns_cmp_lt_u32 {a1.sSeg}, 64\ns_cbranch_scc1 {L('loop')}\n{L('end')}:\ns_waitcnt vmcnt(0)\ns_endpgm")
def k_awo(a, layer, name):
    lo=layer*LAYER_STRIDE; L=lambda s:f"{name}_{s}"
    a(f"{name}:\ns_cmp_ge_u32 s2, 252\ns_cbranch_scc1 {L('end')}"); entry(a); src_x(a,layer,0)
    a(f"s_mul_i32 {awo.sTask}, s2, 43691\ns_lshr_b32 {awo.sTask}, {awo.sTask}, 19\ns_mul_i32 {T0}, {awo.sTask}, 12\ns_sub_u32 {awo.sCg}, s2, {T0}")
    awo.consts(a); awo.load_w(a)
    a(f"{L('loop')}:")
    awo.task(a,lo)
    a(f"s_add_u32 {awo.sTask}, {awo.sTask}, 21\ns_cmp_lt_u32 {awo.sTask}, 128\ns_cbranch_scc1 {L('loop')}\ns_waitcnt vmcnt(0)\n{L('end')}:\ns_endpgm")
def k_bqkv(a, layer, name):
    lo=layer*LAYER_STRIDE; L=lambda s:f"{name}_{s}"
    a(f"{name}:\ns_cmp_ge_u32 s2, 252\ns_cbranch_scc1 {L('end')}"); entry(a); src_x(a,layer,1)
    a(f"s_mul_i32 {a1.sSeg}, s2, 58255\ns_lshr_b32 {a1.sSeg}, {a1.sSeg}, 19\ns_mul_i32 {T0}, {a1.sSeg}, 9\ns_sub_u32 {bqkv.sU}, s2, {T0}")
    a1.consts(a); a1.fetch(a,a1.sSeg); bqkv.load_w(a)
    a(f"{L('loop')}:")
    def nxt():
        a(f"s_add_u32 {T2}, {a1.sSeg}, 28\ns_min_u32 {T2}, {T2}, 63"); a1.fetch(a,T2)
    bqkv.segment(a,lo,nxt)
    a(f"s_add_u32 {a1.sSeg}, {a1.sSeg}, 28\ns_cmp_lt_u32 {a1.sSeg}, 64\ns_cbranch_scc1 {L('loop')}\ns_waitcnt vmcnt(0)\n{L('end')}:\ns_endpgm")
def k_batt(a, layer, name, lrange=120<<23):
    lo=layer*LAYER_STRIDE; L=lambda s:f"{name}_{s}"
    a(f"{name}:\ns_cmp_ge_u32 s2, 256\ns_cbranch_scc1 {L('end')}"); entry(a)
    a(f"s_and_b32 {batt.sHd}, s2, 31\ns_lshr_b32 {batt.sJ}, s2, 5")
    batt.consts(a,lo); batt.run(a,lo,8,8,lrange)
    a(f"s_waitcnt vmcnt(0)\n{L('end')}:\ns_endpgm")
def k_bwo(a, layer, name):
    lo=layer*LAYER_STRIDE; L=lambda s:f"{name}_{s}"
    a(f"{name}:\ns_cmp_ge_u32 s2, 192\ns_cbranch_scc1 {L('end')}"); entry(a); src_x(a,layer,1)
    a(f"s_and_b32 {bwo.sSeg}, s2, 63\ns_lshr_b32 {bwo.sCg}, s2, 6")
    bwo.consts(a); bwo.load_w(a)
    if layer==0: bwo.task(a,lo,sWS,OFF_X2,"sc1")
    else: srd(a,sB,P_OUT,XB_); bwo.task(a,lo,sB,0,"")
    a(f"s_waitcnt vmcnt(0)\n{L('end')}:\ns_endpgm")
import chain as C
CH_CFG=dict(vpos=[1,4,7,10,13], kpos=[16,19], vxpos=[22,25], nV=[5,4,0,1], pfill=3, rfill=7, ds2=0, checks=[[j] for j in range(1,9)], ka2=1, keepmov=1,
   dcons=0, sm2=1, sfill=1, keepalive=1, bar3=2, nst0=1, dm=[20,36,36], tP=[200,240,350,390,400], tB=[0,0,0], bgap=1, tH=None, tS=640, npre=4, pregap=44,
   dkeep=[0,0,0,0], pollgap=0, tbar=28, tpos=28, tgap=12, pub=1, ppos=34)
def k_chain(a, layer, name):
    L=lambda s:f"{name}_{s}"
    a(f"{name}:\ns_cmp_ge_u32 s2, 256\ns_cbranch_scc1 {L('end')}\ns_getreg_b32 {sXc}, hwreg(HW_REG_XCC_ID, 0, 4)\ns_add_u32 {sXc}, {sXc}, 1"); entry(a)
    a(f"v_mov_b32 v10, 0\ns_mov_b32 {T0}, {OFF_FLAG}\ns_cmp_eq_u32 s2, 0\ns_cselect_b32 {T0}, {T0}, 0x40000000\nbuffer_store_dword v10, v10, {sWS}, {T0} offen sc1")
    announce(a); elect(a,L('end'),C.sH)
    a(f"s_cmp_lt_u32 {C.sH}, 32\ns_cbranch_scc0 {L('end')}")
    srd(a,sX,P_MEM,9216); srd(a,sA,P_WQ,4718592); srd(a,sB,P_WK,4718592); srd(a,sC_,P_WV,4718592); srd(a,sD,P_WO,4718592)
    for w in (1,2,3): a(f"s_cmp_eq_u32 {sW}, {w}\ns_cbranch_scc1 {L(f'w{w}')}")
    for w in range(4):
        a(f"{L(f'w{w}')}:")
        C.prologue_consts(a,w); C.init_comm(a,w,sX)
        a("s_waitcnt vmcnt(0)\ns_barrier")
        if w==0: a(f"v_mov_b32 v12, 0\nv_mov_b32 v13, 1\ns_mov_b32 {T0}, {OFF_FLAG}\ns_mov_b64 exec, 1\nbuffer_atomic_add v13, v12, {sWS}, {T0} offen\ns_mov_b64 exec, -1")
        C.load_weights(a,w,{"q":sA,"k":sB,"v":sC_,"o":sD})
        C.set_layer(a,w,layer*LAYER_STRIDE)
        pre=f"{name}{w}"
        if w==0:
            a(f"v_mov_b32 v12, 0\ns_mov_b32 {T0}, {OFF_FLAG}\n{L('arr')}:\nbuffer_load_dword v13, v12, {sWS}, {T0} offen sc1")
            C.spin_guard(a,f"{pre}_fail")
            a(f"s_waitcnt vmcnt(0)\nv_readfirstlane_b32 {T1}, v13\ns_cmp_ge_u32 {T1}, 32\ns_cbranch_scc0 {L('arr')}")
        a("s_barrier")
        def mid(w):
            if w!=3: return []
            return [f"s_add_u32 {C.sT0}, {C.sK}, {16384-3*2048+8192}", f"buffer_load_dword v11, {C.vAux}, {sWS}, {C.sT0} offen sc1",
                    f"s_sub_u32 {C.sT0}, {C.sT0}, 8192", f"buffer_load_dword v11, {C.vAux}, {sWS}, {C.sT0} offen sc1"]
        hooks=dict(mid=mid, end=lambda a,w: a(f"s_cmp_eq_u32 {C.sSeg}, 63\ns_cbranch_scc1 {pre}_fail"), qk=lambda w:[], pre_k=lambda w:[], sal=lambda w:[], prefix=pre)
        C.step_loop(a,w,CH_CFG,hooks)
        a(f"{pre}_fail:\ns_waitcnt vmcnt(0) lgkmcnt(0)\ns_endpgm")
    a(f"{L('end')}:\ns_endpgm")
def full_list():
    fns=[]
    for l in range(2):
        for nm,f in (("a1",k_a1),("ch",k_chain),("a2",k_a2),("aw",k_awo),("bq",k_bqkv),("ba",k_batt),("bw",k_bwo)):
            n=f"{nm}{l}_kernel"; fns.append((n,(lambda a,f=f,l=l,n=n: f(a,l,n))))
    return build_list(fns)
KD="""
.section .rodata,"a"
.p2align 6
.amdhsa_kernel {name}
  .amdhsa_next_free_vgpr 512
  .amdhsa_next_free_sgpr 102
  .amdhsa_accum_offset 256
  .amdhsa_group_segment_fixed_size 0
  .amdhsa_kernarg_size 104
  .amdhsa_user_sgpr_count 2
  .amdhsa_user_sgpr_kernarg_segment_ptr 1
  .amdhsa_system_sgpr_workgroup_id_x 1
.end_amdhsa_kernel
"""
def compact(t):
    o=[]
    for l in t.split("\n"):
        l=l.split(";")[0].strip().replace(", ",",").replace(" offset:0 "," ")
        if l.endswith(" offset:0"): l=l[:-9]
        if l: o.append(l)
    return "\n".join(o)+"\n"
def build_list(fns):
    head="".join(f"; @launch kernel={n} grid=(256,1,1) block=(256,1,1) lds=163840\n" for n,_ in fns)
    body='.amdgcn_target "amdgcn-amd-amdhsa--gfx950"\n.text\n'
    for n,f in fns:
        a=Asm(); a.uid=1000*len(body); f(a)
        body+=f".globl {n}\n.p2align 8\n.type {n},@function\n"+compact(a.finish())
    return head+body+"".join(KD.format(name=n) for n,_ in fns)
if __name__=="__main__":
    t=full_list()
    ref=open("interleave_layers__memory_aug_recurrent_mem_tr__mha_block__prompt.s.ref").read()
    hdr="".join(l+"\n" for l in ref.split("\n")[:14])
    open("interleave_layers__memory_aug_recurrent_mem_tr__mha_block__prompt.s","w").write(hdr+t)
    print(len(t))
```

```python
from asmgen import Asm
from layout import *
import math, struct
def f2u(x): return struct.unpack("<I", struct.pack("<f", x))[0]
def q(base, n=4, k="v"): return f"{k}[{base}:{base+n-1}]"
DPP="row_mask:0xf bank_mask:0xf"
sWS="s[8:11]"; sX="s[12:15]"; sA="s[76:79]"; sB="s[80:83]"; sC_="s[84:87]"; sD="s[88:91]"
sW="s21"; sI="s24"
T0,T1,T2,T3="s60","s61","s62","s63"
P_X,P_MEM,P_WQ,P_WK,P_WV,P_WO,P_BQKV,P_BWO,P_OUT=64,66,68,70,72,74,92,94,96
def srd(a, d, ptr, size, off=0):
    d=int(d[2:d.index(":")])
    if off: a(f"s_add_u32 s{d}, s{ptr}, {off}\ns_addc_u32 s{d+1}, s{ptr+1}, 0")
    else: a(f"s_mov_b32 s{d}, s{ptr}\ns_mov_b32 s{d+1}, s{ptr+1}")
    a(f"s_mov_b32 s{d+2}, {size}\ns_mov_b32 s{d+3}, 0x20000")
def entry(a):
    a(f"""
    s_load_dwordx8 s[64:71], s[0:1], 0
    s_load_dwordx4 s[72:75], s[0:1], 32
    s_load_dwordx4 s[92:95], s[0:1], 64
    s_load_dwordx2 s[96:97], s[0:1], 80
    s_load_dwordx4 s[4:7], s[0:1], 88
    v_lshrrev_b32 v1, 6, v0
    v_readfirstlane_b32 {sW}, v1
    v_and_b32 v0, 63, v0
    s_waitcnt lgkmcnt(0)
    """)
    srd(a,sWS,6,WS_BYTES)
def mf(d,A,B,C): return f"v_mfma_f32_16x16x32_bf16 {d}, {A}, {B}, {C}"
def cv(d,x,y): return f"v_cvt_pk_bf16_f32 v{d}, v{x}, v{y}"

class Frags:
    def __init__(self, vbase): self.vbase=vbase
    def reg(self,i,n=4):
        b=4*i
        return (("a",b) if b<256 else ("v",self.vbase+b-256))
    def op(self,i):
        k,b=self.reg(i); return f"{k}[{b}:{b+3}]"

def load_blocks(a, blocks, lds_base, vtr, ring=4):
    nd=[len(b[0]) for b in blocks]
    def issue(bi):
        pos=0
        for (va,s,sb,c,bl) in blocks[bi][0]:
            a(f"s_add_u32 {T0}, {sb}, {c}\ns_add_u32 m0, {T3}, {(bi%ring)*4096+pos}")
            a(f"buffer_load_dword{'x4' if bl==16 else ''} {va}, {s}, {T0} offen lds")
            pos+=64*bl
        assert pos<=4096
    n=len(blocks)
    for bi in range(min(ring-1,n)): issue(bi)
    for bi in range(n):
        if bi+ring-1<n:
            a("s_waitcnt lgkmcnt(0)"); issue(bi+ring-1)
        left=sum(nd[bi+1:min(n,bi+ring)])
        a(f"s_waitcnt vmcnt({min(left,63)})")
        for (t,k,rb) in blocks[bi][1]:
            for qd in range(4):
                a(f"ds_read_b64_tr_b16 {k}[{rb+2*qd}:{rb+2*qd+1}], {vtr} offset:{(bi%ring)*4096+t*32+(qd&1)*256+(qd>>1)*2048}")
    a("s_waitcnt lgkmcnt(0)")
def tr_addr(a, vtr, t0, t1, lds_base):
    a(f"""
    s_lshl_b32 {T3}, {sW}, 14
    s_add_u32 {T3}, {T3}, {lds_base}
    v_lshrrev_b32 {t0}, 4, v0
    v_bfe_u32 {t1}, v0, 2, 2
    v_lshl_add_u32 {t0}, {t0}, 3, {t1}
    v_lshlrev_b32 {t0}, 6, {t0}
    v_and_b32 {t1}, 3, v0
    v_lshl_add_u32 {t0}, {t1}, 3, {t0}
    v_add_u32 {vtr}, {T3}, {t0}
    """)

XF_T=1088
def xfrag(k,T): return (2*k+T)*XF_T
XF_BYTES=36*XF_T
def ln_consts(a, vSrc, vRaw, vDst, vRd, t0, t1, raw_base, xf_base):
    a(f"""
    v_lshrrev_b32 {t0}, 3, v0
    v_and_b32 {t1}, 7, v0                  ; chunk
    s_lshl_b32 {T0}, {sW}, 3
    v_add_u32 {t0}, {T0}, {t0}             ; token 0..31
    v_mul_u32_u24 {vSrc}, 1152, {t0}
    v_lshl_add_u32 {vSrc}, {t1}, 4, {vSrc}
    s_mul_i32 {T0}, {sW}, 9216
    s_add_u32 {T0}, {T0}, {raw_base}
    v_lshlrev_b32 {vRaw}, 4, v0
    v_add_u32 {vRaw}, {T0}, {vRaw}
    v_and_b32 {vDst}, 15, {t0}
    v_lshlrev_b32 {vDst}, 4, {vDst}
    v_lshrrev_b32 {t0}, 4, {t0}            ; T
    v_lshrrev_b32 {vRd}, 2, {t1}
    v_lshl_add_u32 {t0}, {vRd}, 1, {t0}
    v_mul_u32_u24 {t0}, {XF_T}, {t0}
    v_and_b32 {t1}, 3, {t1}
    v_mul_u32_u24 {t1}, 272, {t1}
    v_add3_u32 {vDst}, {vDst}, {t0}, {t1}
    v_add_u32 {vDst}, {xf_base}, {vDst}
    v_lshrrev_b32 {t0}, 4, v0
    v_mul_u32_u24 {t0}, 272, {t0}
    v_and_b32 {t1}, 15, v0
    v_lshl_add_u32 {t0}, {t1}, 4, {t0}
    v_add_u32 {vRd}, {xf_base}, {t0}
    """)
def ln_fetch(a, vSrc, srd_, sOff, raw_base, fl="sc1"):
    a(f"s_mul_i32 {T1}, {sW}, 9216\ns_add_u32 {T1}, {T1}, {raw_base}")
    for i in range(9):
        a(f"s_add_u32 {T0}, {sOff}, {128*i}\ns_add_u32 m0, {T1}, {1024*i}")
        a(f"buffer_load_dwordx4 {vSrc}, {srd_}, {T0} offen {fl} lds")
def ln_stage(a, vRaw, vDst, R, pre_write=None):
    for i in range(9): a(f"ds_read_b128 {q(R+4*i)}, {vRaw} offset:{1024*i}")
    s1,s2,s3,s4,one,lo,hi=[R+36+i for i in range(7)]
    a(f"v_mov_b32 v{one}, 0x3f803f80")
    for r in (s1,s2,s3,s4): a(f"v_mov_b32 v{r}, 0")
    for i in range(9):
        a(f"s_waitcnt lgkmcnt({8-i})")
        for j in range(4):
            r=R+4*i+j
            a(f"v_dot2c_f32_bf16 v{(s1,s3)[j&1]}, v{r}, v{one}\nv_dot2c_f32_bf16 v{(s2,s4)[j&1]}, v{r}, v{r}")
    a("s_nop 2")
    a(f"v_add_f32 v{s1}, v{s1}, v{s3}\nv_add_f32 v{s2}, v{s2}, v{s4}")
    for pat in ("quad_perm:[1,0,3,2]","quad_perm:[2,3,0,1]","row_half_mirror"):
        for r in (s1,s2): a(f"v_add_f32_dpp v{r}, v{r}, v{r} {pat} {DPP}")
    a(f"""
    v_mul_f32 v{s1}, {hex(f2u(1/576))}, v{s1}          ; mean
    v_mul_f32 v{s3}, v{s1}, v{s1}
    v_mul_f32 v{s2}, {hex(f2u(1/576))}, v{s2}
    v_sub_f32 v{s2}, v{s2}, v{s3}
    v_max_f32 v{s2}, 0, v{s2}
    v_add_f32 v{s2}, {hex(f2u(1e-5))}, v{s2}
    v_rsq_f32 v{s2}, v{s2}
    s_nop 0
    v_mul_f32 v{s3}, v{s1}, v{s2}
    v_sub_f32 v{s3}, 0, v{s3}
    """)
    if pre_write: pre_write()
    for i in range(9):
        for j in range(4):
            r=R+4*i+j
            t=R+44+2*(j&1)
            a(f"""v_lshlrev_b32 v{t}, 16, v{r}
            v_and_b32 v{t+1}, 0xffff0000, v{r}
            v_pk_fma_f32 v[{t}:{t+1}], v[{t}:{t+1}], v[{s1}:{s2}], v[{s3}:{s4}] op_sel:[0,1,0] op_sel_hi:[1,1,0]""")
            if j&1: a(cv(r-1,t-2,t-1)); a(cv(r,t,t+1))
        a(f"ds_write_b128 {vDst}, {q(R+4*i)} offset:{4*i*XF_T}")

sXc="s3"
def announce(a):
    sk=a.lab("ann")
    a(f"""s_waitcnt vmcnt(0)
    s_barrier
    s_cmp_eq_u32 {sW}, 0
    s_cbranch_scc0 {sk}
    v_mov_b32 v10, s2
    v_mov_b32 v11, {sXc}
    s_mov_b64 exec, 1
    global_store_byte v10, v11, s[4:5] sc1
    s_mov_b64 exec, -1
    {sk}:""")
def elect(a, fail, out, t=("v10","v11","v12","v13","v14","v15"), lane="v0"):
    lp,wl,wd,ch=a.lab("el"),a.lab("elw"),a.lab("eld"),a.lab("elc")
    ad,dv,b=t[0],t[1],t[2:6]
    a(f"v_lshlrev_b32 {ad}, 2, {lane}\ns_mov_b32 {T3}, 0\n{lp}:\nglobal_load_dword {dv}, {ad}, s[4:5] sc1")
    a(f"s_add_u32 {T3}, {T3}, 1\ns_cmp_gt_u32 {T3}, 4000000\ns_cbranch_scc1 {fail}\ns_waitcnt vmcnt(0)")
    for i in range(4): a(f"v_bfe_u32 {b[i]}, {dv}, {8*i}, 8")
    a(f"v_min_u32 {dv}, {b[0]}, {b[1]}\nv_min3_u32 {dv}, {dv}, {b[2]}, {b[3]}\nv_cmp_eq_u32 vcc, 0, {dv}\ns_cbranch_vccnz {lp}")
    a(f"s_mov_b32 {T2}, 0\n{wl}:\ns_add_u32 {T2}, {T2}, 1\ns_mov_b32 {T1}, 0")
    for i in range(4): a(f"v_cmp_eq_u32 vcc, {T2}, {b[i]}\ns_bcnt1_i32_b64 {T0}, vcc\ns_add_u32 {T1}, {T1}, {T0}")
    a(f"s_cmp_ge_u32 {T2}, 16\ns_cbranch_scc1 {fail}\ns_cmp_lt_u32 {T1}, 32\ns_cbranch_scc1 {wl}")
    a(f"s_mov_b32 {T1}, 0\ns_mov_b32 {T3}, 0")
    for i in range(4):
        a(f"""v_cmp_gt_u32 vcc, {sXc}, {b[i]}
        s_bcnt1_i32_b64 {T0}, vcc
        s_add_u32 {T3}, {T3}, {T0}
        v_add_u32 {dv}, {i}, {ad}
        v_cmp_gt_u32 s[16:17], s2, {dv}
        v_cmp_eq_u32 vcc, {sXc}, {b[i]}
        s_and_b64 vcc, vcc, s[16:17]
        s_bcnt1_i32_b64 {T0}, vcc
        s_add_u32 {T1}, {T1}, {T0}""")
    a(f"""s_add_u32 {out}, {T1}, {T3}
    s_cmp_gt_u32 {T2}, {sXc}
    s_cselect_b32 {T0}, 32, 0
    s_add_u32 {out}, {out}, {T0}
    s_cmp_lg_u32 {T2}, {sXc}
    s_cbranch_scc1 {wd}
    s_cmp_lt_u32 {T1}, 32
    s_cselect_b32 {out}, {T1}, {out}
    {wd}:""")

sCnt="s38"; SPIN=3000000
def wait_flags(a, so, n, shift, val, fail, every_wave=False, sleep=1, t=("v10","v11"), rows=1):
    lp,ok=a.lab("wf"),a.lab("wfo")
    if not every_wave: a(f"s_cmp_lg_u32 {sW}, 0\ns_cbranch_scc1 {ok}")
    a(f"v_min_u32 {t[0]}, {n-1}, v0\nv_lshlrev_b32 {t[0]}, {shift}, {t[0]}")
    for r in range(rows):
        l2=f"{lp}_{r}"; l3=f"{lp}_{r}f"
        a(f"s_branch {l3}\n{l2}:")
        if sleep: a(f"s_sleep {sleep}")
        a(f"""{l3}:
        buffer_load_dword {t[1]}, {t[0]}, {sWS}, {so} offen offset:{256*r} sc1
        s_add_u32 {sCnt}, {sCnt}, 1
        s_cmp_gt_u32 {sCnt}, {SPIN}
        s_cbranch_scc1 {fail}
        s_waitcnt vmcnt(0)
        v_cmp_gt_u32 vcc, {val}, {t[1]}
        s_cbranch_vccnz {l2}""")
    if not every_wave: a(f"{ok}:\ns_barrier")
def put_flag(a, so, val, t=("v10","v11")):
    a(f"v_mov_b32 {t[0]}, 0\nv_mov_b32 {t[1]}, {val}\ns_mov_b64 exec, 1\nbuffer_store_dword {t[1]}, {t[0]}, {sWS}, {so} offen sc1\ns_mov_b64 exec, -1")
def signal(a, so, val, synced=False):
    sk=a.lab("sg")
    if not synced: a("s_waitcnt vmcnt(0)\ns_barrier")
    a(f"s_cmp_lg_u32 {sW}, 0\ns_cbranch_scc1 {sk}"); put_flag(a,so,val); a(f"{sk}:")

def spoll(a, so, fail, sleep, bad, every_wave=False):
    lp,ok=a.lab("sp"),a.lab("spo")
    if not every_wave: a(f"s_cmp_lg_u32 {sW}, 0\ns_cbranch_scc1 {ok}")
    a(f"""s_branch {lp}f
    {lp}:
    s_sleep {sleep}
    {lp}f:
    s_load_dword s39, s[8:9], {so} glc
    s_add_u32 {sCnt}, {sCnt}, 1
    s_cmp_gt_u32 {sCnt}, {SPIN}
    s_waitcnt lgkmcnt(0)
    s_cbranch_scc1 {fail}
    s_cmp_eq_u32 s39, {bad}
    s_cbranch_scc1 {lp}""")
    if not every_wave: a(f"{ok}:")
```

```python
import sys
from wk import *
import wk, a1, a2p, awo, bqkv, batt, battp, bwo
import chain as C
from stages import compact, KD, CH_CFG
NAME="interleave_layers__memory_aug_recurrent_mem_tr__mha_block__prompt_kernel"
XB_=2048*1152
sLay,sJ,sLo="s23","s22","s20"
NA,NW,NB=3,7,4
def stamp(a, cfg, k, r=10):
    if not cfg.get("ts"): return
    sk=a.lab("ts")
    a(f"""s_cmp_lg_u32 {sW}, 0
    s_cbranch_scc1 {sk}
    s_memrealtime s[98:99]
    s_lshl_b32 s100, {sLay}, 4
    s_add_u32 s100, s100, {k}
    s_lshl_b32 s100, s100, 8
    s_add_u32 s100, s100, s101
    s_lshl_b32 s100, s100, 2
    s_add_u32 s100, s100, {OFF_TS}
    s_waitcnt lgkmcnt(0)
    v_mov_b32 v{r}, s100
    v_mov_b32 v{r+1}, s98
    s_mov_b64 exec, 1
    global_store_dword v{r}, v{r+1}, s[6:7]
    s_memtime s[98:99]
    v_add_u32 v{r}, 0x8000, v{r}
    s_waitcnt lgkmcnt(0)
    v_mov_b32 v{r+1}, s98
    global_store_dword v{r}, v{r+1}, s[6:7]
    s_mov_b64 exec, -1
    {sk}:""")
sVer="s19"
def verify(a, cfg, fail, cur):
    ok=a.lab("ver")
    a(f"s_cmp_lg_u32 {sVer}, 0\ns_cbranch_scc1 {ok}\ns_mov_b32 {sVer}, 1\nv_mbcnt_lo_u32_b32 v18, -1, 0\nv_mbcnt_hi_u32_b32 v18, -1, v18")
    elect(a,fail,"s18",t=("v12","v13","v14","v15","v16","v17"),lane="v18")
    a(f"s_add_u32 {T0}, {sI}, {cur}\ns_cmp_eq_u32 {T0}, s18\ns_cbranch_scc1 {ok}\ns_mov_b32 {sI}, s18\ns_mov_b32 s10, {WS_BYTES}\ns_branch k_role\n{ok}:")
def div7(a, dq, dr, x): a(f"s_mul_i32 {dq}, {x}, 9363\ns_lshr_b32 {dq}, {dq}, 16\ns_mul_i32 {T0}, {dq}, 7\ns_sub_u32 {dr}, {x}, {T0}")
def worker(a, cfg):
    F="w_fail"; sTm,sR="s39","s37"
    def layer_base(): a(f"s_mul_i32 {T0}, {sLay}, {LAYER_STRIDE}\ns_add_u32 s8, s6, {T0}\ns_addc_u32 s9, s7, 0\ns_mov_b32 s10, {LAYER_SPAN}")
    def next_layer(lbl):
        stamp(a,cfg,8); srd(a,sX,6,XB_,OFF_X2)
        a(f"s_add_u32 {sLay}, {sLay}, 1\ns_cmp_lt_u32 {sLay}, 2\ns_cbranch_scc1 {lbl}\ns_branch {F}")
    a(f"worker:\ns_sub_u32 {sI}, {sI}, 32\ns_mov_b32 {sCnt}, 0")
    srd(a,sX,P_X,XB_); srd(a,sD,6,WS_BYTES)
    a(f"s_cmp_ge_u32 {sI}, 128\ns_cbranch_scc1 w_pipe")
    a("g_layer:"); layer_base()
    a(f"s_lshr_b32 {a1.sHd}, {sI}, 2\ns_and_b32 {sJ}, {sI}, 3\ns_mov_b32 {a1.sSeg}, {sJ}\ns_barrier")
    a1.consts(a); a1.load_qkv(a,"kvq")
    stamp(a,cfg,1); verify(a,cfg,F,32); stamp(a,cfg,0)
    def wait_x(sg):
        sk=a.lab("nx")
        a(f"s_cmp_eq_u32 {sLay}, 0\ns_cbranch_scc1 {sk}\ns_lshl_b32 {T3}, {sg}, 7\ns_add_u32 {T3}, {T3}, {F_X2}")
        wait_flags(a,T3,3,4,1,F,every_wave=True); a(f"{sk}:")
    wait_x(a1.sSeg); a1.fetch(a,a1.sSeg)
    a("s_mov_b32 s30, 0x40000000\ns_waitcnt vmcnt(0)\nw_a1:")
    def nxt():
        a(f"s_add_u32 {T2}, {a1.sSeg}, 4\ns_min_u32 {T2}, {T2}, 63"); wait_x(T2); a1.fetch(a,T2)
    def sig(i):
        if i==1: signal(a,"s30",2,synced=True)
        else:
            a(f"s_lshl_b32 s30, {a1.sHd}, 6\ns_add_u32 s30, s30, {a1.sSeg}\ns_lshl_b32 s30, s30, 4\ns_add_u32 s30, s30, {F_KV}"); signal(a,"s30",1)
    a1.segment(a,0,nxt,sig)
    a(f"s_add_u32 {a1.sSeg}, {a1.sSeg}, 4\ns_cmp_lt_u32 {a1.sSeg}, 64\ns_cbranch_scc1 w_a1")
    signal(a,"s30",2)
    stamp(a,cfg,2)
    a(f"s_mov_b32 {batt.sJ}, {sJ}")
    battp.consts(a)
    def stored():
        a(f"""s_lshl_b32 {T3}, {sW}, 2
        s_add_u32 {T3}, {T3}, {sJ}
        s_lshl_b32 {T3}, {T3}, 5
        s_add_u32 {T3}, {T3}, {batt.sHd}
        s_lshl_b32 {T3}, {T3}, 4
        s_add_u32 {T3}, {T3}, {F_BO}
        v_lshlrev_b32 v10, 13, v0
        v_mov_b32 v11, 1
        s_mov_b64 exec, 15
        s_waitcnt vmcnt(0)
        buffer_store_dword v11, v10, {sWS}, {T3} offen sc1
        s_mov_b64 exec, -1""")
    battp.run(a,F,cfg.get("lrange",120<<23),stored,cfg.get("sl_batt",2))
    stamp(a,cfg,5)
    next_layer("g_layer")
    a(f"w_pipe:\ns_sub_u32 {T0}, {sI}, 128\ns_lshr_b32 {sTm}, {T0}, 5\ns_and_b32 {sR}, {T0}, 31\ns_cmp_lt_u32 {sR}, 21\ns_cbranch_scc1 p_layer")
    a(f"s_mul_i32 {a1.sHd}, {sTm}, 11\ns_add_u32 {a1.sHd}, {a1.sHd}, {sR}\ns_sub_u32 {a1.sHd}, {a1.sHd}, 21\ns_min_u32 {a1.sHd}, {a1.sHd}, 31")
    a1.consts(a); a1.load_qkv(a,"kv")
    stamp(a,cfg,1); verify(a,cfg,F,32)
    a(f"s_cmp_eq_u32 {sI}, 223\ns_cbranch_scc1 {F}")
    a2p.consts(a)
    a("a2_layer:"); layer_base()
    def qready(pair):
        a(f"""s_lshr_b32 {T3}, {sW}, 1
        s_add_u32 {T3}, {T3}, {pair}
        s_lshl_b32 {T0}, {a1.sHd}, 6
        s_add_u32 {T3}, {T3}, {T0}
        s_lshl_b32 {T3}, {T3}, 4
        s_add_u32 {T3}, {T3}, {F_KV}""")
        wait_flags(a,T3,1,2,2,F,every_wave=True,sleep=4)
    a(f"s_mov_b32 {a1.sSeg}, 0\ns_lshl_b32 s27, {a1.sHd}, 10\ns_add_u32 s27, s27, {F_KV}")
    qready(a1.sSeg); a2p.loads(a,a1.sSeg,0)
    a("s_waitcnt vmcnt(0)\nw_a2:")
    for vb in range(2):
        a2p.pre(a)
        lp,ok=a.lab("vp"),a.lab("vpo")
        a(f"s_cmp_lg_u32 {sW}, 0\ns_cbranch_scc1 {ok}\nv_mov_b32 v10, 0\ns_add_u32 {T3}, {a2p.sMo}, 16384\ns_branch {lp}f\n{lp}:\ns_sleep {cfg.get('vp_sl',1)}\n{lp}f:\nbuffer_load_dword v11, v10, {sWS}, {T3} offen sc1")
        a(f"s_add_u32 {sCnt}, {sCnt}, 1\ns_cmp_gt_u32 {sCnt}, {SPIN}\ns_cbranch_scc1 {F}\ns_waitcnt vmcnt(0)\nv_cmp_eq_u32 vcc, -1, v11\ns_cbranch_vccnz {lp}\n{ok}:\ns_barrier")
        a(f"buffer_load_dword v11, {a1.vL16}, {sWS}, s27 offen sc1")
        def nxt2():
            sk,rdy=a.lab("a2n"),a.lab("a2r")
            a(f"""v_cmp_lt_u32 vcc, 1, v11
            s_add_u32 s50, {a1.sSeg}, 2
            s_cmp_ge_u32 s50, 64
            s_cbranch_scc1 {sk}
            s_lshr_b32 {T3}, {sW}, 1
            s_add_u32 {T3}, {T3}, s50
            s_bitcmp1_b64 vcc, {T3}
            s_cbranch_scc1 {rdy}""")
            qready("s50"); a(f"{rdy}:"); a2p.loads(a,"s50",vb^1); a(f"{sk}:")
        a2p.post(a,vb,F,nxt2)
        sk=a.lab("a2s")
        a(f"""s_lshl_b32 {T3}, {a1.sSeg}, 5
        s_add_u32 {T3}, {T3}, {a1.sHd}
        s_lshl_b32 {T3}, {T3}, 4
        s_add_u32 {T3}, {T3}, {F_O}
        v_lshlrev_b32 v10, 9, v0
        v_mov_b32 v11, 1
        s_add_u32 {a1.sSeg}, {a1.sSeg}, 2
        s_cmp_lg_u32 {sW}, 0
        s_waitcnt vmcnt(0)
        s_barrier
        s_cbranch_scc1 {sk}
        s_mov_b64 exec, 3
        buffer_store_dword v11, v10, {sWS}, {T3} offen sc1
        s_mov_b64 exec, -1
        {sk}:""")
    a(f"s_cmp_lt_u32 {a1.sSeg}, 64\ns_cbranch_scc1 w_a2")
    stamp(a,cfg,3)
    next_layer("a2_layer")
    a("p_layer:"); layer_base()
    a(f"s_barrier\ns_cmp_ge_u32 {sR}, 12\ns_cbranch_scc1 w_bqr")
    a(f"s_mov_b32 {awo.sTask}, {sTm}\ns_mov_b32 {awo.sCg}, {sR}")
    awo.consts(a); awo.load_w(a)
    stamp(a,cfg,1); verify(a,cfg,F,32)
    a(f"v_and_b32 v7, 7, v0\ns_lshl_b32 {T0}, {sW}, 3\nv_add_u32 v7, {T0}, v7\nv_lshlrev_b32 v7, 4, v7")
    def oflag(dst,task): a(f"s_lshr_b32 {dst}, {task}, 1\ns_lshl_b32 {dst}, {dst}, 9\ns_add_u32 {dst}, {dst}, {F_O}")
    def xsig():
        sk=a.lab("xs"); a(f"s_barrier\ns_cmp_lg_u32 {sW}, 0\ns_cselect_b32 s31, 0x40000000, s31"); put_flag(a,"s31",1)
    a("w_awo_wait:"); oflag(T3,awo.sTask)
    a(f"s_lshl_b32 {T0}, {sW}, 7\ns_add_u32 {T3}, {T3}, {T0}")
    wait_flags(a,T3,8,4,1,F,every_wave=True,sleep=cfg.get("sl_w",1))
    awo.issue(a)
    a(f"s_mov_b32 s31, 0x40000000"); put_flag(a,"s31",1)
    a(f"w_awo:\ns_add_u32 s32, {awo.sTask}, 3"); oflag("s30","s32")
    awo.task(a,0,1,lambda: a(f"buffer_load_dword v8, v7, {sWS}, s30 offen sc1"))
    a(f"""s_lshr_b32 s31, {awo.sTask}, 1
    s_lshl_b32 s31, s31, 5
    s_and_b32 {T0}, {awo.sTask}, 1
    s_mul_i32 {T0}, {T0}, 12
    s_add_u32 s31, s31, {T0}
    s_add_u32 s31, s31, {awo.sCg}
    s_lshl_b32 s31, s31, 4
    s_add_u32 s31, s31, {F_X1}
    s_mov_b32 {awo.sTask}, s32
    v_cmp_eq_u32 vcc, 0, v8
    s_cmp_ge_u32 s32, 128
    s_cbranch_scc1 w_awo_sync
    s_cbranch_vccnz w_awo_sync""")
    awo.issue(a); a(f"s_waitcnt vmcnt({awo.NR+1})"); xsig(); a("s_branch w_awo")
    a("w_awo_sync:\ns_waitcnt vmcnt(0)"); xsig()
    a(f"s_cmp_lt_u32 {awo.sTask}, 128\ns_cbranch_scc1 w_awo_wait\ns_branch w_bwo")
    a(f"w_bqr:\ns_mov_b32 {a1.sSeg}, {sTm}\ns_sub_u32 {bqkv.sU}, {sR}, 12\ns_lshl_b32 s30, {bqkv.sU}, 8\ns_add_u32 s30, s30, {F_BQ}")
    srd(a,sX,8,XB_,OFF_X1)
    a1.consts(a); bqkv.load_w(a)
    stamp(a,cfg,1); verify(a,cfg,F,32)
    a(f"w_bq:\ns_lshl_b32 {T3}, {a1.sSeg}, 9\ns_add_u32 {T3}, {T3}, {F_X1}")
    wait_flags(a,T3,24,4,1,F,sleep=cfg.get("sl_w",1))
    a1.fetch(a,a1.sSeg)
    bqkv.segment(a,0,lambda:None)
    a(f"s_lshl_b32 {T3}, {a1.sSeg}, 2\ns_add_u32 {T3}, {T3}, s30")
    signal(a,T3,1)
    a(f"s_add_u32 {a1.sSeg}, {a1.sSeg}, 3\ns_cmp_lt_u32 {a1.sSeg}, 64\ns_cbranch_scc1 w_bq")
    a("w_bwo:")
    stamp(a,cfg,3)
    a(f"""s_mul_i32 {T1}, {sR}, 43691
    s_lshr_b32 {T1}, {T1}, 17
    s_mul_i32 {T0}, {T1}, 3
    s_sub_u32 {bwo.sCg}, {sR}, {T0}
    s_add_u32 {bwo.sSeg}, {T0}, {sTm}
    s_barrier""")
    srd(a,sX,8,XB_,OFF_X1)
    bwo.consts(a); bwo.load_w(a)
    srd(a,sB,6,XB_,OFF_X2)
    a(f"s_cmp_eq_u32 {sLay}, 0\ns_cbranch_scc1 w_bw1"); srd(a,sB,P_OUT,XB_)
    a(f"w_bw1:\ns_mov_b32 s10, {2*LAYER_STRIDE}")
    stamp(a,cfg,6)
    a(f"w_bw2:\ns_lshl_b32 {T3}, {bwo.sSeg}, 9\ns_add_u32 {T3}, {T3}, {F_BO}")
    wait_flags(a,T3,32,4,1,F)
    bwo.task(a,0,sB,0,"sc1")
    a(f"s_lshl_b32 {T3}, {bwo.sSeg}, 3\ns_add_u32 {T3}, {T3}, {bwo.sCg}\ns_lshl_b32 {T3}, {T3}, 4\ns_add_u32 {T3}, {T3}, {LAYER_STRIDE+F_X2}")
    a(f"s_cmp_eq_u32 {sLay}, 0\ns_cbranch_scc0 w_bw3")
    signal(a,T3,1)
    a(f"w_bw3:\ns_cmp_ge_u32 {bwo.sSeg}, 21\ns_cbranch_scc1 w_bw4"); stamp(a,cfg,7)
    a(f"w_bw4:\ns_add_u32 {bwo.sSeg}, {bwo.sSeg}, 21\ns_cmp_lt_u32 {bwo.sSeg}, 64\ns_cbranch_scc1 w_bw2")
    next_layer("p_layer")
    a(f"{F}:\ns_waitcnt vmcnt(0) lgkmcnt(0)\ns_endpgm")

def chain(a, cfg):
    cc=dict(CH_CFG); cc["prepoison"]=1; cc.update(cfg.get("chain",{}))
    sLo_,sFk="s52","s53"; RDY="s[50:51]"
    srd(a,sX,P_MEM,9216); srd(a,sA,P_WQ,4718592); srd(a,sB,P_WK,4718592); srd(a,sC_,P_WV,4718592); srd(a,sD,P_WO,4718592)
    a(f"s_mov_b32 {sLo_}, 0\ns_mov_b32 {C.sCnt}, 0")
    for w in (1,2,3): a(f"s_cmp_eq_u32 {sW}, {w}\ns_cbranch_scc1 c_w{w}")
    for w in range(4):
        pre=f"ch{w}"; F=f"{pre}_fail"
        a(f"c_w{w}:")
        C.prologue_consts(a,w)
        def at_block():
            verify(a,cfg,F,0); stamp(a,cfg,0,12)
            C.init_comm(a,w,sX)
            a("s_waitcnt vmcnt(0)\ns_barrier")
            if w==0:
                a(f"s_lshl_b32 {T3}, {C.sH}, 4\ns_add_u32 {T3}, {T3}, {F_CH}"); put_flag(a,T3,1,("v12","v13"))
        C.load_weights(a,w,{"q":sA,"k":sB,"v":sC_,"o":sD},(cfg.get("vblock",14),at_block))
        stamp(a,cfg,1,12)
        if w==0:
            lp=a.lab("arr")
            a(f"v_and_b32 v12, 0x1ff, {C.vL16}\ns_mov_b32 {T3}, {F_CH}\n{lp}:\nbuffer_load_dword v13, v12, {sWS}, {T3} offen sc1")
            C.spin_guard(a,F); a(f"s_waitcnt vmcnt(0)\nv_cmp_eq_u32 vcc, 0, v13\ns_cbranch_vccnz {lp}")
        a(f"{pre}_layer:")
        C.set_layer(a,w,sLo_)
        a(f"v_lshrrev_b32 v18, 4, {C.vL16}")
        C.store_mem0(a,w,sX,"v18",[C.held(0),C.held(1)])
        fload=f"buffer_load_dword v11, {C.vL16}, {sWS}, {sFk} offen sc1"
        def kvwait(lbl, back, bit, sleep):
            a(f"{lbl}:"); a(fload); C.spin_guard(a,F)
            if sleep: a(f"s_sleep {sleep}")
            a(f"s_waitcnt vmcnt(0)\nv_cmp_ne_u32 {RDY}, 0, v11\ns_nop 0\ns_bitcmp1_b64 {RDY}, {bit}\ns_cbranch_scc0 {lbl}")
            if back: a(f"s_branch {back}")
        if w==3:
            a(f"s_lshl_b32 {sFk}, {C.sH}, 10\ns_add_u32 {sFk}, {sFk}, {sLo_}\ns_add_u32 {sFk}, {sFk}, {F_KV}")
            kvwait(f"{pre}_kv0",None,cfg.get("kv0",0),1)
        a("s_waitcnt vmcnt(0)\ns_barrier")
        stamp(a,cfg,2,12)
        def qk(w):
            if w==3: return [(2,(None,f"s_add_u32 {C.sT1}, {C.sSeg}, 1")),(2,(None,f"v_cmp_ne_u32 {RDY}, 0, v11")),(8,(None,f"s_bitcmp1_b64 {RDY}, {C.sT1}")),(20,(None,f"s_cbranch_scc0 {pre}_kvw\n{pre}_kvok:"))]
            return []
        hooks=dict(mid=lambda w:[], end=lambda a,w: a(f"s_cmp_eq_u32 {C.sSeg}, 63\ns_cbranch_scc1 {pre}_done"), qk=qk, pre_k=lambda w:[], sal=lambda w:(["s_memrealtime s[98:99]\ns_waitcnt lgkmcnt(0)\ns_mov_b32 m0, "+C.sSeg+"\nv_writelane_b32 "+C.vAux+", s98, m0"] if (w==0 and cfg.get("ts")) else []), prefix=pre, after_touch=[fload])
        C.step_loop(a,w,cc,hooks)
        if w==3: kvwait(f"{pre}_kvw",f"{pre}_kvok",C.sT1,0)
        a(f"{pre}_done:")
        for i in range(len(C.GROUPS[w])): a(C.publish(i))
        a("s_waitcnt vmcnt(0) lgkmcnt(0)")
        if w==0 and cfg.get("ts"):
            a(f"s_lshl_b32 {T0}, {sLay}, 5\ns_add_u32 {T0}, {T0}, {C.sH}\ns_lshl_b32 {T0}, {T0}, 8\ns_add_u32 {T0}, {T0}, {OFF_TS+0x10000}\nv_lshrrev_b32 v12, 2, {C.vL16}\nbuffer_store_dword {C.vAux}, v12, {sWS}, {T0} offen")
        stamp(a,cfg,3,12)
        if cfg.get("stop_after_a1"): a(f"s_branch {F}")
        a(f"s_cmp_lg_u32 {sLo_}, 0\ns_cbranch_scc1 {F}\ns_mov_b32 {sLo_}, {LAYER_STRIDE}\ns_mov_b32 {sLay}, 1")
        for i,g in enumerate(C.GROUPS[w]):
            a(f"s_add_u32 {C.sT1}, {C.mso(i)}, 0x8000\nbuffer_load_dword v21, {C.vMst}, {sWS}, {C.sT1} offen sc1")
        for x in C.next_slots(w): a(x)
        a(f"s_waitcnt vmcnt(0)\ns_branch {pre}_layer\n{F}:\ns_waitcnt vmcnt(0) lgkmcnt(0)\ns_endpgm")

def gen(cfg={}):
    a=Asm()
    a(f"{NAME}:\ns_cmp_lt_u32 s2, 256\ns_cbranch_scc1 k_go\nk_end:\ns_endpgm\nk_go:\ns_getreg_b32 {sXc}, hwreg(HW_REG_XCC_ID, 0, 4)\ns_add_u32 {sXc}, {sXc}, 1\nv_lshlrev_b32 v2, 4, v0")
    entry(a)
    a(f"s_mov_b32 {sLay}, 0\ns_mov_b32 s101, s2")
    stamp(a,cfg,9)
    a(f"""s_lshr_b32 {T0}, s2, 7
    s_mul_i32 {T0}, {T0}, {LAYER_STRIDE}
    s_and_b32 {T1}, s2, 127
    s_lshl_b32 {T2}, {T1}, 11
    s_add_u32 {T2}, {T2}, {T0}
    s_add_u32 {T2}, {T2}, {OFF_F}
    s_lshl_b32 {T1}, {T1}, 13
    s_add_u32 {T1}, {T1}, {T0}
    s_add_u32 {T1}, {T1}, {OFF_MH}
    s_add_u32 {T0}, {T1}, 4096
    v_lshrrev_b32 v3, 1, v2
    v_mov_b32 v4, -1
    v_mov_b32 v5, -1
    v_mov_b32 v6, -1
    v_mov_b32 v7, -1
    v_mov_b32 v8, 0
    v_mov_b32 v9, 0
    buffer_store_dwordx2 v[8:9], v3, {sWS}, {T2} offen sc1
    buffer_store_dwordx4 v[4:7], v2, {sWS}, {T1} offen sc1
    buffer_store_dwordx4 v[4:7], v2, {sWS}, {T0} offen sc1
    s_lshl_b32 {T1}, s2, 13
    s_add_u32 {T1}, {T1}, {OFF_M}
    s_add_u32 {T0}, {T1}, 4096
    buffer_store_dwordx4 v[4:7], v2, {sWS}, {T1} offen sc1
    buffer_store_dwordx4 v[4:7], v2, {sWS}, {T0} offen sc1""")
    announce(a)
    a(f"""s_sub_u32 {T0}, {sXc}, 1
    s_and_b32 {T0}, {T0}, 7
    s_lshl_b32 {T0}, {T0}, 5
    s_lshr_b32 {sI}, s2, 3
    s_add_u32 {sI}, {sI}, {T0}
    s_mov_b32 {sVer}, 0
    k_role:
    s_mov_b32 s101, {sI}
    v_mbcnt_lo_u32_b32 v0, -1, 0
    v_mbcnt_hi_u32_b32 v0, -1, v0
    s_barrier
    s_cmp_lt_u32 {sI}, 32
    s_cbranch_scc1 chain""")
    worker(a,cfg)
    a("chain:")
    chain(a,cfg)
    body=compact(a.finish())
    return f'; @launch grid=(256,1,1) block=(256,1,1) lds=163840\n.amdgcn_target "amdgcn-amd-amdhsa--gfx950"\n.text\n.globl {NAME}\n.p2align 8\n.type {NAME},@function\n'+body+KD.format(name=NAME)
if __name__=="__main__":
    t=gen()
    ref=open("interleave_layers__memory_aug_recurrent_mem_tr__mha_block__prompt.s.ref").read()
    hdr="".join(l+"\n" for l in ref.split("\n")[:14])
    out=sys.argv[1] if len(sys.argv)>1 else "mega.s"
    open(out,"w").write(hdr+t)
    import subprocess
    print(len(t), subprocess.run(f"clang -x assembler -target amdgcn-amd-amdhsa -mcpu=gfx950 {out} -o mega.co && python3 cdna_unwritten_srd_check.py mega.co; llvm-readelf -S mega.co | grep text",shell=True,capture_output=True,text=True))
```

```python
from wk import *
sHd,sSeg,sSrc,sKVo,sQo="s25","s26","s27","s28","s29"
FR=Frags(80)
def fi(mu,t,k): return ("kvq".index(mu)*2+t)*18+k
vSrc,vRaw,vDst,vRd,vL16,vKst,vTr,vWa=[f"v{i}" for i in range(1,9)]
RAW=XF_BYTES; WST=81920
def load_qkv(a, mats):
    srd(a,sA,P_WQ,4718592); srd(a,sB,P_WK,4718592); srd(a,sC_,P_WV,4718592)
    a(f"s_lshl_b32 {T1}, {sW}, 2")
    coop_qkv_addr(a,"v0",T1,"v12","v14","v15","v10","v11")
    a(f"""
    v_lshrrev_b32 v10, 4, v0
    v_lshl_add_u32 v12, v10, 13, v12
    v_xor_b32 v13, 0x80, v12
    s_lshl_b32 {T2}, {sHd}, 8
    s_lshl_b32 {T1}, {sW}, 17
    s_add_u32 {T2}, {T2}, {T1}
    s_lshl_b32 {T3}, {sW}, 12
    """)
    blocks=[]
    for mu in mats:
        for b in range(9):
            blocks.append(([(("v12","v13")[i>>1],{"q":sA,"k":sB,"v":sC_}[mu],T2,(64*b+4*i)*8192) for i in range(4)],
                           [(("v14","v15")[t],)+FR.reg(fi(mu,t,2*b))+(QKV_OFFS,None) for t in range(2)]))
    coop_blocks(a,blocks,lambda i: WST+16384*i,("v10","v11"),T3)
def consts(a):
    ln_consts(a,vSrc,vRaw,vDst,vRd,"v10","v11",RAW,0)
    a(f"""
    v_lshlrev_b32 {vL16}, 4, v0
    v_lshrrev_b32 v10, 2, v0
    v_lshlrev_b32 v10, 5, v10
    v_and_b32 v11, 1, v0
    v_lshl_add_u32 v10, v11, 4, v10
    v_bfe_u32 v11, v0, 1, 1
    v_lshl_add_u32 {vKst}, v11, 11, v10
    """)
ACC=16; XB=64
def gemm(a, mats, bufs, extra=[]):
    acc=lambda mu,t,T: ACC+("kvq".index(mu)*4+t*2+T)*4
    nb=len(bufs)
    rd=lambda k: [f"ds_read_b128 {q(bufs[k%nb]+4*T)}, {vRd} offset:{xfrag(k,T)}" for T in range(2)]
    for k in range(nb-1):
        for x in rd(k): a(x)
    for k in range(18):
        pend=rd(k+nb-1) if k+nb-1<18 else []
        a(f"s_waitcnt lgkmcnt({2*min(nb-2,17-k)})")
        for mu in mats:
            for t in range(2):
                for T in range(2):
                    d=q(acc(mu,t,T)); W=FR.op(fi(mu,t,k)); X=q(bufs[k%nb]+4*T)
                    a(mf(d,X,W,d if k else 0) if mu=="v" else mf(d,W,X,d if k else 0))
                    if pend: a(pend.pop(0))
                    elif extra and t==1 and T==1 and mu==mats[0]: a(extra.pop(0))
    assert not extra
    return acc
def segment(a, lo, nxt, signal):
    cs(a,"a1",0)
    ln_stage(a,vRaw,vDst,ACC,pre_write=lambda: (a("s_waitcnt vmcnt(0)\ns_barrier"),signal(1)))
    a(f"""s_mul_i32 {T0}, {sHd}, 65
    s_add_u32 {T0}, {T0}, {sSeg}
    s_lshl_b32 {sKVo}, {T0}, 14
    s_add_u32 {sKVo}, {sKVo}, {OFF_KV}
    s_lshl_b32 {sQo}, {T0}, 13
    s_add_u32 {sQo}, {sQo}, {OFF_QX}
    s_waitcnt lgkmcnt(0)
    s_barrier""")
    cs(a,"a1",1); later=[]; nxt(later); cs(a,"a1",2)
    acc=gemm(a,"kv",[XB,XB+8,ACC+32],later)
    a(f"s_lshl_b32 {T0}, {sW}, 9\ns_add_u32 {T0}, {T0}, {sKVo}\ns_add_u32 {T1}, {T0}, 4096\ns_lshl_b32 {T2}, {sW}, 11\ns_add_u32 {T2}, {T2}, {sKVo}\ns_add_u32 {T2}, {T2}, 8192")
    cs(a,"a1",3)
    def pack(d,x,y):
        a(cv(d,x,x+1)); a(cv(d+1,x+2,x+3)); a(cv(d+2,y,y+1)); a(cv(d+3,y+2,y+3))
    for T in range(2):
        d=acc("k",0,T); pack(d,d,acc("k",1,T)); a(f"buffer_store_dwordx4 {q(d)}, {vKst}, {sD}, {(T0,T1)[T]} offen sc1")
    for t in range(2):
        d=acc("v",t,0); pack(d,d,acc("v",t,1)); a(f"buffer_store_dwordx4 {q(d)}, {vL16}, {sD}, {T2} offen offset:{1024*t} sc1")
    cs(a,"a1",4); gemm(a,"q",[XB,XB+8,ACC+8]); cs(a,"a1",5)
    signal(0); cs(a,"a1",6)
    a(f"s_lshl_b32 {T0}, {sW}, 10\ns_add_u32 {T0}, {T0}, {sQo}\ns_add_u32 {T1}, {T0}, 4096")
    for T in range(2):
        d=acc("q",0,T); pack(d,d,acc("q",1,T)); a(f"buffer_store_dwordx4 {q(d)}, {vL16}, {sD}, {(T0,T1)[T]} offen sc1")
def fetch(a, sg, later=None):
    a(f"s_mul_i32 {sSrc}, {sg}, {32*1152}")
    ln_fetch(a,vSrc,sX,sSrc,RAW,later=later)
```

```python
from wk import *
from a1 import FR, fi, sHd, sSeg, vL16, vKst
sKVo,sQo,sMo,sOo,sCc,sW1k="s28","s29","s30","s31","s32","s33"
MASK=["s[40:41]","s[42:43]","s[44:45]","s[46:47]"]; SEL="s[48:49]"
vSab,vSc,vKx,vVr="v2","v3","v4","v9"
L_MF=0; L_KX=18432; L_VX=22528
Q,K=112,144; V=[176,192]; SX,SM,TMP,MB_=208,220,228,232
ACC=16; XB=32; KK=16; VD=32; O=40; PT=72; ONES=12; PX=232; PM=240; LL=244
def consts(a):
    a(f"""
    v_and_b32 v10, 15, v0                  ; m
    v_lshrrev_b32 v11, 4, v0               ; gA
    v_and_b32 v12, 13, v10
    v_lshlrev_b32 v12, 4, v12              ; (m&~2)*16
    v_bfe_u32 v13, v10, 1, 1               ; half
    v_lshrrev_b32 v14, 1, v11
    v_lshl_add_u32 v12, v14, 10, v12
    v_and_b32 v14, 1, v11
    v_lshl_add_u32 v15, v14, 8, v12
    v_lshl_add_u32 v15, v13, 3, v15
    s_lshl_b32 {T0}, {sW}, 11
    v_add_u32 {vSab}, {T0}, v15
    v_lshl_add_u32 v14, v14, 1, v13
    v_lshl_add_u32 v14, v14, 8, v12
    s_and_b32 {T0}, {sW}, 1
    s_lshl_b32 {T1}, {T0}, 5
    v_add_u32 {vSc}, {T1}, v14
    s_lshl_b32 {T1}, {T0}, 11
    v_add_u32 {vVr}, {T1}, {vL16}
    s_lshl_b32 {sW1k}, {sW}, 10
    v_add_u32 {vKx}, {sW1k}, {vL16}
    v_lshlrev_b32 v11, 2, v11
    s_mov_b32 {sCc}, {f2u(128**-0.5*math.log2(math.e))}
    s_mov_b32 s34, 0x05040100
    s_mov_b32 s35, 0x07060302
    s_cmp_ge_u32 {sW}, 2
    s_cselect_b64 {SEL}, -1, 0
    """)
    for r in range(4): a(f"v_add_u32 v12, {r}, v11\nv_cmp_le_u32 {MASK[r]}, v12, v10")
    for i in range(4): a(f"v_mov_b32 v{ONES+i}, 0x3f803f80")
OOB=0x40000000
sK0,sK1,sV0,sQ0,sQ1="s28","s51","s52","s29","s53"
def addrs(a, pair):
    a(f"""s_lshr_b32 {T1}, {sW}, 1
    s_add_u32 {T1}, {T1}, {pair}
    s_mul_i32 {T0}, {sHd}, 65
    s_add_u32 {T0}, {T0}, {T1}
    s_lshl_b32 {sK0}, {T0}, 14
    s_add_u32 {sK0}, {sK0}, {OFF_KV}
    s_lshl_b32 {sQ0}, {T0}, 13
    s_add_u32 {sQ0}, {sQ0}, {OFF_QX}
    s_cmp_lt_u32 {T1}, 64
    s_cselect_b32 {sK0}, {sK0}, {OOB}
    s_cselect_b32 {sQ0}, {sQ0}, {OOB}
    s_add_u32 {sQ1}, {sQ0}, 4096
    s_add_u32 {sK1}, {sK0}, 4096
    s_and_b32 {T2}, {sW}, 1
    s_lshl_b32 {T2}, {T2}, 12
    s_add_u32 {T2}, {T2}, {sK0}
    s_add_u32 {sV0}, {T2}, 8192""")
def kv_loads(vb):
    return [f"buffer_load_dwordx4 {q(K+16*T+4*b)}, {vKst}, {sD}, {(sK0,sK1)[T]} offen offset:{512*b} sc1" for T in range(2) for b in range(4)]+\
           [f"buffer_load_dwordx4 {q(V[vb]+4*t)}, {vL16}, {sD}, {sV0} offen offset:{1024*t} sc1" for t in range(4)]
def q_loads(): return [f"buffer_load_dwordx4 {q(Q+16*T+4*b)}, {vL16}, {sD}, {(sQ0,sQ1)[T]} offen offset:{1024*b} sc1" for T in range(2) for b in range(4)]
def body(a, vb, fail, sample, flag_prev, ready, sleep):
    lp=a.lab("a2poll"); tg=f"a2_{vb}"; cs(a,tg,0)
    a(f"""s_lshl_b32 {sMo}, {sSeg}, 14
    s_add_u32 {sMo}, {sMo}, {OFF_MH}
    s_add_u32 {T2}, {sMo}, 16384
    s_cmp_lt_u32 {sSeg}, 64
    s_cselect_b32 {T0}, {sMo}, {OOB}
    s_cmp_eq_u32 {sSeg}, 63
    s_cselect_b32 {T2}, {OOB}, {T2}
    s_bitcmp1_b32 {sW}, 0
    s_cselect_b32 s36, {T2}, {T0}
    s_add_u32 s36, s36, 8192
    s_add_u32 {T0}, {T0}, {sW1k}
    s_add_u32 {T2}, {T2}, {sW1k}
    s_add_u32 {T1}, {T0}, 4096
    s_add_u32 {T3}, {T2}, 4096""")
    ml=[f"buffer_load_dwordx4 {q(MB_+4*i)}, {vL16}, {sWS}, {(T0,T1,T2,T3,'s36')[i]} offen sc1" for i in range(5)]
    for x in ml: a(x)
    sample()
    a(f"v_mov_b32 v{TMP}, {hex(f2u(-1e30))}\ns_waitcnt vmcnt(10)")
    for i,(kt,qt) in enumerate(((0,0),(0,1),(1,1))):
        d=q(SX+4*i)
        for b in range(4): a(mf(d,q(K+16*kt+4*b),q(Q+16*qt+4*b),d if b else 0))
    for i in (0,2):
        for r in range(4): a(f"v_cndmask_b32 v{SX+4*i+r}, v{TMP}, v{SX+4*i+r}, {MASK[r]}")
    a("s_waitcnt vmcnt(6)\ns_barrier"); flag_prev(); cs(a,tg,1)
    a(f"s_waitcnt vmcnt(1)\ns_branch {lp}c\n{lp}:")
    if sleep: a(f"s_sleep {sleep}")
    for x in ml: a(x)
    a(f"""s_add_u32 {sCnt}, {sCnt}, 1
    s_cmp_gt_u32 {sCnt}, {SPIN}
    s_cbranch_scc1 {fail}
    s_waitcnt vmcnt(0)
    {lp}c:
    v_max3_u32 v{TMP}, v{MB_}, v{MB_+4}, v{MB_+8}
    v_max3_u32 v{TMP}, v{TMP}, v{MB_+12}, v{MB_+16}
    v_cmp_eq_u32 vcc, -1, v{TMP}
    s_cbranch_vccnz {lp}""")
    cs(a,tg,2)
    for i in range(4):
        r=MB_+4*i; t=PT+4*(i&1); off=8192*(i&1)+32*(i>>1)
        a(f"""v_perm_b32 v{t}, v{r+1}, v{r}, s34
        v_perm_b32 v{t+1}, v{r+3}, v{r+2}, s34
        v_perm_b32 v{t+2}, v{r+1}, v{r}, s35
        v_perm_b32 v{t+3}, v{r+3}, v{r+2}, s35
        ds_write_b64 {vSab}, v[{t}:{t+1}] offset:{off}
        ds_write_b64 {vSab}, v[{t+2}:{t+3}] offset:{off+512}""")
    a(f"ds_write_b128 {vSc}, {q(MB_+16)} offset:16384")
    a(f"s_add_u32 s50, {sSeg}, 2"); ready("s50"); addrs(a,"s50")
    a("s_waitcnt lgkmcnt(0)\ns_barrier")
    kvl=kv_loads(vb^1); ql=q_loads()
    cs(a,tg,3)
    rd=lambda k: f"ds_read_b128 {q(XB+4*(k%3))}, {vL16} offset:{1024*k}"
    a(rd(0)); a(rd(1))
    for k in range(18):
        a(f"s_waitcnt lgkmcnt({1 if k<17 else 0})"); X=q(XB+4*(k%3))
        for n,(mu,t) in enumerate((("k",0),("k",1),("v",0),("v",1))):
            d=q(ACC+4*n); W=FR.op(fi(mu,t,k))
            a(mf(d,X,W,d if k else 0) if mu=="v" else mf(d,W,X,d if k else 0))
            if n==0 and k<16: a(rd(k+2))
            if n==2 and kvl and k%3!=2: a(kvl.pop(0))
    for i in range(4): a(cv(ACC+i,ACC+2*i,ACC+2*i+1))
    a(f"ds_write_b128 {vKx}, {q(ACC)} offset:{L_KX}")
    for i in range(4): a(cv(ACC+8+i,ACC+8+2*i,ACC+8+2*i+1))
    a(f"ds_write_b128 {vKx}, {q(ACC+8)} offset:{L_VX}")
    for r in (PX+2,PX+3): a(f"v_mov_b32 v{r}, 0")
    a("s_waitcnt lgkmcnt(0)\ns_barrier")
    cs(a,tg,4)
    for b in range(4): a(f"ds_read_b128 {q(KK+4*b)}, {vL16} offset:{L_KX+1024*b}")
    for b in range(2): a(f"ds_read_b128 {q(VD+4*b)}, {vVr} offset:{L_VX+1024*b}")
    for b in range(4):
        a(f"s_waitcnt lgkmcnt({5-b})")
        for qt in range(2):
            d=q(SM+4*qt); a(mf(d,q(KK+4*b),q(Q+16*qt+4*b),d if b else 0))
    a(f"""s_lshr_b32 {T0}, {sW}, 1
    s_add_u32 {T2}, {T0}, {sSeg}
    s_lshl_b32 {T0}, {T2}, 6
    s_add_u32 {T0}, {T0}, {sHd}
    s_lshl_b32 {T0}, {T0}, 1
    s_and_b32 {T1}, {sW}, 1
    s_add_u32 {T0}, {T0}, {T1}
    s_lshl_b32 {sOo}, {T0}, 11
    s_add_u32 {sOo}, {sOo}, {OFF_O}
    s_cmp_lt_u32 {T2}, 64
    s_cselect_b32 {sOo}, {sOo}, {OOB}""")
    assert not kvl
    cs(a,tg,5); a(ql.pop(0))
    for qt in range(2):
        for i in range(2): a(f"v_cndmask_b32 v{SM+4*qt+i}, v{SM+4*qt+i}, v{SM+4*qt+2+i}, {SEL}")
    vals=[[SX+r for r in range(4)]+[SM,SM+1],[SX+4+r for r in range(8)]+[SM+4,SM+5]]
    for qt in range(2):
        v=vals[qt]; mx=TMP+2*qt
        a(f"v_max_f32 v{mx}, v{v[0]}, v{v[1]}")
        for i in range(2,len(v),2): a(f"v_max3_f32 v{mx}, v{mx}, v{v[i]}, v{v[i+1]}")
    for sw in ("v_permlane16_swap_b32","v_permlane32_swap_b32"):
        for qt in range(2): a(f"v_mov_b32 v{TMP+2*qt+1}, v{TMP+2*qt}")
        a(ql.pop(0))
        for qt in range(2): a(f"{sw} v{TMP+2*qt}, v{TMP+2*qt+1}")
        for qt in range(2): a(f"v_max_f32 v{TMP+2*qt}, v{TMP+2*qt}, v{TMP+2*qt+1}")
    m16=lambda d,A,B: f"v_mfma_f32_16x16x16_bf16 {q(d)}, v[{A}:{A+1}], v[{B}:{B+1}], {q(d)}"
    sm=[]
    for qt in range(2):
        v=vals[qt]; mx=TMP+2*qt
        o=[f"v_mul_f32 v{mx}, {sCc}, v{mx}"]+[f"v_fma_f32 v{r}, v{r}, {sCc}, -v{mx}" for r in v]+[f"v_exp_f32 v{r}, v{r}" for r in v]
        o+=[cv(PX+4*qt+i//2,v[i],v[i+1]) for i in range(0,len(v)-2,2)]+[cv(mx,v[-2],v[-1])]
        o+=[f"v_cndmask_b32 v{PM+2*qt}, v{mx}, 0, {SEL}",f"v_cndmask_b32 v{PM+2*qt+1}, 0, v{mx}, {SEL}"]
        sm.append(o)
    def pv(qt):
        return [mf(q(LL+4*qt),q(ONES),q(PX+4*qt),0)]+[mf(q(O+16*qt+4*t),q(V[vb]+4*t),q(PX+4*qt),0) for t in range(4)]+\
               [m16(LL+4*qt,ONES,PM+2*qt)]+[m16(O+16*qt+4*t,VD+2*t,PM+2*qt) for t in range(4)]
    def fin(qt):
        o=O+16*qt; r=[f"v_rcp_f32 v{TMP}, v{LL+4*qt}"]
        for bb in range(2):
            r+=[f"v_mul_f32 v{o+8*bb+i}, v{o+8*bb+i}, v{TMP}" for i in range(8)]+[cv(o+8*bb+i,o+8*bb+2*i,o+8*bb+2*i+1) for i in range(4)]
            r.append(f"buffer_store_dwordx4 {q(o+8*bb)}, {vL16}, {sD}, {(sOo,'s36')[qt]} offen offset:{1024*bb} sc1")
        return r
    def mix(ms,vs,k):
        for n_,x in enumerate(ms):
            a(x)
            if ql and n_%2==0: a(ql.pop(0))
            for _ in range(k):
                if vs: a(vs.pop(0))
        for x in vs: a(x)
    for x in sm[0]: a(x)
    a(f"s_add_u32 s36, {sOo}, {32*4096}\ns_waitcnt lgkmcnt(0)")
    cs(a,tg,6); mix(pv(0),sm[1],3); assert not ql; mix(pv(1),fin(0),3)
    for x in fin(1): a(x)
    cs(a,tg,7)
```

```python
import re, sys

REG_RE = re.compile(r'^(-|abs\(|\|)?([vas])(?:(\d+)|\[(\d+):(\d+)\])(\)|\|)?$')
TRANS = ("v_exp_f32","v_log_f32","v_rcp_f32","v_rsq_f32","v_sqrt_f32","v_sin_f32","v_cos_f32","v_rcp_iflag_f32")

def regs_of(op):
    op = op.strip()
    if op == "vcc": return {("s","vcc")}
    if op in ("vcc_lo","vcc_hi"): return {("s","vcc")}
    if op == "exec" or op in ("exec_lo","exec_hi"): return {("s","exec")}
    if op == "m0": return {("s","m0")}
    m = REG_RE.match(op)
    if not m: return set()
    k = m.group(2)
    if m.group(3) is not None: return {(k,int(m.group(3)))}
    return {(k,i) for i in range(int(m.group(4)), int(m.group(5))+1)}

class Ins:
    __slots__=("text","op","ops","mods","label","defs","uses","kind","srcC","srcAB","passes","data","target","nstates")
    def __init__(self, text):
        self.text = text; self.label=None; self.defs=set(); self.uses=set(); self.kind=None
        self.srcC=set(); self.srcAB=set(); self.passes=0; self.data=set(); self.target=None; self.nstates=1
        t = text.split(";")[0].strip()
        if not t: self.kind="none"; self.op=""; self.nstates=0; return
        if t.endswith(":"):
            self.label=t[:-1]; self.kind="label"; self.op=""; self.nstates=0; return
        if t.startswith("."):
            self.kind="none"; self.op=""; self.nstates=0; return
        p = t.split(None,1); self.op=p[0]
        rest = p[1] if len(p)>1 else ""
        ops=[]; cur=""; d=0
        for ch in rest:
            if ch in "[(": d+=1
            if ch in "])": d-=1
            if ch=="," and d==0: ops.append(cur.strip()); cur=""
            else: cur+=ch
        if cur.strip(): ops.append(cur.strip())
        self.mods=""
        if ops:
            q = ops[-1].split(None,1)
            if len(q)>1 and not ops[-1].startswith("hwreg"): ops[-1]=q[0]; self.mods=q[1]
        self.ops=ops
        self.classify()
    def classify(self):
        op=self.op; o=self.ops; R=regs_of
        allr=lambda l: set().union(*[R(x) for x in l]) if l else set()
        if op.startswith("v_mfma"):
            self.kind="mfma"; self.defs=R(o[0]); self.srcAB=R(o[1])|R(o[2]); self.srcC=R(o[3]); self.uses=self.srcAB|self.srcC
            self.passes = 8 if "32x32" in op else 4
        elif op.startswith("v_smfmac"):
            self.kind="mfma"; self.defs=R(o[0]); self.srcAB=R(o[1])|R(o[2])|R(o[3]); self.srcC=R(o[0]); self.uses=self.srcAB|self.srcC
            self.passes = 8 if "32x32" in op else 4
        elif op.startswith("v_"):
            self.kind="valu"
            if op.startswith("v_nop"): return
            if op.startswith("v_permlane") and "swap" in op or op.startswith("v_swap"):
                self.defs=allr(o); self.uses=allr(o)
            elif "_co_" in op or op.startswith("v_div_scale") or op.startswith("v_mad_u64"):
                self.defs=R(o[0])|R(o[1]); self.uses=allr(o[2:])
            else:
                self.defs=R(o[0]); self.uses=allr(o[1:])
                if op.startswith(("v_fmac","v_dot2c","v_pk_fmac","v_writelane")) or "dpp" in op or "sdwa" in op: self.uses|=R(o[0])
        elif op.startswith("ds_"):
            self.kind="ds"
            if op.startswith(("ds_read","ds_bpermute","ds_permute","ds_swizzle")) or "_rtn" in op:
                self.defs=R(o[0]); self.uses=allr(o[1:])
            else: self.uses=allr(o)
        elif op.startswith(("global_","buffer_","flat_")):
            self.kind="vmem"
            lds = op.startswith("global_load_lds") or re.search(r'\blds\b', self.mods or "") is not None
            if op.startswith(("buffer_wbl2","buffer_inv")): return
            if lds: self.uses=allr(o)|{("s","m0")}; self.kind="vmem"
            elif "load" in op: self.defs=R(o[0]); self.uses=allr(o[1:])
            elif "atomic" in op:
                if re.search(r'\bsc0\b', self.mods or ""):
                    self.defs=R(o[0]); self.uses=allr(o[1:]) if op.startswith("global") else allr(o)
                else: self.uses=allr(o)
            else:
                self.uses=allr(o)
                if op.endswith(("x3","x4")): self.data = R(o[1]) if op.startswith(("global","flat")) else R(o[0])
        elif op.startswith("s_"):
            self.kind="salu"
            if op=="s_nop": self.nstates=int(o[0],0)+1; self.kind="nop"
            elif op.startswith(("s_branch","s_cbranch")): self.kind="branch"; self.target=o[0]
            elif op.startswith(("s_waitcnt","s_barrier","s_endpgm","s_sleep","s_setprio")): self.kind="misc"
            elif op.startswith(("s_load","s_buffer_load","s_memtime","s_memrealtime","s_atomic")): self.kind="smem"; self.defs=R(o[0]); self.uses=allr(o[1:])
            elif op.startswith(("s_cmp","s_bitcmp")): self.uses=allr(o)
            elif op.startswith(("s_setpc",)): self.kind="jump"; self.uses=allr(o)
            elif op.startswith(("s_swappc","s_call")): self.kind="call"; self.defs=R(o[0])
            else:
                self.defs=R(o[0]); self.uses=allr(o[1:])
                if "saveexec" in op: self.defs|={("s","exec")}
        else:
            raise ValueError("unknown instruction: "+self.text)

def vec(s): return {r for r in s if r[0] in "va"}
def sca(s): return {r for r in s if r[0]=="s"}

def need(p, c):
    n=0
    if p.kind=="valu":
        dv=vec(p.defs); ds=sca(p.defs)
        if c.kind=="mfma" and dv & c.uses: n=max(n,2)
        if c.kind=="valu":
            if dv & c.uses:
                if "dpp" in c.op or c.op.startswith("v_permlane"): n=max(n,2)
                if c.op.startswith(("v_readlane","v_readfirstlane")): n=max(n,1)
                if p.op.startswith(TRANS) and not c.op.startswith(TRANS): n=max(n,1)
                if "sdwa" in p.op or "op_sel" in (p.mods or ""): n=max(n,1)
            if ds & c.uses:
                n=max(n, 4 if c.op.startswith(("v_readlane","v_writelane")) else 2)
        if c.kind=="vmem" and ds & c.uses: n=max(n,5)
        if c.kind in("ds","vmem") and p.op.startswith(TRANS) and dv & c.uses: n=max(n,1)
    if p.kind=="mfma":
        big={4:8,8:12}[p.passes]
        if c.kind=="mfma":
            if p.defs & c.srcAB: n=max(n,big)
            if p.defs & c.srcC:
                if not (p.defs==c.srcC and p.op==c.op): n=max(n,{4:6,8:10}[p.passes])
            elif p.defs & c.defs and not (p.defs==c.defs and p.passes==c.passes): n=max(n,{4:6,8:10}[p.passes])
        elif c.kind in("valu","ds","vmem"):
            if p.defs & (c.uses|c.defs): n=max(n,big)
            if c.kind=="valu" and p.srcC & c.defs: n=max(n,{4:3,8:7}[p.passes])
    if p.kind=="vmem" and p.data and p.data & c.defs: n=max(n, 2 if c.kind in("valu","mfma") else 1)
    if p.kind=="salu" and ("s","m0") in p.defs and c.kind in("vmem","ds") and ("s","m0") in c.uses: n=max(n,1)
    return n

class Asm:
    def __init__(self): self.lines=[]; self.uid=0
    def __call__(self, s=""):
        for l in s.split("\n"):
            l=l.strip()
            if l: self.lines.append(l)
    def lab(self, p="L"):
        self.uid+=1; return f"{p}_{self.uid}"
    def finish(self, verbose=False, check=True, align=True):
        ins=[Ins(l) for l in self.lines]
        added=0; i=0
        labels={x.label:k for k,x in enumerate(ins) if x.label}
        srcs={}
        for k,x in enumerate(ins):
            if x.kind=="branch":
                if x.target not in labels: raise ValueError("unknown label "+x.target)
                srcs.setdefault(labels[x.target],[]).append(k)
        pad=[0]*len(ins)
        MAXD=12
        def elapsed(path, extra):
            t=0; mf=0; vf=0
            for n,(j,pd) in enumerate(path):
                x=ins[j]
                if n:
                    t+=pd
                    if n==len(path)-1: t+=extra
                    if x.kind=="mfma": t=max(t,mf,vf)
                    elif x.kind=="valu": t=max(t,vf)
                    if n==len(path)-1: return t-1
                if x.kind=="mfma":
                    mf=t+x.passes; vf=t+(3 if x.op.startswith("v_smfmac") else 2)
                t+=x.nstates
        for k,c in enumerate(ins):
            if c.kind not in("valu","mfma","ds","vmem"): continue
            worst=0
            stack=[(k,0,((k,0),))]
            while stack:
                j,d,path=stack.pop()
                preds=[]
                if j>0 and not (ins[j-1].op in("s_branch","s_endpgm") or ins[j-1].kind=="jump"): preds.append(j-1)
                if ins[j].kind=="label": preds+=srcs.get(j,[])
                for p in preds:
                    x=ins[p]
                    n=need(x,c) if x.nstates else 0
                    np_=((p,pad[p]),)+path
                    if n>d:
                        e=0
                        while elapsed(np_,e)<n: e+=1
                        worst=max(worst,e)
                    nd=d+x.nstates+pad[p]
                    if nd<MAXD and len(np_)<40: stack.append((p,nd,np_))
            pad[k]=worst
        out=[]
        for k,x in enumerate(ins):
            if pad[k]:
                out.append(f"s_nop {pad[k]-1}"); added+=1
                if verbose: print(f"nop {pad[k]} before: {x.text}", file=sys.stderr)
            out.append(x.text)
        if check: check_counters(ins, labels)
        if align: out=align_pass(out)
        return "\n".join(("" if l.endswith(":") else "    ")+l for l in out)+"\n"

WAIT_RE=re.compile(r'(vmcnt|lgkmcnt)\((\d+)\)')
def check_counters(ins, labels, limit=400000):
    errs=set(); seen=set(); stack=[(0,(),())]; steps=0
    starts=[k for k,x in enumerate(ins) if x.label and x.label.endswith("_kernel")]
    stack=[(k,(),()) for k in (starts or [0])]
    NODEF=next(k for k,x in enumerate(ins) if x.kind=="label")
    while stack:
        k,vm,lg=stack.pop()
        while k<len(ins):
            x=ins[k]; steps+=1
            if steps>limit*50: print("counter check: gave up", file=sys.stderr); return
            if x.kind=="label":
                while vm and vm[0]==NODEF: vm=vm[1:]
                while lg and not ins[lg[0]].defs: lg=lg[1:]
                key=(k,vm,lg)
                if key in seen: break
                seen.add(key)
                if len(seen)>limit: print("counter check: too many states", file=sys.stderr); return
            if x.nstates:
                touch=x.uses|x.defs
                isload_v = x.kind=="vmem";
                for q,same in ((vm,x.kind=="vmem"),(lg,x.kind=="ds")):
                    for (j) in q:
                        d=ins[j].defs
                        if not d: continue
                        t = x.uses if (same and ins[j].kind==x.kind) else touch
                        if d & t and "nochk" not in x.text: errs.add((j,k))
                if x.op=="s_waitcnt":
                    for nm,n in WAIT_RE.findall(x.text.split(";")[0]):
                        n=int(n)
                        if nm=="vmcnt": vm=vm[len(vm)-n:] if n and len(vm)>n else (vm if n else ())
                        else:
                            if n==0: lg=()
                            else:
                                dsl=[j for j in lg if ins[j].kind=="ds"][-n:]
                                lg=tuple(j for j in lg if ins[j].kind=="smem" or j in dsl)
                elif x.kind=="vmem": vm=(vm+(k if x.defs else NODEF,))[-64:]
                elif x.kind in("ds","smem"): lg=(lg+(k,))[-40:]
                elif x.kind=="branch":
                    if x.op=="s_branch": k=labels[x.target]; continue
                    stack.append((labels[x.target],vm,lg))
                elif x.op=="s_endpgm" or x.kind=="jump": break
            k+=1
    for j,k in sorted(errs)[:40]:
        print(f"COUNTER HAZARD: [{j}] {ins[j].text}  ->  [{k}] {ins[k].text}", file=sys.stderr)
    if errs: raise SystemExit("counter hazards found")


import subprocess, tempfile, os
def sizes_of(lines):
    uniq={}
    for l in lines:
        t=l.split(";")[0].strip()
        if not t or t.endswith(":") or t.startswith("."): continue
        op=t.split()[0]
        if op.startswith(("s_branch","s_cbranch")): uniq[t]=4; continue
        if "k_last" in t: uniq[t]=8; continue
        uniq.setdefault(t,None)
    todo=[t for t,v in uniq.items() if v is None]
    r=subprocess.run(["llvm-mc","-triple=amdgcn-amd-amdhsa","-mcpu=gfx950","-show-encoding"],input="\n".join(todo)+"\n",capture_output=True,text=True)
    enc=[x for x in r.stdout.split("\n") if "encoding:" in x]
    if len(enc)!=len(todo): raise SystemExit("llvm-mc failed: "+r.stderr[:2000])
    for t,e in zip(todo,enc): uniq[t]=e.split("encoding:")[1].count("0x")
    return [uniq.get(l.split(";")[0].strip(),0) for l in lines]

PROMOTE=("v_mov_b32","v_add_f32","v_sub_f32","v_mul_f32","v_max_f32","v_min_f32","v_exp_f32","v_rcp_f32","v_and_b32","v_or_b32","v_xor_b32","v_add_u32","v_sub_u32","v_subrev_u32",
         "v_lshlrev_b32","v_lshrrev_b32","v_cmp_eq_u32","v_cmp_ne_u32","v_cmp_f_u32","v_fmac_f32","v_max_u32","v_min_u32","v_rsq_f32")
def align_pass(lines):
    sz=sizes_of(lines); out=list(lines); pos=0; cand=None; left=0
    for k,l in enumerate(lines):
        t=l.split(";")[0].strip()
        if t.startswith(".p2align"):
            al=1<<int(t.split()[1].rstrip(",")); pos=(pos+al-1)//al*al; cand=None; continue
        if t.endswith("_kernel:"): pos=0; cand=None
        if not sz[k]: continue
        if pos%32==0: cand=None
        if sz[k]==8 and pos%32==28:
            if cand is not None:
                p=out[cand].split(None,1); out[cand]=p[0]+"_e64 "+p[1]; pos+=4
            else: left+=1
            cand=None
        elif sz[k]==4 and t.split()[0] in PROMOTE: cand=k
        pos+=sz[k]
    return out
```

```python
from wk import *
FR=Frags(128)
sCg,sTask,sOo,sXo="s25","s26","s27","s28"
vL16,vXa,vTr,vWa,vW3,vRed,vTch="v1","v2","v3","v4","v5","v6","v9"
L_RED=131072; vRr="v55"
fi=lambda t,ks: t*32+ks
def load_w(a):
    srd(a,sA,P_WO,4718592)
    tr_addr(a,vTr,"v10","v11",16384,15)
    a(f"""
    v_bfe_u32 v10, v0, 2, 2                ; kk&3
    v_bfe_u32 v11, v0, 4, 1
    v_lshl_add_u32 v10, v11, 4, v10
    v_lshrrev_b32 v11, 5, v0
    v_lshl_add_u32 v10, v11, 2, v10        ; row
    v_mul_u32_u24 v10, 1152, v10
    v_and_b32 v11, 3, v0
    v_lshl_add_u32 {vWa}, v11, 4, v10
    s_mul_i32 {T2}, {sW}, {1024*1152}
    s_lshl_b32 {T1}, {sCg}, 7
    s_add_u32 {T2}, {T2}, {T1}
    """)
    blocks=[]; PK=56; TM=[16,24]
    def wr(r,ks): return [f"ds_write_b128 {vW3}, {q(r+4*i)} offset:{1024*(ks+i)}" for i in range(2)]
    for rb in range(16):
        for ch in range(2):
            t3=TM[rb&1] if rb<8 else PK+8*(rb-8)
            dst=[(t,)+FR.reg(fi(t,2*rb)) for t in range(2)] if ch==0 else [(0,)+FR.reg(fi(2,2*rb)),(1,"v",t3)]
            blocks.append(([(vWa,sA,T2,(64*rb+32*(i>>1)+8*(i&1))*1152+64*ch,16) for i in range(4)],dst,wr(t3,2*rb) if ch and rb<8 else []))
    load_blocks(a,blocks,0,vTr)
    for rb in range(8,16):
        for x in wr(PK+8*(rb-8),2*rb): a(x)
    a("s_waitcnt lgkmcnt(0)")
def consts(a):
    a(f"""
    v_lshlrev_b32 {vL16}, 4, v0
    v_and_b32 v10, 15, v0
    v_lshrrev_b32 v11, 4, v0
    s_lshl_b32 {T0}, {sW}, 2
    v_add_u32 v11, {T0}, v11
    v_mul_u32_u24 v12, 1152, v11
    v_lshl_add_u32 {vXa}, v10, 3, v12
    v_lshlrev_b32 v11, 4, v11
    v_mul_u32_u24 v12, 272, v10
    v_add_u32 v11, v12, v11
    v_add_u32 {vRr}, {L_RED}, v11
    s_mul_i32 {T0}, {sW}, 4352
    s_add_u32 {T0}, {T0}, {L_RED}
    v_and_b32 v12, 48, v0
    v_add3_u32 {vRed}, v12, {vL16}, {T0}
    s_lshl_b32 {T0}, {sW}, 15
    v_add_u32 {vW3}, {T0}, {vL16}
    v_mul_u32_u24 v10, 9, v0
    v_add_u32 v10, {sCg}, v10
    v_lshlrev_b32 v11, 7, v10
    v_mov_b32 {vTch}, 0x40000000
    v_cmp_gt_u32 vcc, 0x100, v10
    v_cndmask_b32 {vTch}, {vTch}, v11, vcc
    """)
ACC=16; RING=56; NR=18; XR=12; RD=32; W3=32
def resid(a, y, x, t):
    for i in range(2):
        a(f"""v_lshlrev_b32 v{t}, 16, v{x+i}
        v_and_b32 v{t+1}, 0xffff0000, v{x+i}
        v_add_f32 v{t}, v{t}, v{y+2*i}
        v_add_f32 v{t+1}, v{t+1}, v{y+2*i+1}
        v_cvt_pk_bf16_f32 v{y+i}, v{t}, v{t+1}""")
def ld(a, ks):
    if ks%4==0: a(f"s_add_u32 s29, {sOo}, {1024*ks}")
    a(f"buffer_load_dwordx4 {q(RING+4*(ks%NR))}, {vL16}, {sD}, s29 offen offset:{1024*(ks%4)} sc1")
import os
N0=int(os.environ.get('N0',7)); NI=N0+2
def issue(a, touch=True):
    a(f"""s_lshl_b32 {sOo}, {sTask}, 17
    s_lshl_b32 {T0}, {sW}, 15
    s_add_u32 {sOo}, {sOo}, {T0}
    s_add_u32 {sOo}, {sOo}, {OFF_O}
    buffer_load_dword v14, {vTch}, {sD}, {sOo} offen sc1
    s_mul_i32 {sXo}, {sTask}, {16*1152}
    s_lshl_b32 {T0}, {sCg}, 7
    s_add_u32 {sXo}, {sXo}, {T0}
    buffer_load_dwordx2 v[{XR}:{XR+1}], {vXa}, {sX}, {sXo} offen sc1""")
    if touch: a("s_nop 15")
    for ks in range(N0): ld(a,ks)
def task(a, lo, extra=0, sample=None):
    cs(a,"awo",1)
    rw=lambda ks: f"ds_read_b128 {q(W3+4*(ks%3))}, {vW3} offset:{1024*ks}"
    a(rw(0)); a(rw(1))
    seq=list(range(N0))+["x"]*extra; nxt=N0
    for ks in range(32):
        if ks==1: cs(a,"awo",2)
        a(f"s_waitcnt vmcnt({len(seq)-1-seq.index(ks)}) lgkmcnt({1 if ks<31 else 0})")
        X=q(RING+4*(ks%NR))
        for t in range(4):
            d=q(ACC+4*t); a(mf(d,FR.op(fi(t,ks)) if t<3 else q(W3+4*(ks%3)),X,d if ks else 0))
            if t==0 and ks+2<32: a(rw(ks+2))
            if (t==1 or (t==2 and ks%3==0)) and nxt<min(32,ks+NR): ld(a,nxt); seq.append(nxt); nxt+=1
            elif t==1 and nxt==32 and sample: sample(); seq.append("s"); sample=None
    cs(a,"awo",3)
    for t in range(4): a(f"ds_write_b128 {vRed}, {q(ACC+4*t)} offset:{1088*t}")
    a(f"s_add_u32 {T1}, {sXo}, {lo+OFF_X1}\ns_waitcnt lgkmcnt(0) vmcnt(0)\ns_barrier")
    cs(a,"awo",4)
    for w in range(4): a(f"ds_read_b128 {q(RD+4*w)}, {vRr} offset:{4352*w}")
    a("s_waitcnt lgkmcnt(0)")
    for i in (0,2): a(f"v_pk_add_f32 v[{RD+i}:{RD+i+1}], v[{RD+i}:{RD+i+1}], v[{RD+4+i}:{RD+5+i}]\nv_pk_add_f32 v[{RD+8+i}:{RD+9+i}], v[{RD+8+i}:{RD+9+i}], v[{RD+12+i}:{RD+13+i}]")
    for i in (0,2): a(f"v_pk_add_f32 v[{48+i}:{49+i}], v[{RD+i}:{RD+i+1}], v[{RD+8+i}:{RD+9+i}]")
    resid(a,48,XR,52)
    a(f"buffer_store_dwordx2 v[48:49], {vXa}, {sWS}, {T1} offen sc1")
    cs(a,"awo",5)
```

```python
from wk import *
import batt
from batt import sHd,sJ,sKm,sKr,sV,sQm,sQr,sIt,sQb,sLlo,vL16,vQm,vQr,vKm,vKr,vV,vOr,S,P,KV,m32,quarter,qk
sNk,sAv,sOwn,sN,sE,sDn,sD0="s42","s43","s44","s45","s46","s51","s35"
sF=["s47","s48","s49","s50"]; M1="s[52:53]"
vS1,vS2,vSr,cK,cR,cV,aK,aR,aV,vMg="v9","v12","v13","v1","v14","v15","v16","v17","v18","v19"
BLK=2368; L_MG=64*BLK; L_AV=L_MG+9216
QB=32; QT=QB+24; OB=112; OT=OB+64; R3=64
J=4
def consts(a):
    batt.consts(a,0)
    a(f"""
    v_lshrrev_b32 v11, 5, v0
    v_and_b32 v10, 31, v0
    v_and_b32 {vSr}, 0xff, {vKr}
    v_lshl_add_u32 {vQr}, v11, 30, {vQr}
    v_lshlrev_b32 {cR}, 2, v10
    v_min_u32 v10, 18, v10
    v_mul_u32_u24 v11, 304, v11
    v_lshl_add_u32 {cV}, v10, 4, v11
    v_mul_u32_u24 v10, 3450, v0
    v_lshrrev_b32 v10, 16, v10                ; g = lane/19
    v_mul_u32_u24 v11, 19, v10
    v_sub_u32 v11, v0, v11                    ; d
    v_cmp_ne_u32 {M1}, 18, v11
    v_lshlrev_b32 v10, 4, v10
    v_lshl_add_u32 {vS1}, v11, 6, v10
    v_lshlrev_b32 v10, 6, v0
    v_add_u32 {vS2}, {7*64+48}, v10
    s_lshr_b32 {T0}, {sHd}, 2
    s_lshl_b32 {T0}, {T0}, 8
    s_add_u32 {sF[0]}, {T0}, {F_BQ}
    s_mov_b32 {sF[1]}, {F_BQ+8*256}
    s_mul_i32 {T0}, {sHd}, 18
    s_add_u32 {T1}, {T0}, 17
    s_lshr_b32 {T0}, {T0}, 6
    s_lshr_b32 {T1}, {T1}, 6
    s_lshl_b32 {T0}, {T0}, 8
    s_lshl_b32 {T1}, {T1}, 8
    s_add_u32 {sF[2]}, {T0}, {F_BQ}
    s_add_u32 {sF[3]}, {T1}, {F_BQ}
    s_mov_b32 {sNk}, 0
    s_mov_b32 {sN}, 0
    s_mov_b32 {sE}, 0
    s_mov_b32 {sDn}, 0
    s_mov_b32 {sOwn}, {sJ}
    v_mul_u32_u24 v10, {BLK}, v0
    s_mul_i32 {T0}, {sW}, 304
    v_add_u32 v10, {T0}, v10
    s_barrier
    ds_write_b128 v10, {q(KV[0]+8)} offset:{1152+18*16}
    """)
def span(a, name, slots, stride, back):
    n=len(slots); st=stride*BLK
    Kb=lambda b: KV[b]; O=lambda i: q(slots[i][0],16)
    rK=lambda b,o: [f"ds_read_b128 {q(Kb(b))}, {aK} offset:{o}", f"ds_read_b32 v{Kb(b)+6}, {aR} offset:{o+1024}"]
    rV=lambda b,o: [f"ds_read_b128 {q(Kb(b)+8+4*j)}, {aV} offset:{o+1152+608*j}" for j in range(2)]
    a(f"{name}:")
    for x in rK(0,0)+rK(1,st)+rV(0,0): a(x)
    for i in range(4,8): a(f"v_mov_b32 v{P+i}, 0\nv_mov_b32 v{Kb(1)+8+i}, 0")
    a("s_waitcnt lgkmcnt(4)")
    for x in qk(S[0],Kb(0),slots[0][1]): a(x)
    a(f"s_waitcnt lgkmcnt(0)\ns_nop 10\n{name}_l:")
    t=0
    for b in range(2):
        for i in range(n):
            s=S[t&1]; ns=S[(t+1)&1]; t+=1; last=i==n-1
            nq=qk(ns,Kb(b^1) if last else Kb(b),slots[(i+1)%n][1])
            pv1=m32(O((i-1)%n),q(Kb(b^1 if i==0 else b)+12),q(P+4),O((i-1)%n)); pv0=m32(O(i),q(Kb(b)+8),q(P),O(i))
            rd=rK(b,(2+b)*st)+rV(b^1,(1+b)*st) if last else []
            for k,mm in enumerate((nq[0],nq[1],pv1,pv0)):
                a(mm)
                if k==2:
                    for x in rd: a(x)
                if k==0 and i==0: a("s_waitcnt lgkmcnt(0)")
                if last and k==1: a(f"s_sub_u32 {sIt}, {sIt}, 1")
                qq=quarter(s,k)
                if last and k==3:
                    if b==1: qq+=[f"v_add_u32 {r}, {2*st}, {r}" for r in (aK,aR,aV)]
                    if n==1: qq.append("s_waitcnt lgkmcnt(2)")
                for x in qq: a(x)
            if last:
                a(f"s_cbranch_scc1 {name}_x0" if b==0 else f"s_cbranch_scc0 {name}_l")
    for b in (1,0):
        if b==0: a(f"{name}_x0:")
        a("s_waitcnt lgkmcnt(0)"); a(m32(O(n-1),q(Kb(b)+12),q(P+4),O(n-1))); a(f"s_branch {back}")
def point(a, kb):
    a(f"s_mul_i32 {T0}, {kb}, {BLK}")
    for r,c in ((aK,cK),(aR,cR),(aV,cV)): a(f"v_add_u32 {r}, {T0}, {c}")
def run(a, fail, lrange, stored, sleep):
    slot=lambda i: (OB+16*i,QB+6*i)
    a("bp_loop:"); cs(a,"bp",0)
    a(f"""
    s_cmp_lg_u32 {sW}, 0
    s_cbranch_scc1 bp_got
    v_lshlrev_b32 v10, 2, v0
    s_branch bp_pf
    bp_poll:
    s_sleep {sleep}
    bp_pf:""")
    for i in range(4): a(f"buffer_load_dword v{20+i}, v10, {sWS}, {sF[i]} offen sc1")
    a(f"""s_add_u32 {sCnt}, {sCnt}, 1
    s_cmp_gt_u32 {sCnt}, {SPIN}
    s_cbranch_scc1 {fail}
    s_waitcnt vmcnt(0)
    v_min_u32 v20, v20, v21
    v_min3_u32 v20, v20, v22, v23
    v_cmp_ne_u32 vcc, 0, v20
    s_nop 0
    s_ff0_i32_b64 {sAv}, vcc
    s_min_u32 {sAv}, {sAv}, 64
    s_cmp_le_u32 {sAv}, {sNk}
    s_cbranch_scc1 bp_poll
    v_mov_b32 v10, {L_AV}
    v_mov_b32 v11, {sAv}
    ds_write_b32 v10, v11
    bp_got:
    s_waitcnt lgkmcnt(0)
    s_barrier
    v_mov_b32 v10, {L_AV}
    ds_read_b32 v11, v10
    s_add_u32 {sQb}, {sNk}, {sW}
    s_waitcnt lgkmcnt(0)
    v_readfirstlane_b32 {sAv}, v11
    s_min_u32 {sAv}, {sAv}, 64
    """); cs(a,"bp",1); a(f"""bp_stage:
    s_cmp_ge_u32 {sQb}, {sAv}
    s_cbranch_scc1 bp_staged""")
    batt.kv_ptr(a,0,sQb)
    a(f"""s_mul_i32 {T2}, {sQb}, {BLK}
    s_mov_b32 m0, {T2}
    s_add_u32 {sQb}, {sQb}, 4
    buffer_load_dwordx4 {vKm}, {sWS}, {sKm} offen sc1 lds
    s_add_u32 m0, {T2}, 1152
    s_mov_b64 exec, {M1}
    buffer_load_dwordx4 {vS1}, {sWS}, {sV} offen sc1 lds
    s_add_u32 m0, {T2}, {1152+1024}
    s_mov_b64 exec, 0x7ff
    buffer_load_dwordx4 {vS2}, {sWS}, {sV} offen sc1 lds
    s_add_u32 m0, {T2}, 1024
    s_mov_b64 exec, 0xffffffff
    buffer_load_dword {vSr}, {sWS}, {sKr} offen sc1 lds
    s_mov_b64 exec, -1
    s_waitcnt vmcnt(40)
    s_branch bp_stage
    bp_staged:
    s_cmp_ge_u32 {sOwn}, {sAv}
    s_cbranch_scc1 bp_noq""")
    batt.q_load(a,QT,sOwn)
    a("bp_noq:")
    point(a,sNk)
    a(f"""s_sub_u32 {sIt}, {sAv}, {sNk}
    s_sub_u32 {sIt}, {sIt}, 1
    s_mov_b32 {sNk}, {sAv}
    s_waitcnt vmcnt(0)
    s_barrier""")
    cs(a,"bp",2)
    for n in range(1,5): a(f"s_cmp_eq_u32 {sN}, {n}\ns_cbranch_scc1 bp_t1_{n}")
    a("bp_t1d:"); cs(a,"bp",3)
    a(f"""s_cmp_lt_u32 {sNk}, 64
    s_cbranch_scc0 bp_fin
    bp_t2:
    s_cmp_ge_u32 {sOwn}, {sNk}
    s_cbranch_scc1 bp_next""")
    for i in range(12): a(f"v_mov_b32 v{OT+i}, 0")
    point(a,sW)
    a(f"""s_sub_u32 {T1}, {sW}, {sE}
    s_sub_u32 {T1}, {T1}, 1
    s_and_b32 {T3}, {T1}, 3
    s_mul_i32 {T1}, {T3}, 3072
    s_add_u32 {T1}, {T1}, {L_MG}
    v_add_u32 {vMg}, {T1}, {vL16}
    s_sub_u32 {sIt}, {sNk}, {sW}
    s_sub_u32 {sIt}, {sIt}, 1
    s_ashr_i32 {sIt}, {sIt}, 2
    s_cmp_ge_i32 {sIt}, 0
    s_cbranch_scc1 bp_cu
    bp_merge:"""); cs(a,"bp",5); a(f"""
    s_cmp_eq_u32 {T3}, 3
    s_barrier
    s_cbranch_scc1 bp_own""")
    for t in range(3): a(f"ds_write_b128 {vMg}, {q(OT+4*t)} offset:{1024*t}")
    a(f"s_waitcnt lgkmcnt(0)\ns_barrier\ns_branch bp_merged\nbp_own:")
    a(f"v_add_u32 v10, {L_MG}, {vL16}\ns_barrier")
    RR=[S[0],S[0]+12,R3]
    for k in range(9): a(f"ds_read_b128 {q(RR[k//3]+4*(k%3))}, v10 offset:{1024*k}")
    a("s_waitcnt lgkmcnt(6)")
    for i in range(11): a(f"v_add_f32 v{OT+i}, v{OT+i}, v{RR[0]+i}")
    a("s_waitcnt lgkmcnt(0)")
    for i in range(11): a(f"v_add_f32 v{RR[1]+i}, v{RR[1]+i}, v{RR[2]+i}")
    for n in range(1,4): a(f"s_cmp_eq_u32 {sN}, {n}\ns_cbranch_scc1 bp_keep{n}")
    for n in range(4):
        a(f"bp_keep{n}:")
        for i in range(11): a(f"v_add_f32 v{OB+16*n+i}, v{OT+i}, v{RR[1]+i}")
        for i in range(6): a(f"v_mov_b32 v{QB+6*n+i}, v{QT+i}")
        if n<3: a("s_branch bp_kept")
    a(f"""bp_kept:
    s_add_u32 {sN}, {sN}, 1
    bp_merged:
    s_add_u32 {sE}, {sE}, 1
    s_add_u32 {sOwn}, {sOwn}, {J}
    s_cmp_ge_u32 {sOwn}, {sNk}
    s_cbranch_scc1 bp_next""")
    batt.q_load(a,QT,sOwn)
    a(f"s_waitcnt vmcnt(0)\ns_branch bp_t2\nbp_next:\ns_cmp_lt_u32 {sNk}, 64\ns_cbranch_scc1 bp_loop"); cs(a,"bp",6); a("s_branch bp_fin")
    for n in range(1,5): span(a,f"bp_t1_{n}",[slot(i) for i in range(n)],1,"bp_t1d")
    span(a,"bp_cu",[(OT,QT)],4,"bp_merge")
    a(f"bp_fin:\ns_mov_b32 {sD0}, {sDn}")
    for n in range(1,5): a(f"s_cmp_eq_u32 {sDn}, {n}\ns_cbranch_scc1 bp_f{n}")
    for n in range(4):
        r=OB+16*n
        a(f"""bp_f{n}:
        s_cmp_le_u32 {sN}, {n}
        s_cbranch_scc1 bp_f4
        v_subrev_u32 v{r+11}, {sLlo}, v{r+10}
        v_cmp_lt_u32 vcc, {hex(lrange)}, v{r+11}
        s_lshl_b32 {sQb}, {sW}, 2
        s_add_u32 {sQb}, {sQb}, {sJ}
        s_add_u32 {sQb}, {sQb}, {16*n}
        s_cbranch_vccnz bp_slow
        bp_norm{n}:
        v_rcp_f32 v{r+10}, v{r+10}
        s_lshl_b32 {T0}, {sQb}, 10
        s_add_u32 {T0}, {T0}, {sQm}
        s_add_u32 {T0}, {T0}, {OFF_BO-OFF_BQ}""")
        for i in range(0,10,2): a(f"v_pk_mul_f32 v[{r+i}:{r+i+1}], v[{r+i}:{r+i+1}], v[{r+10}:{r+11}] op_sel_hi:[1,0]")
        a(f"""s_lshl_b32 {T1}, {sHd}, 6
        s_add_u32 {T1}, {T1}, {sQb}
        s_lshl_b32 {T1}, {T1}, 7
        s_add_u32 {T1}, {T1}, {OFF_BOR}""")
        for i in range(5): a(cv(r+i,r+2*i,r+2*i+1))
        a(f"""buffer_store_dwordx4 {q(r)}, {vQm}, {sWS}, {T0} offen sc1
        s_mov_b64 exec, 0xffffffff
        buffer_store_dword v{r+4}, {vOr}, {sWS}, {T1} offen sc1
        s_mov_b64 exec, -1
        s_mov_b32 {sDn}, {n+1}""")
    a("bp_f4:")
    stored(sD0,sDn)
    a(f"s_cmp_lt_u32 {sOwn}, 64"); cs(a,"bp",7)
    if PROF["on"]=="bp": a("s_cbranch_scc0 bp_done"); cs(a,"bp",4)
    a("s_cbranch_scc1 bp_t2\ns_branch bp_done")
    s=S[0]; CM=S[1]; b=KV[0]; RR=OT; mx=R3; QS=R3+2
    rd=[f"ds_read_b128 {q(b)}, {aK}",f"ds_read_b32 v{b+6}, {aR} offset:1024",f"ds_read_b128 {q(b+8)}, {aV} offset:1152",f"ds_read_b128 {q(b+12)}, {aV} offset:{1152+608}"]+[f"v_add_u32 {r}, {BLK}, {r}" for r in (aK,aR,aV)]+["s_waitcnt lgkmcnt(0)"]
    a("bp_slow:"); batt.q_load(a,QS,sQb); point(a,0)
    a(f"v_mov_b32 v{mx}, 0xff800000\ns_mov_b32 {T2}, 0\ns_waitcnt vmcnt(0)\nbp_p1:")
    for x in rd+qk(s,b,QS): a(x)
    for i in range(0,16,2): a(f"v_max3_f32 v{mx}, v{mx}, v{s+i}, v{s+i+1}")
    a(f"""s_add_u32 {T2}, {T2}, 1
    s_cmp_lt_u32 {T2}, 64
    s_cbranch_scc1 bp_p1
    v_mov_b32 v{mx+1}, v{mx}
    v_permlane32_swap_b32 v{mx}, v{mx+1}
    v_max_f32 v{mx}, v{mx}, v{mx+1}""")
    for i in range(16): a(f"v_sub_f32 v{CM+i}, 0, v{mx}\nv_mov_b32 v{RR+i}, 0")
    point(a,0); a(f"s_mov_b32 {T2}, 0\nbp_p2:")
    for x in rd+qk(s,b,QS,q(CM,16)): a(x)
    for k in range(4):
        for x in quarter(s,k): a(x)
    a(m32(q(RR,16),q(b+8),q(P),q(RR,16))); a(m32(q(RR,16),q(b+12),q(P+4),q(RR,16)))
    a(f"s_add_u32 {T2}, {T2}, 1\ns_cmp_lt_u32 {T2}, 64\ns_cbranch_scc1 bp_p2")
    for n in range(4):
        if n<3: a(f"s_cmp_lg_u32 {sDn}, {n}\ns_cbranch_scc1 bp_sl{n+1}")
        for i in range(11): a(f"v_mov_b32 v{OB+16*n+i}, v{RR+i}")
        a(f"s_branch bp_norm{n}")
        if n<3: a(f"bp_sl{n+1}:")
    a("bp_done:")
```

```python
from wk import *
import a1
from a1 import vSrc,vRaw,vDst,vRd,vL16,vTr,RAW,WST,sSeg,sSrc
FR=Frags(80,54)
sU,sQb,sStr="s25","s28","s29"
vQst,vWa,vWb,vVst="v6","v8","v16","v9"
fi=lambda m,k: m*18+k
def load_w(a, weights=True):
    srd(a,sA,P_BQKV,576*3456)
    tr_addr(a,vTr,"v12","v13",WST)
    lr,le=a.lab("bq_rem"),a.lab("bq_e")
    a(f"""
    s_lshl_b32 {sU}, {sU}, 2
    s_add_u32 {sU}, {sU}, {sW}
    v_lshrrev_b32 v12, 4, v0
    v_mul_u32_u24 v12, 3456, v12
    v_bfe_u32 v13, v0, 3, 1
    v_mul_u32_u24 v13, 1152, v13
    v_add_u32 v12, v12, v13
    v_and_b32 v13, 7, v0
    v_and_b32 v14, 15, v0
    v_lshrrev_b32 v15, 4, v0
    v_lshlrev_b32 v11, 4, v15
    v_lshl_add_u32 {vVst}, v14, 6, v11
    s_cmp_ge_u32 {sU}, 32
    s_cbranch_scc1 {lr}
    v_lshl_add_u32 {vWa}, v13, 2, v12
    s_mul_i32 {T2}, {sU}, 36
    v_lshlrev_b32 v15, 3, v15
    v_lshl_add_u32 {vQst}, v14, 5, v15
    s_lshl_b32 {sQb}, {sU}, 16
    s_add_u32 {sQb}, {sQb}, {OFF_BQ}
    s_mov_b32 {sStr}, 512
    s_branch {le}
    {lr}:
    v_mul_u32_u24 v13, 36, v13
    v_add_u32 {vWa}, v13, v12
    s_sub_u32 {T1}, {sU}, 32
    s_mul_i32 {T2}, {T1}, 288
    s_add_u32 {T2}, {T2}, 32
    v_lshlrev_b32 v15, 14, v15
    v_lshl_add_u32 {vQst}, v14, 3, v15
    s_lshl_b32 {sQb}, {T1}, 16
    s_add_u32 {sQb}, {sQb}, {OFF_BQR}
    s_mov_b32 {sStr}, 128
    {le}:
    v_lshrrev_b32 v12, 2, v0
    v_bfe_u32 v13, v0, 1, 1
    v_lshl_add_u32 v12, v13, 6, v12
    v_mul_u32_u24 v12, 3456, v12
    v_and_b32 v13, 1, v0
    v_lshl_add_u32 {vWb}, v13, 4, v12
    s_lshl_b32 {T1}, {sU}, 5
    """)
    if not weights: return
    blocks=[]
    for b in range(9):
        blocks.append(([(vWa,sA,T2,(64*b+4*i)*3456,4) for i in range(16)],[(t,)+FR.reg(fi(t,2*b)) for t in range(2)]))
    for b in range(0,9,2):
        blocks.append(([(vWb,sA,T1,(64*b+16*i)*3456+2304,16) for i in range(4)],[(hf,)+FR.reg(fi(2,2*(b+hf))) for hf in range(2) if b+hf<9]))
    load_blocks(a,blocks,WST,vTr)
ACC=16; XB=64
assert OFF_BK-OFF_BQ==2*MB and OFF_BKR-OFF_BQR==MB
def segment(a, lo, nxt):
    a("s_waitcnt vmcnt(0)"); cs(a,"bq",2)
    ln_stage(a,vRaw,vDst,ACC,pre_write=lambda: a("s_barrier"))
    a("s_waitcnt lgkmcnt(0)\ns_barrier")
    nxt(); cs(a,"bq",3)
    acc=lambda m,T: ACC+(2*m+T)*4
    rd=lambda k: [f"ds_read_b128 {q(XB+(k&1)*8+4*T)}, {vRd} offset:{xfrag(k,T)}" for T in range(2)]
    for x in rd(0): a(x)
    for k in range(18):
        pend=rd(k+1) if k<17 else []
        a("s_waitcnt lgkmcnt(0)")
        for m in range(3):
            for T in range(2):
                d=q(acc(m,T)); W=FR.op(fi(m,k)); X=q(XB+(k&1)*8+4*T)
                a(mf(d,X,W,d if k else 0) if m==2 else mf(d,W,X,d if k else 0))
                if pend: a(pend.pop(0))
    cs(a,"bq",4)
    a(f"""s_mul_i32 {T0}, {sSeg}, {sStr}
    s_lshl_b32 {T0}, {T0}, 1
    s_add_u32 {T0}, {T0}, {sQb}
    s_add_u32 {T0}, {T0}, {lo}
    s_cmp_ge_u32 {sU}, 32
    s_cselect_b32 {T2}, 1, 2
    s_lshl_b32 {T2}, {T2}, 20""")
    for i in range(8): a(f"v_mul_f32 v{ACC+i}, {hex(f2u(18**-0.5*math.log2(math.e)))}, v{ACC+i}")
    for m in range(2):
        for T in range(2):
            d=acc(m,T); a(cv(d,d,d+1)); a(cv(d+1,d+2,d+3))
            if T: a(f"s_add_u32 {T1}, {T0}, {sStr}")
            a(f"buffer_store_dwordx2 v[{d}:{d+1}], {vQst}, {sWS}, {T1 if T else T0} offen sc1")
        if m==0: a(f"s_add_u32 {T0}, {T0}, {T2}")
    d=acc(2,0)
    for i in range(4): a(cv(d+i,d+2*i,d+2*i+1))
    a(f"""s_mul_i32 {T0}, {sSeg}, 36
    s_add_u32 {T0}, {T0}, {sU}
    s_lshl_b32 {T0}, {T0}, 10
    s_add_u32 {T0}, {T0}, {lo+OFF_BV}
    buffer_store_dwordx4 {q(d)}, {vVst}, {sWS}, {T0} offen sc1""")
```

```python
from wk import *
from awo import resid
FR=Frags(128)
sCg,sSeg,sXo="s25","s26","s28"
vL16,vXa,vTr,vWa,vWb,vWc,vOm,vOr="v1","v2","v3","v4","v5","v6","v7","v8"
WST=81920; L_TR=40960; vTw,vTd,vTs="v3","v4","v5"
fi=lambda t,k: t*18+k
def load_w(a):
    srd(a,sA,P_BWO,576*1152)
    tr_addr(a,vTr,"v10","v11",WST)
    a(f"""
    v_bfe_u32 v10, v0, 2, 2
    v_bfe_u32 v11, v0, 4, 1
    v_lshl_add_u32 v10, v11, 3, v10
    v_lshrrev_b32 v11, 5, v0
    v_lshl_add_u32 v10, v11, 2, v10
    v_mul_u32_u24 v10, 1152, v10
    v_and_b32 v11, 3, v0
    v_lshlrev_b32 v11, 4, v11
    v_add_u32 {vWa}, v11, v10
    v_bfe_u32 v12, v0, 1, 1
    v_mul_u32_u24 v12, {72*1152}, v12
    v_and_b32 v13, 1, v0
    v_lshl_add_u32 v12, v13, 4, v12
    v_add_u32 {vWb}, v10, v12
    v_lshrrev_b32 v12, 3, v0
    v_mul_u32_u24 v12, 18, v12
    v_bfe_u32 v13, v0, 2, 1
    v_add_u32 v12, v12, v13
    v_mul_u32_u24 v12, 1152, v12
    v_add_u32 {vWc}, v11, v12
    s_lshl_b32 {T2}, {sCg}, 2
    s_add_u32 {T2}, {T2}, {sW}
    s_mul_i32 {T2}, {T2}, 96
    """)
    blocks=[]
    for b in range(8): blocks.append(([(vWa,sA,T2,(72*b+18*i)*1152,16) for i in range(4)],[(t,)+FR.reg(fi(t,2*b)) for t in range(2)]))
    for b in range(0,8,2): blocks.append(([(vWb,sA,T2,(72*b+18*i)*1152+64,16) for i in range(4)],[(hf,)+FR.reg(fi(2,2*(b+hf))) for hf in range(2)]))
    blocks.append(([(vWc,sA,T2,(144*i+16)*1152,16) for i in range(4)],[(t,)+FR.reg(fi(t,16)) for t in range(2)]))
    blocks.append(([(vWc,sA,T2,(144*i+16)*1152+64,16) for i in range(4)],[(0,)+FR.reg(fi(2,16))]))
    load_blocks(a,blocks,WST,vTr)
def consts(a):
    a(f"""
    v_lshlrev_b32 {vL16}, 4, v0
    v_and_b32 v10, 15, v0
    v_lshrrev_b32 v11, 4, v0
    v_mul_u32_u24 v12, 1152, v10
    v_lshl_add_u32 {vXa}, v11, 3, v12
    v_lshlrev_b32 v12, 2, v10
    v_lshl_add_u32 {vOr}, v11, 15, v12
    v_lshlrev_b32 v12, 5, v10
    v_and_b32 v13, 1, v11
    v_lshl_add_u32 v12, v13, 4, v12
    v_lshrrev_b32 v13, 1, v11
    v_lshl_add_u32 {vOm}, v13, 16, v12
    v_mul_u32_u24 v12, 400, v10
    v_lshl_add_u32 v12, v11, 3, v12
    s_mul_i32 {T0}, {sW}, 96
    v_add_u32 {vTw}, {T0}, v12
    v_lshrrev_b32 v10, 3, v0
    v_and_b32 v11, 7, v0
    v_lshlrev_b32 v11, 4, v11
    v_mul_u32_u24 v12, 1152, v10
    v_add_u32 {vTs}, v11, v12
    v_mul_u32_u24 v12, 400, v10
    s_mul_i32 {T0}, {sW}, 3200
    v_add3_u32 {vTd}, v11, v12, {T0}
    """)
ACC=12; XB=36; RM=52; XR=68
def resid_loads(a):
    a(f"""s_mul_i32 {sXo}, {sSeg}, {32*1152}
    s_lshl_b32 {T0}, {sCg}, 2
    s_add_u32 {T0}, {T0}, {sW}
    s_mul_i32 {T0}, {T0}, 96
    s_add_u32 {sXo}, {sXo}, {T0}
    s_add_u32 {T1}, {sXo}, {16*1152}""")
    for T in range(2):
        for t in range(3): a(f"buffer_load_dwordx2 v[{XR+6*T+2*t}:{XR+6*T+2*t+1}], {vXa}, {sX}, {(sXo,T1)[T]} offen offset:{32*t} sc1")
def task(a, lo, dst, dst_off, fl):
    a(f"""s_lshl_b32 {T1}, {sSeg}, 10
    s_lshl_b32 {T0}, {sW}, 19
    s_add_u32 {T1}, {T1}, {T0}
    s_lshl_b32 {T2}, {sW}, 13""")
    for i in range(8):
        a(f"s_add_u32 {T0}, {T1}, {lo+OFF_BO+(i>>1)*131072+(i&1)*512}\ns_add_u32 m0, {T2}, {1024*i}\nbuffer_load_dwordx4 {vOm}, {sWS}, {T0} offen sc1 lds")
    a(f"""s_lshl_b32 {T1}, {sSeg}, 7
    s_lshr_b32 {T0}, {sW}, 1
    s_lshl_b32 {T0}, {T0}, 17
    s_add_u32 {T1}, {T1}, {T0}
    s_and_b32 {T0}, {sW}, 1
    s_lshl_b32 {T0}, {T0}, 6
    s_add_u32 {T1}, {T1}, {T0}
    s_lshl_b32 {T2}, {sW}, 10""")
    for i in range(4): a(f"s_add_u32 {T0}, {T1}, {lo+OFF_BOR+i*8192}\ns_add_u32 m0, {T2}, {32768+256*i}\nbuffer_load_dword {vOr}, {sWS}, {T0} offen sc1 lds")
    a(f"v_lshrrev_b32 v10, 2, {vL16}")
    cs(a,"bw",2); a("s_waitcnt vmcnt(0)\ns_barrier"); cs(a,"bw",3)
    rem=[f"ds_read2st64_b32 v[{RM+4*f+2*i}:{RM+4*f+2*i+1}], v10 offset0:{128+4*f+2*i} offset1:{129+4*f+2*i}" for f in range(4) for i in range(2)]
    rd=lambda k: [f"ds_read_b128 {q(XB+(k&1)*8+4*T)}, {vL16} offset:{(2*k+T)*1024}" for T in range(2)]
    for x in rd(0): a(x)
    for k in range(18):
        pend=rd(k+1) if k<15 else []
        if k<16: a("s_waitcnt lgkmcnt(0)")
        if rem: pend.append(rem.pop(0))
        for t in range(3):
            for T in range(2):
                d=q(ACC+(2*t+T)*4); X=q(XB+(k&1)*8+4*T) if k<16 else q(RM+8*(k-16)+4*T)
                a(mf(d,FR.op(fi(t,k)),X,d if k else 0))
                if pend: a(pend.pop(0))
    cs(a,"bw",4)
    for t in range(3):
        for T in range(2):
            d=ACC+(2*t+T)*4; resid(a,d,XR+6*T+2*t,XB)
            a(f"ds_write_b64 {vTw}, v[{d}:{d+1}] offset:{L_TR+6400*T+32*t}")
    a(f"s_mul_i32 {T0}, {sW}, {8*1152-96}\ns_add_u32 {T0}, {T0}, {sXo}\ns_add_u32 {T0}, {T0}, {dst_off}\ns_waitcnt lgkmcnt(0)\ns_barrier")
    for i in range(3): a(f"ds_read_b128 {q(ACC+4*i)}, {vTd} offset:{L_TR+128*i}")
    for i in range(3): a(f"s_waitcnt lgkmcnt({2-i})\nbuffer_store_dwordx4 {q(ACC+4*i)}, {vTs}, {dst}, {T0} offen offset:{128*i} {fl}")
```

```python
from asmgen import Asm
from layout import *
import math, struct

def f2u(x): return struct.unpack("<I", struct.pack("<f", x))[0]

vL16, vL8, vPsc, vW, vXr, vIdx, vPst, vMst, vAux, vOa = [f"v{i}" for i in range(10)]
vOr = "v10"
MEM0 = 12
POOL = 48
WV0 = 88
def q(base, n=4): return f"v[{base}:{base+n-1}]"
def m(k): return MEM0+4*k
def p(i): return POOL+i
LW = 19*2048
L_SCR = 0
L_W0 = 8192
L_PM = 0
L_PX = 512
L_SEL = 1024
L_O = 2048
L_XS = 4096
BIAS = 0
sWS = "s[8:11]"
sH, sSeg, sPar, sM0, sM1, sM2, sMst, sMpo, sKV, sPub, sPA, sPB, sPC, sPld, sCnt, sT0, sT1, sSlot, sC, sLayer, sFlg, sTch = [f"s{i}" for i in range(24,46)]
sK, sPubX, sLlo, sC2, sHint, sSig = "s56","s57","s58","s[22:23]","s59","s20"
sPld1 = sTch; sPA1, sPB1 = sSlot, sFlg; sMtc = sTch; sMst1 = sMpo
sMh, sMh1 = "s54","s55"
sOne = "s18"; sDis = "s19"; sRdy2 = "s[16:17]"
sHalf1 = "s[46:47]"; sHalf0 = "s[48:49]"; sRdy="s[50:51]"
import os
NREP = int(os.environ.get('NREP',2))
SPIN_MAX = 2000000

KORDER = [8,0,1,2,3,4,5,6,7]
def kap(k): return (k+1)%9

class Plan:
    def __init__(self, w):
        self.loc={}
        qk=[]
        for j,k in enumerate(KORDER[:7]):
            qk+=[("q",0,k),("k",0,k),("q",1,k),("k",1,k)]
            if j<4: qk+=[("v",0,k),("v",1,k)]
        ka,kb=KORDER[7:]
        qk+=[("q",0,ka),("q",1,ka),("q",0,kb),("q",1,kb),("k",0,ka),("k",0,kb),("k",1,ka),("k",1,kb)]
        vv=[("v",t,k) for k in KORDER[4:] for t in range(2)]
        oth=[x for x in range(4) if x!=w]
        self.oth=oth
        pairs=[("A",0),("A",1),("B",0),("B",1)]
        self.wo1=[("o",ty,pi,w) for ty,pi in pairs]
        self.wo2=[("o",ty,pi,x) for ty,pi in pairs for x in oth]
        woc=[("o","C",0),("o","C",1)]
        self.qk, self.vv = qk, vv
        self.qk_lds=list(range(0,43,3))
        self.wo_lds=[self.wo1[0],self.wo1[1],self.wo2[6],self.wo2[9]]
        slot=0
        for i in self.qk_lds: self.loc[qk[i]]=("l",slot); slot+=1
        for f in self.wo_lds: self.loc[f]=("l",slot); slot+=1
        r=0
        for f in qk+vv+self.wo1+self.wo2+woc:
            if f in self.loc: continue
            self.loc[f]=("a",8*r) if r<32 else ("v",WV0+8*(r-32)); r+=1
        assert r==53 and slot==19
    def reg(self,f):
        k,b=self.loc[f]; return f"{k}[{b}:{b+7}]"
    def regC(self,x):
        k,b=self.loc[("o","C",x>>1)]; b+=4*(x&1); return f"{k}[{b}:{b+3}]"
PLANS=[Plan(w) for w in range(4)]

def prologue_consts(a, w):
    a(f"""
    v_mov_b32 v10, v0
    v_and_b32 v11, 15, v10                 ; n
    v_lshrrev_b32 v12, 4, v10              ; g
    v_lshlrev_b32 v13, 4, v10
    v_add_u32 {vW}, {L_W0+w*LW}, v13
    v_add_u32 {vL16}, {BIAS}, v13
    v_lshlrev_b32 v13, 3, v10
    v_lshrrev_b32 v14, 5, v10
    v_lshlrev_b32 v14, 6, v14
    v_xor_b32 {vL8}, v14, v13
    v_lshlrev_b32 v13, 2, v11
    v_lshl_add_u32 {vPsc}, v12, 11, v13
    v_and_b32 v13, 3, v10                  ; c = n&3
    v_lshrrev_b32 v14, 2, v10              ; l>>2 = 4g + r
    v_lshlrev_b32 v15, 7, v13
    v_lshl_add_u32 v15, v14, 3, v15
    v_lshrrev_b32 v16, 1, v13
    v_lshlrev_b32 v16, 6, v16
    v_xor_b32 {vXr}, v16, v15
    v_and_b32 v15, 1, v10
    v_lshlrev_b32 v15, 4, v15
    v_lshl_add_u32 {vOa}, v14, 5, v15
    s_mov_b32 s46, 0xcccccccc
    s_mov_b32 s47, 0xcccccccc
    s_mov_b32 s48, 0x33333333
    s_mov_b32 s49, 0x33333333
    v_mov_b32 v15, 0x4444
    v_mov_b32 v16, 0xeeee
    v_cndmask_b32 {vIdx}, v15, v16, {sHalf1}
    v_lshrrev_b32 v15, 3, v11              ; n>>3
    v_lshl_add_u32 v15, v15, 2, v12
    v_lshlrev_b32 v15, 11, v15
    v_and_b32 v17, 7, v11
    v_lshl_add_u32 {vPst}, v17, 3, v15
    v_and_b32 v15, 2, v11                  ; 2half
    v_lshrrev_b32 v16, 1, v12              ; p
    v_add_u32 v15, v15, v16
    v_lshlrev_b32 v15, 4, v15
    v_and_b32 v16, 1, v11                  ; piece
    v_and_b32 v17, 1, v12                  ; g2
    v_lshl_add_u32 v16, v16, 1, v17
    v_lshl_add_u32 {vMst}, v16, 2, v15
    """)
    if w==0:
        a(f"""
        v_lshrrev_b32 v15, 2, v11              ; gamma
        v_and_b32 v16, 1, v15
        v_lshl_add_u32 v16, v16, 1, v13        ; tau = 2*g2 + r   (r = n&3)
        v_mov_b32 v17, 99
        v_cmp_gt_u32 vcc, 2, v13
        v_cndmask_b32 v16, v17, v16, vcc
        v_mov_b32 v17, 0x3f80
        v_mov_b32 v18, 0x3f800000
        v_cmp_lt_u32 vcc, 1, v15
        v_cndmask_b32 v17, v17, v18, vcc
        """)
        for t in range(4):
            a(f"v_cmp_eq_u32 vcc, {t}, v16\nv_cndmask_b32 v{20+t}, 0, v17, vcc")
        a(f"ds_write_b128 {vL16}, v[20:23] offset:{L_SEL-BIAS}")

def load_weights(a, w, srd, hooks={}):
    import wk
    P=PLANS[w]; T=80
    A0,A1,C0,C1,R0,R1=[f"v{240+i}" for i in range(6)]
    vO,vOC,RO,RC="v11","v12","v13","v14"
    wk.coop_qkv_addr(a,"v10",4*w,"v16",R0,R1,"v17","v18")
    def wo_addr():
        a(f"""
        v_lshrrev_b32 v84, 5, v10
        v_and_b32 v85, 31, v10
        v_lshlrev_b32 v86, 2, v84
        v_xor_b32 v85, v85, v86
        v_xor_b32 v85, {8*(w>>1)}, v85
        v_mul_u32_u24 v84, 1152, v84
        v_lshl_add_u32 {vO}, v85, 4, v84
        v_lshrrev_b32 v84, 3, v10
        v_mul_u32_u24 v84, 1152, v84
        v_and_b32 v85, 7, v10
        v_lshl_add_u32 {vOC}, v85, 4, v84
        v_bfe_u32 v84, v10, 2, 1               ; i0
        v_bfe_u32 v85, v10, 4, 1               ; piece
        v_lshl_add_u32 v86, v85, 1, v84
        v_xor_b32 v86, {w}, v86
        v_lshlrev_b32 v86, 6, v86
        v_bfe_u32 v87, v10, 3, 1               ; half
        v_lshl_add_u32 v86, v87, 5, v86
        v_and_b32 v87, 3, v10
        v_lshl_add_u32 v86, v87, 3, v86
        v_lshl_add_u32 v84, v85, 4, v84
        v_lshrrev_b32 v85, 5, v10
        v_lshl_add_u32 v84, v85, 2, v84
        v_lshl_add_u32 {RO}, v84, 9, v86
        v_lshrrev_b32 v84, 2, v10
        v_lshlrev_b32 v84, 7, v84
        v_lshl_add_u32 v84, v87, 3, v84
        v_add_u32 {RC}, {32*w}, v84
        s_lshl_b32 {sK}, {sH}, 8
        s_mul_i32 {sKV}, {sH}, {128*1152}
        """)
    a(f"""
    v_bfe_u32 v17, v10, 4, 1               ; i0
    v_lshrrev_b32 v18, 5, v10              ; half
    v_lshlrev_b32 v19, 2, v18
    v_lshl_add_u32 v19, v17, 4, v19
    v_lshl_add_u32 {A0}, v19, 13, v16
    v_xor_b32 {A1}, 0x80, {A0}
    v_lshl_add_u32 v19, v18, 3, v17
    v_lshl_add_u32 {C0}, v19, 13, v16
    v_xor_b32 {C1}, 0x80, {C0}
    """)
    wo_addr()
    def dest(f):
        kind,b=P.loc[f]
        if kind!="l": return (kind,b),None
        if b>=11: return ("v",16+8*(b-11)),None
        return ("v",T),[f"ds_write_b128 {vW}, v[{T}:{T+3}] offset:{b*2048}",f"ds_write_b128 {vW}, v[{T+4}:{T+7}] offset:{b*2048+1024}"]
    def rd(vb,f,offs):
        d,post=dest(f); return (vb,)+d+(offs,post)
    blocks=[]
    for k in KORDER:
        c=kap(k)==8
        for mu in "kvq":
            blocks.append(([(((C0,C1) if c else (A0,A1))[i>>1],srd[mu],sK,(64*kap(k)+(16*w+2*i if c else 32*(w>>1)+8*(w&1)+i))*8192) for i in range(4)],
                           [rd((R0,R1)[t],(mu,t,k),wk.QKV_OFFS) for t in range(2)]))
    for ty,b in (("A",0),("B",1)):
        for x in range(4):
            blocks.append(([(vO,srd["o"],sKV,(32*x+8*w+2*i)*1152+512*b) for i in range(4)],
                           [rd(RO,("o",ty,t,x),[256*t+(8*(qd>>1)+2*(qd&1))*512 for qd in range(4)]) for t in range(2)]))
    blocks.append(([(vOC,srd["o"],sKV,(32*w+8*i)*1152+1024) for i in range(4)],
                   [rd(RC,("o","C",t),[(64*t+32*(qd>>1)+16*(qd&1))*128 for qd in range(4)]) for t in range(2)]))
    assert len(blocks)==36 and P.loc[("o","C",0)]==("v",240)
    wk.coop_blocks(a,blocks,lambda i: L_W0+i*LW+11*2048,("v15","v246"),4096*w,hooks)
    for b in range(11,19):
        rb=16+8*(b-11)
        a(f"ds_write_b128 {vW}, v[{rb}:{rb+3}] offset:{b*2048}")
        a(f"ds_write_b128 {vW}, v[{rb+4}:{rb+7}] offset:{b*2048+1024}")
    a("s_waitcnt lgkmcnt(0)")

GROUPS = [[],[0,3],[1,4],[2]]

def mso(i): return (sMst,sMst1)[i]
def held(i): return (vAux,"v11")[i]
def publish(i): return f"buffer_store_dword {held(i)}, {vMst}, {sWS}, {(sMh,sMh1)[i]} offen sc1"
def fetch_mem0(a, w, srd_mem, lane):
    for i,g in enumerate(GROUPS[w]):
        a(f"""
        v_and_b32 v28, 3, {lane}               ; 2half+piece
        v_bfe_u32 v30, {lane}, 4, 1            ; g2
        v_lshrrev_b32 v29, 5, {lane}           ; p
        v_mul_u32_u24 v29, 1152, v29
        v_lshl_add_u32 v28, v28, 1, v30        ; 2(2half+piece)+g2
        v_lshl_add_u32 v29, v28, {2 if g==4 else 1}, v29
        s_and_b32 {sT0}, {sH}, 3
        s_mul_i32 {sT0}, {sT0}, {2*1152}
        """)
        if g<4:
            a(f"""s_lshr_b32 {sT1}, {sH}, 3
            s_lshl_b32 {sT1}, {sT1}, 6
            s_add_u32 {sT0}, {sT0}, {sT1}
            s_bfe_u32 {sT1}, {sH}, 0x10002
            s_lshl_b32 {sT1}, {sT1}, 4
            s_add_u32 {sT0}, {sT0}, {sT1}""")
        else:
            a(f"""s_lshr_b32 {sT1}, {sH}, 2
            s_lshl_b32 {sT1}, {sT1}, 5
            s_add_u32 {sT0}, {sT0}, {sT1}""")
        a(f"""buffer_load_ushort v{31+2*i}, v29, {srd_mem}, {sT0} offen offset:{256*g}
        buffer_load_ushort v{32+2*i}, v29, {srd_mem}, {sT0} offen offset:{256*g+(2 if g==4 else 32)}""")
def store_mem0(a, w, dst):
    for i,g in enumerate(GROUPS[w]):
        a(f"""v_lshl_or_b32 v28, v{32+2*i}, 16, v{31+2*i}
        v_min_u32 {dst[i]}, -2, v28
        buffer_store_dword {dst[i]}, {vMst}, {sWS}, {mso(i)} offen""")

def next_slots(w):
    return [f"s_add_u32 {x}, {x}, 0x4000" for x in [sM0,sM1,sM2]+([sMst,sMh] if GROUPS[w] else [])+([sMst1,sMh1] if len(GROUPS[w])>1 else [])+([sMtc] if w==3 else [])]

def mload(k, fl=""):
    b=kap(k); s=[sM0,sM1,sM2][b>>2]
    return f"buffer_load_dwordx4 {q(m(k))}, {vL16}, {sWS}, {s} offen offset:{(b&3)*1024} {fl}".rstrip()
def zero(base, n): return [f"v_mov_b32 v{base+i}, 0" for i in range(n)]
KEEP=["v_nop",5]
def delay(a, clks):
    n=clks//4
    while n>0:
        k=min(n,KEEP[1]); a(KEEP[0])
        if k>1: a(f"s_nop {k-2}")
        n-=k
def weave(v, o):
    v=list(v); o=list(o); r=[]
    while v or o:
        if v: r.append(v.pop(0))
        r.append(o.pop(0) if o else "s_nop 0")
    return r
def spin_guard(a, fail):
    a(f"s_add_u32 {sCnt}, {sCnt}, 1\ns_cmp_gt_u32 {sCnt}, {SPIN_MAX}\ns_cbranch_scc1 {fail}")
DPP="row_mask:0xf bank_mask:0xf"

def step_loop(a, w, cfg, hooks):
    KEEP[:]=[("v_nop",f"v_mov_b32 {vIdx}, {vIdx}")[cfg.get("keepmov",0)],cfg.get("keepn",5)]
    P=PLANS[w]; L=lambda s: f"{hooks.get('prefix',f'ch{w}')}_{s}"
    def E(lst):
        for x in lst: a(x)
    def stage(buf,f):
        b=P.loc[f][1]
        return [f"ds_read_b128 {q(buf)}, {vW} offset:{b*2048}", f"ds_read_b128 {q(buf+4)}, {vW} offset:{b*2048+1024}"]
    def sm(acc,A,B): return f"v_smfmac_f32_16x16x64_bf16 {q(acc)}, {q(A)}, {B}, {vIdx}"
    def mf(d,A,B,C): return f"v_mfma_f32_16x16x32_bf16 {q(d)}, {A}, {B}, {C}"
    def fold(base,dst):
        return [f"v_add_f32 v{base}, v{base}, v{base+2}", f"v_add_f32 v{base+1}, v{base+1}, v{base+3}", f"v_cvt_pk_bf16_f32 v{dst}, v{base}, v{base+1}"]
    def younger(x, since):
        vm=[y for y in a.lines[since:] if y.startswith("buffer")]
        return len(vm)-1-max(k for k,y in enumerate(vm) if y==x)
    S0,S1=p(16),p(24); ST=[S0,S1]; VA=p(32)
    acc={("q",0):p(0),("q",1):p(4),("k",0):p(8),("k",1):p(12),("v",0):VA,("v",1):VA+4}
    KX=[m(8),m(0)]; VX=[m(1),m(2)]; NV=len(P.vv)
    fail=L("fail"); late=[]
    disturb=[f"ds_write_b32 {vMst}, {vIdx} offset:{L_PM}"] if cfg.get("dcons") else []
    prep_qk=zero(p(0),16)+stage(S0,P.qk[P.qk_lds[0]])+stage(S1,P.qk[P.qk_lds[1]])
    a(f"{L('entry')}:")
    a(f"v_and_b32 {vOr}, 8, {vPsc}\nv_add_u32 {vOr}, {vOa}, {vOr}")
    E(disturb); E(prep_qk); E(zero(VA,8))
    NPRE=4
    for k in KORDER[:NPRE]: a(mload(k))
    a("s_waitcnt vmcnt(0)")
    if w==0: a(f"v_lshrrev_b32 v11, 2, {vL16}\nv_and_b32 v11, 127, v11")
    nm=0; PW=0; SW=0 if cfg["tH"] is not None else 1
    issued=list(range(nm))+["s"]+list(range(nm,NPRE))
    CMPM="v_cmp_f_u32" if cfg.get("nocheck") else "v_cmp_eq_u32"
    CMPP="v_cmp_f_u32" if cfg.get("nocheck") else "v_cmp_ne_u32"
    a(f"{L('top')}:")
    top=len(a.lines)
    def retry(j, inflight, back, g=(0,)):
        lb=L(f"retry{j}")
        late.append((lb,[KORDER[x] for x in inflight],back,len(g))); return lb
    a(f"s_waitcnt vmcnt({len(issued)-1-issued.index(0)}) lgkmcnt(2)\n{CMPM} vcc, -1, v{m(8)}\ns_cbranch_vccnz {retry(0,range(NPRE),L('ok0'))}\n{L('ok0')}:")
    n=len(P.qk)
    first={}
    for i,f in enumerate(P.qk): first.setdefault(KORDER.index(f[2]),i)
    islds=lambda i: i in P.qk_lds
    CH=cfg["checks"]
    brpos={c[0]:((first[c[0]]-3)//3)*3+2 for c in CH}
    if 7 in brpos and 8 in brpos: brpos[7]-=3
    grp={c[0]:c for c in CH}
    assert len(set(brpos.values()))==len(CH)
    gapx={}
    def put(g,x): gapx.setdefault(g,[]).append(x)
    for j,g in zip(range(NPRE,9),cfg["vpos"]): put(g,(j,mload(KORDER[j])))
    kl=[f"buffer_load_dwordx4 {q(KX[t])}, v{m(0)}, {sWS}, {sK} offen offset:{t*1024} sc1" for t in range(2)]
    vxl=[f"buffer_load_dwordx4 {q(VX[t])}, {vL16}, {sWS}, {sKV} offen offset:{t*1024} sc1" for t in range(2)]
    for g,x in hooks["pre_k"](w): put(g,x)
    put(13,(None,f"v_and_b32 v{m(0)}, 32, {vL16}")); put(14,(None,f"v_lshl_add_u32 v{m(0)}, v{m(0)}, 4, {vOa}"))
    for t in range(2): put(cfg["kpos"][t],("k",kl[t])); put(cfg["vxpos"][t],("vx",vxl[t]))
    for g,x in hooks["qk"](w): put(g,x)
    if w==3 and cfg.get("touch",1):
        g=cfg["tpos"]; tl=lambda so: f"buffer_load_dword v11, v11, {sWS}, {so} offen sc1 ; nochk"
        put(g-3,(None,f"v_lshlrev_b32 v11, 3, {vL16}")); put(g-4,(None,f"s_add_u32 {sT0}, {sK}, {16384-3*2048}")); put(g-1,(None,f"s_add_u32 {sT1}, {sT0}, 8192"))
        put(g,("t",tl(sT0))); put(g+cfg["tgap"],("t",tl(sT1)))
        g+=cfg["tgap"]+2
        put(g,(None,"s_mov_b64 exec, 15")); put(g,("t",tl(sMtc))); put(g,(None,"s_mov_b64 exec, -1"))
        for x in hooks.get("after_touch",[]): put(g+1,("t",x))
    if cfg.get("pub"):
        for i in range(len(GROUPS[w])): put(cfg["ppos"]+3*i,("p",publish(i)))
    foldq=fold(p(0),p(2))+fold(p(4),p(6))
    nl=0; pend=[]
    for i,f in enumerate(P.qk):
        B=f"v[{ST[nl&1]}:{ST[nl&1]+7}]" if islds(i) else P.reg(f)
        a(sm(acc[f[:2]],m(f[2]),B))
        hascmp=any(brpos[j]-2==i for j in brpos) or any(x.startswith("v_") for _,x in gapx.get(i,[])) or i>=n-4
        if islds(i):
            if nl+2<len(P.qk_lds): pend=stage(ST[nl&1],P.qk[P.qk_lds[nl+2]])
            nl+=1
            if pend and not hascmp and cfg["ds2"]: a(pend.pop(0))
        if pend: a(pend.pop(0))
        val=[]
        for j,x in gapx.get(i,[]):
            if x.startswith("v_"): val.append(x); continue
            a(x)
            if x.startswith("buffer"): issued.append(j)
        for j in brpos:
            if brpos[j]==i:
                infl=[x for x in issued if isinstance(x,int) and x>=j]
                if len(grp[j])==2: a(f"s_or_b64 vcc, vcc, {sRdy2}\ns_cbranch_scc1 {retry(j,infl,L(f'ok{j}'),grp[j])}\n{L(f'ok{j}')}:")
                else: a(f"s_cbranch_vccnz {retry(j,infl,L(f'ok{j}'),grp[j])}\n{L(f'ok{j}')}:")
        wt=""
        for j in brpos:
            c=[f"v{m(KORDER[x])}" for x in grp[j]]
            if brpos[j]-3==i:
                wt+=f" vmcnt({len(issued)-1-issued.index(grp[j][-1])})"
                if len(c)==2: val.append(f"{CMPM} {sRdy2}, -1, {c[1]}")
            if brpos[j]-2==i: val.append(f"{CMPM} vcc, -1, {c[0]}")
            if brpos[j]==i+1 and len(c)==2: pass
        if islds(i+1): wt+=f" lgkmcnt({0 if nl==len(P.qk_lds)-1 else 2})"
        if wt: a("s_waitcnt"+wt)
        E(val)
        if i>=n-4: a(foldq.pop(0))
    vi=[0]
    def V(fl=()):
        f=P.vv[vi[0]]; a(sm(acc[f[:2]],m(f[2]),P.reg(f))); vi[0]+=1; E(fl)
    xs=L_XS+w*1024
    E(foldq); E(fold(p(8),p(3))); E(fold(p(12),p(7)))
    a(f"ds_write2st64_b64 {vL8}, v[{p(2)}:{p(3)}], v[{p(6)}:{p(7)}] offset0:{xs//512} offset1:{xs//512+1}")
    mid=hooks["mid"](w)
    Sa,Sb,Sm,ONES=p(16),p(20),p(24),p(28)
    PX,PM=p(8),p(12)
    misc=[f"v_mov_b32 v{ONES+i}, {sOne}" for i in range(4)]+zero(m(3),4)+zero(m(8),4)+zero(m(0),4)
    def take(k):
        o=misc[:k]; del misc[:k]; return o
    for _ in range(cfg["nV"][0]): V(mid[:2]+take(1)); mid=mid[2:]
    assert not mid
    if "prebar1" in hooks: hooks["prebar1"](a,w,lambda x: younger(x,top))
    a("s_waitcnt lgkmcnt(0)\ns_barrier")
    X=[p(4*i) for i in range(4)]
    for x in range(4):
        rd=[f"ds_read_b64_tr_b16 v[{X[x]+2*i}:{X[x]+2*i+1}], {vXr} offset:{L_XS+x*1024+i*512}" for i in range(2)]
        if x>=4-cfg["nV"][1]: V(rd)
        else: E(rd)
    for x in range(4):
        if x==0: a(f"s_waitcnt lgkmcnt(6) vmcnt({younger(kl[1],top)})")
        d=(Sa,Sb)[x&1]
        a(mf(d,q(KX[x>>1]),q(X[x]),q(d) if x>1 else 0))
        if x<3: a(f"s_waitcnt lgkmcnt({4-2*x})")
        E(take(cfg["sfill"]))
    a(mf(Sm,q(X[0]),q(X[0]),0))
    for i in range(2): a(f"v_mul_f32 v{Sa+i}, {sC}, v{Sa+i}")
    if cfg["sm2"]: a(mf(Sm,q(X[1]),q(X[1]),q(Sm)))
    for i in range(2): a(f"v_fmac_f32 v{Sa+i}, {sC}, v{Sb+2+i}")
    for i in range(2): a(f"v_exp_f32 v{Sa+2+i}, v{Sa+i}")
    a(f"s_mov_b64 exec, {sHalf0}\nv_cvt_pk_bf16_f32 v{Sa+2}, v{Sa+2}, v{Sa+3}")
    a(f"ds_write_b32 {vOa}, v{Sa+2} offset:{L_PX+4*w}")
    a("s_mov_b64 exec, -1")
    VD=VA+2; fv=fold(VA,VD)+fold(VA+4,VD+1)
    for _ in range(cfg["nV"][2]): V(take(1))
    early_fv=vi[0]==NV
    for x in range(2 if cfg["sm2"] else 1,4):
        a(mf(Sm,q(X[x]),q(X[x]),q(Sm)))
        if x==3 and early_fv: misc[:0]=fv
        E(take(2))
    pmq=[f"v_mul_f32 v{Sm+2}, {sC}, v{Sm+2}",f"v_mul_f32 v{Sm+3}, {sC}, v{Sm+3}",f"v_exp_f32 v{Sm}, v{Sm+2}",f"v_exp_f32 v{Sm+1}, v{Sm+3}",
         f"v_mov_b32 v{PM+1}, 0",f"v_cvt_pk_bf16_f32 v{Sm}, v{Sm}, v{Sm+1}",f"v_mov_b32 v{PM+2}, 0",
         f"v_mov_b32_dpp v{PM}, v{Sm} quad_perm:[0,1,0,1] {DPP}",f"v_mov_b32_dpp v{PM+3}, v{Sm} quad_perm:[0,1,0,1] {DPP}"]
    E(take(cfg["pfill"]))
    for _ in range(cfg.get("ka2",0)): a(mf(p(0),q(ONES),q(ONES),0))
    a("s_waitcnt lgkmcnt(0)\ns_barrier")
    a(f"ds_read_b128 {q(PX)}, {vOa} offset:{L_PX}")
    for _ in range(cfg.get("ka3",0)): a(mf(p(0),q(ONES),q(ONES),0))
    misc[:0]=pmq
    for _ in range(cfg["nV"][3]): V(take(1))
    E(take(cfg["rfill"]))
    DL,D0,D1=p(0),p(4),p(20); OW=p(12); OP=p(10)
    T=[m(4),m(6),p(16),p(24)]
    st=stage(T[0],P.wo_lds[0])+stage(T[1],P.wo_lds[1])
    m16=lambda d,A,B: f"v_mfma_f32_16x16x16_bf16 {q(d)}, v[{A}:{A+1}], v[{B}:{B+1}], {q(d)}"
    rl,r0,r1,tc=p(18),p(0),p(2),p(19)
    def scale_o(chk):
        a(f"v_rcp_f32 v{rl}, v{DL}")
        a(f"v_subrev_u32 v{tc}, {sLlo}, v{DL}" if chk else "s_nop 0")
        a(f"v_cndmask_b32 v{r0}, 0, v{rl}, {sHalf0}\nv_cndmask_b32 v{r1}, 0, v{rl}, {sHalf1}")
        for i in range(4): a(f"v_mul_f32 v{D0+i}, v{D0+i}, v{r0}")
        if chk: a(f"v_cmp_lt_u32 vcc, {hex(cfg.get('lrange',120<<23))}, v{tc}")
        for i in (0,2): a(f"v_pk_fma_f32 v[{D0+i}:{D0+i+1}], v[{D1+i}:{D1+i+1}], v[{r1}:{r1+1}], v[{D0+i}:{D0+i+1}] op_sel_hi:[1,0,1]")
        a(f"v_cvt_pk_bf16_f32 v{OP}, v{D0}, v{D0+1}\nv_cvt_pk_bf16_f32 v{OP+1}, v{D0+2}, v{D0+3}")
        if cfg["keepalive"]: a(mf(D1,q(ONES),q(ONES),0))
        a(f"ds_write_b64 {vOr}, v[{OP}:{OP+1}] offset:{L_O+w*512}")
    while vi[0]<NV: V(take(1))
    npm=max([k+1 for k,x in enumerate(misc) if x in pmq]+[0])
    if not early_fv: misc[npm:npm]=fv
    a(f"s_waitcnt vmcnt({younger(vxl[1],top)}) lgkmcnt(0)")
    a(mf(DL,q(ONES),q(PX),0)); a(st.pop(0)); E(take(2))
    a(mf(D0,q(VX[0]),q(PX),0)); a(st.pop(0)); E(take(2))
    a(mf(D1,q(VX[1]),q(PX),0)); a(st.pop(0)); E(take(2))
    while any(x in pmq for x in misc): E(take(1))
    while sum(x in fv for x in misc)>1: E(take(1))
    a(m16(DL,ONES,PM)); a(st.pop(0)); E(take(2))
    misc+=zero(VA+4,4)
    a(m16(D0,VD,PM)); E(take(2))
    a(m16(D1,VD,PM+2))
    scale_o(True)
    a(f"s_cbranch_vccnz {L('slowsm')}\n{L('smdone')}:")
    a(f"v_mov_b32_dpp v{OW}, v{OP} quad_perm:[0,1,0,1] {DPP}\nv_mov_b32_dpp v{OW+1}, v{OP+1} quad_perm:[0,1,0,1] {DPP}")
    a(f"v_mov_b32_dpp v{OW+2}, v{OP} quad_perm:[2,3,2,3] {DPP}\nv_mov_b32_dpp v{OW+3}, v{OP+1} quad_perm:[2,3,2,3] {DPP}")
    aC=m(1); aP={("A",0):m(8),("A",1):m(0),("B",0):m(3),("B",1):VA+4}
    while len(misc)>4: a(misc.pop(0))
    tb={f:T[i] for i,f in enumerate(P.wo_lds)}
    def wB(f): return f"v[{tb[f]}:{tb[f]+7}]" if f in tb else P.reg(f)
    OA={x:p(4*n_) for n_,x in enumerate(P.oth)}
    ph1=[mf(aC,q(OW),P.regC(w),0)]+[sm(aP[f[1:3]],OW,wB(f)) for f in P.wo1]
    a("s_waitcnt lgkmcnt(1)")
    ord_=[f"ds_read_b128 {q(OA[x])}, {vOa} offset:{L_O+x*512}" for x in P.oth]
    for i,x in enumerate(ph1):
        if i==cfg["bar3"]: a("s_waitcnt lgkmcnt(0)\ns_barrier"); E(ord_)
        a(x); E(take(2 if i==0 else 1))
    assert not misc
    SEL,DR=VA,VA+4
    lds=[]
    for i in range(2,4): lds+=stage(tb[P.wo_lds[i]],P.wo_lds[i])
    if GROUPS[w]: lds.append(f"ds_read_b128 {q(SEL)}, {vL16} offset:{L_SEL}")
    dsq=list(ord_)
    def ds(k):
        for _ in range(k):
            if lds: x=lds.pop(0); a(x); dsq.append(x)
    def lgw(x): return f"s_waitcnt lgkmcnt({len(dsq)-1-dsq.index(x)})"
    ds(cfg["nst0"])
    def cv(d,b): return f"v_cvt_pk_bf16_f32 v{d}, v{b}, v{b+1}"
    A0,A1,B0,B1=aP[("A",0)],aP[("A",1)],aP[("B",0)],aP[("B",1)]
    pld=[f"buffer_load_dwordx4 {q(m(4+i))}, {vL16}, {sWS}, {(sPld,sPld1)[i>>1]} offen offset:{1024*(i&1)} sc1" for i in range(2*len(GROUPS[w]))]
    def pst(r,so): return f"buffer_store_dwordx2 v[{r}:{r+1}], {vPst}, {sWS}, {so} offen"
    def tag(r): return f"v_and_or_b32 v{r}, v{r}, -2, {sPar}"
    pk=lambda r,d=None: [cv(d or r,r),cv((d or r)+1,r+2),tag(d or r)]
    after={4:pk(A0),5:[pst(A0,sPA)],7:pk(A1)[:1],8:pk(A1)[1:],9:[pst(A1,sPA1)],10:pk(B0)[:1],11:pk(B0)[1:2],12:pk(B0)[2:],13:pk(B1,B0+2)[:2],14:pk(B1,B0+2)[2:]}
    if cfg.get("bgap"):
        after={4:pk(A0),5:[pst(A0,sPA)],7:pk(A1),8:[pst(A1,sPA1)],10:pk(B0),11:[pst(B0,sPB)],13:pk(B1,B0+2),14:[pst(B0+2,sPB1)]}
    ph2=[(sm(aP[f[1:3]],OA[f[3]],wB(f)),f) for f in P.wo2]+[(mf(aC,q(OA[x]),P.regC(x),q(aC)),None) for x in P.oth]
    mark=len(a.lines)
    for i,(x,f) in enumerate(ph2):
        if i<3: a(lgw(ord_[i]))
        a(x)
        vm=[y for y in after.get(i,[]) if y.startswith("buffer")]
        E(vm)
        if not vm: ds(1)
        if i+1<12 and P.wo2[i+1] in tb: a(lgw(stage(tb[P.wo2[i+1]],P.wo2[i+1])[1]))
        E([y for y in after.get(i,[]) if not y.startswith("buffer")])
    assert not lds
    sal=[f"s_add_u32 {sSeg}, {sSeg}, 1",f"s_add_u32 {sKV}, {sKV}, {cfg.get('kvstep',16384)}",f"s_add_u32 {sK}, {sK}, {cfg.get('kvstep',16384)}"]+hooks["sal"](w)+next_slots(w)
    if w<2: sal.insert(0,f"s_add_u32 {sSig}, {sSig}, 2")
    cpk=tag(aC)
    work=prep_qk[16:]+[cv(aC,aC),cpk]+weave(prep_qk[:16],sal)
    now=[0]
    def spend(clks):
        k=clks//4
        o=work[:k]; del work[:k]; E(o); delay(a,4*(k-len(o))); now[0]+=4*k
    def at(t, ops):
        spend(max(0,t-now[0]))
        while ops[0].endswith(f"{sPC} offen") and cpk in work: spend(4)
        E(ops); now[0]+=10*len(ops)
    def reduce(u, mark):
        r0_,r1_=m(4+2*u),m(5+2*u); ld=pld[2*u:2*u+2]
        def body(w0,w1):
            a(f"s_waitcnt vmcnt({w0}) lgkmcnt(0)"); a(mf(DR,q(SEL),q(r0_),0)); a(f"v_xor_b32 v{r0_}, {sPar}, v{r0_}")
            a(f"s_waitcnt vmcnt({w1})"); a(mf(DR,q(SEL),q(r1_),q(DR)))
        body(younger(ld[0],mark),younger(ld[1],mark))
        a(f"{L(f'okP{u}')}:")
        a(f"v_bitop3_b32 v{r0_}, v{r0_}, v{r1_}, {sPar} bitop3:0xf6\nv_and_b32 v{r0_}, 1, v{r0_}\n{CMPP} vcc, 0, v{r0_}")
        for ror in (4,8):
            for i in range(2): a(f"v_add_f32_dpp v{DR+i}, v{DR+i}, v{DR+i} row_ror:{ror} {DPP}")
        a(f"v_cvt_pk_bf16_f32 {held(u)}, v{DR}, v{DR+1}")
        a(f"s_cbranch_vccnz {L(f'pollP{u}')}")
        if w==SW and u==0: E(hsend)
        a(f"buffer_store_dword {held(u)}, {vMst}, {sWS}, {mso(u)} offen")
        def slow():
            a(f"{L(f'pollP{u}')}:")
            if cfg.get("cnt"): a(f"s_add_u32 s{93+u}, s{93+u}, 1")
            E(ld); E(disturb); spin_guard(a,fail); body(1,0); a(f"s_branch {L(f'okP{u}')}")
        outl.append(slow)
    outl=[]
    def gather(k0,k1=NPRE):
        for k in range(k0,k1):
            if k and k!=nm: spend(cfg["dm"][k-1])
            a(mload(KORDER[k]))
    def close():
        E(work); work.clear()
        a(f"s_xor_b32 {sPar}, {sPar}, 1")
        hooks["end"](a,w)
        a(f"s_branch {L('top')}")
    ev=[(cfg["tB"][0],[pst(B0,sPB)]),(cfg["tB"][1],[pst(B0+2,sPB1)]),(cfg["tB"][2],[f"buffer_store_dword v{aC}, {vPsc}, {sWS}, {sPC} offen"])]
    if cfg.get("bgap"): ev=ev[2:]
    G=GROUPS[w]
    hsend=[f"s_mov_b64 exec, {(1<<NREP)-1}",f"buffer_store_dword v{m(2)}, {vXr}, {sWS}, {sPubX} offen","s_mov_b64 exec, -1"]
    if w==SW and cfg.get("dcons"):
        work[4:4]=[f"ds_read_b32 v{m(2)}, {vMst} offset:{L_PM}"]
        work[len(work)//2:len(work)//2]=["s_waitcnt lgkmcnt(0)",f"ds_write_b32 {vMst}, v{p(0)} offset:{L_PM}",f"v_min_u32 v{m(2)}, 1, v{m(2)}",f"v_add_u32 v{m(2)}, {sSig}, v{m(2)}"]
    elif w==SW: work[len(work)//2:len(work)//2]=[f"v_mov_b32 v{m(2)}, {sSig}"]
    if w==PW: work.append(f"v_mov_b32 v{m(2)+1}, 0")
    for i,g in enumerate(G): ev.append((cfg["tP"][g],pld[2*i:2*i+2]))
    ev.sort(key=lambda x:x[0])
    for t,ops in ev: at(t,ops)
    if G:
        spend(max(4*len(work),cfg["tP"][G[0]]+170-now[0]))
        reduce(0,mark)
        if len(G)>1:
            if G[1]==4: a(f"s_cmp_ge_u32 {sH}, 16\ns_cbranch_scc1 {L('nored')}")
            reduce(1,mark)
            a(f"{L('nored')}:")
    else:
        work+=weave(zero(VA,8),[])
        if SW==w:
            while any("v%d,"%m(2) in x for x in work): spend(4)
            at(cfg["tH"],hsend)
        spend(max(4*len(work),cfg["tS"]-now[0]))
    if G: work+=weave(zero(VA,8),[])
    if w==PW:
        HV=f"v{m(2)+1}"; poll=f"buffer_load_dword {HV}, v11, {sWS}, {sHint} offen sc1"
        a(f"{L('hpoll')}:")
        for u in range(4):
            a(f"v_cmp_gt_u32 vcc, {sSig}, {HV} ; nochk\nv_cmp_ne_u32 {sRdy2}, {sSig}, {HV} ; nochk"); a(poll)
            if cfg.get("cnt"): a("s_add_u32 s94, s94, 1")
            if cfg["pollgap"]: a(f"s_nop {cfg['pollgap']-1}")
            if u==3: a(f"s_add_u32 {sCnt}, {sCnt}, 1\ns_cmp_gt_u32 {sCnt}, {SPIN_MAX}")
            a(f"s_cbranch_vccz {L('hseen')}")
        a(f"s_cbranch_scc0 {L('hpoll')}\ns_branch {fail}\n{L('hslow')}:")
        if cfg.get("cnt"): a("s_add_u32 s93, s93, 1")
        delay(a,cfg.get("dcons") or 0)
        a(f"ds_write_b32 {vMst}, v{p(0)} offset:{L_PM}\ns_waitcnt lgkmcnt(0)")
        a(f"s_branch {L('hok')}\n{L('hseen')}:")
        if cfg.get("dcons"): a(f"s_cmp_lg_u64 {sRdy2}, 0\ns_cbranch_scc1 {L('hslow')}")
        a(f"{L('hok')}:")
    else: spend(cfg["dkeep"][w])
    a("s_barrier")
    gather(0); close()
    for f_ in outl: f_()
    a(f"{L('slowsm')}:"); E(disturb)
    a(f"s_mov_b64 exec, {sHalf0}\nds_write_b64 {vOa}, v[{Sa}:{Sa+1}] offset:{L_XS+512*(w>>1)+8*(w&1)}\ns_mov_b64 exec, -1")
    a("s_waitcnt lgkmcnt(0)\ns_barrier")
    s_=[p(i) for i in range(8)]+[Sm,Sm+1]; mx,tt=p(20),p(21)
    a(f"""ds_read_b128 {q(p(0))}, {vOa} offset:{L_XS}
    ds_read_b128 {q(p(4))}, {vOa} offset:{L_XS+512}
    v_mov_b32_dpp v{Sm}, v{Sm+2} quad_perm:[0,1,0,1] {DPP}
    v_mov_b32_dpp v{Sm+1}, v{Sm+3} quad_perm:[0,1,0,1] {DPP}
    s_waitcnt lgkmcnt(0)
    v_max_f32 v{mx}, v{s_[0]}, v{s_[1]}""")
    for i in range(2,10,2): a(f"v_max3_f32 v{mx}, v{mx}, v{s_[i]}, v{s_[i+1]}")
    a(f"""v_mov_b32 v{tt}, v{mx}
    v_permlane16_swap_b32 v{mx}, v{tt}
    v_max_f32 v{mx}, v{mx}, v{tt}
    v_mov_b32 v{tt}, v{mx}
    v_permlane32_swap_b32 v{mx}, v{tt}
    v_max_f32 v{mx}, v{mx}, v{tt}""")
    for i in range(10): a(f"v_sub_f32 v{s_[i]}, v{s_[i]}, v{mx}\nv_exp_f32 v{s_[i]}, v{s_[i]}")
    for i in range(4): a(cv(PX+i,p(2*i)))
    a(cv(PM,Sm)); a(cv(PM+3,Sm))
    a(mf(DL,q(ONES),q(PX),0)); a(mf(D0,q(VX[0]),q(PX),0)); a(mf(D1,q(VX[1]),q(PX),0))
    a(m16(DL,ONES,PM)); a(m16(D0,VD,PM)); a(m16(D1,VD,PM+2))
    scale_o(False)
    a(f"s_branch {L('smdone')}")
    for lb,ks,back,ng in late:
        a(f"{lb}:")
        if cfg.get("cnt"): a(f"s_add_u32 s{84+KORDER.index(ks[0])}, s{84+KORDER.index(ks[0])}, 1")
        for k in ks: a(mload(k,'sc1'))
        spin_guard(a,fail)
        E(disturb)
        a("s_waitcnt vmcnt(0)")
        for k in ks[:ng]: a(f"v_cmp_eq_u32 vcc, -1, v{m(k)}\ns_cbranch_vccnz {lb}")
        a(f"s_branch {back}")

def init_comm(a, w, stores=True):
    g0,g1=(GROUPS[w]+[0,0])[:2]
    a(f"""
    s_lshl_b32 {sT0}, {sH}, 6
    s_add_u32 {sPA}, {sT0}, {OFF_P+w*16384}
    s_add_u32 {sPA1}, {sPA}, {65536}
    s_add_u32 {sPB}, {sPA}, {2*65536}
    s_add_u32 {sPB1}, {sPA}, {3*65536}
    s_add_u32 {sPC}, {sT0}, {OFF_P+4*65536+w*8192}
    s_add_u32 {sMst}, {sT0}, {OFF_M+2048*g0}
    s_add_u32 {sMst1}, {sT0}, {OFF_M+2048*g1}
    s_mov_b32 {sM0}, {OFF_M}
    s_mov_b32 {sM1}, {OFF_M+4096}
    s_mov_b32 {sM2}, {OFF_M+8192}
    s_lshl_b32 {sT0}, {sH}, 11
    s_add_u32 {sPld}, {sT0}, {OFF_P+65536*g0}
    s_mov_b32 {sPar}, 0
    s_mov_b32 {sC}, {f2u(128**-0.5*math.log2(math.e))}
    s_mov_b32 {sOne}, 0x3f803f80
    s_mov_b32 {sLlo}, {(127-60)<<23}
    v_mov_b32 v20, -1
    v_mov_b32 v21, -1
    v_mov_b32 v22, -1
    v_mov_b32 v23, -1
    """)
    if len(GROUPS[w])>1: a(f"s_add_u32 {sPld1}, {sPld}, {(g1-g0)*65536}")
    if w<2: a(f"""s_mov_b32 {sSig}, 0
    s_lshl_b32 {sT0}, {sH}, 2
    s_add_u32 {sPubX}, {sT0}, {OFF_H}
    s_and_b32 {sT0}, {sH}, {NREP-1}
    s_lshl_b32 {sT0}, {sT0}, 7
    s_add_u32 {sHint}, {sT0}, {OFF_H}
    s_mov_b64 exec, {(1<<NREP)-1}
    v_mov_b32 v28, 0
    {f"buffer_store_dword v28, {vXr}, {sWS}, {sPubX} offen" if stores else ""}
    buffer_load_dword v24, {vXr}, {sWS}, {sPubX} offen sc1
    s_mov_b64 exec, -1""")
    if g1==4: a(f"s_cmp_ge_u32 {sH}, 16\ns_cselect_b32 {sPld1}, 0x40000000, {sPld1}")
    if w==3: a(f"s_lshl_b32 {sMtc}, {sH}, 9\ns_add_u32 {sMtc}, {sMtc}, {OFF_M+0x8000}")
    for i,g in enumerate(GROUPS[w]):
        for j in range(2):
            if stores: a(f"buffer_store_dwordx4 v[20:23], {vL16}, {sWS}, {(sPld,sPld1)[i]} offen offset:{1024*j}")
            a(f"buffer_load_dwordx4 v[24:27], {vL16}, {sWS}, {(sPld,sPld1)[i]} offen offset:{1024*j} sc1")
        a(f"s_add_u32 {sT0}, {mso(i)}, 0x4000")
        a(f"buffer_load_dword v24, {vMst}, {sWS}, {sT0} offen sc1\nbuffer_load_dword v24, {vMst}, {sWS}, {mso(i)} offen sc1")


def set_layer(a, w, layer):
    a(f"""
    s_mov_b32 {sSeg}, 0
    s_mul_i32 {sT0}, {sH}, {KV_H}
    s_add_u32 {sKV}, {sT0}, {OFF_KV+8192+w*2048}
    s_add_u32 {sK}, {sT0}, {OFF_KV+w*2048}
    s_lshl_b32 {sT0}, {sH}, 6
    s_add_u32 {sT0}, {sT0}, {layer}
    s_add_u32 {sMh}, {sT0}, {OFF_MH+2048*(GROUPS[w]+[0,0])[0]}
    s_add_u32 {sMh1}, {sT0}, {OFF_MH+2048*(GROUPS[w]+[0,0])[1]}
    s_mov_b32 {sCnt}, 0
    """)
```

```python
MB = 1<<20
WS_BYTES = 256*MB
OFF_P    = 0x000000
OFF_FLAG = 0x0c0000
OFF_M    = 2*MB
OFF_KV   = 40*MB
KV_H     = 65*16384
QX_H     = 65*8192
OFF_QX   = 73*MB
OFF_O    = 90*MB
LAYER_STRIDE = 16*MB
OFF_F    = 6*MB
OFF_BQR  = 6*MB+MB//2
OFF_BOR  = 6*MB+3*MB//4
OFF_BKR  = OFF_BQR+MB
OFF_MH   = 8*MB
OFF_MKV  = OFF_MH
OFF_X1   = 9*MB
OFF_BV   = 11*MB+MB//2
OFF_BQ   = 14*MB
OFF_BK   = 16*MB
OFF_BO   = 18*MB
OFF_X2   = 37*MB+MB//2
LAYER_SPAN = 22*MB
F_KV     = OFF_F+0x20000
OFF_FL   = 20*MB
F_X2     = OFF_FL+3*0x40000
F_BQ     = OFF_F+0x4000
OFF_H    = OFF_F+0x5000
F_O      = OFF_FL
F_X1     = OFF_FL+0x40000
F_BO     = OFF_FL+0x80000
OFF_TS   = 250*MB
```

```python
from asmgen import Asm
from layout import *
import math, struct
def f2u(x): return struct.unpack("<I", struct.pack("<f", x))[0]
def q(base, n=4, k="v"): return f"{k}[{base}:{base+n-1}]"
DPP="row_mask:0xf bank_mask:0xf"
sWS="s[8:11]"; sX="s[12:15]"; sA="s[76:79]"; sB="s[80:83]"; sC_="s[84:87]"; sD="s[88:91]"
sW="s21"; sI="s24"
T0,T1,T2,T3="s60","s61","s62","s63"
P_X,P_MEM,P_WQ,P_WK,P_WV,P_WO,P_BQKV,P_BWO,P_OUT=64,66,68,70,72,74,92,94,96
def srd(a, d, ptr, size, off=0):
    d=int(d[2:d.index(":")])
    if off: a(f"s_add_u32 s{d}, s{ptr}, {off}\ns_addc_u32 s{d+1}, s{ptr+1}, 0")
    else: a(f"s_mov_b32 s{d}, s{ptr}\ns_mov_b32 s{d+1}, s{ptr+1}")
    a(f"s_mov_b32 s{d+2}, {size}\ns_mov_b32 s{d+3}, 0x20000")
def entry(a):
    a(f"""
    s_load_dwordx8 s[64:71], s[0:1], 0
    s_load_dwordx4 s[72:75], s[0:1], 32
    s_load_dwordx4 s[92:95], s[0:1], 64
    s_load_dwordx2 s[96:97], s[0:1], 80
    s_load_dwordx4 s[4:7], s[0:1], 88
    v_lshrrev_b32 v1, 6, v0
    v_readfirstlane_b32 {sW}, v1
    v_and_b32 v0, 63, v0
    s_waitcnt lgkmcnt(0)
    """)
    srd(a,sWS,6,WS_BYTES)
def mf(d,A,B,C): return f"v_mfma_f32_16x16x32_bf16 {d}, {A}, {B}, {C}"
def cv(d,x,y): return f"v_cvt_pk_bf16_f32 v{d}, v{x}, v{y}"

class Frags:
    def __init__(self, vbase, first=0): self.vbase=vbase; self.first=first
    def reg(self,i,n=4):
        b=4*(i+self.first)
        return (("a",b) if b<256 else ("v",self.vbase+b-256))
    def op(self,i):
        k,b=self.reg(i); return f"{k}[{b}:{b+3}]"

def load_blocks(a, blocks, lds_base, vtr, ring=4):
    nd=[len(b[0]) for b in blocks]
    def issue(bi):
        pos=0
        for (va,s,sb,c,bl) in blocks[bi][0]:
            a(f"s_add_u32 {T0}, {sb}, {c}\ns_add_u32 m0, {T3}, {(bi%ring)*4096+pos}")
            a(f"buffer_load_dword{'x4' if bl==16 else ''} {va}, {s}, {T0} offen lds")
            pos+=64*bl
        assert pos<=4096
    n=len(blocks)
    for bi in range(min(ring-1,n)): issue(bi)
    for bi in range(n):
        if bi+ring-1<n:
            a("s_waitcnt lgkmcnt(0)"); issue(bi+ring-1)
        left=sum(nd[bi+1:min(n,bi+ring)])
        a(f"s_waitcnt vmcnt({min(left,63)})")
        for (t,k,rb) in blocks[bi][1]:
            for qd in range(4):
                a(f"ds_read_b64_tr_b16 {k}[{rb+2*qd}:{rb+2*qd+1}], {vtr} offset:{(bi%ring)*4096+t*32+(qd&1)*256+(qd>>1)*2048}")
        if len(blocks[bi])>2 and blocks[bi][2]:
            a("s_waitcnt lgkmcnt(0)")
            for x in blocks[bi][2]: a(x)
    a("s_waitcnt lgkmcnt(0)")
def tr_addr(a, vtr, t0, t1, lds_base, sh=14):
    a(f"""
    s_lshl_b32 {T3}, {sW}, {sh}
    s_add_u32 {T3}, {T3}, {lds_base}
    v_lshrrev_b32 {t0}, 4, v0
    v_bfe_u32 {t1}, v0, 2, 2
    v_lshl_add_u32 {t0}, {t0}, 3, {t1}
    v_lshlrev_b32 {t0}, 6, {t0}
    v_and_b32 {t1}, 3, v0
    v_lshl_add_u32 {t0}, {t1}, 3, {t0}
    v_add_u32 {vtr}, {T3}, {t0}
    """)

XF_T=1088
def xfrag(k,T): return (2*k+T)*XF_T
XF_BYTES=36*XF_T
def ln_consts(a, vSrc, vRaw, vDst, vRd, t0, t1, raw_base, xf_base):
    a(f"""
    v_lshrrev_b32 {t0}, 3, v0
    v_and_b32 {t1}, 7, v0                  ; chunk
    s_lshl_b32 {T0}, {sW}, 3
    v_add_u32 {t0}, {T0}, {t0}             ; token 0..31
    v_mul_u32_u24 {vSrc}, 1152, {t0}
    v_lshl_add_u32 {vSrc}, {t1}, 4, {vSrc}
    s_mul_i32 {T0}, {sW}, 9216
    s_add_u32 {T0}, {T0}, {raw_base}
    v_lshlrev_b32 {vRaw}, 4, v0
    v_add_u32 {vRaw}, {T0}, {vRaw}
    v_and_b32 {vDst}, 15, {t0}
    v_lshlrev_b32 {vDst}, 4, {vDst}
    v_lshrrev_b32 {t0}, 4, {t0}            ; T
    v_lshrrev_b32 {vRd}, 2, {t1}
    v_lshl_add_u32 {t0}, {vRd}, 1, {t0}
    v_mul_u32_u24 {t0}, {XF_T}, {t0}
    v_and_b32 {t1}, 3, {t1}
    v_mul_u32_u24 {t1}, 272, {t1}
    v_add3_u32 {vDst}, {vDst}, {t0}, {t1}
    v_add_u32 {vDst}, {xf_base}, {vDst}
    v_lshrrev_b32 {t0}, 4, v0
    v_mul_u32_u24 {t0}, 272, {t0}
    v_and_b32 {t1}, 15, v0
    v_lshl_add_u32 {t0}, {t1}, 4, {t0}
    v_add_u32 {vRd}, {xf_base}, {t0}
    """)
def ln_fetch(a, vSrc, srd_, sOff, raw_base, fl="sc1", later=None):
    a(f"s_mul_i32 {T1}, {sW}, 9216\ns_add_u32 {T1}, {T1}, {raw_base}")
    ops=[f"s_add_u32 m0, {T1}, {896*i}\ns_nop 0\nbuffer_load_dwordx4 {vSrc}, {srd_}, {sOff} offen offset:{128*i} {fl} lds" for i in range(9)]
    if later is not None: later+=ops
    else:
        for x in ops: a(x)
def ln_stage(a, vRaw, vDst, R, pre_write=None):
    for i in range(9): a(f"ds_read_b128 {q(R+4*i)}, {vRaw} offset:{1024*i}")
    s1,s2,s3,s4,one,lo,hi=[R+36+i for i in range(7)]
    a(f"v_mov_b32 v{one}, 0x3f803f80")
    for r in (s1,s2,s3,s4): a(f"v_mov_b32 v{r}, 0")
    for i in range(9):
        a(f"s_waitcnt lgkmcnt({8-i})")
        for j in range(4):
            r=R+4*i+j
            a(f"v_dot2c_f32_bf16 v{(s1,s3)[j&1]}, v{r}, v{one}\nv_dot2c_f32_bf16 v{(s2,s4)[j&1]}, v{r}, v{r}")
    a("s_nop 2")
    a(f"v_add_f32 v{s1}, v{s1}, v{s3}\nv_add_f32 v{s2}, v{s2}, v{s4}")
    for pat in ("quad_perm:[1,0,3,2]","quad_perm:[2,3,0,1]","row_half_mirror"):
        for r in (s1,s2): a(f"v_add_f32_dpp v{r}, v{r}, v{r} {pat} {DPP}")
    a(f"""
    v_mul_f32 v{s1}, {hex(f2u(1/576))}, v{s1}          ; mean
    v_mul_f32 v{s3}, v{s1}, v{s1}
    v_mul_f32 v{s2}, {hex(f2u(1/576))}, v{s2}
    v_sub_f32 v{s2}, v{s2}, v{s3}
    v_max_f32 v{s2}, 0, v{s2}
    v_add_f32 v{s2}, {hex(f2u(1e-5))}, v{s2}
    v_rsq_f32 v{s2}, v{s2}
    s_nop 0
    v_mul_f32 v{s3}, v{s1}, v{s2}
    v_sub_f32 v{s3}, 0, v{s3}
    """)
    if pre_write: pre_write()
    for i in range(9):
        for j in range(4):
            r=R+4*i+j
            t=R+44+2*(j&1)
            a(f"""v_lshlrev_b32 v{t}, 16, v{r}
            v_and_b32 v{t+1}, 0xffff0000, v{r}
            v_pk_fma_f32 v[{t}:{t+1}], v[{t}:{t+1}], v[{s1}:{s2}], v[{s3}:{s4}] op_sel:[0,1,0] op_sel_hi:[1,1,0]""")
            if j&1: a(cv(r-1,t-2,t-1)); a(cv(r,t,t+1))
        a(f"ds_write_b128 {vDst}, {q(R+4*i)} offset:{4*i*XF_T}")

sXc="s3"
def announce(a, t=("v10","v11"), wait="s_waitcnt vmcnt(0)"):
    sk=a.lab("ann")
    a(f"""{wait}
    s_barrier
    s_cmp_eq_u32 {sW}, 0
    s_cbranch_scc0 {sk}
    v_mov_b32 {t[0]}, s2
    v_mov_b32 {t[1]}, {sXc}
    s_mov_b64 exec, 1
    global_store_byte {t[0]}, {t[1]}, s[4:5] sc1
    s_mov_b64 exec, -1
    {sk}:""")
def elect(a, fail, out, t=("v10","v11","v12","v13","v14","v15"), lane="v0", sampled=False):
    lp,wl,wd,ch=a.lab("el"),a.lab("elw"),a.lab("eld"),a.lab("elc")
    ad,dv,b=t[0],t[1],t[2:6]
    a(f"v_lshlrev_b32 {ad}, 2, {lane}\ns_mov_b32 {T3}, 0")
    if sampled: a(f"s_branch {lp}s")
    a(f"{lp}:\nglobal_load_dword {dv}, {ad}, s[4:5] sc1")
    a(f"s_add_u32 {T3}, {T3}, 1\ns_cmp_gt_u32 {T3}, 4000000\ns_cbranch_scc1 {fail}\ns_waitcnt vmcnt(0)\n{lp}s:")
    for i in range(4): a(f"v_bfe_u32 {b[i]}, {dv}, {8*i}, 8")
    a(f"v_min_u32 {dv}, {b[0]}, {b[1]}\nv_min3_u32 {dv}, {dv}, {b[2]}, {b[3]}\nv_cmp_eq_u32 vcc, 0, {dv}\ns_cbranch_vccnz {lp}")
    a(f"s_mov_b32 {T2}, 0\n{wl}:\ns_add_u32 {T2}, {T2}, 1\ns_mov_b32 {T1}, 0")
    for i in range(4): a(f"v_cmp_eq_u32 vcc, {T2}, {b[i]}\ns_bcnt1_i32_b64 {T0}, vcc\ns_add_u32 {T1}, {T1}, {T0}")
    a(f"s_cmp_ge_u32 {T2}, 16\ns_cbranch_scc1 {fail}\ns_cmp_lt_u32 {T1}, 32\ns_cbranch_scc1 {wl}")
    a(f"s_mov_b32 {T1}, 0\ns_mov_b32 {T3}, 0")
    for i in range(4):
        a(f"""v_cmp_gt_u32 vcc, {sXc}, {b[i]}
        s_bcnt1_i32_b64 {T0}, vcc
        s_add_u32 {T3}, {T3}, {T0}
        v_add_u32 {dv}, {i}, {ad}
        v_cmp_gt_u32 s[16:17], s2, {dv}
        v_cmp_eq_u32 vcc, {sXc}, {b[i]}
        s_and_b64 vcc, vcc, s[16:17]
        s_bcnt1_i32_b64 {T0}, vcc
        s_add_u32 {T1}, {T1}, {T0}""")
    a(f"""s_add_u32 {out}, {T1}, {T3}
    s_cmp_gt_u32 {T2}, {sXc}
    s_cselect_b32 {T0}, 32, 0
    s_add_u32 {out}, {out}, {T0}
    s_cmp_lg_u32 {T2}, {sXc}
    s_cbranch_scc1 {wd}
    s_cmp_lt_u32 {T1}, 32
    s_cselect_b32 {out}, {T1}, {out}
    {wd}:""")

sCnt="s38"; SPIN=3000000
def wait_flags(a, so, n, shift, val, fail, every_wave=False, sleep=1, t=("v10","v11"), rows=1):
    lp,ok=a.lab("wf"),a.lab("wfo")
    if not every_wave: a(f"s_cmp_lg_u32 {sW}, 0\ns_cbranch_scc1 {ok}")
    a(f"v_min_u32 {t[0]}, {n-1}, v0\nv_lshlrev_b32 {t[0]}, {shift}, {t[0]}")
    for r in range(rows):
        l2=f"{lp}_{r}"; l3=f"{lp}_{r}f"
        a(f"s_branch {l3}\n{l2}:")
        if sleep: a(f"s_sleep {sleep}")
        a(f"""{l3}:
        buffer_load_dword {t[1]}, {t[0]}, {sWS}, {so} offen offset:{256*r} sc1
        s_add_u32 {sCnt}, {sCnt}, 1
        s_cmp_gt_u32 {sCnt}, {SPIN}
        s_cbranch_scc1 {fail}
        s_waitcnt vmcnt(0)
        v_cmp_gt_u32 vcc, {val}, {t[1]}
        s_cbranch_vccnz {l2}""")
    if not every_wave: a(f"{ok}:\ns_barrier")
def put_flag(a, so, val, t=("v10","v11")):
    a(f"v_mov_b32 {t[0]}, 0\nv_mov_b32 {t[1]}, {val}\ns_mov_b64 exec, 1\nbuffer_store_dword {t[1]}, {t[0]}, {sWS}, {so} offen sc1\ns_mov_b64 exec, -1")
def signal(a, so, val, synced=False):
    sk=a.lab("sg")
    if not synced: a("s_waitcnt vmcnt(0)\ns_barrier")
    a(f"s_cmp_lg_u32 {sW}, 0\ns_cbranch_scc1 {sk}"); put_flag(a,so,val); a(f"{sk}:")

def spoll(a, so, fail, sleep, bad, every_wave=False):
    lp,ok=a.lab("sp"),a.lab("spo")
    if not every_wave: a(f"s_cmp_lg_u32 {sW}, 0\ns_cbranch_scc1 {ok}")
    a(f"""s_branch {lp}f
    {lp}:
    s_sleep {sleep}
    {lp}f:
    s_load_dword s39, s[8:9], {so} glc
    s_add_u32 {sCnt}, {sCnt}, 1
    s_cmp_gt_u32 {sCnt}, {SPIN}
    s_waitcnt lgkmcnt(0)
    s_cbranch_scc1 {fail}
    s_cmp_eq_u32 s39, {bad}
    s_cbranch_scc1 {lp}""")
    if not every_wave: a(f"{ok}:")

PROF={"on":None}
CSR=[76,78,84,86,54,56,58,16,98]
def cs(a, tag, k):
    if PROF["on"]==tag: a((f"s_memtime s[{CSR[k]}:{CSR[k]+1}] ; nochk"))
def cs_dump(a, tag):
    if PROF["on"]!=tag: return
    a(f"s_waitcnt lgkmcnt(0)\ns_lshl_b32 {T0}, {sI}, 2\ns_add_u32 {T0}, {T0}, {sW}\ns_lshl_b32 {T0}, {T0}, 6\ns_add_u32 {T0}, {T0}, {OFF_TS+0x20000}\nv_mov_b32 v10, {T0}\ns_mov_b64 exec, 1")
    for k in range(9): a(f"v_mov_b32 v11, s{CSR[k]}\nglobal_store_dword v10, v11, s[6:7] offset:{4*k}\ns_nop 1")
    a("s_mov_b64 exec, -1")

def coop_blocks(a, blocks, slot, tmp, wq, hooks={}):
    n=len(blocks); NB=4
    def issue(bi):
        for i,(va,s_,sb,c) in enumerate(blocks[bi][0]):
            a(f"s_add_u32 {T0}, {sb}, {c}")
            a(f"s_add_u32 m0, {wq}, {slot(bi%NB)+1024*i}" if isinstance(wq,str) else f"s_mov_b32 m0, {wq+slot(bi%NB)+1024*i}")
            a(f"buffer_load_dwordx4 {va}, {s_}, {T0} offen lds")
    a("s_barrier")
    for bi in range(min(NB-1,n)): issue(bi)
    for bi in range(n):
        if bi in hooks: hooks[bi]()
        a(f"s_waitcnt vmcnt({4*(min(n,bi+NB-1)-bi-1)}) lgkmcnt(0)\ns_barrier")
        if bi+NB-1<n: issue(bi+NB-1)
        cur={}
        for (vb,k,rb,offs,post) in blocks[bi][1]:
            if vb not in cur:
                cur[vb]=tmp[len(cur)]; a(f"v_add_u32 {cur[vb]}, {slot(bi%NB)}, {vb}")
            for qd in range(4): a(f"ds_read_b64_tr_b16 {k}[{rb+2*qd}:{rb+2*qd+1}], {cur[vb]} offset:{offs[qd]}")
            if post:
                a("s_waitcnt lgkmcnt(0)")
                for x in post: a(x)
    a("s_waitcnt lgkmcnt(0)\ns_barrier")
QKV_OFFS=[(qd&1)*1024+(qd>>1)*8192 for qd in range(4)]
def coop_qkv_addr(a, lane, w4, vchunk, vt0, vt1, t0, t1):
    a(f"""
    v_lshrrev_b32 {t0}, 4, {lane}
    v_and_b32 {t1}, 15, {lane}
    v_lshlrev_b32 {vchunk}, 1, {t0}
    v_xor_b32 {vchunk}, {vchunk}, {t1}
    v_lshlrev_b32 {vchunk}, 4, {vchunk}
    v_bfe_u32 {t1}, {lane}, 2, 3           ; r + 4(g&1)
    v_lshlrev_b32 {t1}, 1, {t1}
    v_bfe_u32 {vt1}, {lane}, 1, 1
    v_add_u32 {vt1}, {w4}, {vt1}
    v_xor_b32 {vt1}, {vt1}, {t1}
    v_lshlrev_b32 {vt1}, 4, {vt1}
    v_and_b32 {t1}, 1, {lane}
    v_lshl_add_u32 {vt1}, {t1}, 3, {vt1}
    v_bfe_u32 {t1}, {lane}, 2, 2
    v_lshl_add_u32 {t0}, {t0}, 3, {t1}
    v_lshl_add_u32 {vt0}, {t0}, 8, {vt1}
    v_xor_b32 {vt1}, 32, {vt0}
    """)
```

```python
import sys
from wk import *
import wk, a1, a2p, awo, bqkv, batt, battp, bwo
import chain as C
from stages import compact, KD, CH_CFG
NAME="interleave_layers__memory_aug_recurrent_mem_tr__mha_block__prompt_kernel"
XB_=2048*1152
sLay,sJ,sLo="s23","s22","s20"
NA,NW,NB=3,7,4
def stamp(a, cfg, k, r=10):
    if not cfg.get("ts"): return
    sk=a.lab("ts")
    a(f"""s_cmp_lg_u32 {sW}, 0
    s_cbranch_scc1 {sk}
    s_memrealtime s[98:99]
    s_lshl_b32 s100, {sLay}, 4
    s_add_u32 s100, s100, {k}
    s_lshl_b32 s100, s100, 8
    s_add_u32 s100, s100, s101
    s_lshl_b32 s100, s100, 2
    s_add_u32 s100, s100, {OFF_TS}
    s_waitcnt lgkmcnt(0)
    v_mov_b32 v{r}, s100
    v_mov_b32 v{r+1}, s98
    s_mov_b64 exec, 1
    global_store_dword v{r}, v{r+1}, s[6:7]
    s_memtime s[98:99]
    v_add_u32 v{r}, 0x8000, v{r}
    s_waitcnt lgkmcnt(0)
    v_mov_b32 v{r+1}, s98
    global_store_dword v{r}, v{r+1}, s[6:7]
    s_mov_b64 exec, -1
    {sk}:""")
sVer="s19"
def verify(a, cfg, fail, cur, r=12, sampled=False):
    ok=a.lab("ver")
    a(f"s_cmp_lg_u32 {sVer}, 0\ns_cbranch_scc1 {ok}\ns_mov_b32 {sVer}, 1\nv_mbcnt_lo_u32_b32 v{r+6}, -1, 0\nv_mbcnt_hi_u32_b32 v{r+6}, -1, v{r+6}")
    elect(a,fail,"s18",t=[f"v{r+i}" for i in range(6)],lane=f"v{r+6}",sampled=sampled)
    a(f"s_add_u32 {T0}, {sI}, {cur}\ns_cmp_eq_u32 {T0}, s18\ns_cbranch_scc1 {ok}\ns_mov_b32 {sI}, s18\ns_mov_b32 s10, {WS_BYTES}\ns_waitcnt vmcnt(0) lgkmcnt(0)\ns_branch k_role\n{ok}:")
def div7(a, dq, dr, x): a(f"s_mul_i32 {dq}, {x}, 9363\ns_lshr_b32 {dq}, {dq}, 16\ns_mul_i32 {T0}, {dq}, 7\ns_sub_u32 {dr}, {x}, {T0}")
def worker(a, cfg):
    F="w_fail"; sTm,sR="s39","s37"
    def layer_base(): a(f"s_mul_i32 {T0}, {sLay}, {LAYER_STRIDE}\ns_add_u32 s8, s6, {T0}\ns_addc_u32 s9, s7, 0\ns_mov_b32 s10, {LAYER_SPAN}")
    def next_layer(lbl):
        stamp(a,cfg,8); srd(a,sX,6,XB_,OFF_X2)
        a(f"s_add_u32 {sLay}, {sLay}, 1\ns_cmp_lt_u32 {sLay}, 2\ns_cbranch_scc1 {lbl}\ns_branch {F}")
    a(f"worker:\ns_sub_u32 {sI}, {sI}, 32\ns_mov_b32 {sCnt}, 0")
    srd(a,sX,P_X,XB_); srd(a,sD,6,WS_BYTES)
    a(f"s_cmp_ge_u32 {sI}, 128\ns_cbranch_scc1 w_pipe")
    a(f"s_lshr_b32 {a1.sHd}, {sI}, 2\ns_and_b32 {sJ}, {sI}, 3")
    a1.load_qkv(a,"kv")
    a("g_layer:"); layer_base()
    a(f"s_mov_b32 {a1.sSeg}, {sJ}\ns_barrier")
    a1.consts(a); a1.load_qkv(a,"q")
    stamp(a,cfg,1); verify(a,cfg,F,32); stamp(a,cfg,0)
    def wait_x(sg):
        sk=a.lab("nx")
        a(f"s_cmp_eq_u32 {sLay}, 0\ns_cbranch_scc1 {sk}\ns_lshl_b32 {T3}, {sg}, 12\ns_add_u32 {T3}, {T3}, {F_X2}")
        wait_flags(a,T3,3,7,1,F,every_wave=True); a(f"{sk}:")
    wait_x(a1.sSeg); a1.fetch(a,a1.sSeg)
    a("s_mov_b32 s30, 0x40000000\ns_waitcnt vmcnt(0)\nw_a1:")
    def nxt(later):
        sk=a.lab("nx")
        a(f"s_add_u32 {T2}, {a1.sSeg}, 4\ns_min_u32 {T2}, {T2}, 63\ns_cmp_ge_u32 {a1.sSeg}, 32\ns_cbranch_scc1 {sk}")
        a(f"s_cmp_lt_u32 {a1.sSeg}, 28\ns_cbranch_scc1 {sk}o\ns_cmp_eq_u32 {sLay}, 0\ns_cbranch_scc1 {sk}\ns_mov_b32 {T3}, {F_X2}")
        for c in range(3):
            wait_flags(a,T3,64,12,1,F,every_wave=True); a(f"s_add_u32 {T3}, {T3}, 128")
        a(f"s_branch {sk}\n{sk}o:"); wait_x(T2); a(f"{sk}:"); a1.fetch(a,T2,later)
    def sig(i):
        if i==1: signal(a,"s30",2,synced=True)
        else:
            a(f"s_lshl_b32 s30, {a1.sHd}, 6\ns_add_u32 s30, s30, {a1.sSeg}\ns_lshl_b32 s30, s30, 4\ns_add_u32 s30, s30, {F_KV}"); signal(a,"s30",1)
    a1.segment(a,0,nxt,sig); cs(a,"a1",7)
    a(f"s_add_u32 {a1.sSeg}, {a1.sSeg}, 4\ns_cmp_lt_u32 {a1.sSeg}, 64\ns_cbranch_scc1 w_a1")
    signal(a,"s30",2); cs_dump(a,"a1")
    stamp(a,cfg,2)
    def bw_task(idx):
        a(f"s_mul_i32 {bwo.sSeg}, {idx}, 43691\ns_lshr_b32 {bwo.sSeg}, {bwo.sSeg}, 17\ns_mul_i32 {T0}, {bwo.sSeg}, 3\ns_sub_u32 {bwo.sCg}, {idx}, {T0}")
    a(f"s_cmp_eq_u32 {sLay}, 0\ns_cbranch_scc1 g_att\ns_add_u32 {T1}, {sI}, 64"); bw_task(T1); bwo.load_w(a)
    a(f"g_att:\ns_lshr_b32 {batt.sHd}, {sI}, 2\ns_mov_b32 {batt.sJ}, {sJ}")
    battp.consts(a)
    def stored(lo,hi):
        sk=a.lab("st")
        a(f"""s_cmp_eq_u32 {lo}, {hi}
        s_cbranch_scc1 {sk}
        s_lshl_b32 {T3}, {sW}, 2
        s_add_u32 {T3}, {T3}, {sJ}
        s_lshl_b32 {T3}, {T3}, 5
        s_add_u32 {T3}, {T3}, {batt.sHd}
        s_lshl_b32 {T3}, {T3}, 7
        s_add_u32 {T3}, {T3}, {F_BO}
        v_lshlrev_b32 v10, 16, v0
        v_mov_b32 v11, 1
        s_bfm_b64 exec, {hi}, 0
        s_waitcnt vmcnt(0)
        buffer_store_dword v11, v10, {sWS}, {T3} offen sc1
        s_mov_b64 exec, -1
        {sk}:""")
    battp.run(a,F,cfg.get("lrange",120<<23),stored,cfg.get("sl_batt",2))
    cs_dump(a,"bp"); stamp(a,cfg,5)
    a(f"s_cmp_eq_u32 {sLay}, 0\ns_cbranch_scc1 g_next\ns_add_u32 {T1}, {sI}, 64"); bw_task(T1); a("s_branch w_bw0\ng_next:")
    next_layer("g_layer")
    a(f"w_pipe:\ns_sub_u32 {T0}, {sI}, 128\ns_lshr_b32 {sTm}, {T0}, 5\ns_and_b32 {sR}, {T0}, 31\ns_cmp_lt_u32 {sR}, 21\ns_cbranch_scc1 p_layer")
    a(f"s_mul_i32 {a1.sHd}, {sTm}, 11\ns_add_u32 {a1.sHd}, {a1.sHd}, {sR}\ns_sub_u32 {a1.sHd}, {a1.sHd}, 21\ns_min_u32 {a1.sHd}, {a1.sHd}, 31")
    a1.consts(a); a1.load_qkv(a,"kv")
    stamp(a,cfg,1); verify(a,cfg,F,32)
    a(f"s_cmp_lg_u32 {sI}, 223\ns_cbranch_scc1 a2_go\ns_mov_b32 {sLay}, 1"); layer_base(); a(f"s_mov_b32 {T1}, 63\ns_branch w_bwo\na2_go:")
    a2p.consts(a)
    a("a2_layer:"); layer_base()
    def qready(pair):
        a(f"""s_lshr_b32 {T3}, {sW}, 1
        s_add_u32 {T3}, {T3}, {pair}
        s_lshl_b32 {T3}, {T3}, 4
        s_add_u32 {T3}, {T3}, s27""")
        wait_flags(a,T3,1,2,2,F,every_wave=True,sleep=4)
    def ready(pair):
        rdy=a.lab("a2r")
        a(f"""v_cmp_lt_u32 vcc, 1, v7
        s_lshr_b32 {T3}, {sW}, 1
        s_add_u32 {T3}, {T3}, {pair}
        s_cmp_ge_u32 {T3}, 64
        s_cbranch_scc1 {rdy}
        s_bitcmp1_b64 vcc, {T3}
        s_cbranch_scc1 {rdy}""")
        qready(pair); a(f"{rdy}:")
    def flag_prev():
        a(f"""s_sub_u32 s50, {a1.sSeg}, 2
        v_add_u32 v10, s50, v0
        v_cmp_gt_u32 vcc, 64, v10
        v_lshlrev_b32 v10, 12, v10
        v_mov_b32 v11, 1
        s_lshl_b32 s50, {a1.sHd}, 7
        s_add_u32 s50, s50, {F_O}
        s_cmp_eq_u32 {sW}, 0
        s_cselect_b32 s50, s50, {a2p.OOB}
        v_cndmask_b32 v10, v8, v10, vcc
        s_mov_b64 exec, 3
        buffer_store_dword v11, v10, {sWS}, s50 offen sc1
        s_mov_b64 exec, -1""")
    a(f"s_mov_b32 {a1.sSeg}, {-1 if cfg.get('odd',0) else 0}\ns_lshl_b32 s27, {a1.sHd}, 10\ns_add_u32 s27, s27, {F_KV}\nv_mov_b32 v8, 0x20000000\nv_mov_b32 v7, 0")
    ready(a1.sSeg); a2p.addrs(a,a1.sSeg)
    for x in a2p.kv_loads(0)+a2p.q_loads(): a(x)
    a("s_waitcnt vmcnt(0)\nw_a2:")
    for vb in range(2):
        a2p.body(a,vb,F,lambda: a(f"buffer_load_dword v7, {a1.vL16}, {sWS}, s27 offen sc1"),flag_prev,ready,cfg.get("vp_sl",1))
        a(f"s_add_u32 {a1.sSeg}, {a1.sSeg}, 2")
        if vb==(0 if cfg.get('odd',0) else 1): a(f"s_cmp_ge_u32 {a1.sSeg}, 64\ns_cbranch_scc1 w_a2e")
    a("s_branch w_a2\nw_a2e:\ns_waitcnt vmcnt(0)\ns_barrier"); flag_prev()
    cs(a,'a2_0',8); cs_dump(a,'a2_0'); cs_dump(a,'a2_1')
    stamp(a,cfg,3)
    next_layer("a2_layer")
    a(f"p_layer:\ns_cmp_ge_u32 {sR}, 12\ns_cbranch_scc1 w_bqr")
    a(f"""s_mul_i32 {T0}, {sTm}, 3
    s_add_u32 {T0}, {T0}, {sR}
    s_sub_u32 {T0}, {T0}, 9
    s_cmp_lt_u32 {sR}, 9
    s_cselect_b32 {awo.sCg}, {sR}, {T0}
    s_cselect_b32 s33, {sTm}, 3""")
    awo.consts(a); awo.load_w(a)
    stamp(a,cfg,1); verify(a,cfg,F,32)
    a(f"v_and_b32 v7, 7, v0\ns_lshl_b32 {T0}, {sW}, 3\nv_add_u32 v7, {T0}, v7\nv_lshlrev_b32 v7, 7, v7")
    a("aw_layer:"); layer_base(); a(f"s_mov_b32 {awo.sTask}, s33")
    def oflag(dst,task): a(f"s_lshr_b32 {dst}, {task}, 1\ns_lshl_b32 {dst}, {dst}, 12\ns_add_u32 {dst}, {dst}, {F_O}")
    def xsig():
        a(f"s_barrier\ns_cmp_lg_u32 {sW}, 0\ns_cselect_b32 s31, 0x40000000, s31"); put_flag(a,"s31",1)
    a("w_awo_wait:"); oflag(T3,awo.sTask)
    a(f"s_lshl_b32 {T0}, {sW}, 10\ns_add_u32 {T3}, {T3}, {T0}")
    wait_flags(a,T3,8,7,1,F,every_wave=True,sleep=cfg.get("sl_w",1))
    cs(a,"awo",0); awo.issue(a)
    a(f"s_mov_b32 s31, 0x40000000"); put_flag(a,"s31",1)
    a(f"w_awo:\ns_add_u32 s32, {awo.sTask}, 4"); oflag("s30","s32")
    awo.task(a,0,1,lambda: a(f"buffer_load_dword v8, v7, {sWS}, s30 offen sc1"))
    a(f"""s_lshr_b32 s31, {awo.sTask}, 1
    s_lshl_b32 s31, s31, 5
    s_and_b32 {T0}, {awo.sTask}, 1
    s_mul_i32 {T0}, {T0}, 9
    s_add_u32 s31, s31, {T0}
    s_add_u32 s31, s31, {awo.sCg}
    s_lshl_b32 s31, s31, 7
    s_add_u32 s31, s31, {F_X1}
    s_mov_b32 {awo.sTask}, s32
    v_cmp_eq_u32 vcc, 0, v8
    s_cmp_ge_u32 s32, 128
    s_cbranch_scc1 w_awo_sync
    s_cbranch_vccnz w_awo_sync""")
    cs(a,"awp",0); awo.issue(a); cs(a,"awp",1); a(f"s_waitcnt vmcnt({awo.NI})"); cs(a,"awp",2); xsig(); cs(a,"awp",3); a("s_branch w_awo")
    a("w_awo_sync:\ns_waitcnt vmcnt(0)"); cs(a,"awo",6); xsig(); cs(a,"awo",7)
    a(f"s_cmp_lt_u32 {awo.sTask}, 128\ns_cbranch_scc1 w_awo_wait")
    cs_dump(a,"awo"); cs_dump(a,"awp"); stamp(a,cfg,3)
    a(f"s_mul_i32 {T1}, {sTm}, 12\ns_add_u32 {T1}, {T1}, {sR}\ns_add_u32 {T1}, {T1}, 27\ns_cmp_lg_u32 {sLay}, 0\ns_cbranch_scc1 w_bwo")
    next_layer("aw_layer")
    def bq_ids():
        a(f"s_mul_i32 {T1}, {sTm}, 9\ns_add_u32 {T1}, {T1}, {sR}\ns_sub_u32 {T1}, {T1}, 12"); bw_task(T1)
    a("w_bqr:"); bq_ids(); bwo.load_w(a)
    a(f"s_sub_u32 {bqkv.sU}, {sR}, 12"); bqkv.load_w(a)
    stamp(a,cfg,1); verify(a,cfg,F,32)
    a("bq_layer:"); layer_base()
    a(f"s_mov_b32 {a1.sSeg}, {sTm}\ns_sub_u32 {bqkv.sU}, {sR}, 12\ns_lshl_b32 s30, {bqkv.sU}, 8\ns_add_u32 s30, s30, {F_BQ}")
    srd(a,sX,8,XB_,OFF_X1)
    a1.consts(a); bqkv.load_w(a,False)
    a(f"w_bq:\ns_lshl_b32 {T3}, {a1.sSeg}, 12\ns_add_u32 {T3}, {T3}, {F_X1}")
    wait_flags(a,T3,18,7,1,F,sleep=cfg.get("sl_w",1))
    cs(a,"bq",0); a1.fetch(a,a1.sSeg); cs(a,"bq",1)
    bqkv.segment(a,0,lambda:None); cs(a,"bq",5)
    a(f"s_lshl_b32 {T3}, {a1.sSeg}, 2\ns_add_u32 {T3}, {T3}, s30")
    signal(a,T3,1); cs(a,"bq",6)
    a(f"s_add_u32 {a1.sSeg}, {a1.sSeg}, 3\ns_cmp_lt_u32 {a1.sSeg}, 64\ns_cbranch_scc1 w_bq")
    cs_dump(a,"bq"); stamp(a,cfg,3)
    bq_ids(); a("s_branch w_bw0")
    a("w_bwo:"); bw_task(T1); a("s_barrier"); bwo.load_w(a)
    a("w_bw0:")
    srd(a,sX,8,XB_,OFF_X1)
    bwo.consts(a)
    srd(a,sB,6,XB_,OFF_X2)
    a(f"s_cmp_eq_u32 {sLay}, 0\ns_cbranch_scc1 w_bw1"); srd(a,sB,P_OUT,XB_)
    a(f"w_bw1:\ns_mov_b32 s10, {LAYER_STRIDE+LAYER_SPAN}")
    stamp(a,cfg,6)
    a(f"s_lshl_b32 {T3}, {bwo.sSeg}, 12\ns_add_u32 {T3}, {T3}, {F_X1}")
    wait_flags(a,T3,18,7,1,F,sleep=8)
    a("w_bw2:"); bwo.resid_loads(a)
    a(f"s_lshl_b32 {T3}, {bwo.sSeg}, 12\ns_add_u32 {T3}, {T3}, {F_BO}")
    cs(a,"bw",0); wait_flags(a,T3,32,7,1,F); cs(a,"bw",1)
    bwo.task(a,0,sB,0,"sc1"); cs(a,"bw",5)
    a(f"s_lshl_b32 {T3}, {bwo.sSeg}, 5\ns_add_u32 {T3}, {T3}, {bwo.sCg}\ns_lshl_b32 {T3}, {T3}, 7\ns_add_u32 {T3}, {T3}, {LAYER_STRIDE+F_X2}")
    a(f"s_cmp_eq_u32 {sLay}, 0\ns_cbranch_scc0 w_bw5")
    signal(a,T3,1)
    a(f"s_cmp_ge_u32 {bwo.sSeg}, 9\ns_cbranch_scc1 w_bw4"); stamp(a,cfg,7)
    a(f"w_bw4:\ns_add_u32 {bwo.sSeg}, {bwo.sSeg}, 9\ns_cmp_lt_u32 {bwo.sSeg}, 64\ns_cbranch_scc1 w_bw2\nw_bw5:"); cs_dump(a,"bw")
    next_layer("bq_layer")
    a(f"{F}:\ns_waitcnt vmcnt(0) lgkmcnt(0)\ns_endpgm")

def chain(a, cfg):
    cc=dict(CH_CFG); cc["prepoison"]=1; cc.update(cfg.get("chain",{}))
    sLo_,sFk="s52","s53"; RDY="s[50:51]"
    srd(a,sX,P_MEM,9216); srd(a,sA,P_WQ,4718592); srd(a,sB,P_WK,4718592); srd(a,sC_,P_WV,4718592); srd(a,sD,P_WO,4718592)
    a(f"s_mov_b32 {sLo_}, 0\ns_mov_b32 {C.sCnt}, 0")
    for w in (1,2,3): a(f"s_cmp_eq_u32 {sW}, {w}\ns_cbranch_scc1 c_w{w}")
    for w in range(4):
        pre=f"ch{w}"; F=f"{pre}_fail"
        a(f"c_w{w}:")
        C.prologue_consts(a,w)
        vb=cfg.get("vblock",14)
        def ask():
            a("v_lshlrev_b32 v40, 2, v10\nglobal_load_dword v41, v40, s[4:5] sc1"); C.fetch_mem0(a,w,sX,"v10")
        def check():
            verify(a,cfg,F,0,40,True); stamp(a,cfg,0,48)
            C.init_comm(a,w,False); C.store_mem0(a,w,[C.held(0),"v10"])
        C.load_weights(a,w,{"q":sA,"k":sB,"v":sC_,"o":sD},{3:lambda: announce(a,("v40","v41"),"s_nop 0"),vb-4:ask,vb:check})
        stamp(a,cfg,1,12)
        a(f"v_mov_b32 v11, v10\n{pre}_layer:")
        C.set_layer(a,w,sLo_)
        fload=f"buffer_load_dword v11, {C.vL16}, {sWS}, {sFk} offen sc1"
        def kvwait(lbl, back, bit, sleep):
            a(f"{lbl}:"); a(fload); C.spin_guard(a,F)
            if sleep: a(f"s_sleep {sleep}")
            a(f"s_waitcnt vmcnt(0)\nv_cmp_ne_u32 {RDY}, 0, v11\ns_nop 0\ns_bitcmp1_b64 {RDY}, {bit}\ns_cbranch_scc0 {lbl}")
            if back: a(f"s_branch {back}")
        if w==3:
            a(f"s_lshl_b32 {sFk}, {C.sH}, 10\ns_add_u32 {sFk}, {sFk}, {sLo_}\ns_add_u32 {sFk}, {sFk}, {F_KV}")
            kvwait(f"{pre}_kv0",None,cfg.get("kv0",0),1)
        a("s_waitcnt vmcnt(0)\ns_barrier")
        stamp(a,cfg,2,12)
        def qk(w):
            if w==3: return [(2,(None,f"s_add_u32 {C.sT1}, {C.sSeg}, 1")),(2,(None,f"v_cmp_ne_u32 {RDY}, 0, v11")),(8,(None,f"s_bitcmp1_b64 {RDY}, {C.sT1}")),(20,(None,f"s_cbranch_scc0 {pre}_kvw\n{pre}_kvok:"))]
            return []
        hooks=dict(mid=lambda w:[], end=lambda a,w: a(f"s_cmp_eq_u32 {C.sSeg}, 63\ns_cbranch_scc1 {pre}_done"), qk=qk, pre_k=lambda w:[], sal=lambda w:(["s_memrealtime s[98:99]\ns_waitcnt lgkmcnt(0)\ns_mov_b32 m0, "+C.sSeg+"\nv_writelane_b32 "+C.vAux+", s98, m0"] if (w==0 and cfg.get("ts")) else []), prefix=pre, after_touch=[fload])
        C.step_loop(a,w,cc,hooks)
        if w==3: kvwait(f"{pre}_kvw",f"{pre}_kvok",C.sT1,0)
        a(f"{pre}_done:")
        for i in range(len(C.GROUPS[w])): a(C.publish(i))
        a("s_waitcnt vmcnt(0) lgkmcnt(0)")
        if w==0 and cfg.get("ts"):
            a(f"s_lshl_b32 {T0}, {sLay}, 5\ns_add_u32 {T0}, {T0}, {C.sH}\ns_lshl_b32 {T0}, {T0}, 8\ns_add_u32 {T0}, {T0}, {OFF_TS+0x10000}\nv_lshrrev_b32 v12, 2, {C.vL16}\nbuffer_store_dword {C.vAux}, v12, {sWS}, {T0} offen")
        stamp(a,cfg,3,12)
        if cfg.get("stop_after_a1"): a(f"s_branch {F}")
        a(f"s_cmp_lg_u32 {sLo_}, 0\ns_cbranch_scc1 {F}\ns_mov_b32 {sLo_}, {LAYER_STRIDE}\ns_mov_b32 {sLay}, 1")
        for i,g in enumerate(C.GROUPS[w]):
            a(f"s_add_u32 {C.sT1}, {C.mso(i)}, 0x8000\nbuffer_load_dword v21, {C.vMst}, {sWS}, {C.sT1} offen sc1")
        for x in C.next_slots(w): a(x)
        a(f"v_lshrrev_b32 v18, 4, {C.vL16}"); C.fetch_mem0(a,w,sX,"v18"); a("s_waitcnt vmcnt(0)"); C.store_mem0(a,w,[C.held(0),C.held(1)])
        a(f"s_branch {pre}_layer\n{F}:\ns_waitcnt vmcnt(0) lgkmcnt(0)\ns_endpgm")

def gen(cfg={}):
    a=Asm(); wk.PROF['on']=cfg.get('prof')
    a(f"{NAME}:\ns_cmp_lt_u32 s2, 256\ns_cbranch_scc1 k_go\nk_end:\ns_endpgm\nk_go:\ns_getreg_b32 {sXc}, hwreg(HW_REG_XCC_ID, 0, 4)\ns_add_u32 {sXc}, {sXc}, 1\nv_lshlrev_b32 v2, 4, v0")
    if cfg.get("icode",1):
        a(f"""s_getpc_b64 s[16:17]
        k_pc:
        s_lshr_b32 s18, s2, 3
        s_lshl_b32 s18, s18, 5
        v_add_u32 v4, s18, v0
        v_lshlrev_b32 v4, 7, v4
        v_cmp_gt_u32 vcc, 32, v0
        v_min_u32 v4, k_last-k_pc, v4
        v_mov_b32 v7, s17
        s_and_saveexec_b64 s[18:19], vcc
        s_cbranch_execz k_pc2
        v_add_co_u32 v6, vcc, s16, v4
        v_addc_co_u32 v7, vcc, 0, v7, vcc
        global_load_dword v20, v[6:7], off sc1
        k_pc2:
        s_mov_b64 exec, s[18:19]""")
    entry(a)
    a(f"s_mov_b32 {sLay}, 0\ns_mov_b32 s101, s2")
    stamp(a,cfg,9)
    a(f"""s_lshr_b32 {T0}, s2, 7
    s_mul_i32 {T0}, {T0}, {LAYER_STRIDE}
    s_and_b32 {T1}, s2, 127
    s_lshl_b32 {T2}, {T1}, 11
    s_add_u32 {T2}, {T2}, {T0}
    s_add_u32 {T2}, {T2}, {OFF_F}
    s_lshl_b32 {T1}, {T1}, 13
    s_add_u32 {T1}, {T1}, {T0}
    s_add_u32 {T1}, {T1}, {OFF_MH}
    s_add_u32 {T0}, {T1}, 4096
    v_lshrrev_b32 v3, 1, v2
    v_mov_b32 v4, -1
    v_mov_b32 v5, -1
    v_mov_b32 v6, -1
    v_mov_b32 v7, -1
    v_mov_b32 v8, 0
    v_mov_b32 v9, 0
    buffer_store_dwordx2 v[8:9], v3, {sWS}, {T2} offen sc1
    buffer_store_dwordx4 v[4:7], v2, {sWS}, {T1} offen sc1
    buffer_store_dwordx4 v[4:7], v2, {sWS}, {T0} offen sc1
    s_add_u32 {T1}, {T1}, {OFF_FL-OFF_MH}
    v_lshlrev_b32 v3, 1, v2
    s_mov_b32 exec_lo, 0x11111111
    s_mov_b32 exec_hi, 0x11111111
    buffer_store_dword v8, v3, {sWS}, {T1} offen sc1
    s_mov_b64 exec, -1
    s_lshl_b32 {T1}, s2, 11
    s_add_u32 {T1}, {T1}, {OFF_P}
    v_lshrrev_b32 v3, 1, v2
    buffer_store_dwordx2 v[4:5], v3, {sWS}, {T1} offen sc1
    s_lshl_b32 {T1}, s2, 13
    s_add_u32 {T1}, {T1}, {OFF_M}
    s_add_u32 {T0}, {T1}, 4096
    buffer_store_dwordx4 v[4:7], v2, {sWS}, {T1} offen sc1
    buffer_store_dwordx4 v[4:7], v2, {sWS}, {T0} offen sc1""")
    a(f"""s_sub_u32 {T0}, {sXc}, 1
    s_and_b32 {T0}, {T0}, 7
    s_lshl_b32 {T0}, {T0}, 5
    s_lshr_b32 {sI}, s2, 3
    s_add_u32 {sI}, {sI}, {T0}
    s_mov_b32 {sVer}, 0
    s_waitcnt vmcnt(7)
    s_cmp_lt_u32 {sI}, 32
    s_cbranch_scc1 k_role""")
    if cfg.get("warm",0):
        a(f"s_sub_u32 {T0}, {sI}, 32\ns_mul_i32 {T0}, {T0}, {165*128}\nv_lshlrev_b32 v3, 3, v2\nv_mov_b32 v5, 0x40000000\nv_cmp_gt_u32 vcc, {165*128}, v3\nv_cndmask_b32 v3, v5, v3, vcc")
        for p in (P_WQ,P_WK,P_WV,P_WO):
            srd(a,sA,p,4718592); a(f"buffer_load_dword v4, v3, {sA}, {T0} offen sc1")
    announce(a)
    a(f"""k_role:
    s_mov_b32 s101, {sI}
    v_mbcnt_lo_u32_b32 v0, -1, 0
    v_mbcnt_hi_u32_b32 v0, -1, v0
    s_barrier
    s_cmp_lt_u32 {sI}, 32
    s_cbranch_scc1 chain""")
    worker(a,cfg)
    a("chain:")
    chain(a,cfg)
    a("k_last:\ns_endpgm")
    body=compact(a.finish())
    return f'; @launch grid=(256,1,1) block=(256,1,1) lds=163840\n.amdgcn_target "amdgcn-amd-amdhsa--gfx950"\n.text\n.globl {NAME}\n.p2align 8\n.type {NAME},@function\n'+body+KD.format(name=NAME)
if __name__=="__main__":
    import json
    t=gen(json.loads(sys.argv[2]) if len(sys.argv)>2 else {})
    ref=open("interleave_layers__memory_aug_recurrent_mem_tr__mha_block__prompt.s.ref").read()
    hdr="".join(l+"\n" for l in ref.split("\n")[:14])
    out=sys.argv[1] if len(sys.argv)>1 else "mega.s"
    open(out,"w").write(hdr+t)
    import subprocess
    print(len(t), subprocess.run(f"clang -x assembler -target amdgcn-amd-amdhsa -mcpu=gfx950 {out} -o mega.co && python3 cdna_unwritten_srd_check.py mega.co; llvm-readelf -S mega.co | grep text",shell=True,capture_output=True,text=True))
```

```python
from wk import *
sHd,sSeg,sSrc,sKVo,sQo="s25","s26","s27","s28","s29"
FR=Frags(80)
def fi(mu,t,k): return ("kvq".index(mu)*2+t)*18+k
vSrc,vRaw,vDst,vRd,vL16,vKst,vTr,vWa=[f"v{i}" for i in range(1,9)]
RAW=XF_BYTES; WST=81920
def load_qkv(a, mats, hooks={}):
    srd(a,sA,P_WQ,4718592); srd(a,sB,P_WK,4718592); srd(a,sC_,P_WV,4718592)
    a(f"s_lshl_b32 {T1}, {sW}, 2")
    coop_qkv_addr(a,"v0",T1,"v12","v14","v15","v10","v11")
    a(f"""
    v_lshrrev_b32 v10, 4, v0
    v_lshl_add_u32 v12, v10, 13, v12
    v_xor_b32 v13, 0x80, v12
    s_lshl_b32 {T2}, {sHd}, 8
    s_lshl_b32 {T1}, {sW}, 17
    s_add_u32 {T2}, {T2}, {T1}
    s_lshl_b32 {T3}, {sW}, 12
    """)
    blocks=[]
    for mu in mats:
        for b in range(9):
            blocks.append(([(("v12","v13")[i>>1],{"q":sA,"k":sB,"v":sC_}[mu],T2,(64*b+4*i)*8192) for i in range(4)],
                           [(("v14","v15")[t],)+FR.reg(fi(mu,t,2*b))+(QKV_OFFS,None) for t in range(2)]))
    coop_blocks(a,blocks,lambda i: WST+16384*i,("v10","v11"),T3,hooks)
def consts(a):
    ln_consts(a,vSrc,vRaw,vDst,vRd,"v10","v11",RAW,0)
    a(f"""
    v_lshlrev_b32 {vL16}, 4, v0
    v_lshrrev_b32 v10, 2, v0
    v_lshlrev_b32 v10, 5, v10
    v_and_b32 v11, 1, v0
    v_lshl_add_u32 v10, v11, 4, v10
    v_bfe_u32 v11, v0, 1, 1
    v_lshl_add_u32 {vKst}, v11, 11, v10
    """)
ACC=16; XB=64
def gemm(a, mats, bufs, extra=[], at={}):
    acc=lambda mu,t,T: ACC+("kvq".index(mu)*4+t*2+T)*4
    nb=len(bufs)
    rd=lambda k: [f"ds_read_b128 {q(bufs[k%nb]+4*T)}, {vRd} offset:{xfrag(k,T)}" for T in range(2)]
    for k in range(nb-1):
        for x in rd(k): a(x)
    for k in range(18):
        if k in at: at[k]()
        pend=rd(k+nb-1) if k+nb-1<18 else []
        a(f"s_waitcnt lgkmcnt({2*min(nb-2,17-k)})")
        for mu in mats:
            for t in range(2):
                for T in range(2):
                    d=q(acc(mu,t,T)); W=FR.op(fi(mu,t,k)); X=q(bufs[k%nb]+4*T)
                    a(mf(d,X,W,d if k else 0) if mu=="v" else mf(d,W,X,d if k else 0))
                    if pend: a(pend.pop(0))
                    elif extra and t==1 and T==1 and mu==mats[0]: a(extra.pop(0))
    assert not extra
    return acc
def segment(a, lo, nxt, signal, redo=None, sigk=None, before_q=None):
    cs(a,"a1",0)
    ln_stage(a,vRaw,vDst,ACC,pre_write=lambda: (a("s_waitcnt vmcnt(0)\ns_barrier"),signal(1)),redo=redo)
    a(f"""s_mul_i32 {T0}, {sHd}, 65
    s_add_u32 {T0}, {T0}, {sSeg}
    s_lshl_b32 {sKVo}, {T0}, 14
    s_add_u32 {sKVo}, {sKVo}, {OFF_KV}
    s_lshl_b32 {sQo}, {T0}, 13
    s_add_u32 {sQo}, {sQo}, {OFF_QX}
    s_waitcnt lgkmcnt(0)
    s_barrier""")
    cs(a,"a1",1); later=[]; nxt(later); cs(a,"a1",2)
    acc=gemm(a,"kv",[XB,XB+8,ACC+32],later)
    a(f"s_lshl_b32 {T0}, {sW}, 9\ns_add_u32 {T0}, {T0}, {sKVo}\ns_add_u32 {T1}, {T0}, 4096\ns_lshl_b32 {T2}, {sW}, 11\ns_add_u32 {T2}, {T2}, {sKVo}\ns_add_u32 {T2}, {T2}, 8192")
    cs(a,"a1",3)
    def pack(d,x,y):
        a(cv(d,x,x+1)); a(cv(d+1,x+2,x+3)); a(cv(d+2,y,y+1)); a(cv(d+3,y+2,y+3))
    for T in range(2):
        d=acc("k",0,T); pack(d,d,acc("k",1,T)); a(f"buffer_store_dwordx4 {q(d)}, {vKst}, {sD}, {(T0,T1)[T]} offen sc1")
    for t in range(2):
        d=acc("v",t,0); pack(d,d,acc("v",t,1)); a(f"buffer_store_dwordx4 {q(d)}, {vL16}, {sD}, {T2} offen offset:{1024*t} sc1")
    if before_q: before_q()
    cs(a,"a1",4); gemm(a,"q",[XB,XB+8,ACC+8],at={sigk:lambda: signal(0)}); cs(a,"a1",5)
    if sigk is None: signal(0)
    cs(a,"a1",6)
    a(f"s_lshl_b32 {T0}, {sW}, 10\ns_add_u32 {T0}, {T0}, {sQo}\ns_add_u32 {T1}, {T0}, 4096")
    for T in range(2):
        d=acc("q",0,T); pack(d,d,acc("q",1,T)); a(f"buffer_store_dwordx4 {q(d)}, {vL16}, {sD}, {(T0,T1)[T]} offen sc1")
def fetch(a, sg, later=None):
    a(f"s_mul_i32 {sSrc}, {sg}, {32*1152}")
    ln_fetch(a,vSrc,sX,sSrc,RAW,later=later)
```

```python
from wk import *
from a1 import FR, fi, sHd, sSeg, vL16, vKst
sKVo,sQo,sMo,sOo,sCc,sW1k="s28","s29","s30","s31","s32","s33"
MASK=["s[40:41]","s[42:43]","s[44:45]","s[46:47]"]; SEL="s[48:49]"
vSab,vSc,vKx,vVr="v2","v3","v4","v9"
L_MF=0; L_KX=18432; L_VX=22528
Q,K=112,144; V=[176,192]; SX,SM,TMP,MB_=208,220,228,232
ACC=16; XB=32; KK=16; VD=32; O=40; PT=72; ONES=12; PX=232; PM=240; LL=244
def consts(a):
    a(f"""
    v_and_b32 v10, 15, v0                  ; m
    v_lshrrev_b32 v11, 4, v0               ; gA
    v_and_b32 v12, 13, v10
    v_lshlrev_b32 v12, 4, v12              ; (m&~2)*16
    v_bfe_u32 v13, v10, 1, 1               ; half
    v_lshrrev_b32 v14, 1, v11
    v_lshl_add_u32 v12, v14, 10, v12
    v_and_b32 v14, 1, v11
    v_lshl_add_u32 v15, v14, 8, v12
    v_lshl_add_u32 v15, v13, 3, v15
    s_lshl_b32 {T0}, {sW}, 11
    v_add_u32 {vSab}, {T0}, v15
    v_lshl_add_u32 v14, v14, 1, v13
    v_lshl_add_u32 v14, v14, 8, v12
    s_and_b32 {T0}, {sW}, 1
    s_lshl_b32 {T1}, {T0}, 5
    v_add_u32 {vSc}, {T1}, v14
    s_lshl_b32 {T1}, {T0}, 11
    v_add_u32 {vVr}, {T1}, {vL16}
    s_lshl_b32 {sW1k}, {sW}, 10
    v_add_u32 {vKx}, {sW1k}, {vL16}
    v_lshlrev_b32 v11, 2, v11
    s_mov_b32 {sCc}, {f2u(128**-0.5*math.log2(math.e))}
    s_mov_b32 s34, 0x05040100
    s_mov_b32 s35, 0x07060302
    s_cmp_ge_u32 {sW}, 2
    s_cselect_b64 {SEL}, -1, 0
    """)
    for r in range(4): a(f"v_add_u32 v12, {r}, v11\nv_cmp_le_u32 {MASK[r]}, v12, v10")
    for i in range(4): a(f"v_mov_b32 v{ONES+i}, 0x3f803f80")
OOB=0x40000000
sK0,sK1,sV0,sQ0,sQ1="s28","s51","s52","s29","s53"
def addrs(a, pair):
    a(f"""s_lshr_b32 {T1}, {sW}, 1
    s_add_u32 {T1}, {T1}, {pair}
    s_mul_i32 {T0}, {sHd}, 65
    s_add_u32 {T0}, {T0}, {T1}
    s_lshl_b32 {sK0}, {T0}, 14
    s_add_u32 {sK0}, {sK0}, {OFF_KV}
    s_lshl_b32 {sQ0}, {T0}, 13
    s_add_u32 {sQ0}, {sQ0}, {OFF_QX}
    s_cmp_lt_u32 {T1}, 64
    s_cselect_b32 {sK0}, {sK0}, {OOB}
    s_cselect_b32 {sQ0}, {sQ0}, {OOB}
    s_add_u32 {sQ1}, {sQ0}, 4096
    s_add_u32 {sK1}, {sK0}, 4096
    s_and_b32 {T2}, {sW}, 1
    s_lshl_b32 {T2}, {T2}, 12
    s_add_u32 {T2}, {T2}, {sK0}
    s_add_u32 {sV0}, {T2}, 8192""")
def kv_loads(vb):
    return [f"buffer_load_dwordx4 {q(K+16*T+4*b)}, {vKst}, {sD}, {(sK0,sK1)[T]} offen offset:{512*b} sc1" for T in range(2) for b in range(4)]+\
           [f"buffer_load_dwordx4 {q(V[vb]+4*t)}, {vL16}, {sD}, {sV0} offen offset:{1024*t} sc1" for t in range(4)]
def q_loads(): return [f"buffer_load_dwordx4 {q(Q+16*T+4*b)}, {vL16}, {sD}, {(sQ0,sQ1)[T]} offen offset:{1024*b} sc1" for T in range(2) for b in range(4)]
def o_addr(a, pair):
    a(f"""s_lshr_b32 {T0}, {sW}, 1
    s_add_u32 {T2}, {T0}, {pair}
    s_lshl_b32 {T0}, {T2}, 6
    s_add_u32 {T0}, {T0}, {sHd}
    s_lshl_b32 {T0}, {T0}, 1
    s_and_b32 {T1}, {sW}, 1
    s_add_u32 {T0}, {T0}, {T1}
    s_lshl_b32 {sOo}, {T0}, 11
    s_add_u32 {sOo}, {sOo}, {OFF_O}
    s_cmp_lt_u32 {T2}, 64
    s_cselect_b32 {sOo}, {sOo}, {OOB}""")
def poison(a, pair):
    o_addr(a,pair); a(f"s_add_u32 s36, {sOo}, {32*4096}")
    for i in range(4): a(f"v_mov_b32 v{O+i}, -1")
    for qt in range(2):
        for bb in range(2): a(f"buffer_store_dwordx4 {q(O)}, {vL16}, {sD}, {(sOo,'s36')[qt]} offen offset:{1024*bb} sc1")
def body(a, vb, fail, sample, flag_prev, ready, sleep, ahead=0, early=None):
    lp=a.lab("a2poll"); tg=f"a2_{vb}"; cs(a,tg,0)
    a(f"""s_lshl_b32 {sMo}, {sSeg}, 14
    s_add_u32 {sMo}, {sMo}, {OFF_MH}
    s_add_u32 {T2}, {sMo}, 16384
    s_cmp_lt_u32 {sSeg}, 64
    s_cselect_b32 {T0}, {sMo}, {OOB}
    s_cmp_eq_u32 {sSeg}, 63
    s_cselect_b32 {T2}, {OOB}, {T2}
    s_bitcmp1_b32 {sW}, 0
    s_cselect_b32 s36, {T2}, {T0}
    s_add_u32 s36, s36, 8192
    s_add_u32 {T0}, {T0}, {sW1k}
    s_add_u32 {T2}, {T2}, {sW1k}
    s_add_u32 {T1}, {T0}, 4096
    s_add_u32 {T3}, {T2}, 4096""")
    ml=[f"buffer_load_dwordx4 {q(MB_+4*i)}, {vL16}, {sWS}, {(T0,T1,T2,T3,'s36')[i]} offen sc1" for i in range(5)]
    for x in ml: a(x)
    sample()
    a(f"v_mov_b32 v{TMP}, {hex(f2u(-1e30))}\ns_waitcnt vmcnt(10)")
    for i,(kt,qt) in enumerate(((0,0),(0,1),(1,1))):
        d=q(SX+4*i)
        for b in range(4): a(mf(d,q(K+16*kt+4*b),q(Q+16*qt+4*b),d if b else 0))
    for i in (0,2):
        for r in range(4): a(f"v_cndmask_b32 v{SX+4*i+r}, v{TMP}, v{SX+4*i+r}, {MASK[r]}")
    a("s_waitcnt vmcnt(6)\ns_barrier"); flag_prev(); cs(a,tg,1)
    a(f"s_waitcnt vmcnt(1)\ns_branch {lp}c\n{lp}:")
    if sleep: a(f"s_sleep {sleep}")
    for x in ml: a(x)
    a(f"""s_add_u32 {sCnt}, {sCnt}, 1
    s_cmp_gt_u32 {sCnt}, {SPIN}
    s_cbranch_scc1 {fail}
    s_waitcnt vmcnt(0)
    {lp}c:
    v_max3_u32 v{TMP}, v{MB_}, v{MB_+4}, v{MB_+8}
    v_max3_u32 v{TMP}, v{TMP}, v{MB_+12}, v{MB_+16}
    v_cmp_eq_u32 vcc, -1, v{TMP}
    s_cbranch_vccnz {lp}""")
    cs(a,tg,2)
    for i in range(4):
        r=MB_+4*i; t=PT+4*(i&1); off=8192*(i&1)+32*(i>>1)
        a(f"""v_perm_b32 v{t}, v{r+1}, v{r}, s34
        v_perm_b32 v{t+1}, v{r+3}, v{r+2}, s34
        v_perm_b32 v{t+2}, v{r+1}, v{r}, s35
        v_perm_b32 v{t+3}, v{r+3}, v{r+2}, s35
        ds_write_b64 {vSab}, v[{t}:{t+1}] offset:{off}
        ds_write_b64 {vSab}, v[{t+2}:{t+3}] offset:{off+512}""")
    a(f"ds_write_b128 {vSc}, {q(MB_+16)} offset:16384")
    a(f"s_add_u32 s50, {sSeg}, 2"); ready("s50"); addrs(a,"s50")
    kvl=kv_loads(vb^1); ql=q_loads()
    if ahead:
        a(f"""v_cmp_lt_u32 vcc, 0, v7
        v_lshlrev_b32 v10, 3, {vL16}
        s_add_u32 {T1}, {T1}, {ahead-2}
        s_and_b32 {T2}, {sW}, 1
        s_lshl_b32 {T2}, {T2}, 13
        s_add_u32 {T2}, {T2}, {sK0}
        s_add_u32 {T2}, {T2}, {(ahead-2)*16384}
        s_cmp_lt_u32 {T1}, 64
        s_cselect_b32 {T2}, {T2}, {OOB}
        s_bitcmp1_b64 vcc, {T1}
        s_cselect_b32 {T2}, {T2}, {OOB}
        buffer_load_dword v10, v10, {sD}, {T2} offen sc1""")
    a("s_waitcnt lgkmcnt(0)\ns_barrier")
    cs(a,tg,3)
    rd=lambda k: f"ds_read_b128 {q(XB+4*(k%3))}, {vL16} offset:{1024*k}"
    a(rd(0)); a(rd(1))
    for k in range(18):
        a(f"s_waitcnt lgkmcnt({1 if k<17 else 0})"); X=q(XB+4*(k%3))
        for n,(mu,t) in enumerate((("k",0),("k",1),("v",0),("v",1))):
            d=q(ACC+4*n); W=FR.op(fi(mu,t,k))
            a(mf(d,X,W,d if k else 0) if mu=="v" else mf(d,W,X,d if k else 0))
            if n==0 and k<16: a(rd(k+2))
            if n==2 and kvl and k%3!=2: a(kvl.pop(0))
    for i in range(4): a(cv(ACC+i,ACC+2*i,ACC+2*i+1))
    a(f"ds_write_b128 {vKx}, {q(ACC)} offset:{L_KX}")
    for i in range(4): a(cv(ACC+8+i,ACC+8+2*i,ACC+8+2*i+1))
    a(f"ds_write_b128 {vKx}, {q(ACC+8)} offset:{L_VX}")
    for r in (PX+2,PX+3): a(f"v_mov_b32 v{r}, 0")
    a("s_waitcnt lgkmcnt(0)\ns_barrier")
    cs(a,tg,4)
    for b in range(4): a(f"ds_read_b128 {q(KK+4*b)}, {vL16} offset:{L_KX+1024*b}")
    for b in range(2): a(f"ds_read_b128 {q(VD+4*b)}, {vVr} offset:{L_VX+1024*b}")
    for b in range(4):
        a(f"s_waitcnt lgkmcnt({5-b})")
        for qt in range(2):
            d=q(SM+4*qt); a(mf(d,q(KK+4*b),q(Q+16*qt+4*b),d if b else 0))
    o_addr(a,sSeg)
    if early and early[0]==0: early[1]()
    assert not kvl
    cs(a,tg,5); a(ql.pop(0))
    for qt in range(2):
        for i in range(2): a(f"v_cndmask_b32 v{SM+4*qt+i}, v{SM+4*qt+i}, v{SM+4*qt+2+i}, {SEL}")
    vals=[[SX+r for r in range(4)]+[SM,SM+1],[SX+4+r for r in range(8)]+[SM+4,SM+5]]
    for qt in range(2):
        v=vals[qt]; mx=TMP+2*qt
        a(f"v_max_f32 v{mx}, v{v[0]}, v{v[1]}")
        for i in range(2,len(v),2): a(f"v_max3_f32 v{mx}, v{mx}, v{v[i]}, v{v[i+1]}")
    for sw in ("v_permlane16_swap_b32","v_permlane32_swap_b32"):
        for qt in range(2): a(f"v_mov_b32 v{TMP+2*qt+1}, v{TMP+2*qt}")
        a(ql.pop(0))
        for qt in range(2): a(f"{sw} v{TMP+2*qt}, v{TMP+2*qt+1}")
        for qt in range(2): a(f"v_max_f32 v{TMP+2*qt}, v{TMP+2*qt}, v{TMP+2*qt+1}")
    m16=lambda d,A,B: f"v_mfma_f32_16x16x16_bf16 {q(d)}, v[{A}:{A+1}], v[{B}:{B+1}], {q(d)}"
    sm=[]
    for qt in range(2):
        v=vals[qt]; mx=TMP+2*qt
        o=[f"v_mul_f32 v{mx}, {sCc}, v{mx}"]+[f"v_fma_f32 v{r}, v{r}, {sCc}, -v{mx}" for r in v]+[f"v_exp_f32 v{r}, v{r}" for r in v]
        o+=[cv(PX+4*qt+i//2,v[i],v[i+1]) for i in range(0,len(v)-2,2)]+[cv(mx,v[-2],v[-1])]
        o+=[f"v_cndmask_b32 v{PM+2*qt}, v{mx}, 0, {SEL}",f"v_cndmask_b32 v{PM+2*qt+1}, 0, v{mx}, {SEL}"]
        sm.append(o)
    def pv(qt):
        return [mf(q(LL+4*qt),q(ONES),q(PX+4*qt),0)]+[mf(q(O+16*qt+4*t),q(V[vb]+4*t),q(PX+4*qt),0) for t in range(4)]+\
               [m16(LL+4*qt,ONES,PM+2*qt)]+[m16(O+16*qt+4*t,VD+2*t,PM+2*qt) for t in range(4)]
    def fin(qt):
        o=O+16*qt; r=[f"v_rcp_f32 v{TMP}, v{LL+4*qt}"]
        for bb in range(2):
            r+=[f"v_mul_f32 v{o+8*bb+i}, v{o+8*bb+i}, v{TMP}" for i in range(8)]+[cv(o+8*bb+i,o+8*bb+2*i,o+8*bb+2*i+1) for i in range(4)]
            r.append(f"buffer_store_dwordx4 {q(o+8*bb)}, {vL16}, {sD}, {(sOo,'s36')[qt]} offen offset:{1024*bb} sc1")
        return r
    def mix(ms,vs,k):
        for n_,x in enumerate(ms):
            a(x)
            if ql and n_%2==0: a(ql.pop(0))
            for _ in range(k):
                if vs: a(vs.pop(0))
        for x in vs: a(x)
    for x in sm[0]: a(x)
    if early and early[0]==1: early[1]()
    a(f"s_add_u32 s36, {sOo}, {32*4096}\ns_waitcnt lgkmcnt(0)")
    cs(a,tg,6); mix(pv(0),sm[1],3); assert not ql
    if early and early[0]==2: early[1]()
    mix(pv(1),fin(0),3)
    if early and early[0]==3: early[1]()
    for x in fin(1): a(x)
    cs(a,tg,7)
```

```python
from wk import *
FR=Frags(128)
sCg,sTask,sOo,sXo="s25","s26","s27","s28"
vL16,vXa,vTr,vWa,vW3,vRed,vTch="v1","v2","v3","v4","v5","v6","v9"
L_RED=131072; vRr="v55"
fi=lambda t,ks: t*32+ks
def load_w(a):
    srd(a,sA,P_WO,4718592)
    tr_addr(a,vTr,"v10","v11",16384,15)
    a(f"""
    v_bfe_u32 v10, v0, 2, 2                ; kk&3
    v_bfe_u32 v11, v0, 4, 1
    v_lshl_add_u32 v10, v11, 4, v10
    v_lshrrev_b32 v11, 5, v0
    v_lshl_add_u32 v10, v11, 2, v10        ; row
    v_mul_u32_u24 v10, 1152, v10
    v_and_b32 v11, 3, v0
    v_lshl_add_u32 {vWa}, v11, 4, v10
    s_mul_i32 {T2}, {sW}, {1024*1152}
    s_lshl_b32 {T1}, {sCg}, 7
    s_add_u32 {T2}, {T2}, {T1}
    """)
    blocks=[]; PK=56; TM=[16,24]
    def wr(r,ks): return [f"ds_write_b128 {vW3}, {q(r+4*i)} offset:{1024*(ks+i)}" for i in range(2)]
    for rb in range(16):
        for ch in range(2):
            t3=TM[rb&1] if rb<8 else PK+8*(rb-8)
            dst=[(t,)+FR.reg(fi(t,2*rb)) for t in range(2)] if ch==0 else [(0,)+FR.reg(fi(2,2*rb)),(1,"v",t3)]
            blocks.append(([(vWa,sA,T2,(64*rb+32*(i>>1)+8*(i&1))*1152+64*ch,16) for i in range(4)],dst,wr(t3,2*rb) if ch and rb<8 else []))
    load_blocks(a,blocks,0,vTr)
    for rb in range(8,16):
        for x in wr(PK+8*(rb-8),2*rb): a(x)
    a("s_waitcnt lgkmcnt(0)")
def consts(a):
    a(f"""
    v_lshlrev_b32 {vL16}, 4, v0
    v_and_b32 v10, 15, v0
    v_lshrrev_b32 v11, 4, v0
    s_lshl_b32 {T0}, {sW}, 2
    v_add_u32 v11, {T0}, v11
    v_mul_u32_u24 v12, 1152, v11
    v_lshl_add_u32 {vXa}, v10, 3, v12
    v_lshlrev_b32 v11, 4, v11
    v_mul_u32_u24 v12, 272, v10
    v_add_u32 v11, v12, v11
    v_add_u32 {vRr}, {L_RED}, v11
    s_mul_i32 {T0}, {sW}, 4352
    s_add_u32 {T0}, {T0}, {L_RED}
    v_and_b32 v12, 48, v0
    v_add3_u32 {vRed}, v12, {vL16}, {T0}
    s_lshl_b32 {T0}, {sW}, 15
    v_add_u32 {vW3}, {T0}, {vL16}
    v_mul_u32_u24 v10, 9, v0
    v_add_u32 v10, {sCg}, v10
    v_lshlrev_b32 v11, 7, v10
    v_mov_b32 v12, 0x40000000
    v_cmp_gt_u32 vcc, 0x100, v10
    v_cndmask_b32 {vTch}, v12, v11, vcc
    """)
ACC=16; RING=56; NR=18; XR=12; RD=32; W3=32
def resid(a, y, x, t):
    for i in range(2):
        a(f"""v_lshlrev_b32 v{t}, 16, v{x+i}
        v_and_b32 v{t+1}, 0xffff0000, v{x+i}
        v_add_f32 v{t}, v{t}, v{y+2*i}
        v_add_f32 v{t+1}, v{t+1}, v{y+2*i+1}
        v_cvt_pk_bf16_f32 v{y+i}, v{t}, v{t+1}""")
def ld(a, ks):
    if ks%4==0: a(f"s_add_u32 s29, {sOo}, {1024*ks}")
    a(f"buffer_load_dwordx4 {q(RING+4*(ks%NR))}, {vL16}, {sD}, s29 offen offset:{1024*(ks%4)} sc1")
import os
N0=int(os.environ.get('N0',7)); NI=N0+2
def issue(a, touch=True):
    a(f"""s_lshl_b32 {sOo}, {sTask}, 17
    s_lshl_b32 {T0}, {sW}, 15
    s_add_u32 {sOo}, {sOo}, {T0}
    s_add_u32 {sOo}, {sOo}, {OFF_O}
    buffer_load_dword v14, {vTch}, {sD}, {sOo} offen sc1
    s_mul_i32 {sXo}, {sTask}, {16*1152}
    s_lshl_b32 {T0}, {sCg}, 7
    s_add_u32 {sXo}, {sXo}, {T0}
    buffer_load_dwordx2 v[{XR}:{XR+1}], {vXa}, {sX}, {sXo} offen sc1""")
    if touch: a("s_nop 15")
    for ks in range(N0): ld(a,ks)
def task(a, lo, extra=0, sample=None, early=None, redo=None):
    cs(a,"awo",1)
    rw=lambda ks: f"ds_read_b128 {q(W3+4*(ks%3))}, {vW3} offset:{1024*ks}"
    a(rw(0)); a(rw(1))
    seq=list(range(N0))+["x"]*extra; nxt=N0
    for ks in range(32):
        if ks==1: cs(a,"awo",2)
        if early and ks==early[0]: early[1](); seq.append("e")
        a(f"s_waitcnt vmcnt({len(seq)-1-seq.index(ks)}) lgkmcnt({1 if ks<31 else 0})")
        X=q(RING+4*(ks%NR))
        for t in range(4):
            d=q(ACC+4*t); a(mf(d,FR.op(fi(t,ks)) if t<3 else q(W3+4*(ks%3)),X,d if ks else 0))
            if t==0 and ks+2<32: a(rw(ks+2))
            if (t==1 or (t==2 and ks%3==0)) and nxt<min(32,ks+NR): ld(a,nxt); seq.append(nxt); nxt+=1
            elif t==1 and nxt==32 and sample: sample(); seq.append("s"); sample=None
    cs(a,"awo",3)
    if redo: a(f"v_cmp_u_f32 vcc, v{ACC}, v{ACC}\ns_cbranch_vccnz {redo}")
    for t in range(4): a(f"ds_write_b128 {vRed}, {q(ACC+4*t)} offset:{1088*t}")
    a(f"s_add_u32 {T1}, {sXo}, {lo+OFF_X1}\ns_waitcnt lgkmcnt(0) vmcnt(0)\ns_barrier")
    cs(a,"awo",4)
    for w in range(4): a(f"ds_read_b128 {q(RD+4*w)}, {vRr} offset:{4352*w}")
    a("s_waitcnt lgkmcnt(0)")
    for i in (0,2): a(f"v_pk_add_f32 v[{RD+i}:{RD+i+1}], v[{RD+i}:{RD+i+1}], v[{RD+4+i}:{RD+5+i}]\nv_pk_add_f32 v[{RD+8+i}:{RD+9+i}], v[{RD+8+i}:{RD+9+i}], v[{RD+12+i}:{RD+13+i}]")
    for i in (0,2): a(f"v_pk_add_f32 v[{48+i}:{49+i}], v[{RD+i}:{RD+i+1}], v[{RD+8+i}:{RD+9+i}]")
    resid(a,48,XR,52)
    a(f"buffer_store_dwordx2 v[48:49], {vXa}, {sWS}, {T1} offen sc1")
    cs(a,"awo",5)
def poison(a, lo, task):
    a(f"""s_mul_i32 {T1}, {task}, {16*1152}
    s_lshl_b32 {T0}, {sCg}, 7
    s_add_u32 {T1}, {T1}, {T0}
    s_add_u32 {T1}, {T1}, {lo+OFF_X1}
    v_mov_b32 v48, -1
    v_mov_b32 v49, -1
    buffer_store_dwordx2 v[48:49], {vXa}, {sWS}, {T1} offen sc1""")
```

```python
from wk import *
import batt
from batt import sHd,sJ,sKm,sKr,sV,sQm,sQr,sIt,sQb,sLlo,vL16,vQm,vQr,vKm,vKr,vV,vOr,S,P,KV,m32,quarter,qk
sNk,sAv,sOwn,sN,sE,sDn,sD0="s42","s43","s44","s45","s46","s51","s35"
sF=["s47","s48","s49","s50"]; M1="s[52:53]"
vS1,vS2,vSr,cK,cR,cV,aK,aR,aV,vMg="v9","v12","v13","v1","v14","v15","v16","v17","v18","v19"
BLK=2368; L_MG=64*BLK; L_AV=L_MG+9216
QB=32; QT=QB+24; OB=112; OT=OB+64; R3=64
J=4
def consts(a):
    batt.consts(a,0)
    a(f"""
    v_lshrrev_b32 v11, 5, v0
    v_and_b32 v10, 31, v0
    v_and_b32 {vSr}, 0xff, {vKr}
    v_lshl_add_u32 {vQr}, v11, 30, {vQr}
    v_lshlrev_b32 {cR}, 2, v10
    v_min_u32 v10, 18, v10
    v_mul_u32_u24 v11, 304, v11
    v_lshl_add_u32 {cV}, v10, 4, v11
    v_mul_u32_u24 v10, 3450, v0
    v_lshrrev_b32 v10, 16, v10                ; g = lane/19
    v_mul_u32_u24 v11, 19, v10
    v_sub_u32 v11, v0, v11                    ; d
    v_cmp_ne_u32 {M1}, 18, v11
    v_lshlrev_b32 v10, 4, v10
    v_lshl_add_u32 {vS1}, v11, 6, v10
    v_lshlrev_b32 v10, 6, v0
    v_add_u32 {vS2}, {7*64+48}, v10
    s_lshr_b32 {T0}, {sHd}, 2
    s_lshl_b32 {T0}, {T0}, 8
    s_add_u32 {sF[0]}, {T0}, {F_BQ}
    s_mov_b32 {sF[1]}, {F_BQ+8*256}
    s_mul_i32 {T0}, {sHd}, 18
    s_add_u32 {T1}, {T0}, 17
    s_lshr_b32 {T0}, {T0}, 6
    s_lshr_b32 {T1}, {T1}, 6
    s_lshl_b32 {T0}, {T0}, 8
    s_lshl_b32 {T1}, {T1}, 8
    s_add_u32 {sF[2]}, {T0}, {F_BQ}
    s_add_u32 {sF[3]}, {T1}, {F_BQ}
    s_mov_b32 {sNk}, 0
    s_mov_b32 {sN}, 0
    s_mov_b32 {sE}, 0
    s_mov_b32 {sDn}, 0
    s_mov_b32 {sOwn}, {sJ}
    v_mul_u32_u24 v10, {BLK}, v0
    s_mul_i32 {T0}, {sW}, 304
    v_add_u32 v10, {T0}, v10
    s_barrier
    ds_write_b128 v10, {q(KV[0]+8)} offset:{1152+18*16}
    """)
def span(a, name, slots, stride, back):
    n=len(slots); st=stride*BLK; ex={}
    Kb=lambda b: KV[b]; O=lambda i: q(slots[i][0],16)
    rK=lambda b,o: [f"ds_read_b128 {q(Kb(b))}, {aK} offset:{o}", f"ds_read_b32 v{Kb(b)+6}, {aR} offset:{o+1024}"]
    rV=lambda b,o: [f"ds_read_b128 {q(Kb(b)+8+4*j)}, {aV} offset:{o+1152+608*j}" for j in range(2)]
    a(f"{name}:")
    for x in rK(0,0)+rK(1,st)+rV(0,0): a(x)
    for i in range(4,8): a(f"v_mov_b32 v{P+i}, 0\nv_mov_b32 v{Kb(1)+8+i}, 0")
    a("s_waitcnt lgkmcnt(4)")
    for x in qk(S[0],Kb(0),slots[0][1]): a(x)
    a(f"s_waitcnt lgkmcnt(0)\ns_nop 10\n{name}_l:")
    t=0; U=4 if n==1 else 2
    for u in range(U):
        b=u&1
        for i in range(n):
            s=S[t&1]; ns=S[(t+1)&1]; t+=1; last=i==n-1
            nq=qk(ns,Kb(b^1) if last else Kb(b),slots[(i+1)%n][1])
            pv1=m32(O((i-1)%n),q(Kb(b^1 if i==0 else b)+12),q(P+4),O((i-1)%n)); pv0=m32(O(i),q(Kb(b)+8),q(P),O(i))
            rd=rK(b,(2+u)*st)+rV(b^1,(1+u)*st) if last else []
            for k,mm in enumerate((nq[0],nq[1],pv1,pv0)):
                a(mm)
                if k==2:
                    for x in rd: a(x)
                if k==0 and i==0: a("s_waitcnt lgkmcnt(0)")
                if last and k==1: a(f"s_sub_u32 {sIt}, {sIt}, 1")
                if last and k==3: a(f"s_cbranch_scc1 {name}_x{b}"); ex[b]=s
                qq=quarter(s,k)
                if last and k==3:
                    if u==U-1: qq+=[f"v_add_u32 {r}, {U*st}, {r}" for r in (aK,aR,aV)]
                    if n==1: qq.append("s_waitcnt lgkmcnt(2)")
                for x in qq: a(x)
    a(f"s_branch {name}_l")
    for b in range(2):
        a(f"{name}_x{b}:")
        for x in quarter(ex[b],3): a(x)
        a("s_waitcnt lgkmcnt(0)"); a(m32(O(n-1),q(Kb(b)+12),q(P+4),O(n-1))); a(f"s_branch {back}")
def point(a, kb):
    a(f"s_mul_i32 {T0}, {kb}, {BLK}")
    for r,c in ((aK,cK),(aR,cR),(aV,cV)): a(f"v_add_u32 {r}, {T0}, {c}")
def out_addr(a, n):
    a(f"""s_lshl_b32 {sQb}, {sW}, 2
    s_add_u32 {sQb}, {sQb}, {sJ}
    s_add_u32 {sQb}, {sQb}, {16*n}""")
def out_store(a, r):
    a(f"""s_lshl_b32 {T0}, {sQb}, 10
    s_add_u32 {T0}, {T0}, {sQm}
    s_add_u32 {T0}, {T0}, {OFF_BO-OFF_BQ}
    s_lshl_b32 {T1}, {sHd}, 6
    s_add_u32 {T1}, {T1}, {sQb}
    s_lshl_b32 {T1}, {T1}, 7
    s_add_u32 {T1}, {T1}, {OFF_BOR}
    buffer_store_dwordx4 {q(r)}, {vQm}, {sWS}, {T0} offen sc1
    s_mov_b64 exec, 0xffffffff
    buffer_store_dword v{r}, {vOr}, {sWS}, {T1} offen sc1
    s_mov_b64 exec, -1""")
def poison(a):
    for i in range(4): a(f"v_mov_b32 v{OT+i}, -1")
    for n in range(4): out_addr(a,n); out_store(a,OT)
def run(a, fail, lrange, stored, sleep, early=False, check=False, defer=None):
    slot=lambda i: (OB+16*i,QB+6*i)
    a("bp_loop:"); cs(a,"bp",0)
    a(f"""
    s_cmp_lg_u32 {sW}, 0
    s_cbranch_scc1 bp_got
    v_lshlrev_b32 v10, 2, v0
    s_branch bp_pf
    bp_poll:
    s_sleep {sleep}
    bp_pf:""")
    for i in range(4): a(f"buffer_load_dword v{20+i}, v10, {sWS}, {sF[i]} offen sc1")
    a(f"""s_add_u32 {sCnt}, {sCnt}, 1
    s_cmp_gt_u32 {sCnt}, {SPIN}
    s_cbranch_scc1 {fail}
    s_waitcnt vmcnt(0)
    v_min_u32 v20, v20, v21
    v_min3_u32 v20, v20, v22, v23
    v_cmp_ne_u32 vcc, 0, v20
    s_nop 0
    s_ff0_i32_b64 {sAv}, vcc
    s_min_u32 {sAv}, {sAv}, 64
    s_and_b32 {sAv}, {sAv}, -2
    s_cmp_le_u32 {sAv}, {sNk}
    s_cbranch_scc1 bp_poll
    v_mov_b32 v10, {L_AV}
    v_mov_b32 v11, {sAv}
    ds_write_b32 v10, v11
    bp_got:
    s_waitcnt lgkmcnt(0)
    s_barrier
    v_mov_b32 v10, {L_AV}
    ds_read_b32 v11, v10
    s_waitcnt lgkmcnt(0)
    v_readfirstlane_b32 {sAv}, v11
    s_min_u32 {sAv}, {sAv}, 64
    bp_restage:
    s_add_u32 {sQb}, {sNk}, {sW}
    """); cs(a,"bp",1); a(f"""bp_stage:
    s_cmp_ge_u32 {sQb}, {sAv}
    s_cbranch_scc1 bp_staged""")
    batt.kv_ptr(a,0,sQb)
    a(f"""s_mul_i32 {T2}, {sQb}, {BLK}
    s_mov_b32 m0, {T2}
    s_add_u32 {sQb}, {sQb}, 4
    buffer_load_dwordx4 {vKm}, {sWS}, {sKm} offen sc1 lds
    s_add_u32 m0, {T2}, 1152
    s_mov_b64 exec, {M1}
    buffer_load_dwordx4 {vS1}, {sWS}, {sV} offen sc1 lds
    s_add_u32 m0, {T2}, {1152+1024}
    s_mov_b64 exec, 0x7ff
    buffer_load_dwordx4 {vS2}, {sWS}, {sV} offen sc1 lds
    s_add_u32 m0, {T2}, 1024
    s_mov_b64 exec, 0xffffffff
    buffer_load_dword {vSr}, {sWS}, {sKr} offen sc1 lds
    s_mov_b64 exec, -1
    s_waitcnt vmcnt(40)
    s_branch bp_stage
    bp_staged:
    s_cmp_ge_u32 {sOwn}, {sAv}
    s_cbranch_scc1 bp_noq""")
    batt.q_load(a,QT,sOwn)
    a("bp_noq:")
    def qchk(lbl): a(f"v_max3_u32 v10, v{QT}, v{QT+1}, v{QT+2}\nv_max3_u32 v10, v10, v{QT+3}, v{QT+4}\nv_cmp_eq_u32 vcc, -1, v10\ns_cbranch_vccnz {lbl}")
    if check:
        r=S[0]
        a(f"s_cmp_lt_u32 {sAv}, 61\ns_cbranch_scc1 bp_nochk\ns_waitcnt vmcnt(0)"); guard(a,fail)
        a(f"s_cmp_ge_u32 {sOwn}, {sAv}\ns_cbranch_scc1 bp_chk2"); qchk("bp_restage")
        a(f"bp_chk2:\ns_sub_u32 {T1}, {sQb}, 4\ns_cmp_lt_i32 {T1}, {sNk}\ns_cbranch_scc1 bp_nochk"); point(a,T1)
        a(f"""ds_read_b128 {q(r)}, {aK}
        ds_read_b128 {q(r+4)}, {aV} offset:1152
        ds_read_b128 {q(r+8)}, {aV} offset:{1152+608}
        ds_read_b32 v{r+12}, {aR} offset:1024
        s_waitcnt lgkmcnt(0)""")
        for i in range(0,12,2): a(f"v_max3_u32 v{r+12}, v{r+12}, v{r+i}, v{r+i+1}")
        a(f"v_cmp_eq_u32 vcc, -1, v{r+12}\ns_cbranch_vccnz bp_restage\nbp_nochk:")
    point(a,sNk)
    a(f"""s_sub_u32 {sIt}, {sAv}, {sNk}
    s_sub_u32 {sIt}, {sIt}, 1
    s_mov_b32 {sNk}, {sAv}
    s_waitcnt vmcnt(0)
    s_barrier""")
    cs(a,"bp",2)
    for n in range(1,5): a(f"s_cmp_eq_u32 {sN}, {n}\ns_cbranch_scc1 bp_t1_{n}")
    a("bp_t1d:"); cs(a,"bp",3)
    a(f"""s_cmp_lt_u32 {sNk}, 64
    s_cbranch_scc0 bp_fin""")
    if defer: a(f"s_lshl_b32 {T0}, {defer}, 6\ns_add_u32 {T0}, {T0}, 60\ns_cmp_ge_u32 {sOwn}, {T0}\ns_cbranch_scc1 bp_loop")
    a(f"""bp_t2:
    s_cmp_ge_u32 {sOwn}, {sNk}
    s_cbranch_scc1 bp_next""")
    for i in range(12): a(f"v_mov_b32 v{OT+i}, 0")
    point(a,sW)
    a(f"""s_sub_u32 {T1}, {sW}, {sE}
    s_sub_u32 {T1}, {T1}, 1
    s_and_b32 {T3}, {T1}, 3
    s_mul_i32 {T1}, {T3}, 3072
    s_add_u32 {T1}, {T1}, {L_MG}
    v_add_u32 {vMg}, {T1}, {vL16}
    s_sub_u32 {sIt}, {sNk}, {sW}
    s_sub_u32 {sIt}, {sIt}, 1
    s_ashr_i32 {sIt}, {sIt}, 2
    s_cmp_ge_i32 {sIt}, 0
    s_cbranch_scc1 bp_cu
    bp_merge:"""); cs(a,"bp",5); a(f"""
    s_cmp_eq_u32 {T3}, 3
    s_barrier
    s_cbranch_scc1 bp_own""")
    for t in range(3): a(f"ds_write_b128 {vMg}, {q(OT+4*t)} offset:{1024*t}")
    a(f"s_waitcnt lgkmcnt(0)\ns_barrier\ns_branch bp_merged\nbp_own:")
    if early:
        a(f"s_add_u32 {T2}, {sN}, 1\ns_cmp_eq_u32 {sNk}, 64\ns_cselect_b32 {T2}, {T2}, {sN}"); stored(sN,T2,False)
    a(f"v_add_u32 v10, {L_MG}, {vL16}\ns_barrier")
    RR=[S[0],S[0]+12,R3]
    for k in range(9): a(f"ds_read_b128 {q(RR[k//3]+4*(k%3))}, v10 offset:{1024*k}")
    a("s_waitcnt lgkmcnt(6)")
    for i in range(11): a(f"v_add_f32 v{OT+i}, v{OT+i}, v{RR[0]+i}")
    a("s_waitcnt lgkmcnt(0)")
    for i in range(11): a(f"v_add_f32 v{RR[1]+i}, v{RR[1]+i}, v{RR[2]+i}")
    for n in range(1,4): a(f"s_cmp_eq_u32 {sN}, {n}\ns_cbranch_scc1 bp_keep{n}")
    for n in range(4):
        a(f"bp_keep{n}:")
        for i in range(11): a(f"v_add_f32 v{OB+16*n+i}, v{OT+i}, v{RR[1]+i}")
        for i in range(6): a(f"v_mov_b32 v{QB+6*n+i}, v{QT+i}")
        if n<3: a("s_branch bp_kept")
    a(f"""bp_kept:
    s_add_u32 {sN}, {sN}, 1
    bp_merged:
    s_add_u32 {sE}, {sE}, 1
    s_add_u32 {sOwn}, {sOwn}, {J}
    s_cmp_ge_u32 {sOwn}, {sNk}
    s_cbranch_scc1 bp_next""")
    a("bp_req:"); batt.q_load(a,QT,sOwn)
    if check: guard(a,fail)
    a("s_waitcnt vmcnt(0)")
    if check: qchk("bp_req")
    a(f"s_branch bp_t2\nbp_next:\ns_cmp_lt_u32 {sNk}, 64\ns_cbranch_scc1 bp_loop"); cs(a,"bp",6); a("s_branch bp_fin")
    for n in range(1,5): span(a,f"bp_t1_{n}",[slot(i) for i in range(n)],1,"bp_t1d")
    span(a,"bp_cu",[(OT,QT)],4,"bp_merge")
    a(f"bp_fin:\ns_mov_b32 {sD0}, {sDn}")
    if early: stored(sD0,sN,False)
    for n in range(1,5): a(f"s_cmp_eq_u32 {sDn}, {n}\ns_cbranch_scc1 bp_f{n}")
    for n in range(4):
        r=OB+16*n
        a(f"""bp_f{n}:
        s_cmp_le_u32 {sN}, {n}
        s_cbranch_scc1 bp_f4
        v_subrev_u32 v{r+11}, {sLlo}, v{r+10}
        v_cmp_lt_u32 vcc, {hex(lrange)}, v{r+11}
        s_lshl_b32 {sQb}, {sW}, 2
        s_add_u32 {sQb}, {sQb}, {sJ}
        s_add_u32 {sQb}, {sQb}, {16*n}
        s_cbranch_vccnz bp_slow
        bp_norm{n}:
        v_rcp_f32 v{r+10}, v{r+10}
        s_lshl_b32 {T0}, {sQb}, 10
        s_add_u32 {T0}, {T0}, {sQm}
        s_add_u32 {T0}, {T0}, {OFF_BO-OFF_BQ}""")
        for i in range(0,10,2): a(f"v_pk_mul_f32 v[{r+i}:{r+i+1}], v[{r+i}:{r+i+1}], v[{r+10}:{r+11}] op_sel_hi:[1,0]")
        a(f"""s_lshl_b32 {T1}, {sHd}, 6
        s_add_u32 {T1}, {T1}, {sQb}
        s_lshl_b32 {T1}, {T1}, 7
        s_add_u32 {T1}, {T1}, {OFF_BOR}""")
        for i in range(5): a(cv(r+i,r+2*i,r+2*i+1))
        a(f"""buffer_store_dwordx4 {q(r)}, {vQm}, {sWS}, {T0} offen sc1
        s_mov_b64 exec, 0xffffffff
        buffer_store_dword v{r+4}, {vOr}, {sWS}, {T1} offen sc1
        s_mov_b64 exec, -1
        s_mov_b32 {sDn}, {n+1}""")
    a("bp_f4:")
    if not early: stored(sD0,sDn,True)
    a(f"s_cmp_lt_u32 {sOwn}, 64"); cs(a,"bp",7)
    if PROF["on"]=="bp": a("s_cbranch_scc0 bp_done"); cs(a,"bp",4)
    a("s_cbranch_scc1 bp_t2\ns_branch bp_done")
    s=S[0]; CM=S[1]; b=KV[0]; RR=OT; mx=R3; QS=R3+2
    rd=[f"ds_read_b128 {q(b)}, {aK}",f"ds_read_b32 v{b+6}, {aR} offset:1024",f"ds_read_b128 {q(b+8)}, {aV} offset:1152",f"ds_read_b128 {q(b+12)}, {aV} offset:{1152+608}"]+[f"v_add_u32 {r}, {BLK}, {r}" for r in (aK,aR,aV)]+["s_waitcnt lgkmcnt(0)"]
    a("bp_slow:"); batt.q_load(a,QS,sQb); point(a,0)
    a(f"v_mov_b32 v{mx}, 0xff800000\ns_mov_b32 {T2}, 0\ns_waitcnt vmcnt(0)\nbp_p1:")
    for x in rd+qk(s,b,QS): a(x)
    for i in range(0,16,2): a(f"v_max3_f32 v{mx}, v{mx}, v{s+i}, v{s+i+1}")
    a(f"""s_add_u32 {T2}, {T2}, 1
    s_cmp_lt_u32 {T2}, 64
    s_cbranch_scc1 bp_p1
    v_mov_b32 v{mx+1}, v{mx}
    v_permlane32_swap_b32 v{mx}, v{mx+1}
    v_max_f32 v{mx}, v{mx}, v{mx+1}""")
    for i in range(16): a(f"v_sub_f32 v{CM+i}, 0, v{mx}\nv_mov_b32 v{RR+i}, 0")
    point(a,0); a(f"s_mov_b32 {T2}, 0\nbp_p2:")
    for x in rd+qk(s,b,QS,q(CM,16)): a(x)
    for k in range(4):
        for x in quarter(s,k): a(x)
    a(m32(q(RR,16),q(b+8),q(P),q(RR,16))); a(m32(q(RR,16),q(b+12),q(P+4),q(RR,16)))
    a(f"s_add_u32 {T2}, {T2}, 1\ns_cmp_lt_u32 {T2}, 64\ns_cbranch_scc1 bp_p2")
    for n in range(4):
        if n<3: a(f"s_cmp_lg_u32 {sDn}, {n}\ns_cbranch_scc1 bp_sl{n+1}")
        for i in range(11): a(f"v_mov_b32 v{OB+16*n+i}, v{RR+i}")
        a(f"s_branch bp_norm{n}")
        if n<3: a(f"bp_sl{n+1}:")
    a("bp_done:")
```

```python
from wk import *
import a1
from a1 import vSrc,vRaw,vDst,vRd,vL16,vTr,RAW,WST,sSeg,sSrc
FR=Frags(80,54)
sU,sQb,sStr="s25","s28","s29"
vQst,vWa,vWb,vVst="v6","v8","v16","v9"
fi=lambda m,k: m*18+k
def load_w(a, weights=True):
    srd(a,sA,P_BQKV,576*3456)
    tr_addr(a,vTr,"v12","v13",WST)
    lr,le=a.lab("bq_rem"),a.lab("bq_e")
    a(f"""
    s_lshl_b32 {sU}, {sU}, 2
    s_add_u32 {sU}, {sU}, {sW}
    v_lshrrev_b32 v12, 4, v0
    v_mul_u32_u24 v12, 3456, v12
    v_bfe_u32 v13, v0, 3, 1
    v_mul_u32_u24 v13, 1152, v13
    v_add_u32 v12, v12, v13
    v_and_b32 v13, 7, v0
    v_and_b32 v14, 15, v0
    v_lshrrev_b32 v15, 4, v0
    v_lshlrev_b32 v11, 4, v15
    v_lshl_add_u32 {vVst}, v14, 6, v11
    s_cmp_ge_u32 {sU}, 32
    s_cbranch_scc1 {lr}
    v_lshl_add_u32 {vWa}, v13, 2, v12
    s_mul_i32 {T2}, {sU}, 36
    v_lshlrev_b32 v15, 3, v15
    v_lshl_add_u32 {vQst}, v14, 5, v15
    s_lshl_b32 {sQb}, {sU}, 16
    s_add_u32 {sQb}, {sQb}, {OFF_BQ}
    s_mov_b32 {sStr}, 512
    s_branch {le}
    {lr}:
    v_mul_u32_u24 v13, 36, v13
    v_add_u32 {vWa}, v13, v12
    s_sub_u32 {T1}, {sU}, 32
    s_mul_i32 {T2}, {T1}, 288
    s_add_u32 {T2}, {T2}, 32
    v_lshlrev_b32 v15, 14, v15
    v_lshl_add_u32 {vQst}, v14, 3, v15
    s_lshl_b32 {sQb}, {T1}, 16
    s_add_u32 {sQb}, {sQb}, {OFF_BQR}
    s_mov_b32 {sStr}, 128
    {le}:
    v_lshrrev_b32 v12, 2, v0
    v_bfe_u32 v13, v0, 1, 1
    v_lshl_add_u32 v12, v13, 6, v12
    v_mul_u32_u24 v12, 3456, v12
    v_and_b32 v13, 1, v0
    v_lshl_add_u32 {vWb}, v13, 4, v12
    s_lshl_b32 {T1}, {sU}, 5
    """)
    if not weights: return
    blocks=[]
    for b in range(9):
        blocks.append(([(vWa,sA,T2,(64*b+4*i)*3456,4) for i in range(16)],[(t,)+FR.reg(fi(t,2*b)) for t in range(2)]))
    for b in range(0,9,2):
        blocks.append(([(vWb,sA,T1,(64*b+16*i)*3456+2304,16) for i in range(4)],[(hf,)+FR.reg(fi(2,2*(b+hf))) for hf in range(2) if b+hf<9]))
    load_blocks(a,blocks,WST,vTr)
ACC=16; XB=64
assert OFF_BK-OFF_BQ==2*MB and OFF_BKR-OFF_BQR==MB
def segment(a, lo, nxt, redo=None, at={}):
    a("s_waitcnt vmcnt(0)"); cs(a,"bq",2)
    ln_stage(a,vRaw,vDst,ACC,pre_write=lambda: a("s_barrier"),redo=redo)
    a("s_waitcnt lgkmcnt(0)\ns_barrier")
    nxt(); cs(a,"bq",3)
    acc=lambda m,T: ACC+(2*m+T)*4
    rd=lambda k: [f"ds_read_b128 {q(XB+(k&1)*8+4*T)}, {vRd} offset:{xfrag(k,T)}" for T in range(2)]
    for x in rd(0): a(x)
    for k in range(18):
        if k in at: at[k]()
        pend=rd(k+1) if k<17 else []
        a("s_waitcnt lgkmcnt(0)")
        for m in range(3):
            for T in range(2):
                d=q(acc(m,T)); W=FR.op(fi(m,k)); X=q(XB+(k&1)*8+4*T)
                a(mf(d,X,W,d if k else 0) if m==2 else mf(d,W,X,d if k else 0))
                if pend: a(pend.pop(0))
    cs(a,"bq",4)
    stores(a,lo,True)
def stores(a, lo, real):
    acc=lambda m,T: ACC+(2*m+T)*4
    if not real:
        for i in range(20): a(f"v_mov_b32 v{ACC+i}, -1")
    a(f"""s_mul_i32 {T0}, {sSeg}, {sStr}
    s_lshl_b32 {T0}, {T0}, 1
    s_add_u32 {T0}, {T0}, {sQb}
    s_add_u32 {T0}, {T0}, {lo}
    s_cmp_ge_u32 {sU}, 32
    s_cselect_b32 {T2}, 1, 2
    s_lshl_b32 {T2}, {T2}, 20""")
    for i in range(8 if real else 0): a(f"v_mul_f32 v{ACC+i}, {hex(f2u(18**-0.5*math.log2(math.e)))}, v{ACC+i}")
    for m in range(2):
        for T in range(2):
            d=acc(m,T)
            if real: a(cv(d,d,d+1)); a(cv(d+1,d+2,d+3))
            if T: a(f"s_add_u32 {T1}, {T0}, {sStr}")
            a(f"buffer_store_dwordx2 v[{d}:{d+1}], {vQst}, {sWS}, {T1 if T else T0} offen sc1")
        if m==0: a(f"s_add_u32 {T0}, {T0}, {T2}")
    d=acc(2,0)
    for i in range(4 if real else 0): a(cv(d+i,d+2*i,d+2*i+1))
    a(f"""s_mul_i32 {T0}, {sSeg}, 36
    s_add_u32 {T0}, {T0}, {sU}
    s_lshl_b32 {T0}, {T0}, 10
    s_add_u32 {T0}, {T0}, {lo+OFF_BV}
    buffer_store_dwordx4 {q(d)}, {vVst}, {sWS}, {T0} offen sc1""")
```

```python
from wk import *
from awo import resid
FR=Frags(128)
sCg,sSeg,sXo="s25","s26","s28"
vL16,vXa,vTr,vWa,vWb,vWc,vOm,vOr="v1","v2","v3","v4","v5","v6","v7","v8"
WST=81920; L_TR=40960; vTw,vTd,vTs="v3","v4","v5"
fi=lambda t,k: t*18+k
def load_w(a):
    srd(a,sA,P_BWO,576*1152)
    tr_addr(a,vTr,"v10","v11",WST)
    a(f"""
    v_bfe_u32 v10, v0, 2, 2
    v_bfe_u32 v11, v0, 4, 1
    v_lshl_add_u32 v10, v11, 3, v10
    v_lshrrev_b32 v11, 5, v0
    v_lshl_add_u32 v10, v11, 2, v10
    v_mul_u32_u24 v10, 1152, v10
    v_and_b32 v11, 3, v0
    v_lshlrev_b32 v11, 4, v11
    v_add_u32 {vWa}, v11, v10
    v_bfe_u32 v12, v0, 1, 1
    v_mul_u32_u24 v12, {72*1152}, v12
    v_and_b32 v13, 1, v0
    v_lshl_add_u32 v12, v13, 4, v12
    v_add_u32 {vWb}, v10, v12
    v_lshrrev_b32 v12, 3, v0
    v_mul_u32_u24 v12, 18, v12
    v_bfe_u32 v13, v0, 2, 1
    v_add_u32 v12, v12, v13
    v_mul_u32_u24 v12, 1152, v12
    v_add_u32 {vWc}, v11, v12
    s_lshl_b32 {T2}, {sCg}, 2
    s_add_u32 {T2}, {T2}, {sW}
    s_mul_i32 {T2}, {T2}, 96
    """)
    blocks=[]
    for b in range(8): blocks.append(([(vWa,sA,T2,(72*b+18*i)*1152,16) for i in range(4)],[(t,)+FR.reg(fi(t,2*b)) for t in range(2)]))
    for b in range(0,8,2): blocks.append(([(vWb,sA,T2,(72*b+18*i)*1152+64,16) for i in range(4)],[(hf,)+FR.reg(fi(2,2*(b+hf))) for hf in range(2)]))
    blocks.append(([(vWc,sA,T2,(144*i+16)*1152,16) for i in range(4)],[(t,)+FR.reg(fi(t,16)) for t in range(2)]))
    blocks.append(([(vWc,sA,T2,(144*i+16)*1152+64,16) for i in range(4)],[(0,)+FR.reg(fi(2,16))]))
    load_blocks(a,blocks,WST,vTr)
def consts(a):
    a(f"""
    v_lshlrev_b32 {vL16}, 4, v0
    v_and_b32 v10, 15, v0
    v_lshrrev_b32 v11, 4, v0
    v_mul_u32_u24 v12, 1152, v10
    v_lshl_add_u32 {vXa}, v11, 3, v12
    v_lshlrev_b32 v12, 2, v10
    v_lshl_add_u32 {vOr}, v11, 15, v12
    v_lshlrev_b32 v12, 5, v10
    v_and_b32 v13, 1, v11
    v_lshl_add_u32 v12, v13, 4, v12
    v_lshrrev_b32 v13, 1, v11
    v_lshl_add_u32 {vOm}, v13, 16, v12
    v_mul_u32_u24 v12, 400, v10
    v_lshl_add_u32 v12, v11, 3, v12
    s_mul_i32 {T0}, {sW}, 96
    v_add_u32 {vTw}, {T0}, v12
    v_lshrrev_b32 v10, 3, v0
    v_and_b32 v11, 7, v0
    v_lshlrev_b32 v11, 4, v11
    v_mul_u32_u24 v12, 1152, v10
    v_add_u32 {vTs}, v11, v12
    v_mul_u32_u24 v12, 400, v10
    s_mul_i32 {T0}, {sW}, 3200
    v_add3_u32 {vTd}, v11, v12, {T0}
    """)
ACC=12; XB=36; RM=52; XR=68
def resid_loads(a):
    a(f"""s_mul_i32 {sXo}, {sSeg}, {32*1152}
    s_lshl_b32 {T0}, {sCg}, 2
    s_add_u32 {T0}, {T0}, {sW}
    s_mul_i32 {T0}, {T0}, 96
    s_add_u32 {sXo}, {sXo}, {T0}
    s_add_u32 {T1}, {sXo}, {16*1152}""")
    for T in range(2):
        for t in range(3): a(f"buffer_load_dwordx2 v[{XR+6*T+2*t}:{XR+6*T+2*t+1}], {vXa}, {sX}, {(sXo,T1)[T]} offen offset:{32*t} sc1")
def task(a, lo, dst, dst_off, fl, redo=None, at={}):
    a(f"""s_lshl_b32 {T1}, {sSeg}, 10
    s_lshl_b32 {T0}, {sW}, 19
    s_add_u32 {T1}, {T1}, {T0}
    s_lshl_b32 {T2}, {sW}, 13""")
    for i in range(8):
        a(f"s_add_u32 {T0}, {T1}, {lo+OFF_BO+(i>>1)*131072+(i&1)*512}\ns_add_u32 m0, {T2}, {1024*i}\nbuffer_load_dwordx4 {vOm}, {sWS}, {T0} offen sc1 lds")
    a(f"""s_lshl_b32 {T1}, {sSeg}, 7
    s_lshr_b32 {T0}, {sW}, 1
    s_lshl_b32 {T0}, {T0}, 17
    s_add_u32 {T1}, {T1}, {T0}
    s_and_b32 {T0}, {sW}, 1
    s_lshl_b32 {T0}, {T0}, 6
    s_add_u32 {T1}, {T1}, {T0}
    s_lshl_b32 {T2}, {sW}, 10""")
    for i in range(4): a(f"s_add_u32 {T0}, {T1}, {lo+OFF_BOR+i*8192}\ns_add_u32 m0, {T2}, {32768+256*i}\nbuffer_load_dword {vOr}, {sWS}, {T0} offen sc1 lds")
    a(f"v_lshrrev_b32 v10, 2, {vL16}")
    cs(a,"bw",2); a("s_waitcnt vmcnt(0)\ns_barrier"); cs(a,"bw",3)
    rem=[f"ds_read2st64_b32 v[{RM+4*f+2*i}:{RM+4*f+2*i+1}], v10 offset0:{128+4*f+2*i} offset1:{129+4*f+2*i}" for f in range(4) for i in range(2)]
    rd=lambda k: [f"ds_read_b128 {q(XB+(k&1)*8+4*T)}, {vL16} offset:{(2*k+T)*1024}" for T in range(2)]
    for x in rd(0): a(x)
    for k in range(18):
        if k in at: at[k]()
        pend=rd(k+1) if k<15 else []
        if k<16: a("s_waitcnt lgkmcnt(0)")
        if rem: pend.append(rem.pop(0))
        for t in range(3):
            for T in range(2):
                d=q(ACC+(2*t+T)*4); X=q(XB+(k&1)*8+4*T) if k<16 else q(RM+8*(k-16)+4*T)
                a(mf(d,FR.op(fi(t,k)),X,d if k else 0))
                if pend: a(pend.pop(0))
    cs(a,"bw",4)
    if redo: a(f"v_cmp_u_f32 vcc, v{ACC}, v{ACC+4}\ns_cbranch_vccnz {redo}")
    for t in range(3):
        for T in range(2):
            d=ACC+(2*t+T)*4; resid(a,d,XR+6*T+2*t,XB)
            a(f"ds_write_b64 {vTw}, v[{d}:{d+1}] offset:{L_TR+6400*T+32*t}")
    a(f"s_mul_i32 {T0}, {sW}, {8*1152-96}\ns_add_u32 {T0}, {T0}, {sXo}\ns_add_u32 {T0}, {T0}, {dst_off}\ns_waitcnt lgkmcnt(0)\ns_barrier")
    for i in range(3): a(f"ds_read_b128 {q(ACC+4*i)}, {vTd} offset:{L_TR+128*i}")
    for i in range(3): a(f"s_waitcnt lgkmcnt({2-i})\nbuffer_store_dwordx4 {q(ACC+4*i)}, {vTs}, {dst}, {T0} offen offset:{128*i} {fl}")
def poison(a, dst, dst_off):
    a(f"s_mul_i32 {T0}, {sW}, {8*1152-96}\ns_add_u32 {T0}, {T0}, {sXo}\ns_add_u32 {T0}, {T0}, {dst_off}")
    for i in range(4): a(f"v_mov_b32 v{ACC+i}, -1")
    for i in range(3): a(f"buffer_store_dwordx4 {q(ACC)}, {vTs}, {dst}, {T0} offen offset:{128*i} sc1")
```

```python
from asmgen import Asm
from layout import *
import math, struct

def f2u(x): return struct.unpack("<I", struct.pack("<f", x))[0]

vL16, vL8, vPsc, vW, vXr, vIdx, vPst, vMst, vAux, vOa = [f"v{i}" for i in range(10)]
vOr = "v10"
MEM0 = 12
POOL = 48
WV0 = 88
def q(base, n=4): return f"v[{base}:{base+n-1}]"
def m(k): return MEM0+4*k
def p(i): return POOL+i
LW = 19*2048
L_SCR = 0
L_W0 = 8192
L_PM = 0
L_PX = 512
L_SEL = 1024
L_O = 2048
L_XS = 4096
BIAS = 0
sWS = "s[8:11]"
sH, sSeg, sPar, sM0, sM1, sM2, sMst, sMpo, sKV, sPub, sPA, sPB, sPC, sPld, sCnt, sT0, sT1, sSlot, sC, sLayer, sFlg, sTch = [f"s{i}" for i in range(24,46)]
sK, sPubX, sLlo, sC2, sHint, sSig = "s56","s57","s58","s[22:23]","s59","s20"
sPld1 = sTch; sPA1, sPB1 = sSlot, sFlg; sMtc = sTch; sMst1 = sMpo
sMh, sMh1 = "s54","s55"
sOne = "s18"; sDis = "s19"; sRdy2 = "s[16:17]"
sHalf1 = "s[46:47]"; sHalf0 = "s[48:49]"; sRdy="s[50:51]"
import os
NREP = int(os.environ.get('NREP',2))
SPIN_MAX = 2000000

KORDER = [8,0,1,2,3,4,5,6,7]
def kap(k): return (k+1)%9

class Plan:
    def __init__(self, w):
        self.loc={}
        qk=[]
        for j,k in enumerate(KORDER[:7]):
            qk+=[("q",0,k),("k",0,k),("q",1,k),("k",1,k)]
            if j<4: qk+=[("v",0,k),("v",1,k)]
        ka,kb=KORDER[7:]
        qk+=[("q",0,ka),("q",1,ka),("q",0,kb),("q",1,kb),("k",0,ka),("k",0,kb),("k",1,ka),("k",1,kb)]
        vv=[("v",t,k) for k in KORDER[4:] for t in range(2)]
        oth=[x for x in range(4) if x!=w]
        self.oth=oth
        pairs=[("A",0),("A",1),("B",0),("B",1)]
        self.wo1=[("o",ty,pi,w) for ty,pi in pairs]
        self.wo2=[("o",ty,pi,x) for ty,pi in pairs for x in oth]
        woc=[("o","C",0),("o","C",1)]
        self.qk, self.vv = qk, vv
        self.qk_lds=list(range(0,43,3))
        self.wo_lds=[self.wo1[0],self.wo1[1],self.wo2[6],self.wo2[9]]
        slot=0
        for i in self.qk_lds: self.loc[qk[i]]=("l",slot); slot+=1
        for f in self.wo_lds: self.loc[f]=("l",slot); slot+=1
        r=0
        for f in qk+vv+self.wo1+self.wo2+woc:
            if f in self.loc: continue
            self.loc[f]=("a",8*r) if r<32 else ("v",WV0+8*(r-32)); r+=1
        assert r==53 and slot==19
    def reg(self,f):
        k,b=self.loc[f]; return f"{k}[{b}:{b+7}]"
    def regC(self,x):
        k,b=self.loc[("o","C",x>>1)]; b+=4*(x&1); return f"{k}[{b}:{b+3}]"
PLANS=[Plan(w) for w in range(4)]

def prologue_consts(a, w):
    a(f"""
    v_mov_b32 v10, v0
    v_and_b32 v11, 15, v10                 ; n
    v_lshrrev_b32 v12, 4, v10              ; g
    v_lshlrev_b32 v13, 4, v10
    v_add_u32 {vW}, {L_W0+w*LW}, v13
    v_add_u32 {vL16}, {BIAS}, v13
    v_lshlrev_b32 v13, 3, v10
    v_lshrrev_b32 v14, 5, v10
    v_lshlrev_b32 v14, 6, v14
    v_xor_b32 {vL8}, v14, v13
    v_lshlrev_b32 v13, 2, v11
    v_lshl_add_u32 {vPsc}, v12, 11, v13
    v_and_b32 v13, 3, v10                  ; c = n&3
    v_lshrrev_b32 v14, 2, v10              ; l>>2 = 4g + r
    v_lshlrev_b32 v15, 7, v13
    v_lshl_add_u32 v15, v14, 3, v15
    v_lshrrev_b32 v16, 1, v13
    v_lshlrev_b32 v16, 6, v16
    v_xor_b32 {vXr}, v16, v15
    v_and_b32 v15, 1, v10
    v_lshlrev_b32 v15, 4, v15
    v_lshl_add_u32 {vOa}, v14, 5, v15
    s_mov_b32 s46, 0xcccccccc
    s_mov_b32 s47, 0xcccccccc
    s_mov_b32 s48, 0x33333333
    s_mov_b32 s49, 0x33333333
    v_mov_b32 v15, 0x4444
    v_mov_b32 v16, 0xeeee
    v_cndmask_b32 {vIdx}, v15, v16, {sHalf1}
    v_lshrrev_b32 v15, 3, v11              ; n>>3
    v_lshl_add_u32 v15, v15, 2, v12
    v_lshlrev_b32 v15, 11, v15
    v_and_b32 v17, 7, v11
    v_lshl_add_u32 {vPst}, v17, 3, v15
    v_and_b32 v15, 2, v11                  ; 2half
    v_lshrrev_b32 v16, 1, v12              ; p
    v_add_u32 v15, v15, v16
    v_lshlrev_b32 v15, 4, v15
    v_and_b32 v16, 1, v11                  ; piece
    v_and_b32 v17, 1, v12                  ; g2
    v_lshl_add_u32 v16, v16, 1, v17
    v_lshl_add_u32 {vMst}, v16, 2, v15
    """)
    if w==0:
        a(f"""
        v_lshrrev_b32 v15, 2, v11              ; gamma
        v_and_b32 v16, 1, v15
        v_lshl_add_u32 v16, v16, 1, v13        ; tau = 2*g2 + r   (r = n&3)
        v_mov_b32 v17, 99
        v_cmp_gt_u32 vcc, 2, v13
        v_cndmask_b32 v16, v17, v16, vcc
        v_mov_b32 v17, 0x3f80
        v_mov_b32 v18, 0x3f800000
        v_cmp_lt_u32 vcc, 1, v15
        v_cndmask_b32 v17, v17, v18, vcc
        """)
        for t in range(4):
            a(f"v_cmp_eq_u32 vcc, {t}, v16\nv_cndmask_b32 v{20+t}, 0, v17, vcc")
        a(f"ds_write_b128 {vL16}, v[20:23] offset:{L_SEL-BIAS}")

def load_weights(a, w, srd, hooks={}):
    import wk
    P=PLANS[w]; T=80
    A0,A1,C0,C1,R0,R1=[f"v{240+i}" for i in range(6)]
    vO,vOC,RO,RC="v11","v12","v13","v14"
    wk.coop_qkv_addr(a,"v10",4*w,"v16",R0,R1,"v17","v18")
    def wo_addr():
        a(f"""
        v_lshrrev_b32 v84, 5, v10
        v_and_b32 v85, 31, v10
        v_lshlrev_b32 v86, 2, v84
        v_xor_b32 v85, v85, v86
        v_xor_b32 v85, {8*(w>>1)}, v85
        v_mul_u32_u24 v84, 1152, v84
        v_lshl_add_u32 {vO}, v85, 4, v84
        v_lshrrev_b32 v84, 3, v10
        v_mul_u32_u24 v84, 1152, v84
        v_and_b32 v85, 7, v10
        v_lshl_add_u32 {vOC}, v85, 4, v84
        v_bfe_u32 v84, v10, 2, 1               ; i0
        v_bfe_u32 v85, v10, 4, 1               ; piece
        v_lshl_add_u32 v86, v85, 1, v84
        v_xor_b32 v86, {w}, v86
        v_lshlrev_b32 v86, 6, v86
        v_bfe_u32 v87, v10, 3, 1               ; half
        v_lshl_add_u32 v86, v87, 5, v86
        v_and_b32 v87, 3, v10
        v_lshl_add_u32 v86, v87, 3, v86
        v_lshl_add_u32 v84, v85, 4, v84
        v_lshrrev_b32 v85, 5, v10
        v_lshl_add_u32 v84, v85, 2, v84
        v_lshl_add_u32 {RO}, v84, 9, v86
        v_lshrrev_b32 v84, 2, v10
        v_lshlrev_b32 v84, 7, v84
        v_lshl_add_u32 v84, v87, 3, v84
        v_add_u32 {RC}, {32*w}, v84
        s_lshl_b32 {sK}, {sH}, 8
        s_mul_i32 {sKV}, {sH}, {128*1152}
        """)
    a(f"""
    v_bfe_u32 v17, v10, 4, 1               ; i0
    v_lshrrev_b32 v18, 5, v10              ; half
    v_lshlrev_b32 v19, 2, v18
    v_lshl_add_u32 v19, v17, 4, v19
    v_lshl_add_u32 {A0}, v19, 13, v16
    v_xor_b32 {A1}, 0x80, {A0}
    v_lshl_add_u32 v19, v18, 3, v17
    v_lshl_add_u32 {C0}, v19, 13, v16
    v_xor_b32 {C1}, 0x80, {C0}
    """)
    wo_addr()
    def dest(f):
        kind,b=P.loc[f]
        if kind!="l": return (kind,b),None
        if b>=11: return ("v",16+8*(b-11)),None
        return ("v",T),[f"ds_write_b128 {vW}, v[{T}:{T+3}] offset:{b*2048}",f"ds_write_b128 {vW}, v[{T+4}:{T+7}] offset:{b*2048+1024}"]
    def rd(vb,f,offs):
        d,post=dest(f); return (vb,)+d+(offs,post)
    blocks=[]
    for k in KORDER:
        c=kap(k)==8
        for mu in "kvq":
            blocks.append(([(((C0,C1) if c else (A0,A1))[i>>1],srd[mu],sK,(64*kap(k)+(16*w+2*i if c else 32*(w>>1)+8*(w&1)+i))*8192) for i in range(4)],
                           [rd((R0,R1)[t],(mu,t,k),wk.QKV_OFFS) for t in range(2)]))
    for ty,b in (("A",0),("B",1)):
        for x in range(4):
            blocks.append(([(vO,srd["o"],sKV,(32*x+8*w+2*i)*1152+512*b) for i in range(4)],
                           [rd(RO,("o",ty,t,x),[256*t+(8*(qd>>1)+2*(qd&1))*512 for qd in range(4)]) for t in range(2)]))
    blocks.append(([(vOC,srd["o"],sKV,(32*w+8*i)*1152+1024) for i in range(4)],
                   [rd(RC,("o","C",t),[(64*t+32*(qd>>1)+16*(qd&1))*128 for qd in range(4)]) for t in range(2)]))
    assert len(blocks)==36 and P.loc[("o","C",0)]==("v",240)
    wk.coop_blocks(a,blocks,lambda i: L_W0+i*LW+11*2048,("v15","v246"),4096*w,hooks)
    for b in range(11,19):
        rb=16+8*(b-11)
        a(f"ds_write_b128 {vW}, v[{rb}:{rb+3}] offset:{b*2048}")
        a(f"ds_write_b128 {vW}, v[{rb+4}:{rb+7}] offset:{b*2048+1024}")
    a("s_waitcnt lgkmcnt(0)")

GROUPS = [[],[0,3],[1,4],[2]]

def mso(i): return (sMst,sMst1)[i]
def held(i): return (vAux,"v11")[i]
def publish(i): return f"buffer_store_dword {held(i)}, {vMst}, {sWS}, {(sMh,sMh1)[i]} offen sc1"
def fetch_mem0(a, w, srd_mem, lane):
    for i,g in enumerate(GROUPS[w]):
        a(f"""
        v_and_b32 v28, 3, {lane}               ; 2half+piece
        v_bfe_u32 v30, {lane}, 4, 1            ; g2
        v_lshrrev_b32 v29, 5, {lane}           ; p
        v_mul_u32_u24 v29, 1152, v29
        v_lshl_add_u32 v28, v28, 1, v30        ; 2(2half+piece)+g2
        v_lshl_add_u32 v29, v28, {2 if g==4 else 1}, v29
        s_and_b32 {sT0}, {sH}, 3
        s_mul_i32 {sT0}, {sT0}, {2*1152}
        """)
        if g<4:
            a(f"""s_lshr_b32 {sT1}, {sH}, 3
            s_lshl_b32 {sT1}, {sT1}, 6
            s_add_u32 {sT0}, {sT0}, {sT1}
            s_bfe_u32 {sT1}, {sH}, 0x10002
            s_lshl_b32 {sT1}, {sT1}, 4
            s_add_u32 {sT0}, {sT0}, {sT1}""")
        else:
            a(f"""s_lshr_b32 {sT1}, {sH}, 2
            s_lshl_b32 {sT1}, {sT1}, 5
            s_add_u32 {sT0}, {sT0}, {sT1}""")
        a(f"""buffer_load_ushort v{31+2*i}, v29, {srd_mem}, {sT0} offen offset:{256*g}
        buffer_load_ushort v{32+2*i}, v29, {srd_mem}, {sT0} offen offset:{256*g+(2 if g==4 else 32)}""")
def store_mem0(a, w, dst):
    for i,g in enumerate(GROUPS[w]):
        a(f"""v_lshl_or_b32 v28, v{32+2*i}, 16, v{31+2*i}
        v_min_u32 {dst[i]}, -2, v28""")
        if g==0: a("\n".join(rep_addr("v29")))
        a(f"buffer_store_dword {dst[i]}, {vMst if g else 'v29'}, {sWS}, {mso(i)} offen")

def next_slots(w):
    return [f"s_add_u32 {x}, {x}, 0x4000" for x in [sM0,sM1,sM2]+([sMst,sMh] if GROUPS[w] else [])+([sMst1,sMh1] if len(GROUPS[w])>1 else [])+([sMtc] if w in (0,3) else [])]

def mload(k, fl=""):
    b=kap(k); s=[sM0,sM1,sM2][(b+2)>>2]
    return f"buffer_load_dwordx4 {q(m(k))}, {vL16}, {sWS}, {s} offen offset:{(b if b<2 else (b+2)&3)*1024} {fl}".rstrip()
def moff(g): return 6144+2048*g if g else 0
def rep_addr(r): return [f"v_bfe_u32 {r}, {vL16}, 6, 2", f"v_lshl_add_u32 {r}, {r}, 11, {vMst}"]
def zero(base, n): return [f"v_mov_b32 v{base+i}, 0" for i in range(n)]
KEEP=["v_nop",5]
def delay(a, clks):
    n=clks//4
    while n>0:
        k=min(n,KEEP[1]); a(KEEP[0])
        if k>1: a(f"s_nop {k-2}")
        n-=k
def weave(v, o):
    v=list(v); o=list(o); r=[]
    while v or o:
        if v: r.append(v.pop(0))
        r.append(o.pop(0) if o else "s_nop 0")
    return r
def spin_guard(a, fail):
    a(f"s_add_u32 {sCnt}, {sCnt}, 1\ns_cmp_gt_u32 {sCnt}, {SPIN_MAX}\ns_cbranch_scc1 {fail}")
DPP="row_mask:0xf bank_mask:0xf"

def step_loop(a, w, cfg, hooks):
    KEEP[:]=[("v_nop",f"v_mov_b32 {vIdx}, {vIdx}")[cfg.get("keepmov",0)],cfg.get("keepn",5)]
    P=PLANS[w]; L=lambda s: f"{hooks.get('prefix',f'ch{w}')}_{s}"
    def E(lst):
        for x in lst: a(x)
    def stage(buf,f):
        b=P.loc[f][1]
        return [f"ds_read_b128 {q(buf)}, {vW} offset:{b*2048}", f"ds_read_b128 {q(buf+4)}, {vW} offset:{b*2048+1024}"]
    def sm(acc,A,B): return f"v_smfmac_f32_16x16x64_bf16 {q(acc)}, {q(A)}, {B}, {vIdx}"
    def mf(d,A,B,C): return f"v_mfma_f32_16x16x32_bf16 {q(d)}, {A}, {B}, {C}"
    def fold(base,dst):
        return [f"v_add_f32 v{base}, v{base}, v{base+2}", f"v_add_f32 v{base+1}, v{base+1}, v{base+3}", f"v_cvt_pk_bf16_f32 v{dst}, v{base}, v{base+1}"]
    def younger(x, since):
        vm=[y for y in a.lines[since:] if y.startswith("buffer")]
        return len(vm)-1-max(k for k,y in enumerate(vm) if y==x)
    S0,S1=p(16),p(24); ST=[S0,S1]; VA=p(32)
    acc={("q",0):p(0),("q",1):p(4),("k",0):p(8),("k",1):p(12),("v",0):VA,("v",1):VA+4}
    KX=[m(8),m(0)]; VX=[m(1),m(2)]; NV=len(P.vv)
    fail=L("fail"); late=[]
    disturb=[f"ds_write_b32 {vMst}, {vIdx} offset:{L_PM}"] if cfg.get("dcons") else []
    prep_qk=zero(p(0),16)+stage(S0,P.qk[P.qk_lds[0]])+stage(S1,P.qk[P.qk_lds[1]])
    a(f"{L('entry')}:")
    a(f"v_and_b32 {vOr}, 8, {vPsc}\nv_add_u32 {vOr}, {vOa}, {vOr}")
    E(disturb); E(prep_qk); E(zero(VA,8))
    NPRE=4
    LEAD=cfg.get("lead")
    if LEAD:
        a(f"{L('e0')}:"); a(mload(KORDER[0],'sc1')); a(mload(KORDER[1],'sc1')); spin_guard(a,fail)
        a(f"s_waitcnt vmcnt(0)\nv_max_u32 v{m(1)}, v{m(8)}, v{m(0)}\nv_cmp_eq_u32 vcc, -1, v{m(1)}\ns_cbranch_vccnz {L('e0')}")
    for k in KORDER[2 if LEAD else 0:NPRE]: a(mload(k))
    a("s_waitcnt vmcnt(0)")
    if w==0: a(f"v_lshrrev_b32 v11, 2, {vL16}\nv_and_b32 v11, 127, v11")
    nm=0; PW=0; SW=-1 if LEAD else 0 if cfg["tH"] is not None else 1
    DEF=cfg.get("defer",[])
    dst_=[f"buffer_store_dword {held(u)}, {vMst}, {sWS}, {mso(u)} offen" for u,g in enumerate(GROUPS[w]) if g in DEF]
    dpos=cfg.get("dpos",1)
    issued=list(range(dpos))+["s"]*len(dst_)+list(range(dpos,NPRE))
    CMPM="v_cmp_f_u32" if cfg.get("nocheck") else "v_cmp_eq_u32"
    CMPP="v_cmp_f_u32" if cfg.get("nocheck") else "v_cmp_ne_u32"
    a(f"{L('top')}:")
    top=len(a.lines)
    def retry(j, inflight, back, g=(0,)):
        lb=L(f"retry{j}")
        late.append((lb,[KORDER[x] for x in inflight],back,len(g))); return lb
    if LEAD: a("s_waitcnt lgkmcnt(1)")
    else: a(f"s_waitcnt vmcnt({len(issued)-1-issued.index(0)}) lgkmcnt(2)\n{CMPM} vcc, -1, v{m(8)}\ns_cbranch_vccnz {retry(0,range(NPRE),L('ok0'))}\n{L('ok0')}:")
    n=len(P.qk)
    first={}
    for i,f in enumerate(P.qk): first.setdefault(KORDER.index(f[2]),i)
    islds=lambda i: i in P.qk_lds
    CH=cfg["checks"][1 if LEAD else 0:]
    brpos={c[0]:((first[c[0]]-3)//3)*3+2 for c in CH}
    if 7 in brpos and 8 in brpos: brpos[7]-=3
    grp={c[0]:c for c in CH}
    assert len(set(brpos.values()))==len(CH)
    gapx={}
    def put(g,x): gapx.setdefault(g,[]).append(x)
    for j,g in zip(range(NPRE,9),cfg["vpos"]): put(g,(j,mload(KORDER[j])))
    kl=[f"buffer_load_dwordx4 {q(KX[t])}, v{m(0)}, {sWS}, {sK} offen offset:{t*1024} sc1" for t in range(2)]
    vxl=[f"buffer_load_dwordx4 {q(VX[t])}, {vL16}, {sWS}, {sKV} offen offset:{t*1024} sc1" for t in range(2)]
    for g,x in hooks["pre_k"](w): put(g,x)
    put(13,(None,f"v_and_b32 v{m(0)}, 32, {vL16}")); put(14,(None,f"v_lshl_add_u32 v{m(0)}, v{m(0)}, 4, {vOa}"))
    for t in range(2): put(cfg["kpos"][t],("k",kl[t])); put(cfg["vxpos"][t],("vx",vxl[t]))
    for g,x in hooks["qk"](w): put(g,x)
    if cfg.get("tbar"): put(cfg["tbar"],(None,"s_barrier"))
    if cfg.get("touch",1) and w in (0,3):
        r="v11" if w==3 else vAux; sp=cfg.get("tsplit",0)
        g=cfg["tpos"]; tl=lambda so: f"buffer_load_dword {r}, {r}, {sWS}, {so} offen sc1 ; nochk"
        n1,g1=cfg.get("t1",(0,g))
        if w==3 or sp: put(g1-(1 if n1 else 3),(None,f"v_lshlrev_b32 {r}, 3, {vL16}"))
        if w==3:
            put(g1-(1 if n1 else 4),(None,f"s_add_u32 {sT0}, {sK}, {16384-3*2048}")); put(g-1,(None,f"s_add_u32 {sT1}, {sT0}, 8192"))
            if n1:
                put(g1,(None,f"s_bfm_b64 exec, {n1}, 0")); put(g1,("t",tl(sT0))); put(g1,(None,"s_mov_b64 exec, -1"))
                put(g,("t",tl(sT1))); put(g+cfg["tgap"],(None,f"s_bfm_b64 exec, {64-n1}, {n1}")); put(g+cfg["tgap"],("t",tl(sT0))); put(g+cfg["tgap"],(None,"s_mov_b64 exec, -1"))
            else: put(g,("t",tl(sT0))); put(g+cfg["tgap"],("t",tl(sT1)))
        g+=cfg["tgap"]+2
        if w==(0 if sp else 3): put(g,(None,"s_mov_b64 exec, 15")); put(g,("t",tl(sMtc))); put(g,(None,"s_mov_b64 exec, -1"))
        if w==3:
            for x in hooks.get("after_touch",[]): put(g+1,("t",x))
    if cfg.get("pub"):
        for i in range(len(GROUPS[w])): put(cfg["ppos"]+3*i,("p",publish(i)))
    foldq=fold(p(0),p(2))+fold(p(4),p(6))
    nl=0; pend=[]
    for i,f in enumerate(P.qk):
        B=f"v[{ST[nl&1]}:{ST[nl&1]+7}]" if islds(i) else P.reg(f)
        a(sm(acc[f[:2]],m(f[2]),B)+(" ; nochk" if LEAD and w==PW and i<12 else ""))
        hascmp=any(brpos[j]-2==i for j in brpos) or any(x.startswith("v_") for _,x in gapx.get(i,[])) or i>=n-4
        if islds(i):
            if nl+2<len(P.qk_lds): pend=stage(ST[nl&1],P.qk[P.qk_lds[nl+2]])
            nl+=1
            if pend and not hascmp and cfg["ds2"]: a(pend.pop(0))
        if pend: a(pend.pop(0))
        val=[]
        for j,x in gapx.get(i,[]):
            if x.startswith("v_"): val.append(x); continue
            a(x)
            if x.startswith("buffer"): issued.append(j)
        for j in brpos:
            if brpos[j]==i:
                infl=[x for x in issued if isinstance(x,int) and x>=j]
                if len(grp[j])==2: a(f"s_or_b64 vcc, vcc, {sRdy2}\ns_cbranch_scc1 {retry(j,infl,L(f'ok{j}'),grp[j])}\n{L(f'ok{j}')}:")
                else: a(f"s_cbranch_vccnz {retry(j,infl,L(f'ok{j}'),grp[j])}\n{L(f'ok{j}')}:")
        wt=""
        for j in brpos:
            c=[f"v{m(KORDER[x])}" for x in grp[j]]
            if brpos[j]-3==i:
                wt+=f" vmcnt({len(issued)-1-issued.index(grp[j][-1])})"
                if len(c)==2: val.append(f"{CMPM} {sRdy2}, -1, {c[1]}")
            if brpos[j]-2==i: val.append(f"{CMPM} vcc, -1, {c[0]}")
            if brpos[j]==i+1 and len(c)==2: pass
        if islds(i+1): wt+=f" lgkmcnt({0 if nl==len(P.qk_lds)-1 else 2})"
        if wt: a("s_waitcnt"+wt)
        E(val)
        if i>=n-4: a(foldq.pop(0))
    vi=[0]
    def V(fl=()):
        f=P.vv[vi[0]]; a(sm(acc[f[:2]],m(f[2]),P.reg(f))); vi[0]+=1; E(fl)
    xs=L_XS+w*1024
    E(foldq); E(fold(p(8),p(3))); E(fold(p(12),p(7)))
    a(f"ds_write2st64_b64 {vL8}, v[{p(2)}:{p(3)}], v[{p(6)}:{p(7)}] offset0:{xs//512} offset1:{xs//512+1}")
    mid=hooks["mid"](w)
    Sa,Sb,Sm,ONES=p(16),p(20),p(24),p(28)
    PX,PM=p(8),p(12)
    misc=[f"v_mov_b32 v{ONES+i}, {sOne}" for i in range(4)]+zero(m(3),4)+zero(m(8),4)+zero(m(0),4)
    def take(k):
        o=misc[:k]; del misc[:k]; return o
    for _ in range(cfg["nV"][0]): V(mid[:2]+take(1)); mid=mid[2:]
    assert not mid
    if "prebar1" in hooks: hooks["prebar1"](a,w,lambda x: younger(x,top))
    a("s_waitcnt lgkmcnt(0)\ns_barrier")
    X=[p(4*i) for i in range(4)]
    for x in range(4):
        rd=[f"ds_read_b64_tr_b16 v[{X[x]+2*i}:{X[x]+2*i+1}], {vXr} offset:{L_XS+x*1024+i*512}" for i in range(2)]
        if x>=4-cfg["nV"][1]: V(rd)
        else: E(rd)
    for x in range(4):
        if x==0: a(f"s_waitcnt lgkmcnt(6) vmcnt({younger(kl[1],top)})")
        d=(Sa,Sb)[x&1]
        a(mf(d,q(KX[x>>1]),q(X[x]),q(d) if x>1 else 0))
        if x<3: a(f"s_waitcnt lgkmcnt({4-2*x})")
        E(take(cfg["sfill"]))
    a(mf(Sm,q(X[0]),q(X[0]),0))
    for i in range(2): a(f"v_mul_f32 v{Sa+i}, {sC}, v{Sa+i}")
    if cfg["sm2"]: a(mf(Sm,q(X[1]),q(X[1]),q(Sm)))
    for i in range(2): a(f"v_fmac_f32 v{Sa+i}, {sC}, v{Sb+2+i}")
    for i in range(2): a(f"v_exp_f32 v{Sa+2+i}, v{Sa+i}")
    a(f"s_mov_b64 exec, {sHalf0}\nv_cvt_pk_bf16_f32 v{Sa+2}, v{Sa+2}, v{Sa+3}")
    a(f"ds_write_b32 {vOa}, v{Sa+2} offset:{L_PX+4*w}")
    a("s_mov_b64 exec, -1")
    VD=VA+2; fv=fold(VA,VD)+fold(VA+4,VD+1)
    for _ in range(cfg["nV"][2]): V(take(1))
    early_fv=vi[0]==NV
    for x in range(2 if cfg["sm2"] else 1,4):
        a(mf(Sm,q(X[x]),q(X[x]),q(Sm)))
        if x==3 and early_fv: misc[:0]=fv
        E(take(2))
    pmq=[f"v_mul_f32 v{Sm+2}, {sC}, v{Sm+2}",f"v_mul_f32 v{Sm+3}, {sC}, v{Sm+3}",f"v_exp_f32 v{Sm}, v{Sm+2}",f"v_exp_f32 v{Sm+1}, v{Sm+3}",
         f"v_mov_b32 v{PM+1}, 0",f"v_cvt_pk_bf16_f32 v{Sm}, v{Sm}, v{Sm+1}",f"v_mov_b32 v{PM+2}, 0",
         f"v_mov_b32_dpp v{PM}, v{Sm} quad_perm:[0,1,0,1] {DPP}",f"v_mov_b32_dpp v{PM+3}, v{Sm} quad_perm:[0,1,0,1] {DPP}"]
    E(take(cfg["pfill"]))
    for _ in range(cfg.get("ka2",0)): a(mf(p(0),q(ONES),q(ONES),0))
    a("s_waitcnt lgkmcnt(0)\ns_barrier")
    a(f"ds_read_b128 {q(PX)}, {vOa} offset:{L_PX}")
    for _ in range(cfg.get("ka3",0)): a(mf(p(0),q(ONES),q(ONES),0))
    misc[:0]=pmq
    for _ in range(cfg["nV"][3]): V(take(1))
    E(take(cfg["rfill"]))
    DL,D0,D1=p(0),p(4),p(20); OW=p(12); OP=p(10)
    T=[m(4),m(6),p(16),p(24)]
    st=stage(T[0],P.wo_lds[0])+stage(T[1],P.wo_lds[1])
    m16=lambda d,A,B: f"v_mfma_f32_16x16x16_bf16 {q(d)}, v[{A}:{A+1}], v[{B}:{B+1}], {q(d)}"
    rl,r0,r1,tc=p(18),p(0),p(2),p(19)
    def scale_o(chk):
        a(f"v_rcp_f32 v{rl}, v{DL}")
        a(f"v_subrev_u32 v{tc}, {sLlo}, v{DL}" if chk else "s_nop 0")
        a(f"v_cndmask_b32 v{r0}, 0, v{rl}, {sHalf0}\nv_cndmask_b32 v{r1}, 0, v{rl}, {sHalf1}")
        for i in range(4): a(f"v_mul_f32 v{D0+i}, v{D0+i}, v{r0}")
        if chk: a(f"v_cmp_lt_u32 vcc, {hex(cfg.get('lrange',120<<23))}, v{tc}")
        for i in (0,2): a(f"v_pk_fma_f32 v[{D0+i}:{D0+i+1}], v[{D1+i}:{D1+i+1}], v[{r1}:{r1+1}], v[{D0+i}:{D0+i+1}] op_sel_hi:[1,0,1]")
        a(f"v_cvt_pk_bf16_f32 v{OP}, v{D0}, v{D0+1}\nv_cvt_pk_bf16_f32 v{OP+1}, v{D0+2}, v{D0+3}")
        if cfg["keepalive"]: a(mf(D1,q(ONES),q(ONES),0))
        a(f"ds_write_b64 {vOr}, v[{OP}:{OP+1}] offset:{L_O+w*512}")
    while vi[0]<NV: V(take(1))
    npm=max([k+1 for k,x in enumerate(misc) if x in pmq]+[0])
    if not early_fv: misc[npm:npm]=fv
    a(f"s_waitcnt vmcnt({younger(vxl[1],top)}) lgkmcnt(0)")
    a(mf(DL,q(ONES),q(PX),0)); a(st.pop(0)); E(take(2))
    a(mf(D0,q(VX[0]),q(PX),0)); a(st.pop(0)); E(take(2))
    a(mf(D1,q(VX[1]),q(PX),0)); a(st.pop(0)); E(take(2))
    while any(x in pmq for x in misc): E(take(1))
    while sum(x in fv for x in misc)>1: E(take(1))
    a(m16(DL,ONES,PM)); a(st.pop(0)); E(take(2))
    misc+=zero(VA+4,4)
    a(m16(D0,VD,PM)); E(take(2))
    a(m16(D1,VD,PM+2))
    scale_o(True)
    a(f"s_cbranch_vccnz {L('slowsm')}\n{L('smdone')}:")
    a(f"v_mov_b32_dpp v{OW}, v{OP} quad_perm:[0,1,0,1] {DPP}\nv_mov_b32_dpp v{OW+1}, v{OP+1} quad_perm:[0,1,0,1] {DPP}")
    a(f"v_mov_b32_dpp v{OW+2}, v{OP} quad_perm:[2,3,2,3] {DPP}\nv_mov_b32_dpp v{OW+3}, v{OP+1} quad_perm:[2,3,2,3] {DPP}")
    aC=m(1); aP={("A",0):m(8),("A",1):m(0),("B",0):m(3),("B",1):VA+4}
    while len(misc)>4: a(misc.pop(0))
    tb={f:T[i] for i,f in enumerate(P.wo_lds)}
    def wB(f): return f"v[{tb[f]}:{tb[f]+7}]" if f in tb else P.reg(f)
    OA={x:p(4*n_) for n_,x in enumerate(P.oth)}
    ph1=[mf(aC,q(OW),P.regC(w),0)]+[sm(aP[f[1:3]],OW,wB(f)) for f in P.wo1]
    a("s_waitcnt lgkmcnt(1)")
    ord_=[f"ds_read_b128 {q(OA[x])}, {vOa} offset:{L_O+x*512}" for x in P.oth]
    for i,x in enumerate(ph1):
        if i==cfg["bar3"]: a("s_waitcnt lgkmcnt(0)\ns_barrier"); E(ord_)
        a(x); E(take(2 if i==0 else 1))
    assert not misc
    SEL,DR=VA,VA+4
    lds=[]
    for i in range(2,4): lds+=stage(tb[P.wo_lds[i]],P.wo_lds[i])
    if GROUPS[w]: lds.append(f"ds_read_b128 {q(SEL)}, {vL16} offset:{L_SEL}")
    dsq=list(ord_)
    def ds(k):
        for _ in range(k):
            if lds: x=lds.pop(0); a(x); dsq.append(x)
    def lgw(x): return f"s_waitcnt lgkmcnt({len(dsq)-1-dsq.index(x)})"
    ds(cfg["nst0"])
    def cv(d,b): return f"v_cvt_pk_bf16_f32 v{d}, v{b}, v{b+1}"
    A0,A1,B0,B1=aP[("A",0)],aP[("A",1)],aP[("B",0)],aP[("B",1)]
    pld=[f"buffer_load_dwordx4 {q(m(4+i))}, {vL16}, {sWS}, {(sPld,sPld1)[i>>1]} offen offset:{1024*(i&1)} sc1" for i in range(2*len(GROUPS[w]))]
    def pst(r,so): return f"buffer_store_dwordx2 v[{r}:{r+1}], {vPst}, {sWS}, {so} offen"
    def tag(r): return f"v_and_or_b32 v{r}, v{r}, -2, {sPar}"
    pk=lambda r,d=None: [cv(d or r,r),cv((d or r)+1,r+2),tag(d or r)]
    after={4:pk(A0),5:[pst(A0,sPA)],7:pk(A1)[:1],8:pk(A1)[1:],9:[pst(A1,sPA1)],10:pk(B0)[:1],11:pk(B0)[1:2],12:pk(B0)[2:],13:pk(B1,B0+2)[:2],14:pk(B1,B0+2)[2:]}
    if cfg.get("bgap"):
        after={4:pk(A0),5:[pst(A0,sPA)],7:pk(A1),8:[pst(A1,sPA1)],10:pk(B0),11:[pst(B0,sPB)],13:pk(B1,B0+2),14:[pst(B0+2,sPB1)]}
        if cfg["bgap"]==2: del after[14]
    ph2=[(sm(aP[f[1:3]],OA[f[3]],wB(f)),f) for f in P.wo2]+[(mf(aC,q(OA[x]),P.regC(x),q(aC)),None) for x in P.oth]
    mark=len(a.lines)
    for i,(x,f) in enumerate(ph2):
        if i<3: a(lgw(ord_[i]))
        a(x)
        vm=[y for y in after.get(i,[]) if y.startswith("buffer")]
        E(vm)
        if not vm: ds(1)
        if i+1<12 and P.wo2[i+1] in tb: a(lgw(stage(tb[P.wo2[i+1]],P.wo2[i+1])[1]))
        E([y for y in after.get(i,[]) if not y.startswith("buffer")])
    assert not lds
    sal=[f"s_add_u32 {sSeg}, {sSeg}, 1",f"s_add_u32 {sKV}, {sKV}, {cfg.get('kvstep',16384)}",f"s_add_u32 {sK}, {sK}, {cfg.get('kvstep',16384)}"]+hooks["sal"](w)+next_slots(w)
    if w<2: sal.insert(0,f"s_add_u32 {sSig}, {sSig}, 2")
    cpk=tag(aC)
    work=prep_qk[16:]+[cv(aC,aC),cpk]+weave(prep_qk[:16],sal)
    now=[0]
    def spend(clks):
        k=clks//4
        o=work[:k]; del work[:k]; E(o); delay(a,4*(k-len(o))); now[0]+=4*k
    def at(t, ops):
        spend(max(0,t-now[0]))
        while ops[0].endswith(f"{sPC} offen") and cpk in work: spend(4)
        E(ops); now[0]+=10*len(ops)
    def reduce(u, mark):
        r0_,r1_=m(4+2*u),m(5+2*u); ld=pld[2*u:2*u+2]
        def body(w0,w1):
            a(f"s_waitcnt vmcnt({w0}) lgkmcnt(0)"); a(mf(DR,q(SEL),q(r0_),0)); a(f"v_xor_b32 v{r0_}, {sPar}, v{r0_}")
            a(f"s_waitcnt vmcnt({w1})"); a(mf(DR,q(SEL),q(r1_),q(DR)))
        body(younger(ld[0],mark),younger(ld[1],mark))
        a(f"{L(f'okP{u}')}:")
        a(f"v_bitop3_b32 v{r0_}, v{r0_}, v{r1_}, {sPar} bitop3:0xf6\nv_and_b32 v{r0_}, 1, v{r0_}\n{CMPP} vcc, 0, v{r0_}")
        for ror in (4,8):
            for i in range(2): a(f"v_add_f32_dpp v{DR+i}, v{DR+i}, v{DR+i} row_ror:{ror} {DPP}")
        a(f"v_cvt_pk_bf16_f32 {held(u)}, v{DR}, v{DR+1}")
        a(f"s_cbranch_vccnz {L(f'pollP{u}')}")
        if w==SW and u==0: E(hsend)
        if GROUPS[w][u] not in DEF: a(f"buffer_store_dword {held(u)}, {vMst if GROUPS[w][u] else f'v{m(2)+2}'}, {sWS}, {mso(u)} offen")
        def slow():
            a(f"{L(f'pollP{u}')}:")
            if cfg.get("cnt"): a(f"s_add_u32 s{93+u}, s{93+u}, 1")
            E(ld); E(disturb); spin_guard(a,fail); body(1,0); a(f"s_branch {L(f'okP{u}')}")
        outl.append(slow)
    outl=[]
    def gather(k0,k1=NPRE):
        for k in range(k0,k1):
            if k and k!=nm: spend(cfg["dm"][k-1]-(8*len(dst_) if k==dpos else 0))
            a(mload(KORDER[k]))
            if k+1==dpos: E(dst_)
    def close():
        E(work); work.clear()
        a(f"s_xor_b32 {sPar}, {sPar}, 1")
        hooks["end"](a,w)
        a(f"s_branch {L('top')}")
    ev=[(cfg["tB"][0],[pst(B0,sPB)]),(cfg["tB"][1],[pst(B0+2,sPB1)]),(cfg["tB"][2],[f"buffer_store_dword v{aC}, {vPsc}, {sWS}, {sPC} offen"])]
    if cfg.get("bgap"): ev=ev[3-cfg["bgap"]:]
    G=GROUPS[w]
    if 0 in G: work+=rep_addr(f"v{m(2)+2}")
    hsend=[f"s_mov_b64 exec, {(1<<NREP)-1}",f"buffer_store_dword v{m(2)}, {vXr}, {sWS}, {sPubX} offen","s_mov_b64 exec, -1"]
    if w==SW and cfg.get("dcons"):
        work[4:4]=[f"ds_read_b32 v{m(2)}, {vMst} offset:{L_PM}"]
        work[len(work)//2:len(work)//2]=["s_waitcnt lgkmcnt(0)",f"ds_write_b32 {vMst}, v{p(0)} offset:{L_PM}",f"v_min_u32 v{m(2)}, 1, v{m(2)}",f"v_add_u32 v{m(2)}, {sSig}, v{m(2)}"]
    elif w==SW: work[len(work)//2:len(work)//2]=[f"v_mov_b32 v{m(2)}, {sSig}"]
    if w==PW: work.append(f"v_mov_b32 v{m(2)+1}, 0")
    for i,g in enumerate(G): ev.append((cfg["tP"][g],pld[2*i:2*i+2]))
    ev.sort(key=lambda x:x[0])
    split=len(G)>1 and cfg["tP"][G[1]]>cfg["tP"][G[0]]+cfg.get("split",260)
    if split: last=ev.pop()
    for t,ops in ev: at(t,ops)
    if G:
        spend(max(4*len(work),cfg["tP"][G[0]]+170-now[0]))
        reduce(0,mark)
        if split: now[0]=max(now[0],cfg["tP"][G[0]]+230)+90; at(*last); delay(a,150)
        if len(G)>1:
            if G[1]==4: a(f"s_cmp_ge_u32 {sH}, 16\ns_cbranch_scc1 {L('nored')}")
            reduce(1,mark)
            a(f"{L('nored')}:")
    else:
        work+=weave(zero(VA,8),[])
        if SW==w:
            while any("v%d,"%m(2) in x for x in work): spend(4)
            at(cfg["tH"],hsend)
        spend(max(4*len(work),cfg["tS"]-now[0]))
    if G: work+=weave(zero(VA,8),[])
    if LEAD:
        lx=[f"offset:{L_XS+1024*i}" for i in range(2)]; fr=[m(8),m(0)]; t=[f"v{m(3)+i}" for i in range(2)]
        if w==PW:
            smp=[mload(KORDER[i],'sc1') for i in range(2)]
            for _ in range(cfg["npre"]): E(smp); delay(a,cfg["pregap"])
            a(f"s_waitcnt vmcnt({2*cfg['npre']-2})\n{L('hpoll')}:")
            for u in range(3):
                a(f"""v_max3_u32 {t[0]}, v{fr[0]}, v{fr[0]+1}, v{fr[0]+2} ; nochk
                v_max3_u32 {t[1]}, v{fr[1]}, v{fr[1]+1}, v{fr[1]+2} ; nochk
                v_max3_u32 {t[0]}, {t[0]}, v{fr[0]+3}, v{fr[1]+3} ; nochk
                v_max_u32 {t[0]}, {t[0]}, {t[1]}
                {CMPM} vcc, -1, {t[0]}""")
                E(smp)
                if cfg.get("cnt"): a("s_add_u32 s94, s94, 1")
                if cfg["pollgap"]: a(f"s_nop {cfg['pollgap']-1}")
                if u==2: a(f"s_add_u32 {sCnt}, {sCnt}, 1\ns_cmp_gt_u32 {sCnt}, {SPIN_MAX}")
                a(f"s_cbranch_vccz {L('hok')}")
            a(f"s_waitcnt vmcnt(16)\ns_cbranch_scc0 {L('hpoll')}\ns_branch {fail}\n{L('hok')}:")
            for i in range(2): a(f"ds_write_b128 {vL16}, {q(fr[i])} {lx[i]} ; nochk")
            a(mload(KORDER[2])); a(mload(KORDER[3])); a(f"s_xor_b32 {sPar}, {sPar}, 1")
            a("s_waitcnt lgkmcnt(0)\ns_barrier")
        else:
            E(work); work.clear(); delay(a,cfg["dkeep"][w]); a(f"s_xor_b32 {sPar}, {sPar}, 1\ns_waitcnt lgkmcnt(0)\ns_barrier")
            for i in range(2): a(f"ds_read_b128 {q(fr[i])}, {vL16} {lx[i]}")
            for k in (2,3):
                if k==max(dpos,2): E(dst_)
                a(mload(KORDER[k]))
            if dpos==4: E(dst_)
        hooks["end"](a,w)
        a(f"s_branch {L('top')}")
    elif w==PW:
        HV=f"v{m(2)+1}"; poll=f"buffer_load_dword {HV}, v11, {sWS}, {sHint} offen sc1"
        a(f"{L('hpoll')}:")
        for u in range(4):
            a(f"v_cmp_gt_u32 vcc, {sSig}, {HV} ; nochk\nv_cmp_ne_u32 {sRdy2}, {sSig}, {HV} ; nochk"); a(poll)
            if cfg.get("cnt"): a("s_add_u32 s94, s94, 1")
            if cfg["pollgap"]: a(f"s_nop {cfg['pollgap']-1}")
            if u==3: a(f"s_add_u32 {sCnt}, {sCnt}, 1\ns_cmp_gt_u32 {sCnt}, {SPIN_MAX}")
            a(f"s_cbranch_vccz {L('hseen')}")
        a(f"s_cbranch_scc0 {L('hpoll')}\ns_branch {fail}\n{L('hslow')}:")
        if cfg.get("cnt"): a("s_add_u32 s93, s93, 1")
        delay(a,cfg.get("dcons") or 0)
        a(f"ds_write_b32 {vMst}, v{p(0)} offset:{L_PM}\ns_waitcnt lgkmcnt(0)")
        a(f"s_branch {L('hok')}\n{L('hseen')}:")
        if cfg.get("dcons"): a(f"s_cmp_lg_u64 {sRdy2}, 0\ns_cbranch_scc1 {L('hslow')}")
        a(f"{L('hok')}:")
    else: spend(cfg["dkeep"][w])
    if not LEAD:
        a("s_barrier")
        gather(0); close()
    for f_ in outl: f_()
    a(f"{L('slowsm')}:"); E(disturb)
    a(f"s_mov_b64 exec, {sHalf0}\nds_write_b64 {vOa}, v[{Sa}:{Sa+1}] offset:{L_XS+512*(w>>1)+8*(w&1)}\ns_mov_b64 exec, -1")
    a("s_waitcnt lgkmcnt(0)\ns_barrier")
    s_=[p(i) for i in range(8)]+[Sm,Sm+1]; mx,tt=p(20),p(21)
    a(f"""ds_read_b128 {q(p(0))}, {vOa} offset:{L_XS}
    ds_read_b128 {q(p(4))}, {vOa} offset:{L_XS+512}
    v_mov_b32_dpp v{Sm}, v{Sm+2} quad_perm:[0,1,0,1] {DPP}
    v_mov_b32_dpp v{Sm+1}, v{Sm+3} quad_perm:[0,1,0,1] {DPP}
    s_waitcnt lgkmcnt(0)
    v_max_f32 v{mx}, v{s_[0]}, v{s_[1]}""")
    for i in range(2,10,2): a(f"v_max3_f32 v{mx}, v{mx}, v{s_[i]}, v{s_[i+1]}")
    a(f"""v_mov_b32 v{tt}, v{mx}
    v_permlane16_swap_b32 v{mx}, v{tt}
    v_max_f32 v{mx}, v{mx}, v{tt}
    v_mov_b32 v{tt}, v{mx}
    v_permlane32_swap_b32 v{mx}, v{tt}
    v_max_f32 v{mx}, v{mx}, v{tt}""")
    for i in range(10): a(f"v_sub_f32 v{s_[i]}, v{s_[i]}, v{mx}\nv_exp_f32 v{s_[i]}, v{s_[i]}")
    for i in range(4): a(cv(PX+i,p(2*i)))
    a(cv(PM,Sm)); a(cv(PM+3,Sm))
    a(mf(DL,q(ONES),q(PX),0)); a(mf(D0,q(VX[0]),q(PX),0)); a(mf(D1,q(VX[1]),q(PX),0))
    a(m16(DL,ONES,PM)); a(m16(D0,VD,PM)); a(m16(D1,VD,PM+2))
    scale_o(False)
    a(f"s_branch {L('smdone')}")
    for lb,ks,back,ng in late:
        a(f"{lb}:")
        if cfg.get("cnt"): a(f"s_add_u32 s{84+KORDER.index(ks[0])}, s{84+KORDER.index(ks[0])}, 1")
        for k in ks: a(mload(k,'sc1'))
        spin_guard(a,fail)
        E(disturb)
        a("s_waitcnt vmcnt(0)")
        for k in ks[:ng]: a(f"v_cmp_eq_u32 vcc, -1, v{m(k)}\ns_cbranch_vccnz {lb}")
        a(f"s_branch {back}")

def init_comm(a, w, stores=True):
    g0,g1=(GROUPS[w]+[0,0])[:2]
    a(f"""
    s_lshl_b32 {sT0}, {sH}, 6
    s_add_u32 {sPA}, {sT0}, {OFF_P+w*16384}
    s_add_u32 {sPA1}, {sPA}, {65536}
    s_add_u32 {sPB}, {sPA}, {2*65536}
    s_add_u32 {sPB1}, {sPA}, {3*65536}
    s_add_u32 {sPC}, {sT0}, {OFF_P+4*65536+w*8192}
    s_add_u32 {sMst}, {sT0}, {OFF_M+moff(g0)}
    s_add_u32 {sMst1}, {sT0}, {OFF_M+moff(g1)}
    s_and_b32 {sM0}, {sH}, 3
    s_lshl_b32 {sM0}, {sM0}, 11
    s_add_u32 {sM0}, {sM0}, {OFF_M}
    s_mov_b32 {sM1}, {OFF_M+8192}
    s_mov_b32 {sM2}, {OFF_M+12288}
    s_lshl_b32 {sT0}, {sH}, 11
    s_add_u32 {sPld}, {sT0}, {OFF_P+65536*g0}
    s_mov_b32 {sPar}, 0
    s_mov_b32 {sC}, {f2u(128**-0.5*math.log2(math.e))}
    s_mov_b32 {sOne}, 0x3f803f80
    s_mov_b32 {sLlo}, {(127-60)<<23}
    v_mov_b32 v20, -1
    v_mov_b32 v21, -1
    v_mov_b32 v22, -1
    v_mov_b32 v23, -1
    """)
    if len(GROUPS[w])>1: a(f"s_add_u32 {sPld1}, {sPld}, {(g1-g0)*65536}")
    if w<2: a(f"""s_mov_b32 {sSig}, 0
    s_lshl_b32 {sT0}, {sH}, 2
    s_add_u32 {sPubX}, {sT0}, {OFF_H}
    s_and_b32 {sT0}, {sH}, {NREP-1}
    s_lshl_b32 {sT0}, {sT0}, 7
    s_add_u32 {sHint}, {sT0}, {OFF_H}
    s_mov_b64 exec, {(1<<NREP)-1}
    v_mov_b32 v28, 0
    {f"buffer_store_dword v28, {vXr}, {sWS}, {sPubX} offen" if stores else ""}
    buffer_load_dword v24, {vXr}, {sWS}, {sPubX} offen sc1
    s_mov_b64 exec, -1""")
    if g1==4: a(f"s_cmp_ge_u32 {sH}, 16\ns_cselect_b32 {sPld1}, 0x40000000, {sPld1}")
    if w in (0,3): a(f"s_lshl_b32 {sMtc}, {sH}, 9\ns_add_u32 {sMtc}, {sMtc}, {OFF_M+0x8000}")
    for i,g in enumerate(GROUPS[w]):
        for j in range(2):
            if stores: a(f"buffer_store_dwordx4 v[20:23], {vL16}, {sWS}, {(sPld,sPld1)[i]} offen offset:{1024*j}")
            a(f"buffer_load_dwordx4 v[24:27], {vL16}, {sWS}, {(sPld,sPld1)[i]} offen offset:{1024*j} sc1")
        a(f"s_add_u32 {sT0}, {mso(i)}, 0x4000")
        a(f"buffer_load_dword v24, {vMst}, {sWS}, {sT0} offen sc1\nbuffer_load_dword v24, {vMst}, {sWS}, {mso(i)} offen sc1")


def set_layer(a, w, layer):
    a(f"""
    s_mov_b32 {sSeg}, 0
    s_mul_i32 {sT0}, {sH}, {KV_H}
    s_add_u32 {sKV}, {sT0}, {OFF_KV+8192+w*2048}
    s_add_u32 {sK}, {sT0}, {OFF_KV+w*2048}
    s_lshl_b32 {sT0}, {sH}, 6
    s_add_u32 {sT0}, {sT0}, {layer}
    s_add_u32 {sMh}, {sT0}, {OFF_MH+2048*(GROUPS[w]+[0,0])[0]}
    s_add_u32 {sMh1}, {sT0}, {OFF_MH+2048*(GROUPS[w]+[0,0])[1]}
    s_mov_b32 {sCnt}, 0
    """)
```

```python
from asmgen import Asm
from layout import *
import math, struct
def f2u(x): return struct.unpack("<I", struct.pack("<f", x))[0]
def q(base, n=4, k="v"): return f"{k}[{base}:{base+n-1}]"
DPP="row_mask:0xf bank_mask:0xf"
sWS="s[8:11]"; sX="s[12:15]"; sA="s[76:79]"; sB="s[80:83]"; sC_="s[84:87]"; sD="s[88:91]"
sW="s21"; sI="s24"
T0,T1,T2,T3="s60","s61","s62","s63"
P_X,P_MEM,P_WQ,P_WK,P_WV,P_WO,P_BQKV,P_BWO,P_OUT=64,66,68,70,72,74,92,94,96
def srd(a, d, ptr, size, off=0):
    d=int(d[2:d.index(":")])
    if off: a(f"s_add_u32 s{d}, s{ptr}, {off}\ns_addc_u32 s{d+1}, s{ptr+1}, 0")
    else: a(f"s_mov_b32 s{d}, s{ptr}\ns_mov_b32 s{d+1}, s{ptr+1}")
    a(f"s_mov_b32 s{d+2}, {size}\ns_mov_b32 s{d+3}, 0x20000")
def entry(a):
    a(f"""
    s_load_dwordx8 s[64:71], s[0:1], 0
    s_load_dwordx4 s[72:75], s[0:1], 32
    s_load_dwordx4 s[92:95], s[0:1], 64
    s_load_dwordx2 s[96:97], s[0:1], 80
    s_load_dwordx4 s[4:7], s[0:1], 88
    v_lshrrev_b32 v1, 6, v0
    v_readfirstlane_b32 {sW}, v1
    v_and_b32 v0, 63, v0
    s_waitcnt lgkmcnt(0)
    """)
    srd(a,sWS,6,WS_BYTES)
def mf(d,A,B,C): return f"v_mfma_f32_16x16x32_bf16 {d}, {A}, {B}, {C}"
def cv(d,x,y): return f"v_cvt_pk_bf16_f32 v{d}, v{x}, v{y}"

class Frags:
    def __init__(self, vbase, first=0): self.vbase=vbase; self.first=first
    def reg(self,i,n=4):
        b=4*(i+self.first)
        return (("a",b) if b<256 else ("v",self.vbase+b-256))
    def op(self,i):
        k,b=self.reg(i); return f"{k}[{b}:{b+3}]"

def load_blocks(a, blocks, lds_base, vtr, ring=4):
    nd=[len(b[0]) for b in blocks]
    def issue(bi):
        pos=0
        for (va,s,sb,c,bl) in blocks[bi][0]:
            a(f"s_add_u32 {T0}, {sb}, {c}\ns_add_u32 m0, {T3}, {(bi%ring)*4096+pos}")
            a(f"buffer_load_dword{'x4' if bl==16 else ''} {va}, {s}, {T0} offen lds")
            pos+=64*bl
        assert pos<=4096
    n=len(blocks)
    for bi in range(min(ring-1,n)): issue(bi)
    for bi in range(n):
        if bi+ring-1<n:
            a("s_waitcnt lgkmcnt(0)"); issue(bi+ring-1)
        left=sum(nd[bi+1:min(n,bi+ring)])
        a(f"s_waitcnt vmcnt({min(left,63)})")
        for (t,k,rb) in blocks[bi][1]:
            for qd in range(4):
                a(f"ds_read_b64_tr_b16 {k}[{rb+2*qd}:{rb+2*qd+1}], {vtr} offset:{(bi%ring)*4096+t*32+(qd&1)*256+(qd>>1)*2048}")
        if len(blocks[bi])>2 and blocks[bi][2]:
            a("s_waitcnt lgkmcnt(0)")
            for x in blocks[bi][2]: a(x)
    a("s_waitcnt lgkmcnt(0)")
def tr_addr(a, vtr, t0, t1, lds_base, sh=14):
    a(f"""
    s_lshl_b32 {T3}, {sW}, {sh}
    s_add_u32 {T3}, {T3}, {lds_base}
    v_lshrrev_b32 {t0}, 4, v0
    v_bfe_u32 {t1}, v0, 2, 2
    v_lshl_add_u32 {t0}, {t0}, 3, {t1}
    v_lshlrev_b32 {t0}, 6, {t0}
    v_and_b32 {t1}, 3, v0
    v_lshl_add_u32 {t0}, {t1}, 3, {t0}
    v_add_u32 {vtr}, {T3}, {t0}
    """)

XF_T=1088
def xfrag(k,T): return (2*k+T)*XF_T
XF_BYTES=36*XF_T
def ln_consts(a, vSrc, vRaw, vDst, vRd, t0, t1, raw_base, xf_base):
    a(f"""
    v_lshrrev_b32 {t0}, 3, v0
    v_and_b32 {t1}, 7, v0                  ; chunk
    s_lshl_b32 {T0}, {sW}, 3
    v_add_u32 {t0}, {T0}, {t0}             ; token 0..31
    v_mul_u32_u24 {vSrc}, 1152, {t0}
    v_lshl_add_u32 {vSrc}, {t1}, 4, {vSrc}
    s_mul_i32 {T0}, {sW}, 9216
    s_add_u32 {T0}, {T0}, {raw_base}
    v_lshlrev_b32 {vRaw}, 4, v0
    v_add_u32 {vRaw}, {T0}, {vRaw}
    v_and_b32 {vDst}, 15, {t0}
    v_lshlrev_b32 {vDst}, 4, {vDst}
    v_lshrrev_b32 {t0}, 4, {t0}            ; T
    v_lshrrev_b32 {vRd}, 2, {t1}
    v_lshl_add_u32 {t0}, {vRd}, 1, {t0}
    v_mul_u32_u24 {t0}, {XF_T}, {t0}
    v_and_b32 {t1}, 3, {t1}
    v_mul_u32_u24 {t1}, 272, {t1}
    v_add3_u32 {vDst}, {vDst}, {t0}, {t1}
    v_add_u32 {vDst}, {xf_base}, {vDst}
    v_lshrrev_b32 {t0}, 4, v0
    v_mul_u32_u24 {t0}, 272, {t0}
    v_and_b32 {t1}, 15, v0
    v_lshl_add_u32 {t0}, {t1}, 4, {t0}
    v_add_u32 {vRd}, {xf_base}, {t0}
    """)
def ln_fetch(a, vSrc, srd_, sOff, raw_base, fl="sc1", later=None):
    a(f"s_mul_i32 {T1}, {sW}, 9216\ns_add_u32 {T1}, {T1}, {raw_base}")
    ops=[f"s_add_u32 m0, {T1}, {896*i}\ns_nop 0\nbuffer_load_dwordx4 {vSrc}, {srd_}, {sOff} offen offset:{128*i} {fl} lds" for i in range(9)]
    if later is not None: later+=ops
    else:
        for x in ops: a(x)
def ln_stage(a, vRaw, vDst, R, pre_write=None, redo=None):
    for i in range(9): a(f"ds_read_b128 {q(R+4*i)}, {vRaw} offset:{1024*i}")
    s1,s2,s3,s4,one,lo,hi=[R+36+i for i in range(7)]
    a(f"v_mov_b32 v{one}, 0x3f803f80")
    for r in (s1,s2,s3,s4): a(f"v_mov_b32 v{r}, 0")
    for i in range(9):
        a(f"s_waitcnt lgkmcnt({8-i})")
        for j in range(4):
            r=R+4*i+j
            a(f"v_dot2c_f32_bf16 v{(s1,s3)[j&1]}, v{r}, v{one}\nv_dot2c_f32_bf16 v{(s2,s4)[j&1]}, v{r}, v{r}")
    a("s_nop 2")
    a(f"v_add_f32 v{s1}, v{s1}, v{s3}\nv_add_f32 v{s2}, v{s2}, v{s4}")
    if redo: a(f"v_cmp_u_f32 vcc, v{s1}, v{s1}")
    for pat in ("quad_perm:[1,0,3,2]","quad_perm:[2,3,0,1]","row_half_mirror"):
        for r in (s1,s2): a(f"v_add_f32_dpp v{r}, v{r}, v{r} {pat} {DPP}")
    a(f"""
    v_mul_f32 v{s1}, {hex(f2u(1/576))}, v{s1}          ; mean
    v_mul_f32 v{s3}, v{s1}, v{s1}
    v_mul_f32 v{s2}, {hex(f2u(1/576))}, v{s2}
    v_sub_f32 v{s2}, v{s2}, v{s3}
    v_max_f32 v{s2}, 0, v{s2}
    v_add_f32 v{s2}, {hex(f2u(1e-5))}, v{s2}
    v_rsq_f32 v{s2}, v{s2}
    s_nop 0
    v_mul_f32 v{s3}, v{s1}, v{s2}
    v_sub_f32 v{s3}, 0, v{s3}
    """)
    if redo: a(f"s_cbranch_vccnz {redo}")
    if pre_write: pre_write()
    for i in range(9):
        for j in range(4):
            r=R+4*i+j
            t=R+44+2*(j&1)
            a(f"""v_lshlrev_b32 v{t}, 16, v{r}
            v_and_b32 v{t+1}, 0xffff0000, v{r}
            v_pk_fma_f32 v[{t}:{t+1}], v[{t}:{t+1}], v[{s1}:{s2}], v[{s3}:{s4}] op_sel:[0,1,0] op_sel_hi:[1,1,0]""")
            if j&1: a(cv(r-1,t-2,t-1)); a(cv(r,t,t+1))
        a(f"ds_write_b128 {vDst}, {q(R+4*i)} offset:{4*i*XF_T}")

sXc="s3"
def announce(a, t=("v10","v11"), wait="s_waitcnt vmcnt(0)"):
    sk=a.lab("ann")
    a(f"""{wait}
    s_barrier
    s_cmp_eq_u32 {sW}, 0
    s_cbranch_scc0 {sk}
    v_mov_b32 {t[0]}, s2
    v_mov_b32 {t[1]}, {sXc}
    s_mov_b64 exec, 1
    global_store_byte {t[0]}, {t[1]}, s[4:5] sc1
    s_mov_b64 exec, -1
    {sk}:""")
def elect(a, fail, out, t=("v10","v11","v12","v13","v14","v15"), lane="v0", sampled=False):
    lp,wl,wd,ch=a.lab("el"),a.lab("elw"),a.lab("eld"),a.lab("elc")
    ad,dv,b=t[0],t[1],t[2:6]
    a(f"v_lshlrev_b32 {ad}, 2, {lane}\ns_mov_b32 {T3}, 0")
    if sampled: a(f"s_branch {lp}s")
    a(f"{lp}:\nglobal_load_dword {dv}, {ad}, s[4:5] sc1")
    a(f"s_add_u32 {T3}, {T3}, 1\ns_cmp_gt_u32 {T3}, 4000000\ns_cbranch_scc1 {fail}\ns_waitcnt vmcnt(0)\n{lp}s:")
    for i in range(4): a(f"v_bfe_u32 {b[i]}, {dv}, {8*i}, 8")
    a(f"v_min_u32 {dv}, {b[0]}, {b[1]}\nv_min3_u32 {dv}, {dv}, {b[2]}, {b[3]}\nv_cmp_eq_u32 vcc, 0, {dv}\ns_cbranch_vccnz {lp}")
    a(f"s_mov_b32 {T2}, 0\n{wl}:\ns_add_u32 {T2}, {T2}, 1\ns_mov_b32 {T1}, 0")
    for i in range(4): a(f"v_cmp_eq_u32 vcc, {T2}, {b[i]}\ns_bcnt1_i32_b64 {T0}, vcc\ns_add_u32 {T1}, {T1}, {T0}")
    a(f"s_cmp_ge_u32 {T2}, 16\ns_cbranch_scc1 {fail}\ns_cmp_lt_u32 {T1}, 32\ns_cbranch_scc1 {wl}")
    a(f"s_mov_b32 {T1}, 0\ns_mov_b32 {T3}, 0")
    for i in range(4):
        a(f"""v_cmp_gt_u32 vcc, {sXc}, {b[i]}
        s_bcnt1_i32_b64 {T0}, vcc
        s_add_u32 {T3}, {T3}, {T0}
        v_add_u32 {dv}, {i}, {ad}
        v_cmp_gt_u32 s[16:17], s2, {dv}
        v_cmp_eq_u32 vcc, {sXc}, {b[i]}
        s_and_b64 vcc, vcc, s[16:17]
        s_bcnt1_i32_b64 {T0}, vcc
        s_add_u32 {T1}, {T1}, {T0}""")
    a(f"""s_add_u32 {out}, {T1}, {T3}
    s_cmp_gt_u32 {T2}, {sXc}
    s_cselect_b32 {T0}, 32, 0
    s_add_u32 {out}, {out}, {T0}
    s_cmp_lg_u32 {T2}, {sXc}
    s_cbranch_scc1 {wd}
    s_cmp_lt_u32 {T1}, 32
    s_cselect_b32 {out}, {T1}, {out}
    {wd}:""")

sCnt="s38"; SPIN=3000000
def wait_flags(a, so, n, shift, val, fail, every_wave=False, sleep=1, t=("v10","v11"), rows=1):
    lp,ok=a.lab("wf"),a.lab("wfo")
    if not every_wave: a(f"s_cmp_lg_u32 {sW}, 0\ns_cbranch_scc1 {ok}")
    a(f"v_min_u32 {t[0]}, {n-1}, v0\nv_lshlrev_b32 {t[0]}, {shift}, {t[0]}")
    for r in range(rows):
        l2=f"{lp}_{r}"; l3=f"{lp}_{r}f"
        a(f"s_branch {l3}\n{l2}:")
        if sleep: a(f"s_sleep {sleep}")
        a(f"""{l3}:
        buffer_load_dword {t[1]}, {t[0]}, {sWS}, {so} offen offset:{256*r} sc1
        s_add_u32 {sCnt}, {sCnt}, 1
        s_cmp_gt_u32 {sCnt}, {SPIN}
        s_cbranch_scc1 {fail}
        s_waitcnt vmcnt(0)
        v_cmp_gt_u32 vcc, {val}, {t[1]}
        s_cbranch_vccnz {l2}""")
    if not every_wave: a(f"{ok}:\ns_barrier")
def put_flag(a, so, val, t=("v10","v11")):
    a(f"v_mov_b32 {t[0]}, 0\nv_mov_b32 {t[1]}, {val}\ns_mov_b64 exec, 1\nbuffer_store_dword {t[1]}, {t[0]}, {sWS}, {so} offen sc1\ns_mov_b64 exec, -1")
def signal(a, so, val, synced=False, t=("v10","v11")):
    sk=a.lab("sg")
    if not synced: a("s_waitcnt vmcnt(0)\ns_barrier")
    a(f"s_cmp_lg_u32 {sW}, 0\ns_cbranch_scc1 {sk}"); put_flag(a,so,val,t); a(f"{sk}:")

def spoll(a, so, fail, sleep, bad, every_wave=False):
    lp,ok=a.lab("sp"),a.lab("spo")
    if not every_wave: a(f"s_cmp_lg_u32 {sW}, 0\ns_cbranch_scc1 {ok}")
    a(f"""s_branch {lp}f
    {lp}:
    s_sleep {sleep}
    {lp}f:
    s_load_dword s39, s[8:9], {so} glc
    s_add_u32 {sCnt}, {sCnt}, 1
    s_cmp_gt_u32 {sCnt}, {SPIN}
    s_waitcnt lgkmcnt(0)
    s_cbranch_scc1 {fail}
    s_cmp_eq_u32 s39, {bad}
    s_cbranch_scc1 {lp}""")
    if not every_wave: a(f"{ok}:")

PROF={"on":None}
CSR=[0,92,64,66,54,56,58,16,98]
RT=["a2_1","awo","bq","bp","bw","a1"]
def cs(a, tag, k):
    if PROF["on"]==tag: a(f"s_memtime s[{CSR[k]}:{CSR[k]+1}] ; nochk")
    if PROF["on"]=="rt" and tag in RT: a(f"s_memrealtime s[{CSR[k]}:{CSR[k]+1}] ; nochk")
def cs_dump(a, tag, only_rt=False):
    rt=PROF["on"]=="rt" and tag in RT
    if not rt and (only_rt or PROF["on"]!=tag): return
    a(f"s_waitcnt lgkmcnt(0)\ns_lshl_b32 {T0}, {sI}, 2\ns_add_u32 {T0}, {T0}, {sW}\ns_lshl_b32 {T0}, {T0}, 6\ns_add_u32 {T0}, {T0}, {OFF_TS+0x20000+(0x20000*RT.index(tag) if rt else 0)}")
    if rt: a(f"s_lshl_b32 s100, s23, 16\ns_add_u32 {T0}, {T0}, s100")
    a(f"v_mov_b32 v10, {T0}\ns_mov_b64 exec, 1")
    for k in range(9): a(f"v_mov_b32 v11, s{CSR[k]}\nglobal_store_dword v10, v11, s[6:7] offset:{4*k}\ns_nop 1")
    a("s_mov_b64 exec, -1")

def coop_blocks(a, blocks, slot, tmp, wq, hooks={}):
    n=len(blocks); NB=4
    def issue(bi):
        for i,(va,s_,sb,c) in enumerate(blocks[bi][0]):
            a(f"s_add_u32 {T0}, {sb}, {c}")
            a(f"s_add_u32 m0, {wq}, {slot(bi%NB)+1024*i}" if isinstance(wq,str) else f"s_mov_b32 m0, {wq+slot(bi%NB)+1024*i}")
            a(f"buffer_load_dwordx4 {va}, {s_}, {T0} offen lds")
    a("s_barrier")
    for bi in range(min(NB-1,n)): issue(bi)
    for bi in range(n):
        if bi in hooks: hooks[bi]()
        a(f"s_waitcnt vmcnt({4*(min(n,bi+NB-1)-bi-1)}) lgkmcnt(0)\ns_barrier")
        if bi+NB-1<n: issue(bi+NB-1)
        cur={}
        for (vb,k,rb,offs,post) in blocks[bi][1]:
            if vb not in cur:
                cur[vb]=tmp[len(cur)]; a(f"v_add_u32 {cur[vb]}, {slot(bi%NB)}, {vb}")
            for qd in range(4): a(f"ds_read_b64_tr_b16 {k}[{rb+2*qd}:{rb+2*qd+1}], {cur[vb]} offset:{offs[qd]}")
            if post:
                a("s_waitcnt lgkmcnt(0)")
                for x in post: a(x)
    a("s_waitcnt lgkmcnt(0)\ns_barrier")
QKV_OFFS=[(qd&1)*1024+(qd>>1)*8192 for qd in range(4)]
def coop_qkv_addr(a, lane, w4, vchunk, vt0, vt1, t0, t1):
    a(f"""
    v_lshrrev_b32 {t0}, 4, {lane}
    v_and_b32 {t1}, 15, {lane}
    v_lshlrev_b32 {vchunk}, 1, {t0}
    v_xor_b32 {vchunk}, {vchunk}, {t1}
    v_lshlrev_b32 {vchunk}, 4, {vchunk}
    v_bfe_u32 {t1}, {lane}, 2, 3           ; r + 4(g&1)
    v_lshlrev_b32 {t1}, 1, {t1}
    v_bfe_u32 {vt1}, {lane}, 1, 1
    v_add_u32 {vt1}, {w4}, {vt1}
    v_xor_b32 {vt1}, {vt1}, {t1}
    v_lshlrev_b32 {vt1}, 4, {vt1}
    v_and_b32 {t1}, 1, {lane}
    v_lshl_add_u32 {vt1}, {t1}, 3, {vt1}
    v_bfe_u32 {t1}, {lane}, 2, 2
    v_lshl_add_u32 {t0}, {t0}, 3, {t1}
    v_lshl_add_u32 {vt0}, {t0}, 8, {vt1}
    v_xor_b32 {vt1}, 32, {vt0}
    """)

def guard(a, fail): a(f"s_add_u32 {sCnt}, {sCnt}, 64\ns_cmp_gt_u32 {sCnt}, {SPIN}\ns_cbranch_scc1 {fail}")
def flag_if(a, cond, so, t=("v10","v11")):
    a(f"{cond}\ns_cselect_b32 s18, {so}, 0x40000000\ns_cmp_eq_u32 {sW}, 0\ns_cselect_b32 s18, s18, 0x40000000"); put_flag(a,"s18",1,t)
```

```python
import sys
from wk import *
import wk, a1, a2p, awo, bqkv, batt, battp, bwo
import chain as C
from stages import compact, KD, CH_CFG
NAME="interleave_layers__memory_aug_recurrent_mem_tr__mha_block__prompt_kernel"
XB_=2048*1152
sLay,sJ,sLo="s23","s22","s20"
NA,NW,NB=3,7,4
def stamp(a, cfg, k, r=10):
    if not cfg.get("ts"): return
    if cfg.get("light") and not (k in (8,9) or (r==12 and k in (2,3))): return
    sk=a.lab("ts")
    a(f"""s_cmp_lg_u32 {sW}, 0
    s_cbranch_scc1 {sk}
    s_memrealtime s[98:99]
    s_lshl_b32 s100, {sLay}, 4
    s_add_u32 s100, s100, {k}
    s_lshl_b32 s100, s100, 8
    s_add_u32 s100, s100, s101
    s_lshl_b32 s100, s100, 2
    s_add_u32 s100, s100, {OFF_TS}
    s_waitcnt lgkmcnt(0)
    v_mov_b32 v{r}, s100
    v_mov_b32 v{r+1}, s98
    s_mov_b64 exec, 1
    global_store_dword v{r}, v{r+1}, s[6:7]
    s_memtime s[98:99]
    v_add_u32 v{r}, 0x8000, v{r}
    s_waitcnt lgkmcnt(0)
    v_mov_b32 v{r+1}, s98
    global_store_dword v{r}, v{r+1}, s[6:7]
    s_mov_b64 exec, -1
    {sk}:""")
sVer="s19"
def verify(a, cfg, fail, cur, r=12, sampled=False):
    ok=a.lab("ver")
    a(f"s_cmp_lg_u32 {sVer}, 0\ns_cbranch_scc1 {ok}\ns_mov_b32 {sVer}, 1\nv_mbcnt_lo_u32_b32 v{r+6}, -1, 0\nv_mbcnt_hi_u32_b32 v{r+6}, -1, v{r+6}")
    elect(a,fail,"s18",t=[f"v{r+i}" for i in range(6)],lane=f"v{r+6}",sampled=sampled)
    a(f"s_add_u32 {T0}, {sI}, {cur}\ns_cmp_eq_u32 {T0}, s18\ns_cbranch_scc1 {ok}\ns_mov_b32 {sI}, s18\ns_mov_b32 s10, {WS_BYTES}\ns_waitcnt vmcnt(0) lgkmcnt(0)\ns_branch k_role\n{ok}:")
def div7(a, dq, dr, x): a(f"s_mul_i32 {dq}, {x}, 9363\ns_lshr_b32 {dq}, {dq}, 16\ns_mul_i32 {T0}, {dq}, 7\ns_sub_u32 {dr}, {x}, {T0}")
def worker(a, cfg):
    F="w_fail"; sTm,sR="s39","s37"
    EF=dict(o=2,x1=30,bq=14,bo=1,x2=17,kv=11); EF.update(cfg.get("ef",{}))
    on=lambda k: EF[k] is not None
    def layer_base(): a(f"s_mul_i32 {T0}, {sLay}, {LAYER_STRIDE}\ns_add_u32 s8, s6, {T0}\ns_addc_u32 s9, s7, 0\ns_mov_b32 s10, {LAYER_SPAN}")
    def next_layer(lbl):
        stamp(a,cfg,8); srd(a,sX,6,XB_,OFF_X2)
        a(f"s_add_u32 {sLay}, {sLay}, 1\ns_cmp_lt_u32 {sLay}, 2\ns_cbranch_scc1 {lbl}\ns_branch {F}")
    a(f"worker:\ns_sub_u32 {sI}, {sI}, 32\ns_mov_b32 {sCnt}, 0")
    srd(a,sX,P_X,XB_); srd(a,sD,6,WS_BYTES)
    a(f"s_cmp_ge_u32 {sI}, 128\ns_cbranch_scc1 w_pipe")
    a(f"s_lshr_b32 {a1.sHd}, {sI}, 2\ns_and_b32 {sJ}, {sI}, 3")
    a1.load_qkv(a,"kv")
    a("g_layer:"); layer_base()
    a(f"s_mov_b32 {a1.sSeg}, {sJ}\ns_barrier")
    a1.consts(a)
    if not cfg.get("lateq",1): a1.load_qkv(a,"q")
    stamp(a,cfg,1); verify(a,cfg,F,32); stamp(a,cfg,0)
    def wait_x(sg):
        sk=a.lab("nx")
        a(f"s_cmp_eq_u32 {sLay}, 0\ns_cbranch_scc1 {sk}\ns_lshl_b32 {T3}, {sg}, 12\ns_add_u32 {T3}, {T3}, {F_X2}")
        wait_flags(a,T3,3,7,1,F,every_wave=True); a(f"{sk}:")
    wait_x(a1.sSeg); a("s_mov_b32 s30, 0x40000000\nw_a1r:"); cs(a,"a1",8); a1.fetch(a,a1.sSeg); guard(a,F)
    a("s_waitcnt vmcnt(0)\nw_a1:")
    def nxt(later):
        sk=a.lab("nx")
        a(f"s_add_u32 {T2}, {a1.sSeg}, 4\ns_min_u32 {T2}, {T2}, 63\ns_cmp_ge_u32 {a1.sSeg}, 32\ns_cbranch_scc1 {sk}")
        a(f"s_cmp_lt_u32 {a1.sSeg}, 28\ns_cbranch_scc1 {sk}o\ns_cmp_eq_u32 {sLay}, 0\ns_cbranch_scc1 {sk}\ns_mov_b32 {T3}, {F_X2}")
        for c in range(3):
            wait_flags(a,T3,64,12,1,F,every_wave=True); a(f"s_add_u32 {T3}, {T3}, 128")
        a(f"s_branch {sk}\n{sk}o:")
        if cfg.get("lateq",1): a(f"s_cmp_lt_u32 {a1.sSeg}, 4\ns_cselect_b32 {T2}, 4096, {T2}\ns_cbranch_scc1 {sk}")
        wait_x(T2); a(f"{sk}:"); a1.fetch(a,T2,later)
    def late_q():
        a(f"s_cmp_ge_u32 {a1.sSeg}, 4\ns_cbranch_scc1 a1_hasq"); a1.load_qkv(a,"q",{0:lambda: (a("s_waitcnt vmcnt(12)\ns_barrier"),sig(2))})
        a(f"s_add_u32 {T2}, {a1.sSeg}, 4"); wait_x(T2); a1.fetch(a,T2); a("a1_hasq:")
    def sig(i):
        if i==1: signal(a,"s30",2,synced=True)
        else:
            a(f"s_lshl_b32 s30, {a1.sHd}, 6\ns_add_u32 s30, s30, {a1.sSeg}\ns_lshl_b32 s30, s30, 4\ns_add_u32 s30, s30, {F_KV}"); signal(a,"s30",1,synced=i==2,t=("v16","v17") if i==2 else ("v10","v11"))
    a1.segment(a,0,nxt,sig,"w_a1r" if on("x2") else None,EF["kv"],late_q if cfg.get("lateq",1) else None); cs(a,"a1",7)
    if cfg.get("prof")=="rt": a(f"s_cmp_ge_u32 {a1.sSeg}, 4\ns_cbranch_scc1 a1_nd"); cs_dump(a,"a1"); a("a1_nd:")
    a(f"s_add_u32 {a1.sSeg}, {a1.sSeg}, 4\ns_cmp_lt_u32 {a1.sSeg}, 64\ns_cbranch_scc1 w_a1")
    signal(a,"s30",2)
    if cfg.get("prof")=="a1": cs_dump(a,"a1")
    stamp(a,cfg,2)
    def bw_task(idx):
        a(f"s_mul_i32 {bwo.sSeg}, {idx}, 43691\ns_lshr_b32 {bwo.sSeg}, {bwo.sSeg}, 17\ns_mul_i32 {T0}, {bwo.sSeg}, 3\ns_sub_u32 {bwo.sCg}, {idx}, {T0}")
        a(f"s_sub_u32 {T0}, 63, {bwo.sSeg}\ns_cmp_eq_u32 {sLay}, 0\ns_cselect_b32 {bwo.sSeg}, {bwo.sSeg}, {T0}")
    def g_idx(skip): a(f"s_cmp_eq_u32 {sLay}, 0\ns_cbranch_scc1 {skip}\ns_cmp_ge_u32 {sJ}, 2\ns_cbranch_scc1 {skip}\ns_lshr_b32 {T1}, {sI}, 1\ns_add_u32 {T1}, {T1}, {sJ}\ns_add_u32 {T1}, {T1}, 128")
    g_idx("g_att"); bw_task(T1); bwo.load_w(a)
    a(f"g_att:\ns_lshr_b32 {batt.sHd}, {sI}, 2\ns_mov_b32 {batt.sJ}, {sJ}")
    battp.consts(a)
    if on("bo"): battp.poison(a)
    def stored(lo,hi,wait):
        sk=a.lab("st")
        a(f"""s_cmp_eq_u32 {lo}, {hi}
        s_cbranch_scc1 {sk}
        s_lshl_b32 {T3}, {sW}, 2
        s_add_u32 {T3}, {T3}, {sJ}
        s_lshl_b32 {T3}, {T3}, 5
        s_add_u32 {T3}, {T3}, {batt.sHd}
        s_lshl_b32 {T3}, {T3}, 7
        s_add_u32 {T3}, {T3}, {F_BO}
        v_lshlrev_b32 v10, 16, v0
        v_mov_b32 v11, 1
        s_bfm_b64 exec, {hi}, 0
        {"s_waitcnt vmcnt(0)" if wait else ""}
        buffer_store_dword v11, v10, {sWS}, {T3} offen sc1
        s_mov_b64 exec, -1
        {sk}:""")
    battp.run(a,F,cfg.get("lrange",120<<23),stored,cfg.get("sl_batt",2),on("bo"),on("bq"),sLay if cfg.get("defer2",1) else None)
    cs_dump(a,"bp"); stamp(a,cfg,5)
    g_idx("g_next"); bw_task(T1); a("s_branch w_bw0\ng_next:")
    next_layer("g_layer")
    a("w_pipe:")
    for _ in range(cfg.get("pdelay",0)): a("s_sleep 36")
    a(f"""s_sub_u32 {T0}, {sI}, 128
    s_lshr_b32 {T2}, {T0}, 5
    s_and_b32 {T1}, {T0}, 31
    s_mul_i32 {sTm}, {T1}, 58255
    s_lshr_b32 {sTm}, {sTm}, 19
    s_mul_i32 {T0}, {sTm}, 9
    s_sub_u32 {sR}, {T1}, {T0}
    s_cmp_eq_u32 {T2}, 2
    s_cselect_b32 {T0}, 27, 18
    s_cmp_lt_u32 {T1}, {T0}
    s_cbranch_scc1 p_layer""")
    a(f"s_mul_i32 {a1.sHd}, {T2}, 14\ns_add_u32 {a1.sHd}, {a1.sHd}, {T1}\ns_sub_u32 {a1.sHd}, {a1.sHd}, {T0}\ns_min_u32 {a1.sHd}, {a1.sHd}, 31")
    a1.consts(a); a1.load_qkv(a,"kv")
    stamp(a,cfg,1); verify(a,cfg,F,32)
    a(f"s_cmp_lg_u32 {sI}, 223\ns_cbranch_scc1 a2_go\ns_mov_b32 {sLay}, 1"); layer_base(); a(f"s_mov_b32 {T1}, 63\ns_branch w_bwo\na2_go:")
    a2p.consts(a)
    a("a2_layer:"); layer_base()
    def qready(pair):
        a(f"""s_lshr_b32 {T3}, {sW}, 1
        s_add_u32 {T3}, {T3}, {pair}
        s_lshl_b32 {T3}, {T3}, 4
        s_add_u32 {T3}, {T3}, s27""")
        wait_flags(a,T3,1,2,2,F,every_wave=True,sleep=4)
    def ready(pair):
        rdy=a.lab("a2r")
        a(f"""v_cmp_lt_u32 vcc, 1, v7
        s_lshr_b32 {T3}, {sW}, 1
        s_add_u32 {T3}, {T3}, {pair}
        s_cmp_ge_u32 {T3}, 64
        s_cbranch_scc1 {rdy}
        s_bitcmp1_b64 vcc, {T3}
        s_cbranch_scc1 {rdy}""")
        qready(pair); a(f"{rdy}:")
    def flag_prev(back=2):
        a(f"""s_sub_u32 s50, {a1.sSeg}, {back}
        v_add_u32 v10, s50, v0
        v_cmp_gt_u32 vcc, 64, v10
        v_lshlrev_b32 v10, 12, v10
        v_mov_b32 v11, 1
        s_lshl_b32 s50, {a1.sHd}, 7
        s_add_u32 s50, s50, {F_O}
        s_cmp_eq_u32 {sW}, 0
        s_cselect_b32 s50, s50, {a2p.OOB}
        v_cndmask_b32 v10, v8, v10, vcc
        s_mov_b64 exec, 3
        buffer_store_dword v11, v10, {sWS}, s50 offen sc1
        s_mov_b64 exec, -1""")
    a(f"s_mov_b32 {a1.sSeg}, {-1 if cfg.get('odd',0) else 0}\ns_lshl_b32 s27, {a1.sHd}, 10\ns_add_u32 s27, s27, {F_KV}\nv_mov_b32 v8, 0x20000000\nv_mov_b32 v7, 0")
    ready(a1.sSeg)
    O1=cfg.get("ofirst",58)
    if on("o"):
        for p_ in range(O1,64,2): a2p.poison(a,p_)
    def o_early():
        sk=a.lab("oe"); a(f"s_cmp_lt_u32 {a1.sSeg}, {O1}\ns_cbranch_scc1 {sk}"); flag_prev(0); a(f"{sk}:")
    a2p.addrs(a,a1.sSeg)
    for x in a2p.kv_loads(0)+a2p.q_loads(): a(x)
    a("s_waitcnt vmcnt(0)\nw_a2:")
    for vb in range(2):
        a2p.body(a,vb,F,lambda: a(f"buffer_load_dword v7, {a1.vL16}, {sWS}, s27 offen sc1"),flag_prev,ready,cfg.get("vp_sl",1),cfg.get("ahead",0),(EF["o"],o_early) if on("o") else None)
        a(f"s_add_u32 {a1.sSeg}, {a1.sSeg}, 2")
        if vb==(0 if cfg.get('odd',0) else 1): a(f"s_cmp_ge_u32 {a1.sSeg}, 64\ns_cbranch_scc1 w_a2e")
    a("s_branch w_a2\nw_a2e:\ns_waitcnt vmcnt(0)\ns_barrier"); flag_prev()
    cs(a,'a2_0',8); cs_dump(a,'a2_0'); cs_dump(a,'a2_1')
    stamp(a,cfg,3)
    a(f"s_add_u32 {T1}, {a1.sHd}, 64\ns_cmp_lg_u32 {sLay}, 0\ns_cbranch_scc1 w_bwo")
    next_layer("a2_layer")
    a(f"c_join:\nv_mbcnt_lo_u32_b32 v0, -1, 0\nv_mbcnt_hi_u32_b32 v0, -1, v0\ns_mov_b32 {sCnt}, 0"); layer_base()
    a(f"s_add_u32 {T1}, {sI}, 96\ns_add_u32 {sI}, {sI}, 224\ns_branch w_bwo")
    a(f"p_layer:\ns_cmp_eq_u32 {T2}, 2\ns_cbranch_scc1 w_bqr")
    a(f"s_lshl_b32 s33, {T2}, 1\ns_add_u32 s33, s33, {sTm}\ns_mov_b32 {awo.sCg}, {sR}")
    awo.consts(a); awo.load_w(a)
    stamp(a,cfg,1); verify(a,cfg,F,32)
    a(f"v_and_b32 v7, 7, v0\ns_lshl_b32 {T0}, {sW}, 3\nv_add_u32 v7, {T0}, v7\nv_lshlrev_b32 v7, 7, v7")
    a("aw_layer:"); layer_base(); a(f"s_mov_b32 {awo.sTask}, s33")
    def oflag(dst,task): a(f"s_lshr_b32 {dst}, {task}, 1\ns_lshl_b32 {dst}, {dst}, 12\ns_add_u32 {dst}, {dst}, {F_O}")
    def xsig():
        a(f"s_barrier\ns_cmp_lg_u32 {sW}, 0\ns_cselect_b32 s31, 0x40000000, s31"); put_flag(a,"s31",1)
    if on("x1"): a("s_add_u32 s32, s33, 124"); awo.poison(a,0,"s32"); a("s_add_u32 s32, s33, 120"); awo.poison(a,0,"s32")
    a("w_awo_wait:"); oflag(T3,awo.sTask)
    a(f"s_lshl_b32 {T0}, {sW}, 10\ns_add_u32 {T3}, {T3}, {T0}")
    wait_flags(a,T3,8,7,1,F,every_wave=True,sleep=cfg.get("sl_w",1))
    guard(a,F); cs(a,"awo",0); awo.issue(a)
    a(f"s_mov_b32 s31, 0x40000000"); put_flag(a,"s31",1)
    a(f"w_awo:\ns_add_u32 s32, {awo.sTask}, 4"); oflag("s30","s32")
    a(f"""s_lshr_b32 s31, {awo.sTask}, 1
    s_lshl_b32 s31, s31, 5
    s_and_b32 {T0}, {awo.sTask}, 1
    s_mul_i32 {T0}, {T0}, 9
    s_add_u32 s31, s31, {T0}
    s_add_u32 s31, s31, {awo.sCg}
    s_lshl_b32 s31, s31, 7
    s_add_u32 s31, s31, {F_X1}""")
    awo.task(a,0,1,lambda: a(f"buffer_load_dword v8, v7, {sWS}, s30 offen sc1"),
             (EF["x1"],lambda: flag_if(a,f"s_cmp_ge_u32 {awo.sTask}, 120","s31")) if on("x1") else None,"w_awo_wait" if on("o") else None)
    a(f"""
    s_mov_b32 {awo.sTask}, s32
    v_cmp_eq_u32 vcc, 0, v8
    s_cmp_ge_u32 s32, 128
    s_cbranch_scc1 w_awo_sync
    s_cbranch_vccnz w_awo_sync""")
    cs(a,"awp",0); awo.issue(a); cs(a,"awp",1); a(f"s_waitcnt vmcnt({awo.NI})"); cs(a,"awp",2); xsig(); cs(a,"awp",3); a("s_branch w_awo")
    a("w_awo_sync:")
    if on("x1"): a("s_cmp_lt_u32 s32, 124\ns_cbranch_scc1 w_awo_s1\ns_barrier\ns_branch w_awo_s2\nw_awo_s1:")
    a("s_waitcnt vmcnt(0)"); cs(a,"awo",6); xsig(); a("w_awo_s2:"); cs(a,"awo",7)
    a(f"s_cmp_lt_u32 {awo.sTask}, 128\ns_cbranch_scc1 w_awo_wait")
    cs_dump(a,"awo"); cs_dump(a,"awp"); stamp(a,cfg,3)
    a(f"s_mul_i32 {T1}, s33, 9\ns_add_u32 {T1}, {T1}, {sR}\ns_add_u32 {T1}, {T1}, 27\ns_cmp_lg_u32 {sLay}, 0\ns_cbranch_scc1 w_bwo")
    next_layer("aw_layer")
    def bq_ids():
        a(f"s_mul_i32 {T1}, {sTm}, 9\ns_add_u32 {T1}, {T1}, {sR}"); bw_task(T1)
    a("w_bqr:"); bq_ids(); bwo.load_w(a)
    a(f"s_mov_b32 {bqkv.sU}, {sR}"); bqkv.load_w(a)
    stamp(a,cfg,1); verify(a,cfg,F,32)
    a("bq_layer:"); layer_base()
    a(f"s_mov_b32 {a1.sSeg}, {sTm}\ns_mov_b32 {bqkv.sU}, {sR}\ns_lshl_b32 s30, {bqkv.sU}, 8\ns_add_u32 s30, s30, {F_BQ}")
    srd(a,sX,8,XB_,OFF_X1)
    a1.consts(a); bqkv.load_w(a,False)
    if on("bq"):
        a(f"s_add_u32 {T0}, {sTm}, 60\ns_cmp_eq_u32 {sTm}, 0\ns_cselect_b32 {a1.sSeg}, 63, {T0}"); bqkv.stores(a,0,False)
        a(f"s_add_u32 {a1.sSeg}, {sTm}, 60"); bqkv.stores(a,0,False); a(f"s_mov_b32 {a1.sSeg}, {sTm}")
    a(f"w_bq:\ns_lshl_b32 {T3}, {a1.sSeg}, 12\ns_add_u32 {T3}, {T3}, {F_X1}")
    wait_flags(a,T3,18,7,1,F,sleep=cfg.get("sl_w",1))
    a("w_bqf:"); cs(a,"bq",0); a1.fetch(a,a1.sSeg); guard(a,F); cs(a,"bq",1)
    a(f"s_lshl_b32 {T3}, {a1.sSeg}, 2\ns_add_u32 {T3}, {T3}, s30")
    bqkv.segment(a,0,lambda:None,"w_bqf" if on("x1") else None,{EF["bq"]:lambda: flag_if(a,f"s_cmp_ge_u32 {a1.sSeg}, 60",T3)}); cs(a,"bq",5)
    if on("bq"): a(f"s_cmp_ge_u32 {a1.sSeg}, 60\ns_cbranch_scc1 w_bqs")
    signal(a,T3,1); a("w_bqs:"); cs(a,"bq",6)
    a(f"s_add_u32 {a1.sSeg}, {a1.sSeg}, 3\ns_cmp_lt_u32 {a1.sSeg}, 64\ns_cbranch_scc1 w_bq")
    cs_dump(a,"bq"); stamp(a,cfg,3)
    bq_ids(); a("s_branch w_bw0")
    a("w_bwo:"); bw_task(T1); a("s_barrier"); bwo.load_w(a)
    a("w_bw0:")
    srd(a,sX,8,XB_,OFF_X1)
    bwo.consts(a)
    srd(a,sB,6,XB_,OFF_X2)
    a(f"s_cmp_eq_u32 {sLay}, 0\ns_cbranch_scc1 w_bw1"); srd(a,sB,P_OUT,XB_)
    a(f"w_bw1:\ns_mov_b32 s10, {LAYER_STRIDE+LAYER_SPAN}")
    stamp(a,cfg,6)
    a(f"s_lshl_b32 {T3}, {bwo.sSeg}, 12\ns_add_u32 {T3}, {T3}, {F_X1}")
    a(f"s_lshl_b32 {T3}, {bwo.sSeg}, 2\ns_add_u32 {T3}, {T3}, {F_BQ}")
    wait_flags(a,T3,1,2,1,F,sleep=8)
    a("w_bw2:"); bwo.resid_loads(a)
    a(f"s_lshl_b32 s29, {sLay}, 6\ns_add_u32 s29, s29, {bwo.sSeg}")
    if on("x2"):
        a(f"s_cmp_ge_u32 s29, 9\ns_cbranch_scc1 w_bwp"); bwo.poison(a,sB,0); a("s_waitcnt vmcnt(0)\nw_bwp:")
    a(f"w_bwr:\ns_lshl_b32 {T3}, {bwo.sSeg}, 12\ns_add_u32 {T3}, {T3}, {F_BO}")
    cs(a,"bw",0); wait_flags(a,T3,32,7,1,F); guard(a,F); cs(a,"bw",1)
    a(f"s_lshl_b32 {T3}, {bwo.sSeg}, 5\ns_add_u32 {T3}, {T3}, {bwo.sCg}\ns_lshl_b32 {T3}, {T3}, 7\ns_add_u32 {T3}, {T3}, {LAYER_STRIDE+F_X2}")
    bwo.task(a,0,sB,0,"sc1","w_bwr" if on("bo") else None,{EF["x2"]:lambda: flag_if(a,"s_cmp_lt_u32 s29, 9",T3,("v9","v11"))}); cs(a,"bw",5)
    a(f"s_cmp_eq_u32 {sLay}, 0\ns_cbranch_scc0 w_bw5")
    signal(a,T3,1)
    a(f"s_cmp_ge_u32 {bwo.sSeg}, 9\ns_cbranch_scc1 w_bw4"); stamp(a,cfg,7); cs_dump(a,"bw",True)
    a(f"w_bw4:\ns_add_u32 {bwo.sSeg}, {bwo.sSeg}, 9\ns_cmp_lt_u32 {bwo.sSeg}, 64\ns_cbranch_scc1 w_bw2\nw_bw5:")
    if cfg.get("prof")=="rt": a(f"s_cmp_eq_u32 {sLay}, 0\ns_cbranch_scc1 w_bw6")
    cs_dump(a,"bw"); a("w_bw6:")
    next_layer("bq_layer")
    a(f"{F}:\ns_waitcnt vmcnt(0) lgkmcnt(0)\ns_endpgm")

def chain(a, cfg):
    cc=dict(CH_CFG); cc["prepoison"]=1; cc.update(cfg.get("chain",{}))
    sLo_,sFk="s52","s53"; RDY="s[50:51]"
    srd(a,sX,P_MEM,9216); srd(a,sA,P_WQ,4718592); srd(a,sB,P_WK,4718592); srd(a,sC_,P_WV,4718592); srd(a,sD,P_WO,4718592)
    a(f"s_mov_b32 {sLo_}, 0\ns_mov_b32 {C.sCnt}, 0")
    for w in (1,2,3): a(f"s_cmp_eq_u32 {sW}, {w}\ns_cbranch_scc1 c_w{w}")
    for w in range(4):
        pre=f"ch{w}"; F=f"{pre}_fail"
        a(f"c_w{w}:")
        C.prologue_consts(a,w)
        vb=cfg.get("vblock",14)
        def ask():
            a("v_lshlrev_b32 v40, 2, v10\nglobal_load_dword v41, v40, s[4:5] sc1"); C.fetch_mem0(a,w,sX,"v10")
        def check():
            verify(a,cfg,F,0,40,True); stamp(a,cfg,0,48)
            C.init_comm(a,w,False); C.store_mem0(a,w,[C.held(0),"v10"])
        C.load_weights(a,w,{"q":sA,"k":sB,"v":sC_,"o":sD},{3:lambda: announce(a,("v40","v41"),"s_nop 0"),vb-4:ask,vb:check,1:lambda: stamp(a,cfg,10,48),6:lambda: stamp(a,cfg,11,48)})
        stamp(a,cfg,1,12)
        a(f"v_mov_b32 v11, v10\n{pre}_layer:")
        C.set_layer(a,w,sLo_)
        fload=f"buffer_load_dword v11, {C.vL16}, {sWS}, {sFk} offen sc1"
        def kvwait(lbl, back, bit, sleep):
            a(f"{lbl}:"); a(fload); C.spin_guard(a,F)
            if sleep: a(f"s_sleep {sleep}")
            a(f"s_waitcnt vmcnt(0)\nv_cmp_ne_u32 {RDY}, 0, v11\ns_nop 0\ns_bitcmp1_b64 {RDY}, {bit}\ns_cbranch_scc0 {lbl}")
            if back: a(f"s_branch {back}")
        if w==3:
            a(f"s_lshl_b32 {sFk}, {C.sH}, 10\ns_add_u32 {sFk}, {sFk}, {sLo_}\ns_add_u32 {sFk}, {sFk}, {F_KV}")
            kvwait(f"{pre}_kv0",None,cfg.get("kv0",0),1)
        a("s_waitcnt vmcnt(0)\ns_barrier")
        stamp(a,cfg,2,12)
        def qk(w):
            if w==3: return [(2,(None,f"s_add_u32 {C.sT1}, {C.sSeg}, 1")),(2,(None,f"v_cmp_ne_u32 {RDY}, 0, v11")),(8,(None,f"s_bitcmp1_b64 {RDY}, {C.sT1}")),(20,(None,f"s_cbranch_scc0 {pre}_kvw\n{pre}_kvok:"))]
            return []
        hooks=dict(mid=lambda w:[], end=lambda a,w: a(f"s_cmp_eq_u32 {C.sSeg}, 63\ns_cbranch_scc1 {pre}_done"), qk=qk, pre_k=lambda w:[], sal=lambda w:(["s_memrealtime s[98:99]\ns_waitcnt lgkmcnt(0)\ns_mov_b32 m0, "+C.sSeg+"\nv_writelane_b32 "+C.vAux+", s98, m0"] if (w==0 and cfg.get("ts") and not cfg.get("light")) else []), prefix=pre, after_touch=[fload])
        C.step_loop(a,w,cc,hooks)
        if w==3: kvwait(f"{pre}_kvw",f"{pre}_kvok",C.sT1,0)
        a(f"{pre}_done:")
        for i in range(len(C.GROUPS[w])): a(C.publish(i))
        a("s_waitcnt vmcnt(0) lgkmcnt(0)")
        if w==0 and cfg.get("ts"):
            a(f"s_lshl_b32 {T0}, {sLay}, 5\ns_add_u32 {T0}, {T0}, {C.sH}\ns_lshl_b32 {T0}, {T0}, 8\ns_add_u32 {T0}, {T0}, {OFF_TS+0x10000}\nv_lshrrev_b32 v12, 2, {C.vL16}\nbuffer_store_dword {C.vAux}, v12, {sWS}, {T0} offen")
        stamp(a,cfg,3,12)
        if cfg.get("stop_after_a1"): a(f"s_branch {F}")
        a(f"s_cmp_lg_u32 {sLo_}, 0\ns_cbranch_scc1 c_join\ns_mov_b32 {sLo_}, {LAYER_STRIDE}\ns_mov_b32 {sLay}, 1")
        for i,g in enumerate(C.GROUPS[w]):
            a(f"s_add_u32 {C.sT1}, {C.mso(i)}, 0x8000\nbuffer_load_dword v21, {C.vMst}, {sWS}, {C.sT1} offen sc1")
        for x in C.next_slots(w): a(x)
        a(f"v_lshrrev_b32 v18, 4, {C.vL16}"); C.fetch_mem0(a,w,sX,"v18"); a("s_waitcnt vmcnt(0)"); C.store_mem0(a,w,[C.held(0),C.held(1)])
        a(f"s_branch {pre}_layer\n{F}:\ns_waitcnt vmcnt(0) lgkmcnt(0)\ns_endpgm")

def gen(cfg={}):
    a=Asm(); wk.PROF['on']=cfg.get('prof')
    a(f"{NAME}:\ns_cmp_lt_u32 s2, 256\ns_cbranch_scc1 k_go\nk_end:\ns_endpgm\nk_go:\ns_getreg_b32 {sXc}, hwreg(HW_REG_XCC_ID, 0, 4)\ns_add_u32 {sXc}, {sXc}, 1\nv_lshlrev_b32 v2, 4, v0")
    if cfg.get("icode",0):
        a(f"""s_getpc_b64 s[16:17]
        k_pc:
        s_lshr_b32 s18, s2, 3
        s_lshl_b32 s18, s18, 5
        v_add_u32 v4, s18, v0
        v_lshlrev_b32 v4, 7, v4
        v_cmp_gt_u32 vcc, 32, v0
        v_min_u32 v4, k_last-k_pc, v4
        v_mov_b32 v7, s17
        s_and_saveexec_b64 s[18:19], vcc
        s_cbranch_execz k_pc2
        v_add_co_u32 v6, vcc, s16, v4
        v_addc_co_u32 v7, vcc, 0, v7, vcc
        global_load_dword v20, v[6:7], off sc1
        k_pc2:
        s_mov_b64 exec, s[18:19]""")
    entry(a)
    a(f"s_mov_b32 {sLay}, 0\ns_mov_b32 s101, s2")
    stamp(a,cfg,9)
    if cfg.get("noinit"): a(f"s_cmp_eq_u32 {sXc}, 1\ns_cselect_b32 s10, 0, s10")
    a(f"""s_lshr_b32 {T0}, s2, 7
    s_mul_i32 {T0}, {T0}, {LAYER_STRIDE}
    s_and_b32 {T1}, s2, 127
    s_lshl_b32 {T2}, {T1}, 11
    s_add_u32 {T2}, {T2}, {T0}
    s_add_u32 {T2}, {T2}, {OFF_F}
    s_lshl_b32 {T1}, {T1}, 13
    s_add_u32 {T1}, {T1}, {T0}
    s_add_u32 {T1}, {T1}, {OFF_MH}
    s_add_u32 {T0}, {T1}, 4096
    v_lshrrev_b32 v3, 1, v2
    v_mov_b32 v4, -1
    v_mov_b32 v5, -1
    v_mov_b32 v6, -1
    v_mov_b32 v7, -1
    v_mov_b32 v8, 0
    v_mov_b32 v9, 0
    buffer_store_dwordx2 v[8:9], v3, {sWS}, {T2} offen sc1
    buffer_store_dwordx4 v[4:7], v2, {sWS}, {T1} offen sc1
    buffer_store_dwordx4 v[4:7], v2, {sWS}, {T0} offen sc1
    s_add_u32 {T1}, {T1}, {OFF_FL-OFF_MH}
    v_lshlrev_b32 v3, 1, v2
    s_mov_b32 exec_lo, 0x11111111
    s_mov_b32 exec_hi, 0x11111111
    buffer_store_dword v8, v3, {sWS}, {T1} offen sc1
    s_mov_b64 exec, -1
    s_lshl_b32 {T1}, s2, 11
    s_add_u32 {T1}, {T1}, {OFF_P}
    v_lshrrev_b32 v3, 1, v2
    buffer_store_dwordx2 v[4:5], v3, {sWS}, {T1} offen sc1
    s_lshl_b32 {T1}, s2, 13
    s_add_u32 {T1}, {T1}, {OFF_M}
    s_add_u32 {T0}, {T1}, 4096
    buffer_store_dwordx4 v[4:7], v2, {sWS}, {T1} offen sc1
    buffer_store_dwordx4 v[4:7], v2, {sWS}, {T0} offen sc1""")
    a(f"""s_sub_u32 {T0}, {sXc}, 1
    s_and_b32 {T0}, {T0}, 7
    s_lshl_b32 {T0}, {T0}, 5
    s_lshr_b32 {sI}, s2, 3
    s_add_u32 {sI}, {sI}, {T0}
    s_mov_b32 {sVer}, 0
    s_mov_b32 s10, {WS_BYTES}
    s_waitcnt vmcnt(7)
    s_cmp_lt_u32 {sI}, 32
    s_cbranch_scc1 k_role""")
    if cfg.get("warm",0):
        a(f"s_sub_u32 {T0}, {sI}, 32\ns_mul_i32 {T0}, {T0}, {165*128}\nv_lshlrev_b32 v3, 3, v2\nv_mov_b32 v5, 0x40000000\nv_cmp_gt_u32 vcc, {165*128}, v3\nv_cndmask_b32 v3, v5, v3, vcc")
        for p in (P_WQ,P_WK,P_WV,P_WO):
            srd(a,sA,p,4718592); a(f"buffer_load_dword v4, v3, {sA}, {T0} offen sc1")
    announce(a)
    a(f"""k_role:
    s_mov_b32 s101, {sI}
    v_mbcnt_lo_u32_b32 v0, -1, 0
    v_mbcnt_hi_u32_b32 v0, -1, v0
    s_barrier
    s_cmp_lt_u32 {sI}, 32
    s_cbranch_scc1 chain""")
    worker(a,cfg)
    a("chain:")
    chain(a,cfg)
    a("k_last:\ns_endpgm")
    body=compact(a.finish())
    return f'; @launch grid=(256,1,1) block=(256,1,1) lds=163840\n.amdgcn_target "amdgcn-amd-amdhsa--gfx950"\n.text\n.globl {NAME}\n.p2align 8\n.type {NAME},@function\n'+body+KD.format(name=NAME)
if __name__=="__main__":
    import json
    t=gen(json.loads(sys.argv[2]) if len(sys.argv)>2 else {})
    ref=open("interleave_layers__memory_aug_recurrent_mem_tr__mha_block__prompt.s.ref").read()
    hdr="".join(l+"\n" for l in ref.split("\n")[:14])
    out=sys.argv[1] if len(sys.argv)>1 else "mega.s"
    open(out,"w").write(hdr+t)
    import subprocess
    print(len(t), subprocess.run(f"clang -x assembler -target amdgcn-amd-amdhsa -mcpu=gfx950 {out} -o mega.co && python3 cdna_unwritten_srd_check.py mega.co; llvm-readelf -S mega.co | grep text",shell=True,capture_output=True,text=True))
```

```python
import sys
from wk import *
import wk, a1, a2p, awo, bqkv, batt, battp, bwo
import chain as C
from stages import compact, KD, CH_CFG
NAME="interleave_layers__memory_aug_recurrent_mem_tr__mha_block__prompt_kernel"
XB_=2048*1152
sLay,sJ,sLo="s23","s22","s20"
NA,NW,NB=3,7,4
def stamp(a, cfg, k, r=10):
    if cfg.get("dbg"):
        if k==9: a("s_memrealtime s[98:99]\ns_waitcnt lgkmcnt(0)\ns_mov_b32 s100, s98\ns_memtime s[98:99]\ns_waitcnt lgkmcnt(0)\ns_mov_b32 s1, s98"); return
        if not ((r==12 and k in (2,3)) or k==8): return
        if k==2: a("s_memrealtime s[98:99]\ns_waitcnt lgkmcnt(0)\ns_sub_u32 s22, s98, s100\ns_memtime s[98:99]\ns_waitcnt lgkmcnt(0)\ns_sub_u32 s43, s98, s1"); return
        sk=a.lab("dg")
        a(f"""s_cmp_lg_u32 {sW}, 0
        s_cbranch_scc1 {sk}
        s_cmp_lg_u32 s101, {0 if k!=8 else 224}
        s_cbranch_scc1 {sk}
        s_memrealtime s[98:99]
        s_lshl_b32 s0, {sLay}, 4
        s_add_u32 s0, s0, {8*(k-2) if k!=8 else 32}
        v_mov_b32 v{r}, s0
        s_waitcnt lgkmcnt(0)
        s_sub_u32 s0, s98, s100
        v_mov_b32 v{r+1}, s0
        s_memtime s[98:99]
        s_mov_b64 exec, 1
        global_store_dword v{r}, v{r+1}, s[4:5]
        s_waitcnt lgkmcnt(0) vmcnt(0)
        s_sub_u32 s0, s98, s1
        v_mov_b32 v{r+1}, s0
        global_store_dword v{r}, v{r+1}, s[4:5] offset:4""")
        if k==3: a(f"v_mov_b32 v{r+2}, s22\nv_mov_b32 v{r+3}, s43\nglobal_store_dwordx2 v{r}, v[{r+2}:{r+3}], s[4:5] offset:-8")
        a(f"""s_mov_b64 exec, -1
        {sk}:""")
        return
    if not cfg.get("ts"): return
    if cfg.get("light") and not (k in (8,9) or (r==12 and k in (2,3))): return
    sk=a.lab("ts")
    a(f"""s_cmp_lg_u32 {sW}, 0
    s_cbranch_scc1 {sk}
    s_memrealtime s[98:99]
    s_lshl_b32 s100, {sLay}, 4
    s_add_u32 s100, s100, {k}
    s_lshl_b32 s100, s100, 8
    s_add_u32 s100, s100, s101
    s_lshl_b32 s100, s100, 2
    s_add_u32 s100, s100, {OFF_TS}
    s_waitcnt lgkmcnt(0)
    v_mov_b32 v{r}, s100
    v_mov_b32 v{r+1}, s98
    s_mov_b64 exec, 1
    global_store_dword v{r}, v{r+1}, s[6:7]
    s_memtime s[98:99]
    v_add_u32 v{r}, 0x8000, v{r}
    s_waitcnt lgkmcnt(0)
    v_mov_b32 v{r+1}, s98
    global_store_dword v{r}, v{r+1}, s[6:7]
    s_mov_b64 exec, -1
    {sk}:""")
sVer="s19"
def verify(a, cfg, fail, cur, r=12, sampled=False):
    ok=a.lab("ver")
    a(f"s_cmp_lg_u32 {sVer}, 0\ns_cbranch_scc1 {ok}\ns_mov_b32 {sVer}, 1\nv_mbcnt_lo_u32_b32 v{r+6}, -1, 0\nv_mbcnt_hi_u32_b32 v{r+6}, -1, v{r+6}")
    elect(a,fail,"s18",t=[f"v{r+i}" for i in range(6)],lane=f"v{r+6}",sampled=sampled)
    a(f"s_add_u32 {T0}, {sI}, {cur}\ns_cmp_eq_u32 {T0}, s18\ns_cbranch_scc1 {ok}\ns_mov_b32 {sI}, s18\ns_mov_b32 s10, {WS_BYTES}\ns_waitcnt vmcnt(0) lgkmcnt(0)\ns_branch k_role\n{ok}:")
def div7(a, dq, dr, x): a(f"s_mul_i32 {dq}, {x}, 9363\ns_lshr_b32 {dq}, {dq}, 16\ns_mul_i32 {T0}, {dq}, 7\ns_sub_u32 {dr}, {x}, {T0}")
def worker(a, cfg):
    F="w_fail"; sTm,sR="s39","s37"
    EF=dict(o=2,x1=30,bq=14,bo=1,x2=17,kv=11); EF.update(cfg.get("ef",{}))
    on=lambda k: EF[k] is not None
    def layer_base(): a(f"s_mul_i32 {T0}, {sLay}, {LAYER_STRIDE}\ns_add_u32 s8, s6, {T0}\ns_addc_u32 s9, s7, 0\ns_mov_b32 s10, {LAYER_SPAN}")
    def next_layer(lbl):
        stamp(a,cfg,8); srd(a,sX,6,XB_,OFF_X2)
        a(f"s_add_u32 {sLay}, {sLay}, 1\ns_cmp_lt_u32 {sLay}, 2\ns_cbranch_scc1 {lbl}\ns_branch {F}")
    a(f"worker:\ns_sub_u32 {sI}, {sI}, 32\ns_mov_b32 {sCnt}, 0")
    srd(a,sX,P_X,XB_); srd(a,sD,6,WS_BYTES)
    a(f"s_cmp_ge_u32 {sI}, 128\ns_cbranch_scc1 w_pipe")
    a(f"s_lshr_b32 {a1.sHd}, {sI}, 2\ns_and_b32 {sJ}, {sI}, 3")
    a1.load_qkv(a,"kv")
    a("g_layer:"); layer_base()
    a(f"s_mov_b32 {a1.sSeg}, {sJ}\ns_barrier")
    a1.consts(a)
    if not cfg.get("lateq",1): a1.load_qkv(a,"q")
    stamp(a,cfg,1); verify(a,cfg,F,32); stamp(a,cfg,0)
    def wait_x(sg):
        sk=a.lab("nx")
        a(f"s_cmp_eq_u32 {sLay}, 0\ns_cbranch_scc1 {sk}\ns_lshl_b32 {T3}, {sg}, 12\ns_add_u32 {T3}, {T3}, {F_X2}")
        wait_flags(a,T3,3,7,1,F,every_wave=True); a(f"{sk}:")
    wait_x(a1.sSeg); a("s_mov_b32 s30, 0x40000000\nw_a1r:"); cs(a,"a1",8); a1.fetch(a,a1.sSeg); guard(a,F)
    a("s_waitcnt vmcnt(0)\nw_a1:")
    def nxt(later):
        sk=a.lab("nx")
        a(f"s_add_u32 {T2}, {a1.sSeg}, 4\ns_min_u32 {T2}, {T2}, 63\ns_cmp_ge_u32 {a1.sSeg}, 32\ns_cbranch_scc1 {sk}")
        a(f"s_cmp_lt_u32 {a1.sSeg}, 28\ns_cbranch_scc1 {sk}o\ns_cmp_eq_u32 {sLay}, 0\ns_cbranch_scc1 {sk}\ns_mov_b32 {T3}, {F_X2}")
        for c in range(3):
            wait_flags(a,T3,64,12,1,F,every_wave=True); a(f"s_add_u32 {T3}, {T3}, 128")
        a(f"s_branch {sk}\n{sk}o:")
        if cfg.get("lateq",1): a(f"s_cmp_lt_u32 {a1.sSeg}, 4\ns_cselect_b32 {T2}, 4096, {T2}\ns_cbranch_scc1 {sk}")
        wait_x(T2); a(f"{sk}:"); a1.fetch(a,T2,later)
    def late_q():
        a(f"s_cmp_ge_u32 {a1.sSeg}, 4\ns_cbranch_scc1 a1_hasq"); a1.load_qkv(a,"q",{0:lambda: (a("s_waitcnt vmcnt(12)\ns_barrier"),sig(2))})
        a(f"s_add_u32 {T2}, {a1.sSeg}, 4"); wait_x(T2); a1.fetch(a,T2); a("a1_hasq:")
    def sig(i):
        if i==1: signal(a,"s30",2,synced=True)
        else:
            a(f"s_lshl_b32 s30, {a1.sHd}, 6\ns_add_u32 s30, s30, {a1.sSeg}\ns_lshl_b32 s30, s30, 4\ns_add_u32 s30, s30, {F_KV}"); signal(a,"s30",1,synced=i==2,t=("v16","v17") if i==2 else ("v10","v11"))
    a1.segment(a,0,nxt,sig,"w_a1r" if on("x2") else None,EF["kv"],late_q if cfg.get("lateq",1) else None); cs(a,"a1",7)
    if cfg.get("prof")=="rt": a(f"s_cmp_ge_u32 {a1.sSeg}, 4\ns_cbranch_scc1 a1_nd"); cs_dump(a,"a1"); a("a1_nd:")
    a(f"s_add_u32 {a1.sSeg}, {a1.sSeg}, 4\ns_cmp_lt_u32 {a1.sSeg}, 64\ns_cbranch_scc1 w_a1")
    signal(a,"s30",2)
    if cfg.get("prof")=="a1": cs_dump(a,"a1")
    stamp(a,cfg,2)
    def bw_task(idx):
        a(f"s_mul_i32 {bwo.sSeg}, {idx}, 43691\ns_lshr_b32 {bwo.sSeg}, {bwo.sSeg}, 17\ns_mul_i32 {T0}, {bwo.sSeg}, 3\ns_sub_u32 {bwo.sCg}, {idx}, {T0}")
        a(f"s_sub_u32 {T0}, 63, {bwo.sSeg}\ns_cmp_eq_u32 {sLay}, 0\ns_cselect_b32 {bwo.sSeg}, {bwo.sSeg}, {T0}")
    def g_idx(skip): a(f"s_cmp_eq_u32 {sLay}, 0\ns_cbranch_scc1 {skip}\ns_cmp_ge_u32 {sJ}, 2\ns_cbranch_scc1 {skip}\ns_lshr_b32 {T1}, {sI}, 1\ns_add_u32 {T1}, {T1}, {sJ}\ns_add_u32 {T1}, {T1}, 128")
    g_idx("g_att"); bw_task(T1); bwo.load_w(a)
    a(f"g_att:\ns_lshr_b32 {batt.sHd}, {sI}, 2\ns_mov_b32 {batt.sJ}, {sJ}")
    battp.consts(a)
    if on("bo"): battp.poison(a)
    def stored(lo,hi,wait):
        sk=a.lab("st")
        a(f"""s_cmp_eq_u32 {lo}, {hi}
        s_cbranch_scc1 {sk}
        s_lshl_b32 {T3}, {sW}, 2
        s_add_u32 {T3}, {T3}, {sJ}
        s_lshl_b32 {T3}, {T3}, 5
        s_add_u32 {T3}, {T3}, {batt.sHd}
        s_lshl_b32 {T3}, {T3}, 7
        s_add_u32 {T3}, {T3}, {F_BO}
        v_lshlrev_b32 v10, 16, v0
        v_mov_b32 v11, 1
        s_bfm_b64 exec, {hi}, 0
        {"s_waitcnt vmcnt(0)" if wait else ""}
        buffer_store_dword v11, v10, {sWS}, {T3} offen sc1
        s_mov_b64 exec, -1
        {sk}:""")
    battp.run(a,F,cfg.get("lrange",120<<23),stored,cfg.get("sl_batt",2),on("bo"),on("bq"),sLay if cfg.get("defer2",1) else None)
    cs_dump(a,"bp"); stamp(a,cfg,5)
    g_idx("g_next"); bw_task(T1); a("s_branch w_bw0\ng_next:")
    next_layer("g_layer")
    a("w_pipe:")
    for _ in range(cfg.get("pdelay",0)): a("s_sleep 36")
    a(f"""s_sub_u32 {T0}, {sI}, 128
    s_lshr_b32 {T2}, {T0}, 5
    s_and_b32 {T1}, {T0}, 31
    s_mul_i32 {sTm}, {T1}, 58255
    s_lshr_b32 {sTm}, {sTm}, 19
    s_mul_i32 {T0}, {sTm}, 9
    s_sub_u32 {sR}, {T1}, {T0}
    s_cmp_eq_u32 {T2}, 2
    s_cselect_b32 {T0}, 27, 18
    s_cmp_lt_u32 {T1}, {T0}
    s_cbranch_scc1 p_layer""")
    a(f"s_mul_i32 {a1.sHd}, {T2}, 14\ns_add_u32 {a1.sHd}, {a1.sHd}, {T1}\ns_sub_u32 {a1.sHd}, {a1.sHd}, {T0}\ns_min_u32 {a1.sHd}, {a1.sHd}, 31")
    a1.consts(a); a1.load_qkv(a,"kv")
    stamp(a,cfg,1); verify(a,cfg,F,32)
    a(f"s_cmp_lg_u32 {sI}, 223\ns_cbranch_scc1 a2_go\ns_mov_b32 {sLay}, 1"); layer_base(); a(f"s_mov_b32 {T1}, 63\ns_branch w_bwo\na2_go:")
    a2p.consts(a)
    a("a2_layer:"); layer_base()
    def qready(pair):
        a(f"""s_lshr_b32 {T3}, {sW}, 1
        s_add_u32 {T3}, {T3}, {pair}
        s_lshl_b32 {T3}, {T3}, 4
        s_add_u32 {T3}, {T3}, s27""")
        wait_flags(a,T3,1,2,2,F,every_wave=True,sleep=4)
    def ready(pair):
        rdy=a.lab("a2r")
        a(f"""v_cmp_lt_u32 vcc, 1, v7
        s_lshr_b32 {T3}, {sW}, 1
        s_add_u32 {T3}, {T3}, {pair}
        s_cmp_ge_u32 {T3}, 64
        s_cbranch_scc1 {rdy}
        s_bitcmp1_b64 vcc, {T3}
        s_cbranch_scc1 {rdy}""")
        qready(pair); a(f"{rdy}:")
    def flag_prev(back=2):
        a(f"""s_sub_u32 s50, {a1.sSeg}, {back}
        v_add_u32 v10, s50, v0
        v_cmp_gt_u32 vcc, 64, v10
        v_lshlrev_b32 v10, 12, v10
        v_mov_b32 v11, 1
        s_lshl_b32 s50, {a1.sHd}, 7
        s_add_u32 s50, s50, {F_O}
        s_cmp_eq_u32 {sW}, 0
        s_cselect_b32 s50, s50, {a2p.OOB}
        v_cndmask_b32 v10, v8, v10, vcc
        s_mov_b64 exec, 3
        buffer_store_dword v11, v10, {sWS}, s50 offen sc1
        s_mov_b64 exec, -1""")
    a(f"s_mov_b32 {a1.sSeg}, {-1 if cfg.get('odd',0) else 0}\ns_lshl_b32 s27, {a1.sHd}, 10\ns_add_u32 s27, s27, {F_KV}\nv_mov_b32 v8, 0x20000000\nv_mov_b32 v7, 0")
    ready(a1.sSeg)
    O1=cfg.get("ofirst",58)
    if on("o"):
        for p_ in range(O1,64,2): a2p.poison(a,p_)
    def o_early():
        sk=a.lab("oe"); a(f"s_cmp_lt_u32 {a1.sSeg}, {O1}\ns_cbranch_scc1 {sk}"); flag_prev(0); a(f"{sk}:")
    a2p.addrs(a,a1.sSeg)
    for x in a2p.kv_loads(0)+a2p.q_loads(): a(x)
    a("s_waitcnt vmcnt(0)\nw_a2:")
    for vb in range(2):
        a2p.body(a,vb,F,lambda: a(f"buffer_load_dword v7, {a1.vL16}, {sWS}, s27 offen sc1"),flag_prev,ready,cfg.get("vp_sl",1),cfg.get("ahead",0),(EF["o"],o_early) if on("o") else None)
        a(f"s_add_u32 {a1.sSeg}, {a1.sSeg}, 2")
        if vb==(0 if cfg.get('odd',0) else 1): a(f"s_cmp_ge_u32 {a1.sSeg}, 64\ns_cbranch_scc1 w_a2e")
    a("s_branch w_a2\nw_a2e:\ns_waitcnt vmcnt(0)\ns_barrier"); flag_prev()
    cs(a,'a2_0',8); cs_dump(a,'a2_0'); cs_dump(a,'a2_1')
    stamp(a,cfg,3)
    a(f"s_add_u32 {T1}, {a1.sHd}, 64\ns_cmp_lg_u32 {sLay}, 0\ns_cbranch_scc1 w_bwo")
    next_layer("a2_layer")
    a(f"c_join:\nv_mbcnt_lo_u32_b32 v0, -1, 0\nv_mbcnt_hi_u32_b32 v0, -1, v0\ns_mov_b32 {sCnt}, 0"); layer_base()
    a(f"s_add_u32 {T1}, {sI}, 96\ns_add_u32 {sI}, {sI}, 224\ns_branch w_bwo")
    a(f"p_layer:\ns_cmp_eq_u32 {T2}, 2\ns_cbranch_scc1 w_bqr")
    a(f"s_lshl_b32 s33, {T2}, 1\ns_add_u32 s33, s33, {sTm}\ns_mov_b32 {awo.sCg}, {sR}")
    awo.consts(a); awo.load_w(a)
    stamp(a,cfg,1); verify(a,cfg,F,32)
    a(f"v_and_b32 v7, 7, v0\ns_lshl_b32 {T0}, {sW}, 3\nv_add_u32 v7, {T0}, v7\nv_lshlrev_b32 v7, 7, v7")
    a("aw_layer:"); layer_base(); a(f"s_mov_b32 {awo.sTask}, s33")
    def oflag(dst,task): a(f"s_lshr_b32 {dst}, {task}, 1\ns_lshl_b32 {dst}, {dst}, 12\ns_add_u32 {dst}, {dst}, {F_O}")
    def xsig():
        a(f"s_barrier\ns_cmp_lg_u32 {sW}, 0\ns_cselect_b32 s31, 0x40000000, s31"); put_flag(a,"s31",1)
    if on("x1"): a("s_add_u32 s32, s33, 124"); awo.poison(a,0,"s32"); a("s_add_u32 s32, s33, 120"); awo.poison(a,0,"s32")
    a("w_awo_wait:"); oflag(T3,awo.sTask)
    a(f"s_lshl_b32 {T0}, {sW}, 10\ns_add_u32 {T3}, {T3}, {T0}")
    wait_flags(a,T3,8,7,1,F,every_wave=True,sleep=cfg.get("sl_w",1))
    guard(a,F); cs(a,"awo",0); awo.issue(a)
    a(f"s_mov_b32 s31, 0x40000000"); put_flag(a,"s31",1)
    a(f"w_awo:\ns_add_u32 s32, {awo.sTask}, 4"); oflag("s30","s32")
    a(f"""s_lshr_b32 s31, {awo.sTask}, 1
    s_lshl_b32 s31, s31, 5
    s_and_b32 {T0}, {awo.sTask}, 1
    s_mul_i32 {T0}, {T0}, 9
    s_add_u32 s31, s31, {T0}
    s_add_u32 s31, s31, {awo.sCg}
    s_lshl_b32 s31, s31, 7
    s_add_u32 s31, s31, {F_X1}""")
    awo.task(a,0,1,lambda: a(f"buffer_load_dword v8, v7, {sWS}, s30 offen sc1"),
             (EF["x1"],lambda: flag_if(a,f"s_cmp_ge_u32 {awo.sTask}, 120","s31")) if on("x1") else None,"w_awo_wait" if on("o") else None)
    a(f"""
    s_mov_b32 {awo.sTask}, s32
    v_cmp_eq_u32 vcc, 0, v8
    s_cmp_ge_u32 s32, 128
    s_cbranch_scc1 w_awo_sync
    s_cbranch_vccnz w_awo_sync""")
    cs(a,"awp",0); awo.issue(a); cs(a,"awp",1); a(f"s_waitcnt vmcnt({awo.NI})"); cs(a,"awp",2); xsig(); cs(a,"awp",3); a("s_branch w_awo")
    a("w_awo_sync:")
    if on("x1"): a("s_cmp_lt_u32 s32, 124\ns_cbranch_scc1 w_awo_s1\ns_barrier\ns_branch w_awo_s2\nw_awo_s1:")
    a("s_waitcnt vmcnt(0)"); cs(a,"awo",6); xsig(); a("w_awo_s2:"); cs(a,"awo",7)
    a(f"s_cmp_lt_u32 {awo.sTask}, 128\ns_cbranch_scc1 w_awo_wait")
    cs_dump(a,"awo"); cs_dump(a,"awp"); stamp(a,cfg,3)
    a(f"s_mul_i32 {T1}, s33, 9\ns_add_u32 {T1}, {T1}, {sR}\ns_add_u32 {T1}, {T1}, 27\ns_cmp_lg_u32 {sLay}, 0\ns_cbranch_scc1 w_bwo")
    next_layer("aw_layer")
    def bq_ids():
        a(f"s_mul_i32 {T1}, {sTm}, 9\ns_add_u32 {T1}, {T1}, {sR}"); bw_task(T1)
    a("w_bqr:"); bq_ids(); bwo.load_w(a)
    a(f"s_mov_b32 {bqkv.sU}, {sR}"); bqkv.load_w(a)
    stamp(a,cfg,1); verify(a,cfg,F,32)
    a("bq_layer:"); layer_base()
    a(f"s_mov_b32 {a1.sSeg}, {sTm}\ns_mov_b32 {bqkv.sU}, {sR}\ns_lshl_b32 s30, {bqkv.sU}, 8\ns_add_u32 s30, s30, {F_BQ}")
    srd(a,sX,8,XB_,OFF_X1)
    a1.consts(a); bqkv.load_w(a,False)
    if on("bq"):
        a(f"s_add_u32 {T0}, {sTm}, 60\ns_cmp_eq_u32 {sTm}, 0\ns_cselect_b32 {a1.sSeg}, 63, {T0}"); bqkv.stores(a,0,False)
        a(f"s_add_u32 {a1.sSeg}, {sTm}, 60"); bqkv.stores(a,0,False); a(f"s_mov_b32 {a1.sSeg}, {sTm}")
    a(f"w_bq:\ns_lshl_b32 {T3}, {a1.sSeg}, 12\ns_add_u32 {T3}, {T3}, {F_X1}")
    wait_flags(a,T3,18,7,1,F,sleep=cfg.get("sl_w",1))
    a("w_bqf:"); cs(a,"bq",0); a1.fetch(a,a1.sSeg); guard(a,F); cs(a,"bq",1)
    a(f"s_lshl_b32 {T3}, {a1.sSeg}, 2\ns_add_u32 {T3}, {T3}, s30")
    bqkv.segment(a,0,lambda:None,"w_bqf" if on("x1") else None,{EF["bq"]:lambda: flag_if(a,f"s_cmp_ge_u32 {a1.sSeg}, 60",T3)}); cs(a,"bq",5)
    if on("bq"): a(f"s_cmp_ge_u32 {a1.sSeg}, 60\ns_cbranch_scc1 w_bqs")
    signal(a,T3,1); a("w_bqs:"); cs(a,"bq",6)
    a(f"s_add_u32 {a1.sSeg}, {a1.sSeg}, 3\ns_cmp_lt_u32 {a1.sSeg}, 64\ns_cbranch_scc1 w_bq")
    cs_dump(a,"bq"); stamp(a,cfg,3)
    bq_ids(); a("s_branch w_bw0")
    a("w_bwo:"); bw_task(T1); a("s_barrier"); bwo.load_w(a)
    a("w_bw0:")
    srd(a,sX,8,XB_,OFF_X1)
    bwo.consts(a)
    srd(a,sB,6,XB_,OFF_X2)
    a(f"s_cmp_eq_u32 {sLay}, 0\ns_cbranch_scc1 w_bw1"); srd(a,sB,P_OUT,XB_)
    a(f"w_bw1:\ns_mov_b32 s10, {LAYER_STRIDE+LAYER_SPAN}")
    stamp(a,cfg,6)
    a(f"s_lshl_b32 {T3}, {bwo.sSeg}, 12\ns_add_u32 {T3}, {T3}, {F_X1}")
    a(f"s_lshl_b32 {T3}, {bwo.sSeg}, 2\ns_add_u32 {T3}, {T3}, {F_BQ}")
    wait_flags(a,T3,1,2,1,F,sleep=8)
    a("w_bw2:"); bwo.resid_loads(a)
    a(f"s_lshl_b32 s29, {sLay}, 6\ns_add_u32 s29, s29, {bwo.sSeg}")
    if on("x2"):
        a(f"s_cmp_ge_u32 s29, 9\ns_cbranch_scc1 w_bwp"); bwo.poison(a,sB,0); a("s_waitcnt vmcnt(0)\nw_bwp:")
    a(f"w_bwr:\ns_lshl_b32 {T3}, {bwo.sSeg}, 12\ns_add_u32 {T3}, {T3}, {F_BO}")
    cs(a,"bw",0); wait_flags(a,T3,32,7,1,F); guard(a,F); cs(a,"bw",1)
    a(f"s_lshl_b32 {T3}, {bwo.sSeg}, 5\ns_add_u32 {T3}, {T3}, {bwo.sCg}\ns_lshl_b32 {T3}, {T3}, 7\ns_add_u32 {T3}, {T3}, {LAYER_STRIDE+F_X2}")
    bwo.task(a,0,sB,0,"sc1","w_bwr" if on("bo") else None,{EF["x2"]:lambda: flag_if(a,"s_cmp_lt_u32 s29, 9",T3,("v9","v11"))}); cs(a,"bw",5)
    a(f"s_cmp_eq_u32 {sLay}, 0\ns_cbranch_scc0 w_bw5")
    signal(a,T3,1)
    a(f"s_cmp_ge_u32 {bwo.sSeg}, 9\ns_cbranch_scc1 w_bw4"); stamp(a,cfg,7); cs_dump(a,"bw",True)
    a(f"w_bw4:\ns_add_u32 {bwo.sSeg}, {bwo.sSeg}, 9\ns_cmp_lt_u32 {bwo.sSeg}, 64\ns_cbranch_scc1 w_bw2\nw_bw5:")
    if cfg.get("prof")=="rt": a(f"s_cmp_eq_u32 {sLay}, 0\ns_cbranch_scc1 w_bw6")
    cs_dump(a,"bw"); a("w_bw6:")
    next_layer("bq_layer")
    a(f"{F}:\ns_waitcnt vmcnt(0) lgkmcnt(0)\ns_endpgm")

def chain(a, cfg):
    cc=dict(CH_CFG); cc["prepoison"]=1; cc.update(cfg.get("chain",{}))
    sLo_,sFk="s52","s53"; RDY="s[50:51]"
    srd(a,sX,P_MEM,9216); srd(a,sA,P_WQ,4718592); srd(a,sB,P_WK,4718592); srd(a,sC_,P_WV,4718592); srd(a,sD,P_WO,4718592)
    a(f"s_mov_b32 {sLo_}, 0\ns_mov_b32 {C.sCnt}, 0")
    for w in (1,2,3): a(f"s_cmp_eq_u32 {sW}, {w}\ns_cbranch_scc1 c_w{w}")
    for w in range(4):
        pre=f"ch{w}"; F=f"{pre}_fail"
        a(f"c_w{w}:")
        C.prologue_consts(a,w)
        vb=cfg.get("vblock",14)
        def ask():
            a("v_lshlrev_b32 v40, 2, v10\nglobal_load_dword v41, v40, s[4:5] sc1"); C.fetch_mem0(a,w,sX,"v10")
        def check():
            verify(a,cfg,F,0,40,True); stamp(a,cfg,0,48)
            C.init_comm(a,w,False); C.store_mem0(a,w,[C.held(0),"v10"])
        C.load_weights(a,w,{"q":sA,"k":sB,"v":sC_,"o":sD},{3:lambda: announce(a,("v40","v41"),"s_nop 0"),vb-4:ask,vb:check,1:lambda: stamp(a,cfg,10,48),6:lambda: stamp(a,cfg,11,48)})
        stamp(a,cfg,1,12)
        a(f"v_mov_b32 v11, v10\n{pre}_layer:")
        C.set_layer(a,w,sLo_)
        fload=f"buffer_load_dword v11, {C.vL16}, {sWS}, {sFk} offen sc1"
        def kvwait(lbl, back, bit, sleep):
            a(f"{lbl}:"); a(fload); C.spin_guard(a,F)
            if sleep: a(f"s_sleep {sleep}")
            a(f"s_waitcnt vmcnt(0)\nv_cmp_ne_u32 {RDY}, 0, v11\ns_nop 0\ns_bitcmp1_b64 {RDY}, {bit}\ns_cbranch_scc0 {lbl}")
            if back: a(f"s_branch {back}")
        if w==3:
            a(f"s_lshl_b32 {sFk}, {C.sH}, 10\ns_add_u32 {sFk}, {sFk}, {sLo_}\ns_add_u32 {sFk}, {sFk}, {F_KV}")
            kvwait(f"{pre}_kv0",None,cfg.get("kv0",0),1)
        a("s_waitcnt vmcnt(0)\ns_barrier")
        stamp(a,cfg,2,12)
        def qk(w):
            if w==3: return [(2,(None,f"s_add_u32 {C.sT1}, {C.sSeg}, 1")),(2,(None,f"v_cmp_ne_u32 {RDY}, 0, v11")),(8,(None,f"s_bitcmp1_b64 {RDY}, {C.sT1}")),(20,(None,f"s_cbranch_scc0 {pre}_kvw\n{pre}_kvok:"))]
            return []
        hooks=dict(mid=lambda w:[], end=lambda a,w: a(f"s_cmp_eq_u32 {C.sSeg}, 63\ns_cbranch_scc1 {pre}_done"), qk=qk, pre_k=lambda w:[], sal=lambda w:(["s_memrealtime s[98:99]\ns_waitcnt lgkmcnt(0)\ns_mov_b32 m0, "+C.sSeg+"\nv_writelane_b32 "+C.vAux+", s98, m0"] if (w==0 and cfg.get("ts") and not cfg.get("light")) else []), prefix=pre, after_touch=[fload])
        C.step_loop(a,w,cc,hooks)
        if w==3: kvwait(f"{pre}_kvw",f"{pre}_kvok",C.sT1,0)
        a(f"{pre}_done:")
        for i in range(len(C.GROUPS[w])): a(C.publish(i))
        a("s_waitcnt vmcnt(0) lgkmcnt(0)")
        if w==0 and cfg.get("ts"):
            a(f"s_lshl_b32 {T0}, {sLay}, 5\ns_add_u32 {T0}, {T0}, {C.sH}\ns_lshl_b32 {T0}, {T0}, 8\ns_add_u32 {T0}, {T0}, {OFF_TS+0x10000}\nv_lshrrev_b32 v12, 2, {C.vL16}\nbuffer_store_dword {C.vAux}, v12, {sWS}, {T0} offen")
        stamp(a,cfg,3,12)
        if cfg.get("stop_after_a1"): a(f"s_branch {F}")
        a(f"s_cmp_lg_u32 {sLo_}, 0\ns_cbranch_scc1 c_join\ns_mov_b32 {sLo_}, {LAYER_STRIDE}\ns_mov_b32 {sLay}, 1")
        for i,g in enumerate(C.GROUPS[w]):
            a(f"s_add_u32 {C.sT1}, {C.mso(i)}, 0x8000\nbuffer_load_dword v21, {C.vMst}, {sWS}, {C.sT1} offen sc1")
        for x in C.next_slots(w): a(x)
        a(f"v_lshrrev_b32 v18, 4, {C.vL16}"); C.fetch_mem0(a,w,sX,"v18"); a("s_waitcnt vmcnt(0)"); C.store_mem0(a,w,[C.held(0),C.held(1)])
        a(f"s_branch {pre}_layer\n{F}:\ns_waitcnt vmcnt(0) lgkmcnt(0)\ns_endpgm")

def gen(cfg={}):
    a=Asm(); wk.PROF['on']=cfg.get('prof')
    a(f"{NAME}:\ns_cmp_lt_u32 s2, 256\ns_cbranch_scc1 k_go\nk_end:\ns_endpgm\nk_go:\ns_getreg_b32 {sXc}, hwreg(HW_REG_XCC_ID, 0, 4)\ns_add_u32 {sXc}, {sXc}, 1\nv_lshlrev_b32 v2, 4, v0")
    if cfg.get("icode",0):
        a(f"""s_getpc_b64 s[16:17]
        k_pc:
        s_lshr_b32 s18, s2, 3
        s_lshl_b32 s18, s18, 5
        v_add_u32 v4, s18, v0
        v_lshlrev_b32 v4, 7, v4
        v_cmp_gt_u32 vcc, 32, v0
        v_min_u32 v4, k_last-k_pc, v4
        v_mov_b32 v7, s17
        s_and_saveexec_b64 s[18:19], vcc
        s_cbranch_execz k_pc2
        v_add_co_u32 v6, vcc, s16, v4
        v_addc_co_u32 v7, vcc, 0, v7, vcc
        global_load_dword v20, v[6:7], off sc1
        k_pc2:
        s_mov_b64 exec, s[18:19]""")
    entry(a)
    a(f"s_mov_b32 {sLay}, 0\ns_mov_b32 s101, s2")
    stamp(a,cfg,9)
    if cfg.get("noinit"): a(f"s_cmp_eq_u32 {sXc}, 1\ns_cselect_b32 s10, 0, s10")
    a(f"""s_lshr_b32 {T0}, s2, 7
    s_mul_i32 {T0}, {T0}, {LAYER_STRIDE}
    s_and_b32 {T1}, s2, 127
    s_lshl_b32 {T2}, {T1}, 11
    s_add_u32 {T2}, {T2}, {T0}
    s_add_u32 {T2}, {T2}, {OFF_F}
    s_lshl_b32 {T1}, {T1}, 13
    s_add_u32 {T1}, {T1}, {T0}
    s_add_u32 {T1}, {T1}, {OFF_MH}
    s_add_u32 {T0}, {T1}, 4096
    v_lshrrev_b32 v3, 1, v2
    v_mov_b32 v4, -1
    v_mov_b32 v5, -1
    v_mov_b32 v6, -1
    v_mov_b32 v7, -1
    v_mov_b32 v8, 0
    v_mov_b32 v9, 0
    buffer_store_dwordx2 v[8:9], v3, {sWS}, {T2} offen sc1
    buffer_store_dwordx4 v[4:7], v2, {sWS}, {T1} offen sc1
    buffer_store_dwordx4 v[4:7], v2, {sWS}, {T0} offen sc1
    s_add_u32 {T1}, {T1}, {OFF_FL-OFF_MH}
    v_lshlrev_b32 v3, 1, v2
    s_mov_b32 exec_lo, 0x11111111
    s_mov_b32 exec_hi, 0x11111111
    buffer_store_dword v8, v3, {sWS}, {T1} offen sc1
    s_mov_b64 exec, -1
    s_lshl_b32 {T1}, s2, 11
    s_add_u32 {T1}, {T1}, {OFF_P}
    v_lshrrev_b32 v3, 1, v2
    buffer_store_dwordx2 v[4:5], v3, {sWS}, {T1} offen sc1
    s_lshl_b32 {T1}, s2, 13
    s_add_u32 {T1}, {T1}, {OFF_M}
    s_add_u32 {T0}, {T1}, 4096
    buffer_store_dwordx4 v[4:7], v2, {sWS}, {T1} offen sc1
    buffer_store_dwordx4 v[4:7], v2, {sWS}, {T0} offen sc1""")
    a(f"""s_sub_u32 {T0}, {sXc}, 1
    s_and_b32 {T0}, {T0}, 7
    s_lshl_b32 {T0}, {T0}, 5
    s_lshr_b32 {sI}, s2, 3
    s_add_u32 {sI}, {sI}, {T0}
    s_mov_b32 {sVer}, 0
    s_mov_b32 s10, {WS_BYTES}
    s_waitcnt vmcnt(7)
    s_cmp_lt_u32 {sI}, 32
    s_cbranch_scc1 k_role""")
    if cfg.get("warm",0):
        a(f"s_sub_u32 {T0}, {sI}, 32\ns_mul_i32 {T0}, {T0}, {165*128}\nv_lshlrev_b32 v3, 3, v2\nv_mov_b32 v5, 0x40000000\nv_cmp_gt_u32 vcc, {165*128}, v3\nv_cndmask_b32 v3, v5, v3, vcc")
        for p in (P_WQ,P_WK,P_WV,P_WO):
            srd(a,sA,p,4718592); a(f"buffer_load_dword v4, v3, {sA}, {T0} offen sc1")
    announce(a)
    a(f"""k_role:
    s_mov_b32 s101, {sI}
    v_mbcnt_lo_u32_b32 v0, -1, 0
    v_mbcnt_hi_u32_b32 v0, -1, v0
    s_barrier
    s_cmp_lt_u32 {sI}, 32
    s_cbranch_scc1 chain""")
    worker(a,cfg)
    a("chain:")
    chain(a,cfg)
    a("k_last:\ns_endpgm")
    body=compact(a.finish())
    return f'; @launch grid=(256,1,1) block=(256,1,1) lds=163840\n.amdgcn_target "amdgcn-amd-amdhsa--gfx950"\n.text\n.globl {NAME}\n.p2align 8\n.type {NAME},@function\n'+body+KD.format(name=NAME)
if __name__=="__main__":
    import json
    t=gen(json.loads(sys.argv[2]) if len(sys.argv)>2 else {})
    ref=open("interleave_layers__memory_aug_recurrent_mem_tr__mha_block__prompt.s.ref").read()
    hdr="".join(l+"\n" for l in ref.split("\n")[:14])
    out=sys.argv[1] if len(sys.argv)>1 else "mega.s"
    open(out,"w").write(hdr+t)
    import subprocess
    print(len(t), subprocess.run(f"clang -x assembler -target amdgcn-amd-amdhsa -mcpu=gfx950 {out} -o mega.co && python3 cdna_unwritten_srd_check.py mega.co; llvm-readelf -S mega.co | grep text",shell=True,capture_output=True,text=True))
```

```python
from asmgen import Asm
from layout import *
import math, struct

def f2u(x): return struct.unpack("<I", struct.pack("<f", x))[0]

vL16, vL8, vPsc, vW, vXr, vIdx, vPst, vMst, vAux, vOa = [f"v{i}" for i in range(10)]
vOr = "v10"
MEM0 = 12
POOL = 48
WV0 = 88
def q(base, n=4): return f"v[{base}:{base+n-1}]"
def m(k): return MEM0+4*k
def p(i): return POOL+i
LW = 19*2048
L_SCR = 0
L_W0 = 8192
L_PM = 0
L_PX = 512
L_SEL = 1024
L_O = 2048
L_XS = 4096
BIAS = 0
sWS = "s[8:11]"
sH, sSeg, sPar, sM0, sM1, sM2, sMst, sMpo, sKV, sPub, sPA, sPB, sPC, sPld, sCnt, sT0, sT1, sSlot, sC, sLayer, sFlg, sTch = [f"s{i}" for i in range(24,46)]
sK, sPubX, sLlo, sC2, sHint, sSig = "s56","s57","s58","s[22:23]","s59","s20"
sPld1 = sTch; sPA1, sPB1 = sSlot, sFlg; sMtc = sTch; sMst1 = sMpo
sMh, sMh1 = "s54","s55"
sOne = "s18"; sDis = "s19"; sRdy2 = "s[16:17]"
sHalf1 = "s[46:47]"; sHalf0 = "s[48:49]"; sRdy="s[50:51]"
import os
NREP = int(os.environ.get('NREP',2))
SPIN_MAX = 2000000

KORDER = [8,0,1,2,3,4,5,6,7]
def kap(k): return (k+1)%9

class Plan:
    def __init__(self, w):
        self.loc={}
        qk=[]
        for j,k in enumerate(KORDER[:7]):
            qk+=[("q",0,k),("k",0,k),("q",1,k),("k",1,k)]
            if j<4: qk+=[("v",0,k),("v",1,k)]
        ka,kb=KORDER[7:]
        qk+=[("q",0,ka),("q",1,ka),("q",0,kb),("q",1,kb),("k",0,ka),("k",0,kb),("k",1,ka),("k",1,kb)]
        vv=[("v",t,k) for k in KORDER[4:] for t in range(2)]
        oth=[x for x in range(4) if x!=w]
        self.oth=oth
        pairs=[("A",0),("A",1),("B",0),("B",1)]
        self.wo1=[("o",ty,pi,w) for ty,pi in pairs]
        self.wo2=[("o",ty,pi,x) for ty,pi in pairs for x in oth]
        woc=[("o","C",0),("o","C",1)]
        self.qk, self.vv = qk, vv
        self.qk_lds=list(range(0,43,3))
        self.wo_lds=[self.wo1[0],self.wo1[1],self.wo2[6],self.wo2[9]]
        slot=0
        for i in self.qk_lds: self.loc[qk[i]]=("l",slot); slot+=1
        for f in self.wo_lds: self.loc[f]=("l",slot); slot+=1
        r=0
        for f in qk+vv+self.wo1+self.wo2+woc:
            if f in self.loc: continue
            self.loc[f]=("a",8*r) if r<32 else ("v",WV0+8*(r-32)); r+=1
        assert r==53 and slot==19
    def reg(self,f):
        k,b=self.loc[f]; return f"{k}[{b}:{b+7}]"
    def regC(self,x):
        k,b=self.loc[("o","C",x>>1)]; b+=4*(x&1); return f"{k}[{b}:{b+3}]"
PLANS=[Plan(w) for w in range(4)]

def prologue_consts(a, w):
    a(f"""
    v_mov_b32 v10, v0
    v_and_b32 v11, 15, v10                 ; n
    v_lshrrev_b32 v12, 4, v10              ; g
    v_lshlrev_b32 v13, 4, v10
    v_add_u32 {vW}, {L_W0+w*LW}, v13
    v_add_u32 {vL16}, {BIAS}, v13
    v_lshlrev_b32 v13, 3, v10
    v_lshrrev_b32 v14, 5, v10
    v_lshlrev_b32 v14, 6, v14
    v_xor_b32 {vL8}, v14, v13
    v_lshlrev_b32 v13, 2, v11
    v_lshl_add_u32 {vPsc}, v12, 11, v13
    v_and_b32 v13, 3, v10                  ; c = n&3
    v_lshrrev_b32 v14, 2, v10              ; l>>2 = 4g + r
    v_lshlrev_b32 v15, 7, v13
    v_lshl_add_u32 v15, v14, 3, v15
    v_lshrrev_b32 v16, 1, v13
    v_lshlrev_b32 v16, 6, v16
    v_xor_b32 {vXr}, v16, v15
    v_and_b32 v15, 1, v10
    v_lshlrev_b32 v15, 4, v15
    v_lshl_add_u32 {vOa}, v14, 5, v15
    s_mov_b32 s46, 0xcccccccc
    s_mov_b32 s47, 0xcccccccc
    s_mov_b32 s48, 0x33333333
    s_mov_b32 s49, 0x33333333
    v_mov_b32 v15, 0x4444
    v_mov_b32 v16, 0xeeee
    v_cndmask_b32 {vIdx}, v15, v16, {sHalf1}
    v_lshrrev_b32 v15, 3, v11              ; n>>3
    v_lshl_add_u32 v15, v15, 2, v12
    v_lshlrev_b32 v15, 11, v15
    v_and_b32 v17, 7, v11
    v_lshl_add_u32 {vPst}, v17, 3, v15
    v_and_b32 v15, 2, v11                  ; 2half
    v_lshrrev_b32 v16, 1, v12              ; p
    v_add_u32 v15, v15, v16
    v_lshlrev_b32 v15, 4, v15
    v_and_b32 v16, 1, v11                  ; piece
    v_and_b32 v17, 1, v12                  ; g2
    v_lshl_add_u32 v16, v16, 1, v17
    v_lshl_add_u32 {vMst}, v16, 2, v15
    """)
    if w==0:
        a(f"""
        v_lshrrev_b32 v15, 2, v11              ; gamma
        v_and_b32 v16, 1, v15
        v_lshl_add_u32 v16, v16, 1, v13        ; tau = 2*g2 + r   (r = n&3)
        v_mov_b32 v17, 99
        v_cmp_gt_u32 vcc, 2, v13
        v_cndmask_b32 v16, v17, v16, vcc
        v_mov_b32 v17, 0x3f80
        v_mov_b32 v18, 0x3f800000
        v_cmp_lt_u32 vcc, 1, v15
        v_cndmask_b32 v17, v17, v18, vcc
        """)
        for t in range(4):
            a(f"v_cmp_eq_u32 vcc, {t}, v16\nv_cndmask_b32 v{20+t}, 0, v17, vcc")
        a(f"ds_write_b128 {vL16}, v[20:23] offset:{L_SEL-BIAS}")

def load_weights(a, w, srd, hooks={}, order=None):
    import wk
    P=PLANS[w]; T=80
    A0,A1,C0,C1,R0,R1=[f"v{240+i}" for i in range(6)]
    vO,vOC,RO,RC="v11","v12","v13","v14"
    wk.coop_qkv_addr(a,"v10",4*w,"v16",R0,R1,"v17","v18")
    def wo_addr():
        a(f"""
        v_lshrrev_b32 v84, 5, v10
        v_and_b32 v85, 31, v10
        v_lshlrev_b32 v86, 2, v84
        v_xor_b32 v85, v85, v86
        v_xor_b32 v85, {8*(w>>1)}, v85
        v_mul_u32_u24 v84, 1152, v84
        v_lshl_add_u32 {vO}, v85, 4, v84
        v_lshrrev_b32 v84, 3, v10
        v_mul_u32_u24 v84, 1152, v84
        v_and_b32 v85, 7, v10
        v_lshl_add_u32 {vOC}, v85, 4, v84
        v_bfe_u32 v84, v10, 2, 1               ; i0
        v_bfe_u32 v85, v10, 4, 1               ; piece
        v_lshl_add_u32 v86, v85, 1, v84
        v_xor_b32 v86, {w}, v86
        v_lshlrev_b32 v86, 6, v86
        v_bfe_u32 v87, v10, 3, 1               ; half
        v_lshl_add_u32 v86, v87, 5, v86
        v_and_b32 v87, 3, v10
        v_lshl_add_u32 v86, v87, 3, v86
        v_lshl_add_u32 v84, v85, 4, v84
        v_lshrrev_b32 v85, 5, v10
        v_lshl_add_u32 v84, v85, 2, v84
        v_lshl_add_u32 {RO}, v84, 9, v86
        v_lshrrev_b32 v84, 2, v10
        v_lshlrev_b32 v84, 7, v84
        v_lshl_add_u32 v84, v87, 3, v84
        v_add_u32 {RC}, {32*w}, v84
        s_lshl_b32 {sK}, {sH}, 8
        s_mul_i32 {sKV}, {sH}, {128*1152}
        """)
    a(f"""
    v_bfe_u32 v17, v10, 4, 1               ; i0
    v_lshrrev_b32 v18, 5, v10              ; half
    v_lshlrev_b32 v19, 2, v18
    v_lshl_add_u32 v19, v17, 4, v19
    v_lshl_add_u32 {A0}, v19, 13, v16
    v_xor_b32 {A1}, 0x80, {A0}
    v_lshl_add_u32 v19, v18, 3, v17
    v_lshl_add_u32 {C0}, v19, 13, v16
    v_xor_b32 {C1}, 0x80, {C0}
    """)
    wo_addr()
    pk=sorted((f for f in P.loc if P.loc[f][0]=="l" and P.loc[f][1]>=11),key=lambda f:"oqvk".index(f[0]))
    park={P.loc[f][1]:16+8*i for i,f in enumerate(pk)}
    def dest(f):
        kind,b=P.loc[f]
        if kind!="l": return (kind,b),None
        if b>=11: return ("v",park[b]),None
        return ("v",T),[f"ds_write_b128 {vW}, v[{T}:{T+3}] offset:{b*2048}",f"ds_write_b128 {vW}, v[{T+4}:{T+7}] offset:{b*2048+1024}"]
    def rd(vb,f,offs):
        d,post=dest(f); return (vb,)+d+(offs,post)
    blocks=[]
    for k in KORDER:
        c=kap(k)==8
        for mu in "kvq":
            blocks.append(([(((C0,C1) if c else (A0,A1))[i>>1],srd[mu],sK,(64*kap(k)+(16*w+2*i if c else 32*(w>>1)+8*(w&1)+i))*8192) for i in range(4)],
                           [rd((R0,R1)[t],(mu,t,k),wk.QKV_OFFS) for t in range(2)]))
    for ty,b in (("A",0),("B",1)):
        for x in range(4):
            blocks.append(([(vO,srd["o"],sKV,(32*x+8*w+2*i)*1152+512*b) for i in range(4)],
                           [rd(RO,("o",ty,t,x),[256*t+(8*(qd>>1)+2*(qd&1))*512 for qd in range(4)]) for t in range(2)]))
    blocks.append(([(vOC,srd["o"],sKV,(32*w+8*i)*1152+1024) for i in range(4)],
                   [rd(RC,("o","C",t),[(64*t+32*(qd>>1)+16*(qd&1))*128 for qd in range(4)]) for t in range(2)]))
    if order: blocks=sorted(blocks[:27],key=lambda b: order.index([m_ for m_ in "kvq" if srd[m_]==b[0][0][1]][0]))+blocks[27:]
    assert len(blocks)==36 and P.loc[("o","C",0)]==("v",240)
    wk.coop_blocks(a,blocks,lambda i: L_W0+i*LW+11*2048,("v15","v246"),4096*w,hooks)
    for b in range(11,19):
        rb=park[b]
        a(f"ds_write_b128 {vW}, v[{rb}:{rb+3}] offset:{b*2048}")
        a(f"ds_write_b128 {vW}, v[{rb+4}:{rb+7}] offset:{b*2048+1024}")
    a("s_waitcnt lgkmcnt(0)")

GROUPS = [[],[0,3],[1,4],[2]]

def mso(i): return (sMst,sMst1)[i]
def held(i): return (vAux,"v11")[i]
def publish(i): return f"buffer_store_dword {held(i)}, {vMst}, {sWS}, {(sMh,sMh1)[i]} offen sc1"
def fetch_mem0(a, w, srd_mem, lane):
    for i,g in enumerate(GROUPS[w]):
        a(f"""
        v_and_b32 v28, 3, {lane}               ; 2half+piece
        v_bfe_u32 v30, {lane}, 4, 1            ; g2
        v_lshrrev_b32 v29, 5, {lane}           ; p
        v_mul_u32_u24 v29, 1152, v29
        v_lshl_add_u32 v28, v28, 1, v30        ; 2(2half+piece)+g2
        v_lshl_add_u32 v29, v28, {2 if g==4 else 1}, v29
        s_and_b32 {sT0}, {sH}, 3
        s_mul_i32 {sT0}, {sT0}, {2*1152}
        """)
        if g<4:
            a(f"""s_lshr_b32 {sT1}, {sH}, 3
            s_lshl_b32 {sT1}, {sT1}, 6
            s_add_u32 {sT0}, {sT0}, {sT1}
            s_bfe_u32 {sT1}, {sH}, 0x10002
            s_lshl_b32 {sT1}, {sT1}, 4
            s_add_u32 {sT0}, {sT0}, {sT1}""")
        else:
            a(f"""s_lshr_b32 {sT1}, {sH}, 2
            s_lshl_b32 {sT1}, {sT1}, 5
            s_add_u32 {sT0}, {sT0}, {sT1}""")
        a(f"""buffer_load_ushort v{31+2*i}, v29, {srd_mem}, {sT0} offen offset:{256*g}
        buffer_load_ushort v{32+2*i}, v29, {srd_mem}, {sT0} offen offset:{256*g+(2 if g==4 else 32)}""")
def store_mem0(a, w, dst):
    for i,g in enumerate(GROUPS[w]):
        a(f"""v_lshl_or_b32 v28, v{32+2*i}, 16, v{31+2*i}
        v_min_u32 {dst[i]}, -2, v28""")
        if g==0: a("\n".join(rep_addr("v29")))
        a(f"buffer_store_dword {dst[i]}, {vMst if g else 'v29'}, {sWS}, {mso(i)} offen")

def next_slots(w):
    return [f"s_add_u32 {x}, {x}, 0x4000" for x in [sM0,sM1,sM2]+([sMst,sMh] if GROUPS[w] else [])+([sMst1,sMh1] if len(GROUPS[w])>1 else [])+([sMtc] if w in (0,3) else [])]

def mload(k, fl=""):
    b=kap(k); s=[sM0,sM1,sM2][(b+2)>>2]
    return f"buffer_load_dwordx4 {q(m(k))}, {vL16}, {sWS}, {s} offen offset:{(b if b<2 else (b+2)&3)*1024} {fl}".rstrip()
def moff(g): return 6144+2048*g if g else 0
def rep_addr(r): return [f"v_bfe_u32 {r}, {vL16}, 6, 2", f"v_lshl_add_u32 {r}, {r}, 11, {vMst}"]
def zero(base, n): return [f"v_mov_b32 v{base+i}, 0" for i in range(n)]
KEEP=["v_nop",5]
def delay(a, clks):
    n=clks//4
    while n>0:
        k=min(n,KEEP[1]); a(KEEP[0])
        if k>1: a(f"s_nop {k-2}")
        n-=k
def weave(v, o):
    v=list(v); o=list(o); r=[]
    while v or o:
        if v: r.append(v.pop(0))
        r.append(o.pop(0) if o else "s_nop 0")
    return r
def spin_guard(a, fail):
    a(f"s_add_u32 {sCnt}, {sCnt}, 1\ns_cmp_gt_u32 {sCnt}, {SPIN_MAX}\ns_cbranch_scc1 {fail}")
DPP="row_mask:0xf bank_mask:0xf"

def step_loop(a, w, cfg, hooks):
    KEEP[:]=[("v_nop",f"v_mov_b32 {vIdx}, {vIdx}")[cfg.get("keepmov",0)],cfg.get("keepn",5)]
    P=PLANS[w]; L=lambda s: f"{hooks.get('prefix',f'ch{w}')}_{s}"
    def E(lst):
        for x in lst: a(x)
    def stage(buf,f):
        b=P.loc[f][1]
        return [f"ds_read_b128 {q(buf)}, {vW} offset:{b*2048}", f"ds_read_b128 {q(buf+4)}, {vW} offset:{b*2048+1024}"]
    def sm(acc,A,B): return f"v_smfmac_f32_16x16x64_bf16 {q(acc)}, {q(A)}, {B}, {vIdx}"
    def mf(d,A,B,C): return f"v_mfma_f32_16x16x32_bf16 {q(d)}, {A}, {B}, {C}"
    def fold(base,dst):
        return [f"v_add_f32 v{base}, v{base}, v{base+2}", f"v_add_f32 v{base+1}, v{base+1}, v{base+3}", f"v_cvt_pk_bf16_f32 v{dst}, v{base}, v{base+1}"]
    def younger(x, since):
        vm=[y for y in a.lines[since:] if y.startswith("buffer")]
        return len(vm)-1-max(k for k,y in enumerate(vm) if y==x)
    S0,S1=p(16),p(24); ST=[S0,S1]; VA=p(32)
    acc={("q",0):p(0),("q",1):p(4),("k",0):p(8),("k",1):p(12),("v",0):VA,("v",1):VA+4}
    KX=[m(8),m(0)]; VX=[m(1),m(2)]; NV=len(P.vv)
    fail=L("fail"); late=[]
    disturb=[f"ds_write_b32 {vMst}, {vIdx} offset:{L_PM}"] if cfg.get("dcons") else []
    prep_qk=zero(p(0),16)+stage(S0,P.qk[P.qk_lds[0]])+stage(S1,P.qk[P.qk_lds[1]])
    a(f"{L('entry')}:")
    a(f"v_and_b32 {vOr}, 8, {vPsc}\nv_add_u32 {vOr}, {vOa}, {vOr}")
    E(disturb); E(prep_qk); E(zero(VA,8))
    NPRE=4
    LEAD=cfg.get("lead")
    if LEAD:
        a(f"{L('e0')}:"); a(mload(KORDER[0],'sc1')); a(mload(KORDER[1],'sc1')); spin_guard(a,fail)
        a(f"s_waitcnt vmcnt(0)\nv_max_u32 v{m(1)}, v{m(8)}, v{m(0)}\nv_cmp_eq_u32 vcc, -1, v{m(1)}\ns_cbranch_vccnz {L('e0')}")
    for k in KORDER[2 if LEAD else 0:NPRE]: a(mload(k))
    a("s_waitcnt vmcnt(0)")
    if w==0: a(f"v_lshrrev_b32 v11, 2, {vL16}\nv_and_b32 v11, 127, v11")
    nm=0; PW=0; SW=-1 if LEAD else 0 if cfg["tH"] is not None else 1
    DEF=cfg.get("defer",[])
    dst_=[f"buffer_store_dword {held(u)}, {vMst}, {sWS}, {mso(u)} offen" for u,g in enumerate(GROUPS[w]) if g in DEF]
    dpos=cfg.get("dpos",1)
    issued=list(range(dpos))+["s"]*len(dst_)+list(range(dpos,NPRE))
    CMPM="v_cmp_f_u32" if cfg.get("nocheck") else "v_cmp_eq_u32"
    CMPP="v_cmp_f_u32" if cfg.get("nocheck") else "v_cmp_ne_u32"
    a(f"{L('top')}:")
    top=len(a.lines)
    def retry(j, inflight, back, g=(0,)):
        lb=L(f"retry{j}")
        late.append((lb,[KORDER[x] for x in inflight],back,len(g))); return lb
    SPEC=cfg.get("spec") and not LEAD
    if LEAD: a("s_waitcnt lgkmcnt(1)")
    elif SPEC: a(f"s_waitcnt vmcnt({len(issued)-1-issued.index(0)}) lgkmcnt(2)")
    else: a(f"s_waitcnt vmcnt({len(issued)-1-issued.index(0)}) lgkmcnt(2)\n{CMPM} vcc, -1, v{m(8)}\ns_cbranch_vccnz {retry(0,range(NPRE),L('ok0'))}\n{L('ok0')}:")
    n=len(P.qk)
    first={}
    for i,f in enumerate(P.qk): first.setdefault(KORDER.index(f[2]),i)
    islds=lambda i: i in P.qk_lds
    CH=cfg["checks"][1 if LEAD else 0:]
    brpos={c[0]:((first[c[0]]-3)//3)*3+2 for c in CH}
    if 7 in brpos and 8 in brpos: brpos[7]-=3
    grp={c[0]:c for c in CH}
    assert len(set(brpos.values()))==len(CH)
    gapx={}
    def put(g,x): gapx.setdefault(g,[]).append(x)
    for j,g in zip(range(NPRE,9),cfg["vpos"]): put(g,(j,mload(KORDER[j])))
    kl=[f"buffer_load_dwordx4 {q(KX[t])}, v{m(0)}, {sWS}, {sK} offen offset:{t*1024} sc1" for t in range(2)]
    vxl=[f"buffer_load_dwordx4 {q(VX[t])}, {vL16}, {sWS}, {sKV} offen offset:{t*1024} sc1" for t in range(2)]
    if SPEC: put(0,(None,f"{CMPM} vcc, -1, v{m(8)}")); put(2,(None,f"s_cbranch_vccnz {L('redo0')}"))
    for g,x in hooks["pre_k"](w): put(g,x)
    put(13,(None,f"v_and_b32 v{m(0)}, 32, {vL16}")); put(14,(None,f"v_lshl_add_u32 v{m(0)}, v{m(0)}, 4, {vOa}"))
    for t in range(2): put(cfg["kpos"][t],("k",kl[t])); put(cfg["vxpos"][t],("vx",vxl[t]))
    for g,x in hooks["qk"](w): put(g,x)
    if cfg.get("tbar"): put(cfg["tbar"],(None,"s_barrier"))
    if cfg.get("touch",1) and w in (0,3):
        r="v11" if w==3 else vAux; sp=cfg.get("tsplit",0)
        g=cfg["tpos"]; tl=lambda so: f"buffer_load_dword {r}, {r}, {sWS}, {so} offen sc1 ; nochk"
        n1,g1=cfg.get("t1",(0,g))
        if w==3 or sp: put(g1-(1 if n1 else 3),(None,f"v_lshlrev_b32 {r}, 3, {vL16}"))
        if w==3:
            put(g1-(1 if n1 else 4),(None,f"s_add_u32 {sT0}, {sK}, {16384-3*2048}")); put(g-1,(None,f"s_add_u32 {sT1}, {sT0}, 8192"))
            if n1:
                put(g1,(None,f"s_bfm_b64 exec, {n1}, 0")); put(g1,("t",tl(sT0))); put(g1,(None,"s_mov_b64 exec, -1"))
                put(g,("t",tl(sT1))); put(g+cfg["tgap"],(None,f"s_bfm_b64 exec, {64-n1}, {n1}")); put(g+cfg["tgap"],("t",tl(sT0))); put(g+cfg["tgap"],(None,"s_mov_b64 exec, -1"))
            else: put(g,("t",tl(sT0))); put(g+cfg["tgap"],("t",tl(sT1)))
        g+=cfg["tgap"]+2
        if w==(0 if sp else 3): put(g,(None,"s_mov_b64 exec, 15")); put(g,("t",tl(sMtc))); put(g,(None,"s_mov_b64 exec, -1"))
        if w==3:
            for x in hooks.get("after_touch",[]): put(g+1,("t",x))
    if cfg.get("pub"):
        for i in range(len(GROUPS[w])): put(cfg["ppos"]+3*i,("p",publish(i)))
    foldq=fold(p(0),p(2))+fold(p(4),p(6))
    nl=0; pend=[]
    for i,f in enumerate(P.qk):
        B=f"v[{ST[nl&1]}:{ST[nl&1]+7}]" if islds(i) else P.reg(f)
        a(sm(acc[f[:2]],m(f[2]),B)+(" ; nochk" if LEAD and w==PW and i<12 else ""))
        hascmp=any(brpos[j]-2==i for j in brpos) or any(x.startswith("v_") for _,x in gapx.get(i,[])) or i>=n-4
        if islds(i):
            if nl+2<len(P.qk_lds): pend=stage(ST[nl&1],P.qk[P.qk_lds[nl+2]])
            nl+=1
            if pend and not hascmp and cfg["ds2"]: a(pend.pop(0))
        if pend: a(pend.pop(0))
        val=[]
        for j,x in gapx.get(i,[]):
            if x.startswith("v_"): val.append(x); continue
            a(x)
            if x.startswith("buffer"): issued.append(j)
        for j in brpos:
            if brpos[j]==i:
                infl=[x for x in issued if isinstance(x,int) and x>=j]
                if len(grp[j])==2: a(f"s_or_b64 vcc, vcc, {sRdy2}\ns_cbranch_scc1 {retry(j,infl,L(f'ok{j}'),grp[j])}\n{L(f'ok{j}')}:")
                else: a(f"s_cbranch_vccnz {retry(j,infl,L(f'ok{j}'),grp[j])}\n{L(f'ok{j}')}:")
        wt=""
        for j in brpos:
            c=[f"v{m(KORDER[x])}" for x in grp[j]]
            if brpos[j]-3==i:
                wt+=f" vmcnt({len(issued)-1-issued.index(grp[j][-1])})"
                if len(c)==2: val.append(f"{CMPM} {sRdy2}, -1, {c[1]}")
            if brpos[j]-2==i: val.append(f"{CMPM} vcc, -1, {c[0]}")
            if brpos[j]==i+1 and len(c)==2: pass
        if islds(i+1): wt+=f" lgkmcnt({0 if nl==len(P.qk_lds)-1 else 2})"
        if wt: a("s_waitcnt"+wt)
        E(val)
        if i>=n-4: a(foldq.pop(0))
    vi=[0]
    def V(fl=()):
        f=P.vv[vi[0]]; a(sm(acc[f[:2]],m(f[2]),P.reg(f))); vi[0]+=1; E(fl)
    xs=L_XS+w*1024
    E(foldq); E(fold(p(8),p(3))); E(fold(p(12),p(7)))
    a(f"ds_write2st64_b64 {vL8}, v[{p(2)}:{p(3)}], v[{p(6)}:{p(7)}] offset0:{xs//512} offset1:{xs//512+1}")
    mid=hooks["mid"](w)
    Sa,Sb,Sm,ONES=p(16),p(20),p(24),p(28)
    PX,PM=p(8),p(12)
    misc=[f"v_mov_b32 v{ONES+i}, {sOne}" for i in range(4)]+zero(m(3),4)+zero(m(8),4)+zero(m(0),4)
    def take(k):
        o=misc[:k]; del misc[:k]; return o
    for _ in range(cfg["nV"][0]): V(mid[:2]+take(1)); mid=mid[2:]
    assert not mid
    if "prebar1" in hooks: hooks["prebar1"](a,w,lambda x: younger(x,top))
    a("s_waitcnt lgkmcnt(0)\ns_barrier")
    X=[p(4*i) for i in range(4)]
    for x in range(4):
        rd=[f"ds_read_b64_tr_b16 v[{X[x]+2*i}:{X[x]+2*i+1}], {vXr} offset:{L_XS+x*1024+i*512}" for i in range(2)]
        if x>=4-cfg["nV"][1]: V(rd)
        else: E(rd)
    for x in range(4):
        if x==0: a(f"s_waitcnt lgkmcnt(6) vmcnt({younger(kl[1],top)})")
        d=(Sa,Sb)[x&1]
        a(mf(d,q(KX[x>>1]),q(X[x]),q(d) if x>1 else 0))
        if x<3: a(f"s_waitcnt lgkmcnt({4-2*x})")
        E(take(cfg["sfill"]))
    a(mf(Sm,q(X[0]),q(X[0]),0))
    for i in range(2): a(f"v_mul_f32 v{Sa+i}, {sC}, v{Sa+i}")
    if cfg["sm2"]: a(mf(Sm,q(X[1]),q(X[1]),q(Sm)))
    for i in range(2): a(f"v_fmac_f32 v{Sa+i}, {sC}, v{Sb+2+i}")
    for i in range(2): a(f"v_exp_f32 v{Sa+2+i}, v{Sa+i}")
    a(f"s_mov_b64 exec, {sHalf0}\nv_cvt_pk_bf16_f32 v{Sa+2}, v{Sa+2}, v{Sa+3}")
    a(f"ds_write_b32 {vOa}, v{Sa+2} offset:{L_PX+4*w}")
    a("s_mov_b64 exec, -1")
    VD=VA+2; fv=fold(VA,VD)+fold(VA+4,VD+1)
    for _ in range(cfg["nV"][2]): V(take(1))
    early_fv=vi[0]==NV
    for x in range(2 if cfg["sm2"] else 1,4):
        a(mf(Sm,q(X[x]),q(X[x]),q(Sm)))
        if x==3 and early_fv: misc[:0]=fv
        E(take(2))
    pmq=[f"v_mul_f32 v{Sm+2}, {sC}, v{Sm+2}",f"v_mul_f32 v{Sm+3}, {sC}, v{Sm+3}",f"v_exp_f32 v{Sm}, v{Sm+2}",f"v_exp_f32 v{Sm+1}, v{Sm+3}",
         f"v_mov_b32 v{PM+1}, 0",f"v_cvt_pk_bf16_f32 v{Sm}, v{Sm}, v{Sm+1}",f"v_mov_b32 v{PM+2}, 0",
         f"v_mov_b32_dpp v{PM}, v{Sm} quad_perm:[0,1,0,1] {DPP}",f"v_mov_b32_dpp v{PM+3}, v{Sm} quad_perm:[0,1,0,1] {DPP}"]
    E(take(cfg["pfill"]))
    for _ in range(cfg.get("ka2",0)): a(mf(p(0),q(ONES),q(ONES),0))
    a("s_waitcnt lgkmcnt(0)\ns_barrier")
    a(f"ds_read_b128 {q(PX)}, {vOa} offset:{L_PX}")
    for _ in range(cfg.get("ka3",0)): a(mf(p(0),q(ONES),q(ONES),0))
    misc[:0]=pmq
    for _ in range(cfg["nV"][3]): V(take(1))
    E(take(cfg["rfill"]))
    DL,D0,D1=p(0),p(4),p(20); OW=p(12); OP=p(10)
    T=[m(4),m(6),p(16),p(24)]
    st=stage(T[0],P.wo_lds[0])+stage(T[1],P.wo_lds[1])
    m16=lambda d,A,B: f"v_mfma_f32_16x16x16_bf16 {q(d)}, v[{A}:{A+1}], v[{B}:{B+1}], {q(d)}"
    rl,r0,r1,tc=p(18),p(0),p(2),p(19)
    def scale_o(chk):
        a(f"v_rcp_f32 v{rl}, v{DL}")
        a(f"v_subrev_u32 v{tc}, {sLlo}, v{DL}" if chk else "s_nop 0")
        a(f"v_cndmask_b32 v{r0}, 0, v{rl}, {sHalf0}\nv_cndmask_b32 v{r1}, 0, v{rl}, {sHalf1}")
        for i in range(4): a(f"v_mul_f32 v{D0+i}, v{D0+i}, v{r0}")
        if chk: a(f"v_cmp_lt_u32 vcc, {hex(cfg.get('lrange',120<<23))}, v{tc}")
        for i in (0,2): a(f"v_pk_fma_f32 v[{D0+i}:{D0+i+1}], v[{D1+i}:{D1+i+1}], v[{r1}:{r1+1}], v[{D0+i}:{D0+i+1}] op_sel_hi:[1,0,1]")
        a(f"v_cvt_pk_bf16_f32 v{OP}, v{D0}, v{D0+1}\nv_cvt_pk_bf16_f32 v{OP+1}, v{D0+2}, v{D0+3}")
        if cfg["keepalive"]: a(mf(D1,q(ONES),q(ONES),0))
        a(f"ds_write_b64 {vOr}, v[{OP}:{OP+1}] offset:{L_O+w*512}")
    while vi[0]<NV: V(take(1))
    npm=max([k+1 for k,x in enumerate(misc) if x in pmq]+[0])
    if not early_fv: misc[npm:npm]=fv
    a(f"s_waitcnt vmcnt({younger(vxl[1],top)}) lgkmcnt(0)")
    a(mf(DL,q(ONES),q(PX),0)); a(st.pop(0)); E(take(2))
    a(mf(D0,q(VX[0]),q(PX),0)); a(st.pop(0)); E(take(2))
    a(mf(D1,q(VX[1]),q(PX),0)); a(st.pop(0)); E(take(2))
    while any(x in pmq for x in misc): E(take(1))
    while sum(x in fv for x in misc)>1: E(take(1))
    a(m16(DL,ONES,PM)); a(st.pop(0)); E(take(2))
    misc+=zero(VA+4,4)
    a(m16(D0,VD,PM)); E(take(2))
    a(m16(D1,VD,PM+2))
    scale_o(True)
    a(f"s_cbranch_vccnz {L('slowsm')}\n{L('smdone')}:")
    a(f"v_mov_b32_dpp v{OW}, v{OP} quad_perm:[0,1,0,1] {DPP}\nv_mov_b32_dpp v{OW+1}, v{OP+1} quad_perm:[0,1,0,1] {DPP}")
    a(f"v_mov_b32_dpp v{OW+2}, v{OP} quad_perm:[2,3,2,3] {DPP}\nv_mov_b32_dpp v{OW+3}, v{OP+1} quad_perm:[2,3,2,3] {DPP}")
    aC=m(1); aP={("A",0):m(8),("A",1):m(0),("B",0):m(3),("B",1):VA+4}
    while len(misc)>4: a(misc.pop(0))
    tb={f:T[i] for i,f in enumerate(P.wo_lds)}
    def wB(f): return f"v[{tb[f]}:{tb[f]+7}]" if f in tb else P.reg(f)
    OA={x:p(4*n_) for n_,x in enumerate(P.oth)}
    ph1=[mf(aC,q(OW),P.regC(w),0)]+[sm(aP[f[1:3]],OW,wB(f)) for f in P.wo1]
    a("s_waitcnt lgkmcnt(1)")
    ord_=[f"ds_read_b128 {q(OA[x])}, {vOa} offset:{L_O+x*512}" for x in P.oth]
    for i,x in enumerate(ph1):
        if i==cfg["bar3"]: a("s_waitcnt lgkmcnt(0)\ns_barrier"); E(ord_)
        a(x); E(take(2 if i==0 else 1))
    assert not misc
    SEL,DR=VA,VA+4
    lds=[]
    for i in range(2,4): lds+=stage(tb[P.wo_lds[i]],P.wo_lds[i])
    if GROUPS[w]: lds.append(f"ds_read_b128 {q(SEL)}, {vL16} offset:{L_SEL}")
    dsq=list(ord_)
    def ds(k):
        for _ in range(k):
            if lds: x=lds.pop(0); a(x); dsq.append(x)
    def lgw(x): return f"s_waitcnt lgkmcnt({len(dsq)-1-dsq.index(x)})"
    ds(cfg["nst0"])
    def cv(d,b): return f"v_cvt_pk_bf16_f32 v{d}, v{b}, v{b+1}"
    A0,A1,B0,B1=aP[("A",0)],aP[("A",1)],aP[("B",0)],aP[("B",1)]
    pld=[f"buffer_load_dwordx4 {q(m(4+i))}, {vL16}, {sWS}, {(sPld,sPld1)[i>>1]} offen offset:{1024*(i&1)} sc1" for i in range(2*len(GROUPS[w]))]
    def pst(r,so): return f"buffer_store_dwordx2 v[{r}:{r+1}], {vPst}, {sWS}, {so} offen"
    def tag(r): return f"v_and_or_b32 v{r}, v{r}, -2, {sPar}"
    pk=lambda r,d=None: [cv(d or r,r),cv((d or r)+1,r+2),tag(d or r)]
    after={4:pk(A0),5:[pst(A0,sPA)],7:pk(A1)[:1],8:pk(A1)[1:],9:[pst(A1,sPA1)],10:pk(B0)[:1],11:pk(B0)[1:2],12:pk(B0)[2:],13:pk(B1,B0+2)[:2],14:pk(B1,B0+2)[2:]}
    if cfg.get("bgap"):
        after={4:pk(A0),5:[pst(A0,sPA)],7:pk(A1),8:[pst(A1,sPA1)],10:pk(B0),11:[pst(B0,sPB)],13:pk(B1,B0+2),14:[pst(B0+2,sPB1)]}
        if cfg["bgap"]==2: del after[14]
        if cfg.get("a0now"): after[4]=after[4]+["+"+after.pop(5)[0]]
    ph2=[(sm(aP[f[1:3]],OA[f[3]],wB(f)),f) for f in P.wo2]+[(mf(aC,q(OA[x]),P.regC(x),q(aC)),None) for x in P.oth]
    mark=len(a.lines)
    for i,(x,f) in enumerate(ph2):
        if i<3: a(lgw(ord_[i]))
        a(x)
        vm=[y for y in after.get(i,[]) if y.startswith("buffer")]
        E(vm)
        if not vm: ds(1)
        if i+1<12 and P.wo2[i+1] in tb: a(lgw(stage(tb[P.wo2[i+1]],P.wo2[i+1])[1]))
        E([y.lstrip("+") for y in after.get(i,[]) if not y.startswith("buffer")])
    assert not lds
    sal=[f"s_add_u32 {sSeg}, {sSeg}, 1",f"s_add_u32 {sKV}, {sKV}, {cfg.get('kvstep',16384)}",f"s_add_u32 {sK}, {sK}, {cfg.get('kvstep',16384)}"]+hooks["sal"](w)+next_slots(w)
    if w<2: sal.insert(0,f"s_add_u32 {sSig}, {sSig}, 2")
    cpk=tag(aC)
    work=prep_qk[16:]+[cv(aC,aC),cpk]+weave(prep_qk[:16],sal)
    now=[0]
    def spend(clks):
        k=clks//4
        o=work[:k]; del work[:k]; E(o); delay(a,4*(k-len(o))); now[0]+=4*k
    def at(t, ops):
        spend(max(0,t-now[0]))
        while ops[0].endswith(f"{sPC} offen") and cpk in work: spend(4)
        E(ops); now[0]+=10*len(ops)
    D2=cfg.get("d2")
    alt=[m(8),m(0),m(1),m(3)]
    pl2=[x.replace(q(m(4+i)),q(alt[i])) for i,x in enumerate(pld)]
    def reduce(u, mark):
        ld=pld[2*u:2*u+2]; he=w==SW and u==0 and cfg.get("hearly")
        def body(r0_,r1_,w0,w1,bad):
            a(f"s_waitcnt vmcnt({w0}) lgkmcnt(0)"); a(mf(DR,q(SEL),q(r0_),0)); a(f"v_xor_b32 v{r0_}, {sPar}, v{r0_}")
            a(f"s_waitcnt vmcnt({w1})"); a(mf(DR,q(SEL),q(r1_),q(DR)))
            a(f"v_bitop3_b32 v{r0_}, v{r0_}, v{r1_}, {sPar} bitop3:0xf6\nv_and_b32 v{r0_}, 1, v{r0_}\n{CMPP} vcc, 0, v{r0_}")
            if he: a(f"s_cbranch_vccnz {bad}"); E(hsend)
            for ror in (4,8):
                for i in range(2): a(f"v_add_f32_dpp v{DR+i}, v{DR+i}, v{DR+i} row_ror:{ror} {DPP}")
            a(f"v_cvt_pk_bf16_f32 {held(u)}, v{DR}, v{DR+1}")
            if not he: a(f"s_cbranch_vccnz {bad}")
        y2=[younger(x,mark) for x in pl2[2*u:2*u+2]] if D2 else None
        body(m(4+2*u),m(5+2*u),younger(ld[0],mark),younger(ld[1],mark),L(f'altP{u}') if D2 else L(f'pollP{u}'))
        a(f"{L(f'okP{u}')}:")
        if w==SW and u==0 and not he: E(hsend)
        if GROUPS[w][u] not in DEF: a(f"buffer_store_dword {held(u)}, {vMst if GROUPS[w][u] else f'v{m(2)+2}'}, {sWS}, {mso(u)} offen")
        def slow():
            if D2:
                a(f"{L(f'altP{u}')}:")
                if cfg.get("cnt")==2: a(f"s_add_u32 s{93+u}, s{93+u}, 1")
                body(alt[2*u],alt[2*u+1],y2[0],y2[1],L(f'pollP{u}')); a(f"s_branch {L(f'okP{u}')}")
            a(f"{L(f'pollP{u}')}:")
            if cfg.get("cnt")==1: a(f"s_add_u32 s{93+u}, s{93+u}, 1")
            E(ld); E(disturb); spin_guard(a,fail); body(m(4+2*u),m(5+2*u),1,0,L(f'pollP{u}')); a(f"s_branch {L(f'okP{u}')}")
        outl.append(slow)
    outl=[]
    def gather(k0,k1=NPRE):
        for k in range(k0,k1):
            if k and k!=nm: spend(cfg["dm"][k-1]-(8*len(dst_) if k==dpos else 0))
            a(mload(KORDER[k]))
            if k+1==dpos: E(dst_)
    def close():
        E(work); work.clear()
        a(f"s_xor_b32 {sPar}, {sPar}, 1")
        hooks["end"](a,w)
        a(f"s_branch {L('top')}")
    ev=[(cfg["tB"][0],[pst(B0,sPB)]),(cfg["tB"][1],[pst(B0+2,sPB1)]),(cfg["tB"][2],[f"buffer_store_dword v{aC}, {vPsc}, {sWS}, {sPC} offen"])]
    if cfg.get("bgap"): ev=ev[3-cfg["bgap"]:]
    G=GROUPS[w]
    if 0 in G: work+=rep_addr(f"v{m(2)+2}")
    hsend=[f"s_mov_b64 exec, {(1<<NREP)-1}",f"buffer_store_dword v{m(2)}, {vXr}, {sWS}, {sPubX} offen","s_mov_b64 exec, -1"]
    if w==SW and cfg.get("dcons"):
        work[4:4]=[f"ds_read_b32 v{m(2)}, {vMst} offset:{L_PM}"]
        work[len(work)//2:len(work)//2]=["s_waitcnt lgkmcnt(0)",f"ds_write_b32 {vMst}, v{p(0)} offset:{L_PM}",f"v_min_u32 v{m(2)}, 1, v{m(2)}",f"v_add_u32 v{m(2)}, {sSig}, v{m(2)}"]
    elif w==SW: work[len(work)//2:len(work)//2]=[f"v_mov_b32 v{m(2)}, {sSig}"]
    if w==PW: work.append(f"v_mov_b32 v{m(2)+1}, 0")
    for i,g in enumerate(G): ev.append((cfg["tP"][g],pld[2*i:2*i+2]))
    if D2:
        for i,g in enumerate(G): ev.append((cfg["tP"][g]+D2,pl2[2*i:2*i+2]))
    ev.sort(key=lambda x:x[0])
    split=not D2 and len(G)>1 and cfg["tP"][G[1]]>cfg["tP"][G[0]]+cfg.get("split",260)
    if split: last=ev.pop()
    for t,ops in ev: at(t,ops)
    if G:
        spend(max(4*len(work),cfg["tP"][G[0]]+170-now[0]))
        reduce(0,mark)
        if split: now[0]=max(now[0],cfg["tP"][G[0]]+230)+90; at(*last); delay(a,150)
        if len(G)>1:
            if G[1]==4: a(f"s_cmp_ge_u32 {sH}, 16\ns_cbranch_scc1 {L('nored')}")
            reduce(1,mark)
            a(f"{L('nored')}:")
    else:
        work+=weave(zero(VA,8),[])
        if SW==w:
            while any("v%d,"%m(2) in x for x in work): spend(4)
            at(cfg["tH"],hsend)
        spend(max(4*len(work),cfg["tS"]-now[0]))
    if G: work+=weave(zero(VA,8),[])
    if LEAD:
        lx=[f"offset:{L_XS+1024*i}" for i in range(2)]; fr=[m(8),m(0)]; t=[f"v{m(3)+i}" for i in range(2)]
        if w==PW:
            smp=[mload(KORDER[i],'sc1') for i in range(2)]
            for _ in range(cfg["npre"]): E(smp); delay(a,cfg["pregap"])
            a(f"s_waitcnt vmcnt({2*cfg['npre']-2})\n{L('hpoll')}:")
            for u in range(3):
                a(f"""v_max3_u32 {t[0]}, v{fr[0]}, v{fr[0]+1}, v{fr[0]+2} ; nochk
                v_max3_u32 {t[1]}, v{fr[1]}, v{fr[1]+1}, v{fr[1]+2} ; nochk
                v_max3_u32 {t[0]}, {t[0]}, v{fr[0]+3}, v{fr[1]+3} ; nochk
                v_max_u32 {t[0]}, {t[0]}, {t[1]}
                {CMPM} vcc, -1, {t[0]}""")
                E(smp)
                if cfg.get("cnt"): a("s_add_u32 s94, s94, 1")
                if cfg["pollgap"]: a(f"s_nop {cfg['pollgap']-1}")
                if u==2: a(f"s_add_u32 {sCnt}, {sCnt}, 1\ns_cmp_gt_u32 {sCnt}, {SPIN_MAX}")
                a(f"s_cbranch_vccz {L('hok')}")
            a(f"s_waitcnt vmcnt(16)\ns_cbranch_scc0 {L('hpoll')}\ns_branch {fail}\n{L('hok')}:")
            for i in range(2): a(f"ds_write_b128 {vL16}, {q(fr[i])} {lx[i]} ; nochk")
            a(mload(KORDER[2])); a(mload(KORDER[3])); a(f"s_xor_b32 {sPar}, {sPar}, 1")
            a("s_waitcnt lgkmcnt(0)\ns_barrier")
        else:
            E(work); work.clear(); delay(a,cfg["dkeep"][w]); a(f"s_xor_b32 {sPar}, {sPar}, 1\ns_waitcnt lgkmcnt(0)\ns_barrier")
            for i in range(2): a(f"ds_read_b128 {q(fr[i])}, {vL16} {lx[i]}")
            for k in (2,3):
                if k==max(dpos,2): E(dst_)
                a(mload(KORDER[k]))
            if dpos==4: E(dst_)
        hooks["end"](a,w)
        a(f"s_branch {L('top')}")
    elif w==PW:
        HV=f"v{m(2)+1}"; poll=f"buffer_load_dword {HV}, v11, {sWS}, {sHint} offen sc1"
        a(f"{L('hpoll')}:")
        for u in range(4):
            a(f"v_cmp_gt_u32 vcc, {sSig}, {HV} ; nochk\nv_cmp_ne_u32 {sRdy2}, {sSig}, {HV} ; nochk"); a(poll)
            if cfg.get("cnt"): a("s_add_u32 s94, s94, 1")
            if cfg["pollgap"]: a(f"s_nop {cfg['pollgap']-1}")
            if u==3: a(f"s_add_u32 {sCnt}, {sCnt}, 1\ns_cmp_gt_u32 {sCnt}, {SPIN_MAX}")
            a(f"s_cbranch_vccz {L('hseen')}")
        a(f"s_cbranch_scc0 {L('hpoll')}\ns_branch {fail}\n{L('hslow')}:")
        if cfg.get("cnt"): a("s_add_u32 s93, s93, 1")
        delay(a,cfg.get("dcons") or 0)
        a(f"ds_write_b32 {vMst}, v{p(0)} offset:{L_PM}\ns_waitcnt lgkmcnt(0)")
        a(f"s_branch {L('hok')}\n{L('hseen')}:")
        if cfg.get("dcons"): a(f"s_cmp_lg_u64 {sRdy2}, 0\ns_cbranch_scc1 {L('hslow')}")
        a(f"{L('hok')}:")
    else: spend(cfg["dkeep"][w])
    if not LEAD:
        a("s_barrier")
        gather(0); close()
    for f_ in outl: f_()
    a(f"{L('slowsm')}:"); E(disturb)
    a(f"s_mov_b64 exec, {sHalf0}\nds_write_b64 {vOa}, v[{Sa}:{Sa+1}] offset:{L_XS+512*(w>>1)+8*(w&1)}\ns_mov_b64 exec, -1")
    a("s_waitcnt lgkmcnt(0)\ns_barrier")
    s_=[p(i) for i in range(8)]+[Sm,Sm+1]; mx,tt=p(20),p(21)
    a(f"""ds_read_b128 {q(p(0))}, {vOa} offset:{L_XS}
    ds_read_b128 {q(p(4))}, {vOa} offset:{L_XS+512}
    v_mov_b32_dpp v{Sm}, v{Sm+2} quad_perm:[0,1,0,1] {DPP}
    v_mov_b32_dpp v{Sm+1}, v{Sm+3} quad_perm:[0,1,0,1] {DPP}
    s_waitcnt lgkmcnt(0)
    v_max_f32 v{mx}, v{s_[0]}, v{s_[1]}""")
    for i in range(2,10,2): a(f"v_max3_f32 v{mx}, v{mx}, v{s_[i]}, v{s_[i+1]}")
    a(f"""v_mov_b32 v{tt}, v{mx}
    v_permlane16_swap_b32 v{mx}, v{tt}
    v_max_f32 v{mx}, v{mx}, v{tt}
    v_mov_b32 v{tt}, v{mx}
    v_permlane32_swap_b32 v{mx}, v{tt}
    v_max_f32 v{mx}, v{mx}, v{tt}""")
    for i in range(10): a(f"v_sub_f32 v{s_[i]}, v{s_[i]}, v{mx}\nv_exp_f32 v{s_[i]}, v{s_[i]}")
    for i in range(4): a(cv(PX+i,p(2*i)))
    a(cv(PM,Sm)); a(cv(PM+3,Sm))
    a(mf(DL,q(ONES),q(PX),0)); a(mf(D0,q(VX[0]),q(PX),0)); a(mf(D1,q(VX[1]),q(PX),0))
    a(m16(DL,ONES,PM)); a(m16(D0,VD,PM)); a(m16(D1,VD,PM+2))
    scale_o(False)
    a(f"s_branch {L('smdone')}")
    if SPEC:
        a(f"{L('redo0')}:")
        if cfg.get("cnt"): a("s_add_u32 s84, s84, 1")
        for k in KORDER[:NPRE]: a(mload(k,'sc1'))
        spin_guard(a,fail); E(disturb)
        a(f"s_waitcnt vmcnt(0) lgkmcnt(0)\nv_cmp_eq_u32 vcc, -1, v{m(8)}\ns_cbranch_vccnz {L('redo0')}")
        E(prep_qk); a(f"s_branch {L('top')}")
    for lb,ks,back,ng in late:
        a(f"{lb}:")
        if cfg.get("cnt"): a(f"s_add_u32 s{84+KORDER.index(ks[0])}, s{84+KORDER.index(ks[0])}, 1")
        for k in ks: a(mload(k,'sc1'))
        spin_guard(a,fail)
        E(disturb)
        a("s_waitcnt vmcnt(0)")
        for k in ks[:ng]: a(f"v_cmp_eq_u32 vcc, -1, v{m(k)}\ns_cbranch_vccnz {lb}")
        a(f"s_branch {back}")

def init_comm(a, w, stores=True):
    g0,g1=(GROUPS[w]+[0,0])[:2]
    a(f"""
    s_lshl_b32 {sT0}, {sH}, 6
    s_add_u32 {sPA}, {sT0}, {OFF_P+w*16384}
    s_add_u32 {sPA1}, {sPA}, {65536}
    s_add_u32 {sPB}, {sPA}, {2*65536}
    s_add_u32 {sPB1}, {sPA}, {3*65536}
    s_add_u32 {sPC}, {sT0}, {OFF_P+4*65536+w*8192}
    s_add_u32 {sMst}, {sT0}, {OFF_M+moff(g0)}
    s_add_u32 {sMst1}, {sT0}, {OFF_M+moff(g1)}
    s_and_b32 {sM0}, {sH}, 3
    s_lshl_b32 {sM0}, {sM0}, 11
    s_add_u32 {sM0}, {sM0}, {OFF_M}
    s_mov_b32 {sM1}, {OFF_M+8192}
    s_mov_b32 {sM2}, {OFF_M+12288}
    s_lshl_b32 {sT0}, {sH}, 11
    s_add_u32 {sPld}, {sT0}, {OFF_P+65536*g0}
    s_mov_b32 {sPar}, 0
    s_mov_b32 {sC}, {f2u(128**-0.5*math.log2(math.e))}
    s_mov_b32 {sOne}, 0x3f803f80
    s_mov_b32 {sLlo}, {(127-60)<<23}
    v_mov_b32 v20, -1
    v_mov_b32 v21, -1
    v_mov_b32 v22, -1
    v_mov_b32 v23, -1
    """)
    if len(GROUPS[w])>1: a(f"s_add_u32 {sPld1}, {sPld}, {(g1-g0)*65536}")
    if w<2: a(f"""s_mov_b32 {sSig}, 0
    s_lshl_b32 {sT0}, {sH}, 2
    s_add_u32 {sPubX}, {sT0}, {OFF_H}
    s_and_b32 {sT0}, {sH}, {NREP-1}
    s_lshl_b32 {sT0}, {sT0}, 7
    s_add_u32 {sHint}, {sT0}, {OFF_H}
    s_mov_b64 exec, {(1<<NREP)-1}
    v_mov_b32 v28, 0
    {f"buffer_store_dword v28, {vXr}, {sWS}, {sPubX} offen" if stores else ""}
    buffer_load_dword v24, {vXr}, {sWS}, {sPubX} offen sc1
    s_mov_b64 exec, -1""")
    if g1==4: a(f"s_cmp_ge_u32 {sH}, 16\ns_cselect_b32 {sPld1}, 0x40000000, {sPld1}")
    if w in (0,3): a(f"s_lshl_b32 {sMtc}, {sH}, 9\ns_add_u32 {sMtc}, {sMtc}, {OFF_M+0x8000}")
    for i,g in enumerate(GROUPS[w]):
        for j in range(2):
            if stores: a(f"buffer_store_dwordx4 v[20:23], {vL16}, {sWS}, {(sPld,sPld1)[i]} offen offset:{1024*j}")
            a(f"buffer_load_dwordx4 v[24:27], {vL16}, {sWS}, {(sPld,sPld1)[i]} offen offset:{1024*j} sc1")
        a(f"s_add_u32 {sT0}, {mso(i)}, 0x4000")
        a(f"buffer_load_dword v24, {vMst}, {sWS}, {sT0} offen sc1\nbuffer_load_dword v24, {vMst}, {sWS}, {mso(i)} offen sc1")


def set_layer(a, w, layer):
    a(f"""
    s_mov_b32 {sSeg}, 0
    s_mul_i32 {sT0}, {sH}, {KV_H}
    s_add_u32 {sKV}, {sT0}, {OFF_KV+8192+w*2048}
    s_add_u32 {sK}, {sT0}, {OFF_KV+w*2048}
    s_lshl_b32 {sT0}, {sH}, 6
    s_add_u32 {sT0}, {sT0}, {layer}
    s_add_u32 {sMh}, {sT0}, {OFF_MH+2048*(GROUPS[w]+[0,0])[0]}
    s_add_u32 {sMh1}, {sT0}, {OFF_MH+2048*(GROUPS[w]+[0,0])[1]}
    s_mov_b32 {sCnt}, 0
    """)
```

```python
import sys
from wk import *
import wk, a1, a2p, awo, bqkv, batt, battp, bwo
import chain as C
from stages import compact, KD, CH_CFG
NAME="interleave_layers__memory_aug_recurrent_mem_tr__mha_block__prompt_kernel"
XB_=2048*1152
sLay,sJ,sLo="s23","s22","s20"
NA,NW,NB=3,7,4
def stamp(a, cfg, k, r=10):
    if cfg.get("dbg"):
        if k==9: a("s_memrealtime s[98:99]\ns_waitcnt lgkmcnt(0)\ns_mov_b32 s100, s98\ns_memtime s[98:99]\ns_waitcnt lgkmcnt(0)\ns_mov_b32 s1, s98"); return
        if not ((r==12 and k in (2,3)) or k==8): return
        if k==2: a("s_memrealtime s[98:99]\ns_waitcnt lgkmcnt(0)\ns_sub_u32 s22, s98, s100\ns_memtime s[98:99]\ns_waitcnt lgkmcnt(0)\ns_sub_u32 s43, s98, s1"); return
        sk=a.lab("dg")
        a(f"""s_cmp_lg_u32 {sW}, 0
        s_cbranch_scc1 {sk}
        s_cmp_lg_u32 s101, {0 if k!=8 else 224}
        s_cbranch_scc1 {sk}
        s_memrealtime s[98:99]
        s_lshl_b32 s0, {sLay}, 4
        s_add_u32 s0, s0, {8*(k-2) if k!=8 else 32}
        v_mov_b32 v{r}, s0
        s_waitcnt lgkmcnt(0)
        s_sub_u32 s0, s98, s100
        v_mov_b32 v{r+1}, s0
        s_memtime s[98:99]
        s_mov_b64 exec, 1
        global_store_dword v{r}, v{r+1}, s[4:5]
        s_waitcnt lgkmcnt(0) vmcnt(0)
        s_sub_u32 s0, s98, s1
        v_mov_b32 v{r+1}, s0
        global_store_dword v{r}, v{r+1}, s[4:5] offset:4""")
        if k==3: a(f"v_mov_b32 v{r+2}, s22\nv_mov_b32 v{r+3}, s43\nglobal_store_dwordx2 v{r}, v[{r+2}:{r+3}], s[4:5] offset:-8")
        a(f"""s_mov_b64 exec, -1
        {sk}:""")
        return
    if not cfg.get("ts"): return
    if cfg.get("light") and not (k in (8,9) or (r==12 and k in (2,3))): return
    sk=a.lab("ts")
    a(f"""s_cmp_lg_u32 {sW}, 0
    s_cbranch_scc1 {sk}
    s_memrealtime s[98:99]
    s_lshl_b32 s100, {sLay}, 4
    s_add_u32 s100, s100, {k}
    s_lshl_b32 s100, s100, 8
    s_add_u32 s100, s100, s101
    s_lshl_b32 s100, s100, 2
    s_add_u32 s100, s100, {OFF_TS}
    s_waitcnt lgkmcnt(0)
    v_mov_b32 v{r}, s100
    v_mov_b32 v{r+1}, s98
    s_mov_b64 exec, 1
    global_store_dword v{r}, v{r+1}, s[6:7]
    s_memtime s[98:99]
    v_add_u32 v{r}, 0x8000, v{r}
    s_waitcnt lgkmcnt(0)
    v_mov_b32 v{r+1}, s98
    global_store_dword v{r}, v{r+1}, s[6:7]
    s_mov_b64 exec, -1
    {sk}:""")
sVer="s19"
def verify(a, cfg, fail, cur, r=12, sampled=False):
    ok=a.lab("ver")
    a(f"s_cmp_lg_u32 {sVer}, 0\ns_cbranch_scc1 {ok}\ns_mov_b32 {sVer}, 1\nv_mbcnt_lo_u32_b32 v{r+6}, -1, 0\nv_mbcnt_hi_u32_b32 v{r+6}, -1, v{r+6}")
    elect(a,fail,"s18",t=[f"v{r+i}" for i in range(6)],lane=f"v{r+6}",sampled=sampled)
    a(f"s_sub_u32 {T0}, 255, {sI}" if cur and cfg.get("rev") else f"s_add_u32 {T0}, {sI}, {cur}")
    a(f"s_cmp_eq_u32 {T0}, s18\ns_cbranch_scc1 {ok}\ns_mov_b32 {sI}, s18\ns_mov_b32 s10, {WS_BYTES}\ns_waitcnt vmcnt(0) lgkmcnt(0)\ns_branch k_role\n{ok}:")
def div7(a, dq, dr, x): a(f"s_mul_i32 {dq}, {x}, 9363\ns_lshr_b32 {dq}, {dq}, 16\ns_mul_i32 {T0}, {dq}, 7\ns_sub_u32 {dr}, {x}, {T0}")
def worker(a, cfg):
    F="w_fail"; sTm,sR="s39","s37"
    EF=dict(o=2,x1=30,bq=14,bo=1,x2=17,kv=11); EF.update(cfg.get("ef",{}))
    on=lambda k: EF[k] is not None
    def layer_base(): a(f"s_mul_i32 {T0}, {sLay}, {LAYER_STRIDE}\ns_add_u32 s8, s6, {T0}\ns_addc_u32 s9, s7, 0\ns_mov_b32 s10, {LAYER_SPAN}")
    def next_layer(lbl):
        stamp(a,cfg,8); srd(a,sX,6,XB_,OFF_X2)
        a(f"s_add_u32 {sLay}, {sLay}, 1\ns_cmp_lt_u32 {sLay}, 2\ns_cbranch_scc1 {lbl}\ns_branch {F}")
    a("worker:")
    a(f"s_sub_u32 {sI}, 255, {sI}" if cfg.get("rev") else f"s_sub_u32 {sI}, {sI}, 32")
    a(f"s_mov_b32 {sCnt}, 0\ns_add_u32 s101, {sI}, 32")
    srd(a,sX,P_X,XB_); srd(a,sD,6,WS_BYTES)
    a(f"s_cmp_ge_u32 {sI}, 128\ns_cbranch_scc1 w_pipe")
    a(f"s_lshr_b32 {a1.sHd}, {sI}, 2\ns_and_b32 {sJ}, {sI}, 3")
    a1.load_qkv(a,"kv")
    a("g_layer:"); layer_base()
    a(f"s_mov_b32 {a1.sSeg}, {sJ}\ns_barrier")
    a1.consts(a)
    if not cfg.get("lateq",1): a1.load_qkv(a,"q")
    stamp(a,cfg,1); verify(a,cfg,F,32); stamp(a,cfg,0)
    def wait_x(sg):
        sk=a.lab("nx")
        a(f"s_cmp_eq_u32 {sLay}, 0\ns_cbranch_scc1 {sk}\ns_lshl_b32 {T3}, {sg}, 12\ns_add_u32 {T3}, {T3}, {F_X2}")
        wait_flags(a,T3,3,7,1,F,every_wave=True); a(f"{sk}:")
    wait_x(a1.sSeg); a("s_mov_b32 s30, 0x40000000\nw_a1r:"); cs(a,"a1",8); a1.fetch(a,a1.sSeg); guard(a,F)
    a("s_waitcnt vmcnt(0)\nw_a1:")
    def nxt(later):
        sk=a.lab("nx")
        a(f"s_add_u32 {T2}, {a1.sSeg}, 4\ns_min_u32 {T2}, {T2}, 63\ns_cmp_ge_u32 {a1.sSeg}, 32\ns_cbranch_scc1 {sk}")
        a(f"s_cmp_lt_u32 {a1.sSeg}, 28\ns_cbranch_scc1 {sk}o\ns_cmp_eq_u32 {sLay}, 0\ns_cbranch_scc1 {sk}\ns_mov_b32 {T3}, {F_X2}")
        for c in range(3):
            wait_flags(a,T3,64,12,1,F,every_wave=True); a(f"s_add_u32 {T3}, {T3}, 128")
        a(f"s_branch {sk}\n{sk}o:")
        if cfg.get("lateq",1): a(f"s_cmp_lt_u32 {a1.sSeg}, 4\ns_cselect_b32 {T2}, 4096, {T2}\ns_cbranch_scc1 {sk}")
        wait_x(T2); a(f"{sk}:"); a1.fetch(a,T2,later)
    def late_q():
        a(f"s_cmp_ge_u32 {a1.sSeg}, 4\ns_cbranch_scc1 a1_hasq"); a1.load_qkv(a,"q",{0:lambda: (a("s_waitcnt vmcnt(12)\ns_barrier"),sig(2))})
        a(f"s_add_u32 {T2}, {a1.sSeg}, 4"); wait_x(T2); a1.fetch(a,T2); a("a1_hasq:")
    def sig(i):
        if i==1: signal(a,"s30",2,synced=True)
        else:
            a(f"s_lshl_b32 s30, {a1.sHd}, 6\ns_add_u32 s30, s30, {a1.sSeg}\ns_lshl_b32 s30, s30, 4\ns_add_u32 s30, s30, {F_KV}"); signal(a,"s30",1,synced=i==2,t=("v16","v17") if i==2 else ("v10","v11"))
    a1.segment(a,0,nxt,sig,"w_a1r" if on("x2") else None,EF["kv"],late_q if cfg.get("lateq",1) else None); cs(a,"a1",7)
    if cfg.get("prof")=="rt": a(f"s_cmp_ge_u32 {a1.sSeg}, 4\ns_cbranch_scc1 a1_nd"); cs_dump(a,"a1"); a("a1_nd:")
    a(f"s_add_u32 {a1.sSeg}, {a1.sSeg}, 4\ns_cmp_lt_u32 {a1.sSeg}, 64\ns_cbranch_scc1 w_a1")
    signal(a,"s30",2)
    if cfg.get("prof")=="a1": cs_dump(a,"a1")
    stamp(a,cfg,2)
    def bw_task(idx):
        a(f"s_mul_i32 {bwo.sSeg}, {idx}, 43691\ns_lshr_b32 {bwo.sSeg}, {bwo.sSeg}, 17\ns_mul_i32 {T0}, {bwo.sSeg}, 3\ns_sub_u32 {bwo.sCg}, {idx}, {T0}")
        a(f"s_sub_u32 {T0}, 63, {bwo.sSeg}\ns_cmp_eq_u32 {sLay}, 0\ns_cselect_b32 {bwo.sSeg}, {bwo.sSeg}, {T0}")
    def g_idx(skip): a(f"s_cmp_eq_u32 {sLay}, 0\ns_cbranch_scc1 {skip}\ns_cmp_ge_u32 {sJ}, 2\ns_cbranch_scc1 {skip}\ns_lshr_b32 {T1}, {sI}, 1\ns_add_u32 {T1}, {T1}, {sJ}\ns_add_u32 {T1}, {T1}, 128")
    g_idx("g_att"); bw_task(T1); bwo.load_w(a)
    a(f"g_att:\ns_lshr_b32 {batt.sHd}, {sI}, 2\ns_mov_b32 {batt.sJ}, {sJ}")
    battp.consts(a)
    if on("bo"): battp.poison(a)
    def stored(lo,hi,wait):
        sk=a.lab("st")
        a(f"""s_cmp_eq_u32 {lo}, {hi}
        s_cbranch_scc1 {sk}
        s_lshl_b32 {T3}, {sW}, 2
        s_add_u32 {T3}, {T3}, {sJ}
        s_lshl_b32 {T3}, {T3}, 5
        s_add_u32 {T3}, {T3}, {batt.sHd}
        s_lshl_b32 {T3}, {T3}, 7
        s_add_u32 {T3}, {T3}, {F_BO}
        v_lshlrev_b32 v10, 16, v0
        v_mov_b32 v11, 1
        s_bfm_b64 exec, {hi}, 0
        {"s_waitcnt vmcnt(0)" if wait else ""}
        buffer_store_dword v11, v10, {sWS}, {T3} offen sc1
        s_mov_b64 exec, -1
        {sk}:""")
    battp.run(a,F,cfg.get("lrange",120<<23),stored,cfg.get("sl_batt",2),on("bo"),on("bq"),sLay if cfg.get("defer2",1) else None)
    cs_dump(a,"bp"); stamp(a,cfg,5)
    g_idx("g_next"); bw_task(T1); a("s_branch w_bw0\ng_next:")
    next_layer("g_layer")
    a("w_pipe:")
    for _ in range(cfg.get("pdelay",0)): a("s_sleep 36")
    a(f"""s_sub_u32 {T0}, {sI}, 128
    s_lshr_b32 {T2}, {T0}, 5
    s_and_b32 {T1}, {T0}, 31
    s_mul_i32 {sTm}, {T1}, 58255
    s_lshr_b32 {sTm}, {sTm}, 19
    s_mul_i32 {T0}, {sTm}, 9
    s_sub_u32 {sR}, {T1}, {T0}
    s_cmp_eq_u32 {T2}, 2
    s_cselect_b32 {T0}, 27, 18
    s_cmp_lt_u32 {T1}, {T0}
    s_cbranch_scc1 p_layer""")
    a(f"s_mul_i32 {a1.sHd}, {T2}, 14\ns_add_u32 {a1.sHd}, {a1.sHd}, {T1}\ns_sub_u32 {a1.sHd}, {a1.sHd}, {T0}\ns_min_u32 {a1.sHd}, {a1.sHd}, 31")
    a1.consts(a); a1.load_qkv(a,"kv")
    stamp(a,cfg,1); verify(a,cfg,F,32)
    a(f"s_cmp_lg_u32 {sI}, 223\ns_cbranch_scc1 a2_go\ns_mov_b32 {sLay}, 1"); layer_base(); a(f"s_mov_b32 {T1}, 63\ns_branch w_bwo\na2_go:")
    a2p.consts(a)
    a("a2_layer:"); layer_base()
    def qready(pair):
        a(f"""s_lshr_b32 {T3}, {sW}, 1
        s_add_u32 {T3}, {T3}, {pair}
        s_lshl_b32 {T3}, {T3}, 4
        s_add_u32 {T3}, {T3}, s27""")
        wait_flags(a,T3,1,2,2,F,every_wave=True,sleep=4)
    def ready(pair):
        rdy=a.lab("a2r")
        a(f"""v_cmp_lt_u32 vcc, 1, v7
        s_lshr_b32 {T3}, {sW}, 1
        s_add_u32 {T3}, {T3}, {pair}
        s_cmp_ge_u32 {T3}, 64
        s_cbranch_scc1 {rdy}
        s_bitcmp1_b64 vcc, {T3}
        s_cbranch_scc1 {rdy}""")
        qready(pair); a(f"{rdy}:")
    def flag_prev(back=2):
        a(f"""s_sub_u32 s50, {a1.sSeg}, {back}
        v_add_u32 v10, s50, v0
        v_cmp_gt_u32 vcc, 64, v10
        v_lshlrev_b32 v10, 12, v10
        v_mov_b32 v11, 1
        s_lshl_b32 s50, {a1.sHd}, 7
        s_add_u32 s50, s50, {F_O}
        s_cmp_eq_u32 {sW}, 0
        s_cselect_b32 s50, s50, {a2p.OOB}
        v_cndmask_b32 v10, v8, v10, vcc
        s_mov_b64 exec, 3
        buffer_store_dword v11, v10, {sWS}, s50 offen sc1
        s_mov_b64 exec, -1""")
    a(f"s_mov_b32 {a1.sSeg}, {-1 if cfg.get('odd',0) else 0}\ns_lshl_b32 s27, {a1.sHd}, 10\ns_add_u32 s27, s27, {F_KV}\nv_mov_b32 v8, 0x20000000\nv_mov_b32 v7, 0")
    ready(a1.sSeg)
    O1=cfg.get("ofirst",58)
    if on("o"):
        for p_ in range(O1,64,2): a2p.poison(a,p_)
    def o_early():
        sk=a.lab("oe"); a(f"s_cmp_lt_u32 {a1.sSeg}, {O1}\ns_cbranch_scc1 {sk}"); flag_prev(0); a(f"{sk}:")
    a2p.addrs(a,a1.sSeg)
    for x in a2p.kv_loads(0)+a2p.q_loads(): a(x)
    a("s_waitcnt vmcnt(0)\nw_a2:")
    for vb in range(2):
        a2p.body(a,vb,F,lambda: a(f"buffer_load_dword v7, {a1.vL16}, {sWS}, s27 offen sc1"),flag_prev,ready,cfg.get("vp_sl",1),cfg.get("ahead",0),(EF["o"],o_early) if on("o") else None)
        a(f"s_add_u32 {a1.sSeg}, {a1.sSeg}, 2")
        if vb==(0 if cfg.get('odd',0) else 1): a(f"s_cmp_ge_u32 {a1.sSeg}, 64\ns_cbranch_scc1 w_a2e")
    a("s_branch w_a2\nw_a2e:\ns_waitcnt vmcnt(0)\ns_barrier"); flag_prev()
    cs(a,'a2_0',8); cs_dump(a,'a2_0'); cs_dump(a,'a2_1')
    stamp(a,cfg,3)
    a(f"s_add_u32 {T1}, {a1.sHd}, 64\ns_cmp_lg_u32 {sLay}, 0\ns_cbranch_scc1 w_bwo")
    next_layer("a2_layer")
    a("c_join:")
    if cfg.get("wb"): a("buffer_wbl2 sc1")
    a(f"v_mbcnt_lo_u32_b32 v0, -1, 0\nv_mbcnt_hi_u32_b32 v0, -1, v0\ns_mov_b32 {sCnt}, 0"); layer_base()
    a(f"s_add_u32 {T1}, {sI}, 96\ns_add_u32 {sI}, {sI}, 224\ns_branch w_bwo")
    a(f"p_layer:\ns_cmp_eq_u32 {T2}, 2\ns_cbranch_scc1 w_bqr")
    a(f"s_lshl_b32 s33, {T2}, 1\ns_add_u32 s33, s33, {sTm}\ns_mov_b32 {awo.sCg}, {sR}")
    awo.consts(a); awo.load_w(a)
    stamp(a,cfg,1); verify(a,cfg,F,32)
    a(f"v_and_b32 v7, 7, v0\ns_lshl_b32 {T0}, {sW}, 3\nv_add_u32 v7, {T0}, v7\nv_lshlrev_b32 v7, 7, v7")
    a("aw_layer:"); layer_base(); a(f"s_mov_b32 {awo.sTask}, s33")
    def oflag(dst,task): a(f"s_lshr_b32 {dst}, {task}, 1\ns_lshl_b32 {dst}, {dst}, 12\ns_add_u32 {dst}, {dst}, {F_O}")
    def xsig():
        a(f"s_barrier\ns_cmp_lg_u32 {sW}, 0\ns_cselect_b32 s31, 0x40000000, s31"); put_flag(a,"s31",1)
    if on("x1"): a("s_add_u32 s32, s33, 124"); awo.poison(a,0,"s32"); a("s_add_u32 s32, s33, 120"); awo.poison(a,0,"s32")
    a("w_awo_wait:"); oflag(T3,awo.sTask)
    a(f"s_lshl_b32 {T0}, {sW}, 10\ns_add_u32 {T3}, {T3}, {T0}")
    wait_flags(a,T3,8,7,1,F,every_wave=True,sleep=cfg.get("sl_w",1))
    guard(a,F); cs(a,"awo",0); awo.issue(a)
    a(f"s_mov_b32 s31, 0x40000000"); put_flag(a,"s31",1)
    a(f"w_awo:\ns_add_u32 s32, {awo.sTask}, 4"); oflag("s30","s32")
    a(f"""s_lshr_b32 s31, {awo.sTask}, 1
    s_lshl_b32 s31, s31, 5
    s_and_b32 {T0}, {awo.sTask}, 1
    s_mul_i32 {T0}, {T0}, 9
    s_add_u32 s31, s31, {T0}
    s_add_u32 s31, s31, {awo.sCg}
    s_lshl_b32 s31, s31, 7
    s_add_u32 s31, s31, {F_X1}""")
    awo.task(a,0,1,lambda: a(f"buffer_load_dword v8, v7, {sWS}, s30 offen sc1"),
             (EF["x1"],lambda: flag_if(a,f"s_cmp_ge_u32 {awo.sTask}, 120","s31")) if on("x1") else None,"w_awo_wait" if on("o") else None)
    a(f"""
    s_mov_b32 {awo.sTask}, s32
    v_cmp_eq_u32 vcc, 0, v8
    s_cmp_ge_u32 s32, 128
    s_cbranch_scc1 w_awo_sync
    s_cbranch_vccnz w_awo_sync""")
    cs(a,"awp",0); awo.issue(a); cs(a,"awp",1); a(f"s_waitcnt vmcnt({awo.NI})"); cs(a,"awp",2); xsig(); cs(a,"awp",3); a("s_branch w_awo")
    a("w_awo_sync:")
    if on("x1"): a("s_cmp_lt_u32 s32, 124\ns_cbranch_scc1 w_awo_s1\ns_barrier\ns_branch w_awo_s2\nw_awo_s1:")
    a("s_waitcnt vmcnt(0)"); cs(a,"awo",6); xsig(); a("w_awo_s2:"); cs(a,"awo",7)
    a(f"s_cmp_lt_u32 {awo.sTask}, 128\ns_cbranch_scc1 w_awo_wait")
    cs_dump(a,"awo"); cs_dump(a,"awp"); stamp(a,cfg,3)
    a(f"s_mul_i32 {T1}, s33, 9\ns_add_u32 {T1}, {T1}, {sR}\ns_add_u32 {T1}, {T1}, 27\ns_cmp_lg_u32 {sLay}, 0\ns_cbranch_scc1 w_bwo")
    next_layer("aw_layer")
    def bq_ids():
        a(f"s_mul_i32 {T1}, {sTm}, 9\ns_add_u32 {T1}, {T1}, {sR}"); bw_task(T1)
    a("w_bqr:")
    if cfg.get("warmq"):
        srd(a,sA,P_WQ,4718592)
        a(f"s_lshl_b32 {T0}, {T1}, 2\ns_add_u32 {T0}, {T0}, {sW}\ns_lshl_b32 {T0}, {T0}, 13\nv_lshlrev_b32 v3, 7, v0")
        for i in range(6): a(f"buffer_load_dword v4, v3, {sA}, {T0} offen sc1\ns_add_u32 {T0}, {T0}, {108*8192}")
        a("s_waitcnt vmcnt(0)")
    bq_ids(); bwo.load_w(a)
    a(f"s_mov_b32 {bqkv.sU}, {sR}"); bqkv.load_w(a)
    stamp(a,cfg,1); verify(a,cfg,F,32)
    a("bq_layer:"); layer_base()
    a(f"s_mov_b32 {a1.sSeg}, {sTm}\ns_mov_b32 {bqkv.sU}, {sR}\ns_lshl_b32 s30, {bqkv.sU}, 8\ns_add_u32 s30, s30, {F_BQ}")
    srd(a,sX,8,XB_,OFF_X1)
    a1.consts(a); bqkv.load_w(a,False)
    if on("bq"):
        a(f"s_add_u32 {T0}, {sTm}, 60\ns_cmp_eq_u32 {sTm}, 0\ns_cselect_b32 {a1.sSeg}, 63, {T0}"); bqkv.stores(a,0,False)
        a(f"s_add_u32 {a1.sSeg}, {sTm}, 60"); bqkv.stores(a,0,False); a(f"s_mov_b32 {a1.sSeg}, {sTm}")
    a(f"w_bq:\ns_lshl_b32 {T3}, {a1.sSeg}, 12\ns_add_u32 {T3}, {T3}, {F_X1}")
    wait_flags(a,T3,18,7,1,F,sleep=cfg.get("sl_w",1))
    a("w_bqf:"); cs(a,"bq",0); a1.fetch(a,a1.sSeg); guard(a,F); cs(a,"bq",1)
    a(f"s_lshl_b32 {T3}, {a1.sSeg}, 2\ns_add_u32 {T3}, {T3}, s30")
    bqkv.segment(a,0,lambda:None,"w_bqf" if on("x1") else None,{EF["bq"]:lambda: flag_if(a,f"s_cmp_ge_u32 {a1.sSeg}, 60",T3)}); cs(a,"bq",5)
    if on("bq"): a(f"s_cmp_ge_u32 {a1.sSeg}, 60\ns_cbranch_scc1 w_bqs")
    signal(a,T3,1); a("w_bqs:"); cs(a,"bq",6)
    a(f"s_add_u32 {a1.sSeg}, {a1.sSeg}, 3\ns_cmp_lt_u32 {a1.sSeg}, 64\ns_cbranch_scc1 w_bq")
    cs_dump(a,"bq"); stamp(a,cfg,3)
    bq_ids(); a("s_branch w_bw0")
    a("w_bwo:"); bw_task(T1); a("s_barrier"); bwo.load_w(a)
    a("w_bw0:")
    srd(a,sX,8,XB_,OFF_X1)
    bwo.consts(a)
    srd(a,sB,6,XB_,OFF_X2)
    a(f"s_cmp_eq_u32 {sLay}, 0\ns_cbranch_scc1 w_bw1"); srd(a,sB,P_OUT,XB_)
    a(f"w_bw1:\ns_mov_b32 s10, {LAYER_STRIDE+LAYER_SPAN}")
    stamp(a,cfg,6)
    a(f"s_lshl_b32 {T3}, {bwo.sSeg}, 12\ns_add_u32 {T3}, {T3}, {F_X1}")
    a(f"s_lshl_b32 {T3}, {bwo.sSeg}, 2\ns_add_u32 {T3}, {T3}, {F_BQ}")
    wait_flags(a,T3,1,2,1,F,sleep=8)
    a("w_bw2:"); bwo.resid_loads(a)
    a(f"s_lshl_b32 s29, {sLay}, 6\ns_add_u32 s29, s29, {bwo.sSeg}")
    if on("x2"):
        a(f"s_cmp_ge_u32 s29, 9\ns_cbranch_scc1 w_bwp"); bwo.poison(a,sB,0); a("s_waitcnt vmcnt(0)\nw_bwp:")
    a(f"w_bwr:\ns_lshl_b32 {T3}, {bwo.sSeg}, 12\ns_add_u32 {T3}, {T3}, {F_BO}")
    cs(a,"bw",0); wait_flags(a,T3,32,7,1,F); guard(a,F); cs(a,"bw",1)
    a(f"s_lshl_b32 {T3}, {bwo.sSeg}, 5\ns_add_u32 {T3}, {T3}, {bwo.sCg}\ns_lshl_b32 {T3}, {T3}, 7\ns_add_u32 {T3}, {T3}, {LAYER_STRIDE+F_X2}")
    bwo.task(a,0,sB,0,"sc1","w_bwr" if on("bo") else None,{EF["x2"]:lambda: flag_if(a,"s_cmp_lt_u32 s29, 9",T3,("v9","v11"))}); cs(a,"bw",5)
    a(f"s_cmp_eq_u32 {sLay}, 0\ns_cbranch_scc0 w_bw5")
    signal(a,T3,1)
    a(f"s_cmp_ge_u32 {bwo.sSeg}, 9\ns_cbranch_scc1 w_bw4"); stamp(a,cfg,7); cs_dump(a,"bw",True)
    a(f"w_bw4:\ns_add_u32 {bwo.sSeg}, {bwo.sSeg}, 9\ns_cmp_lt_u32 {bwo.sSeg}, 64\ns_cbranch_scc1 w_bw2\nw_bw5:")
    if cfg.get("prof")=="rt": a(f"s_cmp_eq_u32 {sLay}, 0\ns_cbranch_scc1 w_bw6")
    cs_dump(a,"bw"); a("w_bw6:")
    next_layer("bq_layer")
    a(f"{F}:\ns_waitcnt vmcnt(0) lgkmcnt(0)\ns_endpgm")

def chain(a, cfg):
    cc=dict(CH_CFG); cc["prepoison"]=1; cc.update(cfg.get("chain",{}))
    sLo_,sFk="s52","s53"; RDY="s[50:51]"
    srd(a,sX,P_MEM,9216); srd(a,sA,P_WQ,4718592); srd(a,sB,P_WK,4718592); srd(a,sC_,P_WV,4718592); srd(a,sD,P_WO,4718592)
    a(f"s_mov_b32 {sLo_}, 0\ns_mov_b32 {C.sCnt}, 0")
    for w in (1,2,3): a(f"s_cmp_eq_u32 {sW}, {w}\ns_cbranch_scc1 c_w{w}")
    for w in range(4):
        pre=f"ch{w}"; F=f"{pre}_fail"
        a(f"c_w{w}:")
        C.prologue_consts(a,w)
        vb=cfg.get("vblock",14)
        def ask():
            a("v_lshlrev_b32 v40, 2, v10\nglobal_load_dword v41, v40, s[4:5] sc1"); C.fetch_mem0(a,w,sX,"v10")
        def check():
            verify(a,cfg,F,0,40,True); stamp(a,cfg,0,48)
            C.init_comm(a,w,False); C.store_mem0(a,w,[C.held(0),"v10"])
        li=cfg.get("lateinit",0)
        def late_init():
            sk=a.lab("li"); a(f"s_cmp_lg_u32 {sVer}, 0\ns_cbranch_scc1 {sk}\nv_add_u32 v54, {1024*w}, {C.vL16}"); init_ws(a,52); a(f"{sk}:")
        C.load_weights(a,w,{"q":sA,"k":sB,"v":sC_,"o":sD},{li or -1:late_init,3+li:lambda: announce(a,("v40","v41"),"s_nop 0"),vb-4:ask,vb:check},cfg.get('worder'))
        stamp(a,cfg,1,12)
        a(f"v_mov_b32 v11, v10\n{pre}_layer:")
        C.set_layer(a,w,sLo_)
        fload=f"buffer_load_dword v11, {C.vL16}, {sWS}, {sFk} offen sc1"
        def kvwait(lbl, back, bit, sleep):
            a(f"{lbl}:"); a(fload); C.spin_guard(a,F)
            if sleep: a(f"s_sleep {sleep}")
            a(f"s_waitcnt vmcnt(0)\nv_cmp_ne_u32 {RDY}, 0, v11\ns_nop 0\ns_bitcmp1_b64 {RDY}, {bit}\ns_cbranch_scc0 {lbl}")
            if back: a(f"s_branch {back}")
        if w==3:
            a(f"s_lshl_b32 {sFk}, {C.sH}, 10\ns_add_u32 {sFk}, {sFk}, {sLo_}\ns_add_u32 {sFk}, {sFk}, {F_KV}")
            kvwait(f"{pre}_kv0",None,cfg.get("kv0",0),1)
        a("s_waitcnt vmcnt(0)\ns_barrier")
        stamp(a,cfg,2,12)
        def qk(w):
            if w==3: return [(2,(None,f"s_add_u32 {C.sT1}, {C.sSeg}, 1")),(2,(None,f"v_cmp_ne_u32 {RDY}, 0, v11")),(8,(None,f"s_bitcmp1_b64 {RDY}, {C.sT1}")),(20,(None,f"s_cbranch_scc0 {pre}_kvw\n{pre}_kvok:"))]
            return []
        hooks=dict(mid=lambda w:[], end=lambda a,w: a(f"s_cmp_eq_u32 {C.sSeg}, 63\ns_cbranch_scc1 {pre}_done"), qk=qk, pre_k=lambda w:[], sal=lambda w:(["s_memrealtime s[98:99]\ns_waitcnt lgkmcnt(0)\ns_mov_b32 m0, "+C.sSeg+"\nv_writelane_b32 "+C.vAux+", s98, m0"] if (w==0 and cfg.get("ts") and not cfg.get("light")) else []), prefix=pre, after_touch=[fload])
        C.step_loop(a,w,cc,hooks)
        if w==3: kvwait(f"{pre}_kvw",f"{pre}_kvok",C.sT1,0)
        a(f"{pre}_done:")
        for i in range(len(C.GROUPS[w])): a(C.publish(i))
        a("s_waitcnt vmcnt(0) lgkmcnt(0)")
        if w==0 and cfg.get("ts"):
            a(f"s_lshl_b32 {T0}, {sLay}, 5\ns_add_u32 {T0}, {T0}, {C.sH}\ns_lshl_b32 {T0}, {T0}, 8\ns_add_u32 {T0}, {T0}, {OFF_TS+0x10000}\nv_lshrrev_b32 v12, 2, {C.vL16}\nbuffer_store_dword {C.vAux}, v12, {sWS}, {T0} offen")
        stamp(a,cfg,3,12)
        if cfg.get("stop_after_a1"): a(f"s_branch {F}")
        a(f"s_cmp_lg_u32 {sLo_}, 0\ns_cbranch_scc1 c_join\ns_mov_b32 {sLo_}, {LAYER_STRIDE}\ns_mov_b32 {sLay}, 1")
        for i,g in enumerate(C.GROUPS[w]):
            a(f"s_add_u32 {C.sT1}, {C.mso(i)}, 0x8000\nbuffer_load_dword v21, {C.vMst}, {sWS}, {C.sT1} offen sc1")
        for x in C.next_slots(w): a(x)
        a(f"v_lshrrev_b32 v18, 4, {C.vL16}"); C.fetch_mem0(a,w,sX,"v18"); a("s_waitcnt vmcnt(0)"); C.store_mem0(a,w,[C.held(0),C.held(1)])
        a(f"s_branch {pre}_layer\n{F}:\ns_waitcnt vmcnt(0) lgkmcnt(0)\ns_endpgm")

def init_ws(a, R):
    a(f"""s_lshr_b32 {T0}, s2, 7
    s_mul_i32 {T0}, {T0}, {LAYER_STRIDE}
    s_and_b32 {T1}, s2, 127
    s_lshl_b32 {T2}, {T1}, 11
    s_add_u32 {T2}, {T2}, {T0}
    s_add_u32 {T2}, {T2}, {OFF_F}
    s_lshl_b32 {T1}, {T1}, 13
    s_add_u32 {T1}, {T1}, {T0}
    s_add_u32 {T1}, {T1}, {OFF_MH}
    s_add_u32 {T0}, {T1}, 4096
    v_lshrrev_b32 v{R+3}, 1, v{R+2}
    v_mov_b32 v{R+4}, -1
    v_mov_b32 v{R+5}, -1
    v_mov_b32 v{R+6}, -1
    v_mov_b32 v{R+7}, -1
    v_mov_b32 v{R+8}, 0
    v_mov_b32 v{R+9}, 0
    buffer_store_dwordx2 v[{R+8}:{R+9}], v{R+3}, {sWS}, {T2} offen sc1
    buffer_store_dwordx4 v[{R+4}:{R+7}], v{R+2}, {sWS}, {T1} offen sc1
    buffer_store_dwordx4 v[{R+4}:{R+7}], v{R+2}, {sWS}, {T0} offen sc1
    s_add_u32 {T1}, {T1}, {OFF_FL-OFF_MH}
    v_lshlrev_b32 v{R+3}, 1, v{R+2}
    s_mov_b32 exec_lo, 0x11111111
    s_mov_b32 exec_hi, 0x11111111
    buffer_store_dword v{R+8}, v{R+3}, {sWS}, {T1} offen sc1
    s_mov_b64 exec, -1
    s_lshl_b32 {T1}, s2, 11
    s_add_u32 {T1}, {T1}, {OFF_P}
    v_lshrrev_b32 v{R+3}, 1, v{R+2}
    buffer_store_dwordx2 v[{R+4}:{R+5}], v{R+3}, {sWS}, {T1} offen sc1
    s_lshl_b32 {T1}, s2, 13
    s_add_u32 {T1}, {T1}, {OFF_M}
    s_add_u32 {T0}, {T1}, 4096
    buffer_store_dwordx4 v[{R+4}:{R+7}], v{R+2}, {sWS}, {T1} offen sc1
    buffer_store_dwordx4 v[{R+4}:{R+7}], v{R+2}, {sWS}, {T0} offen sc1""")
def gen(cfg={}):
    cfg=dict(dict(rev=1,xmap='32570146',icode=1,worder='kqv',warmq=1,vblock=11),**cfg)
    xm=cfg['xmap']; assert sorted(xm)==list('01234567'); tab=sum(xm.index(str(x))<<(4*x) for x in range(8))
    a=Asm(); wk.PROF['on']=cfg.get('prof')
    a(f"{NAME}:\ns_cmp_lt_u32 s2, 256\ns_cbranch_scc1 k_go\nk_end:\ns_endpgm\nk_go:\ns_getreg_b32 {sXc}, hwreg(HW_REG_XCC_ID, 0, 3)\ns_lshl_b32 {sXc}, {sXc}, 2\ns_lshr_b32 {sXc}, {hex(tab)}, {sXc}\ns_and_b32 {sXc}, {sXc}, 7\ns_add_u32 {sXc}, {sXc}, 1\nv_lshlrev_b32 v2, 4, v0")
    if cfg.get("icode",0):
        a(f"""s_getpc_b64 s[16:17]
        k_pc:
        s_lshr_b32 s18, s2, 3
        s_lshl_b32 s18, s18, 5
        v_add_u32 v4, s18, v0
        v_lshlrev_b32 v4, 7, v4
        v_cmp_gt_u32 vcc, 32, v0
        v_min_u32 v4, k_last-k_pc, v4
        v_mov_b32 v7, s17
        s_and_saveexec_b64 s[18:19], vcc
        s_cbranch_execz k_pc2
        v_add_co_u32 v6, vcc, s16, v4
        v_addc_co_u32 v7, vcc, 0, v7, vcc
        global_load_dword v20, v[6:7], off sc1
        k_pc2:
        s_mov_b64 exec, s[18:19]""")
    entry(a)
    a(f"s_mov_b32 {sLay}, 0\ns_mov_b32 s101, s2")
    stamp(a,cfg,9)
    if cfg.get("noinit"): a(f"s_cmp_eq_u32 {sXc}, 1\ns_cselect_b32 s10, 0, s10")
    if not cfg.get('lateinit'): init_ws(a,0)
    a(f"""s_sub_u32 {T0}, {sXc}, 1
    s_and_b32 {T0}, {T0}, 7
    s_lshl_b32 {T0}, {T0}, 5
    s_lshr_b32 {sI}, s2, 3
    s_add_u32 {sI}, {sI}, {T0}
    s_mov_b32 {sVer}, 0
    {"s_waitcnt vmcnt(7)" if cfg.get("icode") else ""}
    s_mov_b32 s10, {WS_BYTES}
    s_cmp_lt_u32 {sI}, 32
    s_cbranch_scc1 k_role""")
    if cfg.get('lateinit'): init_ws(a,0)
    if cfg.get("warm",0):
        a(f"s_sub_u32 {T0}, {sI}, 32\ns_mul_i32 {T0}, {T0}, {165*128}\nv_lshlrev_b32 v3, 3, v2\nv_mov_b32 v5, 0x40000000\nv_cmp_gt_u32 vcc, {165*128}, v3\nv_cndmask_b32 v3, v5, v3, vcc")
        for c_ in cfg["warm"]:
            if c_=="|": a("s_waitcnt vmcnt(0)"); continue
            srd(a,sA,dict(q=P_WQ,k=P_WK,v=P_WV,o=P_WO)[c_],4718592); a(f"buffer_load_dword v4, v3, {sA}, {T0} offen sc1")
    announce(a)
    a(f"""k_role:
    s_mov_b32 s101, {sI}
    v_mbcnt_lo_u32_b32 v0, -1, 0
    v_mbcnt_hi_u32_b32 v0, -1, v0
    s_barrier
    s_cmp_lt_u32 {sI}, 32
    s_cbranch_scc1 chain""")
    worker(a,cfg)
    a("chain:")
    chain(a,cfg)
    a("k_last:\ns_endpgm")
    body=compact(a.finish())
    return f'; @launch grid=(256,1,1) block=(256,1,1) lds=163840\n.amdgcn_target "amdgcn-amd-amdhsa--gfx950"\n.text\n.globl {NAME}\n.p2align 8\n.type {NAME},@function\n'+body+KD.format(name=NAME)
if __name__=="__main__":
    import json
    t=gen(json.loads(sys.argv[2]) if len(sys.argv)>2 else {})
    ref=open("interleave_layers__memory_aug_recurrent_mem_tr__mha_block__prompt.s.ref").read()
    hdr="".join(l+"\n" for l in ref.split("\n")[:14])
    out=sys.argv[1] if len(sys.argv)>1 else "mega.s"
    open(out,"w").write(hdr+t)
    import subprocess
    print(len(t), subprocess.run(f"clang -x assembler -target amdgcn-amd-amdhsa -mcpu=gfx950 {out} -o mega.co && python3 cdna_unwritten_srd_check.py mega.co; llvm-readelf -S mega.co | grep text",shell=True,capture_output=True,text=True))
```

```python
from wk import *
sHd,sSeg,sSrc,sKVo,sQo="s25","s26","s27","s28","s29"
FR=Frags(80)
def fi(mu,t,k): return ("kvq".index(mu)*2+t)*18+k
vSrc,vRaw,vRd1,vRd0,vL16,vKst,vN4,vG16,vSw=[f"v{i}" for i in range(1,10)]
sBuf="s31"; WST=81920
SLOT=[40960,106496,122880,139264]
def load_qkv(a, mats, hooks={}):
    srd(a,sA,P_WQ,4718592); srd(a,sB,P_WK,4718592); srd(a,sC_,P_WV,4718592)
    a(f"s_lshl_b32 {T1}, {sW}, 2")
    coop_qkv_addr(a,"v0",T1,"v12","v14","v15","v10","v11")
    a(f"""
    v_lshrrev_b32 v10, 4, v0
    v_lshl_add_u32 v12, v10, 13, v12
    v_xor_b32 v13, 0x80, v12
    s_lshl_b32 {T2}, {sHd}, 8
    s_lshl_b32 {T1}, {sW}, 17
    s_add_u32 {T2}, {T2}, {T1}
    s_lshl_b32 {T3}, {sW}, 12
    """)
    blocks=[]
    for mu in mats:
        for b in range(9):
            blocks.append(([(("v12","v13")[i>>1],{"q":sA,"k":sB,"v":sC_}[mu],T2,(64*b+4*i)*8192) for i in range(4)],
                           [(("v14","v15")[t],)+FR.reg(fi(mu,t,2*b))+(QKV_OFFS,None) for t in range(2)]))
    coop_blocks(a,blocks,lambda i: SLOT[i],("v10","v11"),T3,hooks)
def consts(a):
    lp_consts(a,vSrc,vRaw,vRd0,vRd1,vN4,vG16,vSw,"v10","v11")
    a(f"""
    s_mov_b32 {sBuf}, 0
    v_lshlrev_b32 {vL16}, 4, v0
    v_lshrrev_b32 v10, 2, v0
    v_lshlrev_b32 v10, 5, v10
    v_and_b32 v11, 1, v0
    v_lshl_add_u32 v10, v11, 4, v10
    v_bfe_u32 v11, v0, 1, 1
    v_lshl_add_u32 {vKst}, v11, 11, v10
    """)
ACC=16; XB=64
def gemm(a, mats, bufs, extra=[], at={}):
    acc=lambda mu,t,T: ACC+("kvq".index(mu)*4+t*2+T)*4
    nb=len(bufs)
    rd=lambda k: [lp_frag(vRd0,vRd1,bufs[k%nb]+4*T,k,T) for T in range(2)]
    for k in range(nb-1):
        for x in rd(k): a(x)
    for k in range(18):
        if k in at: at[k]()
        pend=rd(k+nb-1) if k+nb-1<18 else []
        a(f"s_waitcnt lgkmcnt({2*min(nb-2,17-k)})")
        for mu in mats:
            for t in range(2):
                for T in range(2):
                    d=q(acc(mu,t,T)); W=FR.op(fi(mu,t,k)); X=q(bufs[k%nb]+4*T)
                    a(mf(d,X,W,d if k else 0) if mu=="v" else mf(d,W,X,d if k else 0))
                    if pend: a(pend.pop(0))
                    elif extra and t==1 and T==1 and mu==mats[0]: a(extra.pop(0))
    assert not extra
    return acc
def colsum(a, mats):
    lp_colsum(a,[[FR.op(fi(mu,t,k)) for k in range(18)] for mu in mats for t in range(2)],2*"kvq".index(mats[0]),vN4,ACC+8)
def cs_save(a): a(f"s_lshl_b32 {T0}, {sW}, 9\nv_lshl_add_u32 v10, v0, 2, {T0}\nds_read_b32 v76, v10 offset:{L_CS}\nds_read_b32 v77, v10 offset:{L_CS+256}\ns_waitcnt lgkmcnt(0)")
def cs_restore(a): a(f"s_lshl_b32 {T0}, {sW}, 9\nv_lshl_add_u32 v10, v0, 2, {T0}\nds_write_b32 v10, v76 offset:{L_CS}\nds_write_b32 v10, v77 offset:{L_CS+256}\ns_waitcnt lgkmcnt(0)")
def segment(a, lo, nxt, signal, redo=None, sigk=None, before_q=None):
    cs(a,"a1",0)
    lp_stats(a,vRaw,vSw,ACC,redo)
    a(f"""s_mul_i32 {T0}, {sHd}, 65
    s_add_u32 {T0}, {T0}, {sSeg}
    s_lshl_b32 {sKVo}, {T0}, 14
    s_add_u32 {sKVo}, {sKVo}, {OFF_KV}
    s_lshl_b32 {sQo}, {T0}, 13
    s_add_u32 {sQo}, {sQo}, {OFF_QX}
    s_xor_b32 {sBuf}, {sBuf}, {XBUF}
    v_xor_b32 {vRaw}, {XBUF}, {vRaw}
    s_waitcnt lgkmcnt(0)
    s_barrier""")
    for x in lp_ab(vN4): a(x)
    cs(a,"a1",1); later=[]; nxt(later); cs(a,"a1",2)
    acc=gemm(a,"kv",[XB,XB+8,ACC+32],later,at={13:lambda: (a("s_waitcnt vmcnt(9)\ns_barrier"),signal(1))})
    cs(a,"a1",3)
    CK,CV=ACC+40,ACC+32
    for x in lp_addr(vN4,vG16)+[lp_rd_col(0,CK),lp_rd_col(1,CK+4)]+lp_rd_row(vG16,XB)+[f"ds_read2_b32 v[{CV}:{CV+1}], v11 offset0:96 offset1:112"]: a(x)
    a(f"s_add_u32 {T0}, {T0}, {sKVo}\ns_add_u32 {T1}, {T0}, 4096\ns_lshl_b32 {T2}, {sW}, 11\ns_add_u32 {T2}, {T2}, {sKVo}\ns_add_u32 {T2}, {T2}, 8192\ns_waitcnt lgkmcnt(5)")
    def pack(d,x,y):
        a(cv(d,x,x+1)); a(cv(d+1,x+2,x+3)); a(cv(d+2,y,y+1)); a(cv(d+3,y+2,y+3))
    for T in range(2):
        for t in range(2): lp_col(a,acc("k",t,T),T,CK+4*t)
        d=acc("k",0,T); pack(d,d,acc("k",1,T)); a(f"buffer_store_dwordx4 {q(d)}, {vKst}, {sD}, {(T0,T1)[T]} offen sc1")
    a("s_waitcnt lgkmcnt(0)")
    for t in range(2):
        for T in range(2): lp_row(a,acc("v",t,T),XB+8*T,CV,t)
        d=acc("v",t,0); pack(d,d,acc("v",t,1)); a(f"buffer_store_dwordx4 {q(d)}, {vL16}, {sD}, {T2} offen offset:{1024*t} sc1")
    if before_q: before_q()
    cs(a,"a1",4); gemm(a,"q",[XB,XB+8,ACC+8],at={sigk:lambda: signal(0)}); cs(a,"a1",5)
    if sigk is None: signal(0)
    cs(a,"a1",6)
    for x in lp_addr(vN4,vG16)[:2]+[lp_rd_col(4,XB),lp_rd_col(5,XB+4)]: a(x)
    a(f"s_lshl_b32 {T0}, {sW}, 10\ns_add_u32 {T0}, {T0}, {sQo}\ns_add_u32 {T1}, {T0}, 4096\nv_xor_b32 {vRd0}, {XBUF}, {vRd0}\nv_xor_b32 {vRd1}, {XBUF}, {vRd1}\ns_waitcnt lgkmcnt(0)")
    for T in range(2):
        for t in range(2): lp_col(a,acc("q",t,T),T,XB+4*t)
        d=acc("q",0,T); pack(d,d,acc("q",1,T)); a(f"buffer_store_dwordx4 {q(d)}, {vL16}, {sD}, {(T0,T1)[T]} offen sc1")
def fetch(a, sg, later=None):
    a(f"s_mul_i32 {sSrc}, {sg}, {32*1152}")
    ln_fetch(a,vSrc,sX,sSrc,sBuf,later=later)
```

```python
from wk import *
import a1
from a1 import vSrc,vRaw,vRd0,vRd1,vL16,vN4,vG16,vSw,WST,sSeg,sSrc
FR=Frags(80,54)
sU,sQb,sStr="s25","s28","s29"
vQst,vWa,vWb,vVst,vTr="v6","v62","v16","v60","v61"
fi=lambda m,k: m*18+k
def load_w(a, weights=True):
    srd(a,sA,P_BQKV,576*3456)
    tr_addr(a,vTr,"v12","v13",WST)
    lr,le=a.lab("bq_rem"),a.lab("bq_e")
    a(f"""
    s_lshl_b32 {sU}, {sU}, 2
    s_add_u32 {sU}, {sU}, {sW}
    v_lshrrev_b32 v12, 4, v0
    v_mul_u32_u24 v12, 3456, v12
    v_bfe_u32 v13, v0, 3, 1
    v_mul_u32_u24 v13, 1152, v13
    v_add_u32 v12, v12, v13
    v_and_b32 v13, 7, v0
    v_and_b32 v14, 15, v0
    v_lshrrev_b32 v15, 4, v0
    v_lshlrev_b32 v11, 4, v15
    v_lshl_add_u32 {vVst}, v14, 6, v11
    s_cmp_ge_u32 {sU}, 32
    s_cbranch_scc1 {lr}
    v_lshl_add_u32 {vWa}, v13, 2, v12
    s_mul_i32 {T2}, {sU}, 36
    v_lshlrev_b32 v15, 3, v15
    v_lshl_add_u32 {vQst}, v14, 5, v15
    s_lshl_b32 {sQb}, {sU}, 16
    s_add_u32 {sQb}, {sQb}, {OFF_BQ}
    s_mov_b32 {sStr}, 512
    s_branch {le}
    {lr}:
    v_mul_u32_u24 v13, 36, v13
    v_add_u32 {vWa}, v13, v12
    s_sub_u32 {T1}, {sU}, 32
    s_mul_i32 {T2}, {T1}, 288
    s_add_u32 {T2}, {T2}, 32
    v_lshlrev_b32 v15, 14, v15
    v_lshl_add_u32 {vQst}, v14, 3, v15
    s_lshl_b32 {sQb}, {T1}, 16
    s_add_u32 {sQb}, {sQb}, {OFF_BQR}
    s_mov_b32 {sStr}, 128
    {le}:
    v_lshrrev_b32 v12, 2, v0
    v_bfe_u32 v13, v0, 1, 1
    v_lshl_add_u32 v12, v13, 6, v12
    v_mul_u32_u24 v12, 3456, v12
    v_and_b32 v13, 1, v0
    v_lshl_add_u32 {vWb}, v13, 4, v12
    s_lshl_b32 {T1}, {sU}, 5
    """)
    if not weights: return
    blocks=[]
    for b in range(9):
        blocks.append(([(vWa,sA,T2,(64*b+4*i)*3456,4) for i in range(16)],[(t,)+FR.reg(fi(t,2*b)) for t in range(2)]))
    for b in range(0,9,2):
        blocks.append(([(vWb,sA,T1,(64*b+16*i)*3456+2304,16) for i in range(4)],[(hf,)+FR.reg(fi(2,2*(b+hf))) for hf in range(2) if b+hf<9]))
    load_blocks(a,blocks,WST,vTr)
ACC=16; XB=64
assert OFF_BK-OFF_BQ==2*MB and OFF_BKR-OFF_BQR==MB
def segment(a, lo, nxt, redo=None, at={}):
    a("s_waitcnt vmcnt(0)"); cs(a,"bq",2)
    lp_stats(a,vRaw,vSw,ACC,redo)
    a("s_waitcnt lgkmcnt(0)\ns_barrier")
    nxt(); cs(a,"bq",3)
    acc=lambda m,T: ACC+(2*m+T)*4
    rd=lambda k: [lp_frag(vRd0,vRd1,XB+(k&1)*8+4*T,k,T) for T in range(2)]
    CQ,RW,CV,AQ=40,XB,48,52
    for x in lp_addr(vN4,vG16): a(x)
    ep=lp_ab(vN4)+[lp_rd_col(0,CQ),lp_rd_col(1,CQ+4),f"ds_read_b32 v{CV}, v11 offset:{256+128}"]
    for x in rd(0): a(x)
    for k in range(18):
        if k in at: at[k]()
        pend=rd(k+1) if k<17 else []
        if ep: pend.append(ep.pop(0))
        if k==8: pend+=[f"v_mul_f32 v{AQ+i}, {hex(f2u(18**-0.5*math.log2(math.e)))}, v{AB+i}" for i in range(4)]
        a("s_waitcnt lgkmcnt(0)")
        for m in range(3):
            for T in range(2):
                d=q(acc(m,T)); W=FR.op(fi(m,k)); X=q(XB+(k&1)*8+4*T)
                a(mf(d,X,W,d if k else 0) if m==2 else mf(d,W,X,d if k else 0))
                if pend: a(pend.pop(0))
    cs(a,"bq",4)
    for x in lp_rd_row(vG16,RW): a(x)
    for T in range(2): lp_col(a,acc(0,T),T,CQ,AQ); lp_col(a,acc(1,T),T,CQ+4)
    a("s_waitcnt lgkmcnt(0)")
    for T in range(2): lp_row(a,acc(2,T),RW+8*T,CV,0)
    stores(a,lo,True)
def colsum(a): lp_colsum(a,[[FR.op(fi(m,k)) for k in range(18)] for m in range(3)],0,vN4,ACC)
def stores(a, lo, real):
    acc=lambda m,T: ACC+(2*m+T)*4
    if not real:
        for i in range(20): a(f"v_mov_b32 v{ACC+i}, -1")
    a(f"""s_mul_i32 {T0}, {sSeg}, {sStr}
    s_lshl_b32 {T0}, {T0}, 1
    s_add_u32 {T0}, {T0}, {sQb}
    s_add_u32 {T0}, {T0}, {lo}
    s_cmp_ge_u32 {sU}, 32
    s_cselect_b32 {T2}, 1, 2
    s_lshl_b32 {T2}, {T2}, 20""")
    for m in range(2):
        for T in range(2):
            d=acc(m,T)
            if real: a(cv(d,d,d+1)); a(cv(d+1,d+2,d+3))
            if T: a(f"s_add_u32 {T1}, {T0}, {sStr}")
            a(f"buffer_store_dwordx2 v[{d}:{d+1}], {vQst}, {sWS}, {T1 if T else T0} offen sc1")
        if m==0: a(f"s_add_u32 {T0}, {T0}, {T2}")
    d=acc(2,0)
    for i in range(4 if real else 0): a(cv(d+i,d+2*i,d+2*i+1))
    a(f"""s_mul_i32 {T0}, {sSeg}, 36
    s_add_u32 {T0}, {T0}, {sU}
    s_lshl_b32 {T0}, {T0}, 10
    s_add_u32 {T0}, {T0}, {lo+OFF_BV}
    buffer_store_dwordx4 {q(d)}, {vVst}, {sWS}, {T0} offen sc1""")
```

```python
from asmgen import Asm
from layout import *
import math, struct

def f2u(x): return struct.unpack("<I", struct.pack("<f", x))[0]

vL16, vL8, vPsc, vW, vXr, vIdx, vPst, vMst, vAux, vOa = [f"v{i}" for i in range(10)]
vOr = "v10"
MEM0 = 12
POOL = 48
WV0 = 88
def q(base, n=4): return f"v[{base}:{base+n-1}]"
def m(k): return MEM0+4*k
def p(i): return POOL+i
LW = 19*2048
L_SCR = 0
L_W0 = 8192
L_PM = 0
L_PX = 512
L_SEL = 1024
L_O = 2048
L_XS = 4096
BIAS = 0
sWS = "s[8:11]"
sH, sSeg, sPar, sM0, sM1, sM2, sMst, sMpo, sKV, sPub, sPA, sPB, sPC, sPld, sCnt, sT0, sT1, sSlot, sC, sLayer, sFlg, sTch = [f"s{i}" for i in range(24,46)]
sK, sPubX, sLlo, sC2, sHint, sSig = "s56","s57","s58","s[22:23]","s59","s20"
sPld1 = sTch; sPA1, sPB1 = sSlot, sFlg; sMtc = sTch; sMst1 = sMpo
sMh, sMh1 = "s54","s55"
sOne = "s18"; sDis = "s19"; sRdy2 = "s[16:17]"
sHalf1 = "s[46:47]"; sHalf0 = "s[48:49]"; sRdy="s[50:51]"
import os
NREP = int(os.environ.get('NREP',2))
SPIN_MAX = 2000000

KORDER = [8,0,1,2,3,4,5,6,7]
def kap(k): return (k+1)%9

class Plan:
    def __init__(self, w):
        self.loc={}
        qk=[]
        for j,k in enumerate(KORDER[:7]):
            qk+=[("q",0,k),("k",0,k),("q",1,k),("k",1,k)]
            if j<4: qk+=[("v",0,k),("v",1,k)]
        ka,kb=KORDER[7:]
        qk+=[("q",0,ka),("q",1,ka),("q",0,kb),("q",1,kb),("k",0,ka),("k",0,kb),("k",1,ka),("k",1,kb)]
        vv=[("v",t,k) for k in KORDER[4:] for t in range(2)]
        oth=[x for x in range(4) if x!=w]
        self.oth=oth
        pairs=[("A",0),("A",1),("B",0),("B",1)]
        self.wo1=[("o",ty,pi,w) for ty,pi in pairs]
        self.wo2=[("o",ty,pi,x) for ty,pi in pairs for x in oth]
        woc=[("o","C",0),("o","C",1)]
        self.qk, self.vv = qk, vv
        self.qk_lds=list(range(0,43,3))
        self.wo_lds=[self.wo1[0],self.wo1[1],self.wo2[6],self.wo2[9]]
        slot=0
        for i in self.qk_lds: self.loc[qk[i]]=("l",slot); slot+=1
        for f in self.wo_lds: self.loc[f]=("l",slot); slot+=1
        r=0
        for f in qk+vv+self.wo1+self.wo2+woc:
            if f in self.loc: continue
            self.loc[f]=("a",8*r) if r<32 else ("v",WV0+8*(r-32)); r+=1
        assert r==53 and slot==19
    def reg(self,f):
        k,b=self.loc[f]; return f"{k}[{b}:{b+7}]"
    def regC(self,x):
        k,b=self.loc[("o","C",x>>1)]; b+=4*(x&1); return f"{k}[{b}:{b+3}]"
PLANS=[Plan(w) for w in range(4)]

def prologue_consts(a, w):
    a(f"""
    v_mov_b32 v10, v0
    v_and_b32 v11, 15, v10                 ; n
    v_lshrrev_b32 v12, 4, v10              ; g
    v_lshlrev_b32 v13, 4, v10
    v_add_u32 {vW}, {L_W0+w*LW}, v13
    v_add_u32 {vL16}, {BIAS}, v13
    v_lshlrev_b32 v13, 3, v10
    v_lshrrev_b32 v14, 5, v10
    v_lshlrev_b32 v14, 6, v14
    v_xor_b32 {vL8}, v14, v13
    v_lshlrev_b32 v13, 2, v11
    v_lshl_add_u32 {vPsc}, v12, 11, v13
    v_and_b32 v13, 3, v10                  ; c = n&3
    v_lshrrev_b32 v14, 2, v10              ; l>>2 = 4g + r
    v_lshlrev_b32 v15, 7, v13
    v_lshl_add_u32 v15, v14, 3, v15
    v_lshrrev_b32 v16, 1, v13
    v_lshlrev_b32 v16, 6, v16
    v_xor_b32 {vXr}, v16, v15
    v_and_b32 v15, 1, v10
    v_lshlrev_b32 v15, 4, v15
    v_lshl_add_u32 {vOa}, v14, 5, v15
    s_mov_b32 s46, 0xcccccccc
    s_mov_b32 s47, 0xcccccccc
    s_mov_b32 s48, 0x33333333
    s_mov_b32 s49, 0x33333333
    v_mov_b32 v15, 0x4444
    v_mov_b32 v16, 0xeeee
    v_cndmask_b32 {vIdx}, v15, v16, {sHalf1}
    v_lshrrev_b32 v15, 3, v11              ; n>>3
    v_lshl_add_u32 v15, v15, 2, v12
    v_lshlrev_b32 v15, 11, v15
    v_and_b32 v17, 7, v11
    v_lshl_add_u32 {vPst}, v17, 3, v15
    v_and_b32 v15, 2, v11                  ; 2half
    v_lshrrev_b32 v16, 1, v12              ; p
    v_add_u32 v15, v15, v16
    v_lshlrev_b32 v15, 4, v15
    v_and_b32 v16, 1, v11                  ; piece
    v_and_b32 v17, 1, v12                  ; g2
    v_lshl_add_u32 v16, v16, 1, v17
    v_lshl_add_u32 {vMst}, v16, 2, v15
    """)
    if w==0:
        a(f"""
        v_lshrrev_b32 v15, 2, v11              ; gamma
        v_and_b32 v16, 1, v15
        v_lshl_add_u32 v16, v16, 1, v13        ; tau = 2*g2 + r   (r = n&3)
        v_mov_b32 v17, 99
        v_cmp_gt_u32 vcc, 2, v13
        v_cndmask_b32 v16, v17, v16, vcc
        v_mov_b32 v17, 0x3f80
        v_mov_b32 v18, 0x3f800000
        v_cmp_lt_u32 vcc, 1, v15
        v_cndmask_b32 v17, v17, v18, vcc
        """)
        for t in range(4):
            a(f"v_cmp_eq_u32 vcc, {t}, v16\nv_cndmask_b32 v{20+t}, 0, v17, vcc")
        a(f"ds_write_b128 {vL16}, v[20:23] offset:{L_SEL-BIAS}")

def load_weights(a, w, srd, hooks={}, order=None):
    import wk
    P=PLANS[w]; T=80
    A0,A1,C0,C1,R0,R1=[f"v{240+i}" for i in range(6)]
    vO,vOC,RO,RC="v11","v12","v13","v14"
    wk.coop_qkv_addr(a,"v10",4*w,"v16",R0,R1,"v17","v18")
    def wo_addr():
        a(f"""
        v_lshrrev_b32 v84, 5, v10
        v_and_b32 v85, 31, v10
        v_lshlrev_b32 v86, 2, v84
        v_xor_b32 v85, v85, v86
        v_xor_b32 v85, {8*(w>>1)}, v85
        v_mul_u32_u24 v84, 1152, v84
        v_lshl_add_u32 {vO}, v85, 4, v84
        v_lshrrev_b32 v84, 3, v10
        v_mul_u32_u24 v84, 1152, v84
        v_and_b32 v85, 7, v10
        v_lshl_add_u32 {vOC}, v85, 4, v84
        v_bfe_u32 v84, v10, 2, 1               ; i0
        v_bfe_u32 v85, v10, 4, 1               ; piece
        v_lshl_add_u32 v86, v85, 1, v84
        v_xor_b32 v86, {w}, v86
        v_lshlrev_b32 v86, 6, v86
        v_bfe_u32 v87, v10, 3, 1               ; half
        v_lshl_add_u32 v86, v87, 5, v86
        v_and_b32 v87, 3, v10
        v_lshl_add_u32 v86, v87, 3, v86
        v_lshl_add_u32 v84, v85, 4, v84
        v_lshrrev_b32 v85, 5, v10
        v_lshl_add_u32 v84, v85, 2, v84
        v_lshl_add_u32 {RO}, v84, 9, v86
        v_lshrrev_b32 v84, 2, v10
        v_lshlrev_b32 v84, 7, v84
        v_lshl_add_u32 v84, v87, 3, v84
        v_add_u32 {RC}, {32*w}, v84
        s_lshl_b32 {sK}, {sH}, 8
        s_mul_i32 {sKV}, {sH}, {128*1152}
        """)
    a(f"""
    v_bfe_u32 v17, v10, 4, 1               ; i0
    v_lshrrev_b32 v18, 5, v10              ; half
    v_lshlrev_b32 v19, 2, v18
    v_lshl_add_u32 v19, v17, 4, v19
    v_lshl_add_u32 {A0}, v19, 13, v16
    v_xor_b32 {A1}, 0x80, {A0}
    v_lshl_add_u32 v19, v18, 3, v17
    v_lshl_add_u32 {C0}, v19, 13, v16
    v_xor_b32 {C1}, 0x80, {C0}
    """)
    wo_addr()
    pk=sorted((f for f in P.loc if P.loc[f][0]=="l" and P.loc[f][1]>=11),key=lambda f:"oqvk".index(f[0]))
    park={P.loc[f][1]:16+8*i for i,f in enumerate(pk)}
    def dest(f):
        kind,b=P.loc[f]
        if kind!="l": return (kind,b),None
        if b>=11: return ("v",park[b]),None
        return ("v",T),[f"ds_write_b128 {vW}, v[{T}:{T+3}] offset:{b*2048}",f"ds_write_b128 {vW}, v[{T+4}:{T+7}] offset:{b*2048+1024}"]
    def rd(vb,f,offs):
        d,post=dest(f); return (vb,)+d+(offs,post)
    blocks=[]
    for k in KORDER:
        c=kap(k)==8
        for mu in "kvq":
            blocks.append(([(((C0,C1) if c else (A0,A1))[i>>1],srd[mu],sK,(64*kap(k)+(16*w+2*i if c else 32*(w>>1)+8*(w&1)+i))*8192) for i in range(4)],
                           [rd((R0,R1)[t],(mu,t,k),wk.QKV_OFFS) for t in range(2)]))
    for ty,b in (("A",0),("B",1)):
        for x in range(4):
            blocks.append(([(vO,srd["o"],sKV,(32*x+8*w+2*i)*1152+512*b) for i in range(4)],
                           [rd(RO,("o",ty,t,x),[256*t+(8*(qd>>1)+2*(qd&1))*512 for qd in range(4)]) for t in range(2)]))
    blocks.append(([(vOC,srd["o"],sKV,(32*w+8*i)*1152+1024) for i in range(4)],
                   [rd(RC,("o","C",t),[(64*t+32*(qd>>1)+16*(qd&1))*128 for qd in range(4)]) for t in range(2)]))
    if order: blocks=sorted(blocks[:27],key=lambda b: order.index([m_ for m_ in "kvq" if srd[m_]==b[0][0][1]][0]))+blocks[27:]
    assert len(blocks)==36 and P.loc[("o","C",0)]==("v",240)
    wk.coop_blocks(a,blocks,lambda i: L_W0+i*LW+11*2048,("v15","v246"),4096*w,hooks)
    for b in range(11,19):
        rb=park[b]
        a(f"ds_write_b128 {vW}, v[{rb}:{rb+3}] offset:{b*2048}")
        a(f"ds_write_b128 {vW}, v[{rb+4}:{rb+7}] offset:{b*2048+1024}")
    a("s_waitcnt lgkmcnt(0)")

GROUPS = [[],[0,3],[1,4],[2]]

def mso(i): return (sMst,sMst1)[i]
def held(i): return (vAux,"v11")[i]
def publish(i): return f"buffer_store_dword {held(i)}, {vMst}, {sWS}, {(sMh,sMh1)[i]} offen sc1"
def fetch_mem0(a, w, srd_mem, lane):
    for i,g in enumerate(GROUPS[w]):
        a(f"""
        v_and_b32 v28, 3, {lane}               ; 2half+piece
        v_bfe_u32 v30, {lane}, 4, 1            ; g2
        v_lshrrev_b32 v29, 5, {lane}           ; p
        v_mul_u32_u24 v29, 1152, v29
        v_lshl_add_u32 v28, v28, 1, v30        ; 2(2half+piece)+g2
        v_lshl_add_u32 v29, v28, {2 if g==4 else 1}, v29
        s_and_b32 {sT0}, {sH}, 3
        s_mul_i32 {sT0}, {sT0}, {2*1152}
        """)
        if g<4:
            a(f"""s_lshr_b32 {sT1}, {sH}, 3
            s_lshl_b32 {sT1}, {sT1}, 6
            s_add_u32 {sT0}, {sT0}, {sT1}
            s_bfe_u32 {sT1}, {sH}, 0x10002
            s_lshl_b32 {sT1}, {sT1}, 4
            s_add_u32 {sT0}, {sT0}, {sT1}""")
        else:
            a(f"""s_lshr_b32 {sT1}, {sH}, 2
            s_lshl_b32 {sT1}, {sT1}, 5
            s_add_u32 {sT0}, {sT0}, {sT1}""")
        a(f"""buffer_load_ushort v{31+2*i}, v29, {srd_mem}, {sT0} offen offset:{256*g}
        buffer_load_ushort v{32+2*i}, v29, {srd_mem}, {sT0} offen offset:{256*g+(2 if g==4 else 32)}""")
def store_mem0(a, w, dst):
    for i,g in enumerate(GROUPS[w]):
        a(f"""v_lshl_or_b32 v28, v{32+2*i}, 16, v{31+2*i}
        v_min_u32 {dst[i]}, -2, v28""")
        if g==0: a("\n".join(rep_addr("v29")))
        a(f"buffer_store_dword {dst[i]}, {vMst if g else 'v29'}, {sWS}, {mso(i)} offen")

def next_slots(w):
    return [f"s_add_u32 {x}, {x}, 0x4000" for x in [sM0,sM1,sM2]+([sMst,sMh] if GROUPS[w] else [])+([sMst1,sMh1] if len(GROUPS[w])>1 else [])+([sMtc] if w in (0,3) else [])]

def mload(k, fl=""):
    b=kap(k); s=[sM0,sM1,sM2][(b+2)>>2]
    return f"buffer_load_dwordx4 {q(m(k))}, {vL16}, {sWS}, {s} offen offset:{(b if b<2 else (b+2)&3)*1024} {fl}".rstrip()
def moff(g): return 6144+2048*g if g else 0
def rep_addr(r): return [f"v_bfe_u32 {r}, {vL16}, 6, 2", f"v_lshl_add_u32 {r}, {r}, 11, {vMst}"]
def zero(base, n): return [f"v_mov_b32 v{base+i}, 0" for i in range(n)]
KEEP=["v_nop",5]
def delay(a, clks):
    n=clks//4
    while n>0:
        k=min(n,KEEP[1]); a(KEEP[0])
        if k>1: a(f"s_nop {k-2}")
        n-=k
def weave(v, o):
    v=list(v); o=list(o); r=[]
    while v or o:
        if v: r.append(v.pop(0))
        r.append(o.pop(0) if o else "s_nop 0")
    return r
def spin_guard(a, fail):
    a(f"s_add_u32 {sCnt}, {sCnt}, 1\ns_cmp_gt_u32 {sCnt}, {SPIN_MAX}\ns_cbranch_scc1 {fail}")
DPP="row_mask:0xf bank_mask:0xf"

def step_loop(a, w, cfg, hooks):
    KEEP[:]=[("v_nop",f"v_mov_b32 {vIdx}, {vIdx}")[cfg.get("keepmov",0)],cfg.get("keepn",5)]
    P=PLANS[w]; L=lambda s: f"{hooks.get('prefix',f'ch{w}')}_{s}"
    def E(lst):
        for x in lst: a(x)
    def stage(buf,f):
        b=P.loc[f][1]
        return [f"ds_read_b128 {q(buf)}, {vW} offset:{b*2048}", f"ds_read_b128 {q(buf+4)}, {vW} offset:{b*2048+1024}"]
    def sm(acc,A,B): return f"v_smfmac_f32_16x16x64_bf16 {q(acc)}, {q(A)}, {B}, {vIdx}"
    def mf(d,A,B,C): return f"v_mfma_f32_16x16x32_bf16 {q(d)}, {A}, {B}, {C}"
    def fold(base,dst):
        return [f"v_add_f32 v{base}, v{base}, v{base+2}", f"v_add_f32 v{base+1}, v{base+1}, v{base+3}", f"v_cvt_pk_bf16_f32 v{dst}, v{base}, v{base+1}"]
    def younger(x, since):
        vm=[y for y in a.lines[since:] if y.startswith("buffer")]
        return len(vm)-1-max(k for k,y in enumerate(vm) if y==x)
    S0,S1=p(16),p(24); ST=[S0,S1]; VA=p(32)
    acc={("q",0):p(0),("q",1):p(4),("k",0):p(8),("k",1):p(12),("v",0):VA,("v",1):VA+4}
    KX=[m(8),m(0)]; VX=[m(1),m(2)]; NV=len(P.vv)
    fail=L("fail"); late=[]
    disturb=[f"ds_write_b32 {vMst}, {vIdx} offset:{L_PM}"] if cfg.get("dcons") else []
    prep_qk=zero(p(0),16)+stage(S0,P.qk[P.qk_lds[0]])+stage(S1,P.qk[P.qk_lds[1]])
    a(f"{L('entry')}:")
    a(f"v_and_b32 {vOr}, 8, {vPsc}\nv_add_u32 {vOr}, {vOa}, {vOr}")
    E(disturb); E(prep_qk); E(zero(VA,8))
    NPRE=4
    LEAD=cfg.get("lead")
    if LEAD:
        a(f"{L('e0')}:"); a(mload(KORDER[0],'sc1')); a(mload(KORDER[1],'sc1')); spin_guard(a,fail)
        a(f"s_waitcnt vmcnt(0)\nv_max_u32 v{m(1)}, v{m(8)}, v{m(0)}\nv_cmp_eq_u32 vcc, -1, v{m(1)}\ns_cbranch_vccnz {L('e0')}")
    for k in KORDER[2 if LEAD else 0:NPRE]: a(mload(k))
    a("s_waitcnt vmcnt(0)")
    if w==0: a(f"v_lshrrev_b32 v11, 2, {vL16}\nv_and_b32 v11, 127, v11")
    nm=0; PW=0; SW=-1 if LEAD else 0 if cfg["tH"] is not None else 1
    DEF=cfg.get("defer",[])
    dst_=[f"buffer_store_dword {held(u)}, {vMst}, {sWS}, {mso(u)} offen" for u,g in enumerate(GROUPS[w]) if g in DEF]
    dpos=cfg.get("dpos",1)
    issued=list(range(dpos))+["s"]*len(dst_)+list(range(dpos,NPRE))
    CMPM="v_cmp_f_u32" if cfg.get("nocheck") else "v_cmp_eq_u32"
    CMPP="v_cmp_f_u32" if cfg.get("nocheck") else "v_cmp_ne_u32"
    if "entry_wait" in hooks: hooks["entry_wait"]()
    a(f"{L('top')}:")
    top=len(a.lines)
    def retry(j, inflight, back, g=(0,)):
        lb=L(f"retry{j}")
        late.append((lb,[KORDER[x] for x in inflight],back,len(g))); return lb
    SPEC=cfg.get("spec") and not LEAD
    if LEAD: a("s_waitcnt lgkmcnt(1)")
    elif SPEC: a(f"s_waitcnt vmcnt({len(issued)-1-issued.index(0)}) lgkmcnt(2)")
    else: a(f"s_waitcnt vmcnt({len(issued)-1-issued.index(0)}) lgkmcnt(2)\n{CMPM} vcc, -1, v{m(8)}\ns_cbranch_vccnz {retry(0,range(NPRE),L('ok0'))}\n{L('ok0')}:")
    n=len(P.qk)
    first={}
    for i,f in enumerate(P.qk): first.setdefault(KORDER.index(f[2]),i)
    islds=lambda i: i in P.qk_lds
    CH=cfg["checks"][1 if LEAD else 0:]
    brpos={c[0]:((first[c[0]]-3)//3)*3+2 for c in CH}
    if 7 in brpos and 8 in brpos: brpos[7]-=3
    grp={c[0]:c for c in CH}
    assert len(set(brpos.values()))==len(CH)
    gapx={}
    def put(g,x):
        assert 0<=g<n
        gapx.setdefault(g,[]).append(x)
    for j,g in zip(range(NPRE,9),cfg["vpos"]): put(g,(j,mload(KORDER[j])))
    kl=[f"buffer_load_dwordx4 {q(KX[t])}, v{m(0)}, {sWS}, {sK} offen offset:{t*1024} sc1" for t in range(2)]
    vxl=[f"buffer_load_dwordx4 {q(VX[t])}, {vL16}, {sWS}, {sKV} offen offset:{t*1024} sc1" for t in range(2)]
    if SPEC: put(0,(None,f"{CMPM} vcc, -1, v{m(8)}")); put(2,(None,f"s_cbranch_vccnz {L('redo0')}"))
    for g,x in hooks["pre_k"](w): put(g,x)
    put(13,(None,f"v_and_b32 v{m(0)}, 32, {vL16}")); put(14,(None,f"v_lshl_add_u32 v{m(0)}, v{m(0)}, 4, {vOa}"))
    for t in range(2): put(cfg["kpos"][t],("k",kl[t])); put(cfg["vxpos"][t],("vx",vxl[t]))
    for g,x in hooks["qk"](w): put(g,x)
    if cfg.get("tbar"): put(cfg["tbar"],(None,"s_barrier"))
    spots={}
    if cfg.get("tparts") and w in (0,3):
        r="v11" if w==3 else vAux; tp=cfg["tparts"]; tl=lambda so: f"buffer_load_dword {r}, {r}, {sWS}, {so} offen sc1 ; nochk"
        put(24,(None,f"s_add_u32 {sT0}, {sK}, {16384-3*2048 if w==3 else 16384+8192}")); put(25,(None,f"v_lshlrev_b32 {r}, 3, {vL16}"))
        def at_(g,ops):
            if isinstance(g,int):
                for x in ops: put(g,("t" if x.startswith("buffer") else None,x))
            else: spots.setdefault(g,[]).extend(ops)
        for i in range(2): at_(tp[(0 if w==3 else 2)+i],[f"s_bfm_b64 exec, 32, {32*i}",tl(sT0),"s_mov_b64 exec, -1"])
        if w==3:
            at_(tp[0]+3,["s_mov_b64 exec, 15",tl(sMtc),"s_mov_b64 exec, -1"])
            at_(tp[1]+1 if isinstance(tp[1],int) and tp[1]<n-1 else "x2",hooks.get("after_touch",[]))
    elif cfg.get("touch",1) and w in (0,3):
        r="v11" if w==3 else vAux; sp=cfg.get("tsplit",0)
        g=cfg["tpos"]; tl=lambda so: f"buffer_load_dword {r}, {r}, {sWS}, {so} offen sc1 ; nochk"
        n1,g1=cfg.get("t1",(0,g))
        if w==3 or sp: put(g1-(1 if n1 else 3),(None,f"v_lshlrev_b32 {r}, 3, {vL16}"))
        if w==3:
            put(g1-(1 if n1 else 4),(None,f"s_add_u32 {sT0}, {sK}, {16384-3*2048}")); put(g-1,(None,f"s_add_u32 {sT1}, {sT0}, 8192"))
            if n1:
                put(g1,(None,f"s_bfm_b64 exec, {n1}, 0")); put(g1,("t",tl(sT0))); put(g1,(None,"s_mov_b64 exec, -1"))
                put(g,("t",tl(sT1))); put(g+cfg["tgap"],(None,f"s_bfm_b64 exec, {64-n1}, {n1}")); put(g+cfg["tgap"],("t",tl(sT0))); put(g+cfg["tgap"],(None,"s_mov_b64 exec, -1"))
            else: put(g,("t",tl(sT0))); put(g+cfg["tgap"],("t",tl(sT1)))
        g+=cfg["tgap"]+2
        if w==(0 if sp else 3): put(g,(None,"s_mov_b64 exec, 15")); put(g,("t",tl(sMtc))); put(g,(None,"s_mov_b64 exec, -1"))
        if w==3:
            for x in hooks.get("after_touch",[]): put(g+1,("t",x))
    if cfg.get("pub"):
        for i in range(len(GROUPS[w])): put(cfg["ppos"]+3*i,("p",publish(i)))
    foldq=fold(p(0),p(2))+fold(p(4),p(6))
    nl=0; pend=[]
    for i,f in enumerate(P.qk):
        B=f"v[{ST[nl&1]}:{ST[nl&1]+7}]" if islds(i) else P.reg(f)
        a(sm(acc[f[:2]],m(f[2]),B)+(" ; nochk" if LEAD and w==PW and i<12 else ""))
        hascmp=any(brpos[j]-2==i for j in brpos) or any(x.startswith("v_") for _,x in gapx.get(i,[])) or i>=n-4
        if islds(i):
            if nl+2<len(P.qk_lds): pend=stage(ST[nl&1],P.qk[P.qk_lds[nl+2]])
            nl+=1
            if pend and not hascmp and cfg["ds2"]: a(pend.pop(0))
        if pend: a(pend.pop(0))
        val=[]
        for j,x in gapx.get(i,[]):
            if x.startswith("v_"): val.append(x); continue
            a(x)
            if x.startswith("buffer"): issued.append(j)
        for j in brpos:
            if brpos[j]==i:
                infl=[x for x in issued if isinstance(x,int) and x>=j]
                if len(grp[j])==2: a(f"s_or_b64 vcc, vcc, {sRdy2}\ns_cbranch_scc1 {retry(j,infl,L(f'ok{j}'),grp[j])}\n{L(f'ok{j}')}:")
                else: a(f"s_cbranch_vccnz {retry(j,infl,L(f'ok{j}'),grp[j])}\n{L(f'ok{j}')}:")
        wt=""
        for j in brpos:
            c=[f"v{m(KORDER[x])}" for x in grp[j]]
            if brpos[j]-3==i:
                wt+=f" vmcnt({len(issued)-1-issued.index(grp[j][-1])})"
                if len(c)==2: val.append(f"{CMPM} {sRdy2}, -1, {c[1]}")
            if brpos[j]-2==i: val.append(f"{CMPM} vcc, -1, {c[0]}")
            if brpos[j]==i+1 and len(c)==2: pass
        if islds(i+1): wt+=f" lgkmcnt({0 if nl==len(P.qk_lds)-1 else 2})"
        if wt: a("s_waitcnt"+wt)
        E(val)
        if i>=n-4: a(foldq.pop(0))
    vi=[0]
    def V(fl=()):
        f=P.vv[vi[0]]; a(sm(acc[f[:2]],m(f[2]),P.reg(f))); vi[0]+=1; E(fl)
    xs=L_XS+w*1024
    E(foldq); E(fold(p(8),p(3))); E(fold(p(12),p(7)))
    a(f"ds_write2st64_b64 {vL8}, v[{p(2)}:{p(3)}], v[{p(6)}:{p(7)}] offset0:{xs//512} offset1:{xs//512+1}")
    mid=hooks["mid"](w)
    for k_ in ("x","x2","x3"): mid=mid+["\n".join(spots.get(k_,[])),""]
    Sa,Sb,Sm,ONES=p(16),p(20),p(24),p(28)
    PX,PM=p(8),p(12)
    misc=[f"v_mov_b32 v{ONES+i}, {sOne}" for i in range(4)]+zero(m(3),4)+zero(m(8),4)+zero(m(0),4)
    def take(k):
        o=misc[:k]; del misc[:k]; return o
    for _ in range(cfg["nV"][0]): V(mid[:2]+take(1)); mid=mid[2:]
    assert not mid
    if "prebar1" in hooks: hooks["prebar1"](a,w,lambda x: younger(x,top))
    a("s_waitcnt lgkmcnt(0)\ns_barrier")
    X=[p(4*i) for i in range(4)]
    for x in range(4):
        rd=[f"ds_read_b64_tr_b16 v[{X[x]+2*i}:{X[x]+2*i+1}], {vXr} offset:{L_XS+x*1024+i*512}" for i in range(2)]
        if x>=4-cfg["nV"][1]: V(rd)
        else: E(rd)
        if x==3: E(spots.get("s",[]))
    for x in range(4):
        if x==0: a(f"s_waitcnt lgkmcnt(6) vmcnt({younger(kl[1],top)})")
        d=(Sa,Sb)[x&1]
        a(mf(d,q(KX[x>>1]),q(X[x]),q(d) if x>1 else 0))
        if x<3: a(f"s_waitcnt lgkmcnt({4-2*x})")
        E(take(cfg["sfill"]))
    a(mf(Sm,q(X[0]),q(X[0]),0))
    for i in range(2): a(f"v_mul_f32 v{Sa+i}, {sC}, v{Sa+i}")
    if cfg["sm2"]: a(mf(Sm,q(X[1]),q(X[1]),q(Sm)))
    for i in range(2): a(f"v_fmac_f32 v{Sa+i}, {sC}, v{Sb+2+i}")
    for i in range(2): a(f"v_exp_f32 v{Sa+2+i}, v{Sa+i}")
    a(f"s_mov_b64 exec, {sHalf0}\nv_cvt_pk_bf16_f32 v{Sa+2}, v{Sa+2}, v{Sa+3}")
    a(f"ds_write_b32 {vOa}, v{Sa+2} offset:{L_PX+4*w}")
    a("s_mov_b64 exec, -1")
    VD=VA+2; fv=fold(VA,VD)+fold(VA+4,VD+1)
    for _ in range(cfg["nV"][2]): V(take(1))
    early_fv=vi[0]==NV
    for x in range(2 if cfg["sm2"] else 1,4):
        a(mf(Sm,q(X[x]),q(X[x]),q(Sm)))
        if x==2: E(spots.get("p",[]))
        if x==3 and early_fv: misc[:0]=fv
        E(take(2))
    pmq=[f"v_mul_f32 v{Sm+2}, {sC}, v{Sm+2}",f"v_mul_f32 v{Sm+3}, {sC}, v{Sm+3}",f"v_exp_f32 v{Sm}, v{Sm+2}",f"v_exp_f32 v{Sm+1}, v{Sm+3}",
         f"v_mov_b32 v{PM+1}, 0",f"v_cvt_pk_bf16_f32 v{Sm}, v{Sm}, v{Sm+1}",f"v_mov_b32 v{PM+2}, 0",
         f"v_mov_b32_dpp v{PM}, v{Sm} quad_perm:[0,1,0,1] {DPP}",f"v_mov_b32_dpp v{PM+3}, v{Sm} quad_perm:[0,1,0,1] {DPP}"]
    E(take(cfg["pfill"]))
    for _ in range(cfg.get("ka2",0)): a(mf(p(0),q(ONES),q(ONES),0))
    a("s_waitcnt lgkmcnt(0)\ns_barrier")
    a(f"ds_read_b128 {q(PX)}, {vOa} offset:{L_PX}"); E(spots.get("r",[]))
    for _ in range(cfg.get("ka3",0)): a(mf(p(0),q(ONES),q(ONES),0))
    misc[:0]=pmq
    for _ in range(cfg["nV"][3]): V(take(1))
    E(take(cfg["rfill"]))
    DL,D0,D1=p(0),p(4),p(20); OW=p(12); OP=p(10)
    T=[m(4),m(6),p(16),p(24)]
    st=stage(T[0],P.wo_lds[0])+stage(T[1],P.wo_lds[1])
    m16=lambda d,A,B: f"v_mfma_f32_16x16x16_bf16 {q(d)}, v[{A}:{A+1}], v[{B}:{B+1}], {q(d)}"
    rl,r0,r1,tc=p(18),p(0),p(2),p(19)
    def scale_o(chk):
        a(f"v_rcp_f32 v{rl}, v{DL}")
        a(f"v_subrev_u32 v{tc}, {sLlo}, v{DL}" if chk else "s_nop 0")
        a(f"v_cndmask_b32 v{r0}, 0, v{rl}, {sHalf0}\nv_cndmask_b32 v{r1}, 0, v{rl}, {sHalf1}")
        for i in range(4): a(f"v_mul_f32 v{D0+i}, v{D0+i}, v{r0}")
        if chk: a(f"v_cmp_lt_u32 vcc, {hex(cfg.get('lrange',120<<23))}, v{tc}")
        for i in (0,2): a(f"v_pk_fma_f32 v[{D0+i}:{D0+i+1}], v[{D1+i}:{D1+i+1}], v[{r1}:{r1+1}], v[{D0+i}:{D0+i+1}] op_sel_hi:[1,0,1]")
        a(f"v_cvt_pk_bf16_f32 v{OP}, v{D0}, v{D0+1}\nv_cvt_pk_bf16_f32 v{OP+1}, v{D0+2}, v{D0+3}")
        if cfg["keepalive"]: a(mf(D1,q(ONES),q(ONES),0))
        a(f"ds_write_b64 {vOr}, v[{OP}:{OP+1}] offset:{L_O+w*512}")
    while vi[0]<NV: V(take(1))
    npm=max([k+1 for k,x in enumerate(misc) if x in pmq]+[0])
    if not early_fv: misc[npm:npm]=fv
    a(f"s_waitcnt vmcnt({younger(vxl[1],top)}) lgkmcnt(0)")
    a(mf(DL,q(ONES),q(PX),0)); a(st.pop(0)); E(take(2))
    a(mf(D0,q(VX[0]),q(PX),0)); a(st.pop(0)); E(take(2))
    a(mf(D1,q(VX[1]),q(PX),0)); a(st.pop(0)); E(take(2))
    while any(x in pmq for x in misc): E(take(1))
    while sum(x in fv for x in misc)>1: E(take(1))
    a(m16(DL,ONES,PM)); a(st.pop(0)); E(take(2))
    misc+=zero(VA+4,4)
    a(m16(D0,VD,PM)); E(take(2))
    a(m16(D1,VD,PM+2))
    scale_o(True)
    a(f"s_cbranch_vccnz {L('slowsm')}\n{L('smdone')}:")
    a(f"v_mov_b32_dpp v{OW}, v{OP} quad_perm:[0,1,0,1] {DPP}\nv_mov_b32_dpp v{OW+1}, v{OP+1} quad_perm:[0,1,0,1] {DPP}")
    a(f"v_mov_b32_dpp v{OW+2}, v{OP} quad_perm:[2,3,2,3] {DPP}\nv_mov_b32_dpp v{OW+3}, v{OP+1} quad_perm:[2,3,2,3] {DPP}")
    aC=m(1); aP={("A",0):m(8),("A",1):m(0),("B",0):m(3),("B",1):VA+4}
    while len(misc)>4: a(misc.pop(0))
    tb={f:T[i] for i,f in enumerate(P.wo_lds)}
    def wB(f): return f"v[{tb[f]}:{tb[f]+7}]" if f in tb else P.reg(f)
    OA={x:p(4*n_) for n_,x in enumerate(P.oth)}
    ph1=[mf(aC,q(OW),P.regC(w),0)]+[sm(aP[f[1:3]],OW,wB(f)) for f in P.wo1]
    a("s_waitcnt lgkmcnt(1)")
    ord_=[f"ds_read_b128 {q(OA[x])}, {vOa} offset:{L_O+x*512}" for x in P.oth]
    for i,x in enumerate(ph1):
        if i==cfg["bar3"]: a("s_waitcnt lgkmcnt(0)\ns_barrier"); E(ord_)
        a(x); E(take(2 if i==0 else 1))
    assert not misc
    SEL,DR=VA,VA+4
    lds=[]
    for i in range(2,4): lds+=stage(tb[P.wo_lds[i]],P.wo_lds[i])
    if GROUPS[w]: lds.append(f"ds_read_b128 {q(SEL)}, {vL16} offset:{L_SEL}")
    dsq=list(ord_)
    def ds(k):
        for _ in range(k):
            if lds: x=lds.pop(0); a(x); dsq.append(x)
    def lgw(x): return f"s_waitcnt lgkmcnt({len(dsq)-1-dsq.index(x)})"
    ds(cfg["nst0"])
    def cv(d,b): return f"v_cvt_pk_bf16_f32 v{d}, v{b}, v{b+1}"
    A0,A1,B0,B1=aP[("A",0)],aP[("A",1)],aP[("B",0)],aP[("B",1)]
    pld=[f"buffer_load_dwordx4 {q(m(4+i))}, {vL16}, {sWS}, {(sPld,sPld1)[i>>1]} offen offset:{1024*(i&1)} sc1" for i in range(2*len(GROUPS[w]))]
    def pst(r,so): return f"buffer_store_dwordx2 v[{r}:{r+1}], {vPst}, {sWS}, {so} offen"
    def tag(r): return f"v_and_or_b32 v{r}, v{r}, -2, {sPar}"
    pk=lambda r,d=None: [cv(d or r,r),cv((d or r)+1,r+2),tag(d or r)]
    after={4:pk(A0),5:[pst(A0,sPA)],7:pk(A1)[:1],8:pk(A1)[1:],9:[pst(A1,sPA1)],10:pk(B0)[:1],11:pk(B0)[1:2],12:pk(B0)[2:],13:pk(B1,B0+2)[:2],14:pk(B1,B0+2)[2:]}
    if cfg.get("bgap"):
        after={4:pk(A0),5:[pst(A0,sPA)],7:pk(A1),8:[pst(A1,sPA1)],10:pk(B0),11:[pst(B0,sPB)],13:pk(B1,B0+2),14:[pst(B0+2,sPB1)]}
        if cfg["bgap"]==2: del after[14]
        if cfg.get("a0now"): after[4]=after[4]+["+"+after.pop(5)[0]]
    ph2=[(sm(aP[f[1:3]],OA[f[3]],wB(f)),f) for f in P.wo2]+[(mf(aC,q(OA[x]),P.regC(x),q(aC)),None) for x in P.oth]
    mark=len(a.lines)
    for i,(x,f) in enumerate(ph2):
        if i<3: a(lgw(ord_[i]))
        a(x)
        vm=[y for y in after.get(i,[]) if y.startswith("buffer")]
        E(vm)
        if not vm: ds(1)
        if i+1<12 and P.wo2[i+1] in tb: a(lgw(stage(tb[P.wo2[i+1]],P.wo2[i+1])[1]))
        E([y.lstrip("+") for y in after.get(i,[]) if not y.startswith("buffer")])
    assert not lds
    sal=[f"s_add_u32 {sSeg}, {sSeg}, 1",f"s_add_u32 {sKV}, {sKV}, {cfg.get('kvstep',16384)}",f"s_add_u32 {sK}, {sK}, {cfg.get('kvstep',16384)}"]+hooks["sal"](w)+next_slots(w)
    if w<2: sal.insert(0,f"s_add_u32 {sSig}, {sSig}, 2")
    cpk=tag(aC)
    work=prep_qk[16:]+[cv(aC,aC),cpk]+weave(prep_qk[:16],sal)
    now=[0]
    def spend(clks):
        k=clks//4
        o=work[:k]; del work[:k]; E(o); delay(a,4*(k-len(o))); now[0]+=4*k
    def at(t, ops):
        spend(max(0,t-now[0]))
        while ops[0].endswith(f"{sPC} offen") and cpk in work: spend(4)
        E(ops); now[0]+=10*len(ops)
    D2=cfg.get("d2")
    alt=[m(8),m(0),m(1),m(3)]
    pl2=[x.replace(q(m(4+i)),q(alt[i])) for i,x in enumerate(pld)]
    def reduce(u, mark):
        ld=pld[2*u:2*u+2]; he=w==SW and u==0 and cfg.get("hearly")
        def body(r0_,r1_,w0,w1,bad):
            a(f"s_waitcnt vmcnt({w0}) lgkmcnt(0)"); a(mf(DR,q(SEL),q(r0_),0)); a(f"v_xor_b32 v{r0_}, {sPar}, v{r0_}")
            a(f"s_waitcnt vmcnt({w1})"); a(mf(DR,q(SEL),q(r1_),q(DR)))
            a(f"v_bitop3_b32 v{r0_}, v{r0_}, v{r1_}, {sPar} bitop3:0xf6\nv_and_b32 v{r0_}, 1, v{r0_}\n{CMPP} vcc, 0, v{r0_}")
            if he: a(f"s_cbranch_vccnz {bad}"); E(hsend)
            for ror in (4,8):
                for i in range(2): a(f"v_add_f32_dpp v{DR+i}, v{DR+i}, v{DR+i} row_ror:{ror} {DPP}")
            a(f"v_cvt_pk_bf16_f32 {held(u)}, v{DR}, v{DR+1}")
            if not he: a(f"s_cbranch_vccnz {bad}")
        y2=[younger(x,mark) for x in pl2[2*u:2*u+2]] if D2 else None
        body(m(4+2*u),m(5+2*u),younger(ld[0],mark),younger(ld[1],mark),L(f'altP{u}') if D2 else L(f'pollP{u}'))
        a(f"{L(f'okP{u}')}:")
        if w==SW and u==0 and not he: E(hsend)
        if GROUPS[w][u] not in DEF: a(f"buffer_store_dword {held(u)}, {vMst if GROUPS[w][u] else f'v{m(2)+2}'}, {sWS}, {mso(u)} offen")
        def slow():
            if D2:
                a(f"{L(f'altP{u}')}:")
                if cfg.get("cnt")==2: a(f"s_add_u32 s{93+u}, s{93+u}, 1")
                body(alt[2*u],alt[2*u+1],y2[0],y2[1],L(f'pollP{u}')); a(f"s_branch {L(f'okP{u}')}")
            a(f"{L(f'pollP{u}')}:")
            if cfg.get("cnt")==1: a(f"s_add_u32 s{93+u}, s{93+u}, 1")
            E(ld); E(disturb); spin_guard(a,fail); body(m(4+2*u),m(5+2*u),1,0,L(f'pollP{u}')); a(f"s_branch {L(f'okP{u}')}")
        outl.append(slow)
    outl=[]
    def gather(k0,k1=NPRE):
        for k in range(k0,k1):
            if k and k!=nm: spend(cfg["dm"][k-1]-(8*len(dst_) if k==dpos else 0))
            a(mload(KORDER[k]))
            if k+1==dpos: E(dst_)
    def close():
        E(work); work.clear()
        a(f"s_xor_b32 {sPar}, {sPar}, 1")
        hooks["end"](a,w)
        a(f"s_branch {L('top')}")
    ev=[(cfg["tB"][0],[pst(B0,sPB)]),(cfg["tB"][1],[pst(B0+2,sPB1)]),(cfg["tB"][2],[f"buffer_store_dword v{aC}, {vPsc}, {sWS}, {sPC} offen"])]
    if cfg.get("bgap"): ev=ev[3-cfg["bgap"]:]
    G=GROUPS[w]
    if 0 in G: work+=rep_addr(f"v{m(2)+2}")
    hsend=[f"s_mov_b64 exec, {(1<<NREP)-1}",f"buffer_store_dword v{m(2)}, {vXr}, {sWS}, {sPubX} offen","s_mov_b64 exec, -1"]
    if w==SW and cfg.get("dcons"):
        work[4:4]=[f"ds_read_b32 v{m(2)}, {vMst} offset:{L_PM}"]
        work[len(work)//2:len(work)//2]=["s_waitcnt lgkmcnt(0)",f"ds_write_b32 {vMst}, v{p(0)} offset:{L_PM}",f"v_min_u32 v{m(2)}, 1, v{m(2)}",f"v_add_u32 v{m(2)}, {sSig}, v{m(2)}"]
    elif w==SW: work[len(work)//2:len(work)//2]=[f"v_mov_b32 v{m(2)}, {sSig}"]
    if w==PW: work.append(f"v_mov_b32 v{m(2)+1}, 0")
    for i,g in enumerate(G): ev.append((cfg["tP"][g],pld[2*i:2*i+2]))
    if D2:
        for i,g in enumerate(G): ev.append((cfg["tP"][g]+D2,pl2[2*i:2*i+2]))
    ev.sort(key=lambda x:x[0])
    split=not D2 and len(G)>1 and cfg["tP"][G[1]]>cfg["tP"][G[0]]+cfg.get("split",260)
    if split: last=ev.pop()
    for t,ops in ev: at(t,ops)
    if G:
        spend(max(4*len(work),cfg["tP"][G[0]]+170-now[0]))
        reduce(0,mark)
        if split: now[0]=max(now[0],cfg["tP"][G[0]]+230)+90; at(*last); delay(a,150)
        if len(G)>1:
            if G[1]==4: a(f"s_cmp_ge_u32 {sH}, 16\ns_cbranch_scc1 {L('nored')}")
            reduce(1,mark)
            a(f"{L('nored')}:")
    else:
        work+=weave(zero(VA,8),[])
        if SW==w:
            while any("v%d,"%m(2) in x for x in work): spend(4)
            at(cfg["tH"],hsend)
        spend(max(4*len(work),cfg["tS"]-now[0]))
    if G: work+=weave(zero(VA,8),[])
    if LEAD:
        lx=[f"offset:{L_XS+1024*i}" for i in range(2)]; fr=[m(8),m(0)]; t=[f"v{m(3)+i}" for i in range(2)]
        if w==PW:
            smp=[mload(KORDER[i],'sc1') for i in range(2)]
            for _ in range(cfg["npre"]): E(smp); delay(a,cfg["pregap"])
            a(f"s_waitcnt vmcnt({2*cfg['npre']-2})\n{L('hpoll')}:")
            for u in range(3):
                a(f"""v_max3_u32 {t[0]}, v{fr[0]}, v{fr[0]+1}, v{fr[0]+2} ; nochk
                v_max3_u32 {t[1]}, v{fr[1]}, v{fr[1]+1}, v{fr[1]+2} ; nochk
                v_max3_u32 {t[0]}, {t[0]}, v{fr[0]+3}, v{fr[1]+3} ; nochk
                v_max_u32 {t[0]}, {t[0]}, {t[1]}
                {CMPM} vcc, -1, {t[0]}""")
                E(smp)
                if cfg.get("cnt"): a("s_add_u32 s94, s94, 1")
                if cfg["pollgap"]: a(f"s_nop {cfg['pollgap']-1}")
                if u==2: a(f"s_add_u32 {sCnt}, {sCnt}, 1\ns_cmp_gt_u32 {sCnt}, {SPIN_MAX}")
                a(f"s_cbranch_vccz {L('hok')}")
            a(f"s_waitcnt vmcnt(16)\ns_cbranch_scc0 {L('hpoll')}\ns_branch {fail}\n{L('hok')}:")
            for i in range(2): a(f"ds_write_b128 {vL16}, {q(fr[i])} {lx[i]} ; nochk")
            a(mload(KORDER[2])); a(mload(KORDER[3])); a(f"s_xor_b32 {sPar}, {sPar}, 1")
            a("s_waitcnt lgkmcnt(0)\ns_barrier")
        else:
            E(work); work.clear(); delay(a,cfg["dkeep"][w]); a(f"s_xor_b32 {sPar}, {sPar}, 1\ns_waitcnt lgkmcnt(0)\ns_barrier")
            for i in range(2): a(f"ds_read_b128 {q(fr[i])}, {vL16} {lx[i]}")
            for k in (2,3):
                if k==max(dpos,2): E(dst_)
                a(mload(KORDER[k]))
            if dpos==4: E(dst_)
        hooks["end"](a,w)
        a(f"s_branch {L('top')}")
    elif w==PW:
        HV=f"v{m(2)+1}"; poll=f"buffer_load_dword {HV}, v11, {sWS}, {sHint} offen sc1"
        a(f"{L('hpoll')}:")
        for u in range(4):
            a(f"v_cmp_gt_u32 vcc, {sSig}, {HV} ; nochk\nv_cmp_ne_u32 {sRdy2}, {sSig}, {HV} ; nochk"); a(poll)
            if cfg.get("cnt"): a("s_add_u32 s94, s94, 1")
            if cfg["pollgap"]: a(f"s_nop {cfg['pollgap']-1}")
            if u==3: a(f"s_add_u32 {sCnt}, {sCnt}, 1\ns_cmp_gt_u32 {sCnt}, {SPIN_MAX}")
            a(f"s_cbranch_vccz {L('hseen')}")
        a(f"s_cbranch_scc0 {L('hpoll')}\ns_branch {fail}\n{L('hslow')}:")
        if cfg.get("cnt"): a("s_add_u32 s93, s93, 1")
        delay(a,cfg.get("dcons") or 0)
        a(f"ds_write_b32 {vMst}, v{p(0)} offset:{L_PM}\ns_waitcnt lgkmcnt(0)")
        a(f"s_branch {L('hok')}\n{L('hseen')}:")
        if cfg.get("dcons"): a(f"s_cmp_lg_u64 {sRdy2}, 0\ns_cbranch_scc1 {L('hslow')}")
        a(f"{L('hok')}:")
    else: spend(cfg["dkeep"][w])
    if not LEAD:
        a("s_barrier")
        gather(0); close()
    for f_ in outl: f_()
    a(f"{L('slowsm')}:"); E(disturb)
    a(f"s_mov_b64 exec, {sHalf0}\nds_write_b64 {vOa}, v[{Sa}:{Sa+1}] offset:{L_XS+512*(w>>1)+8*(w&1)}\ns_mov_b64 exec, -1")
    a("s_waitcnt lgkmcnt(0)\ns_barrier")
    s_=[p(i) for i in range(8)]+[Sm,Sm+1]; mx,tt=p(20),p(21)
    a(f"""ds_read_b128 {q(p(0))}, {vOa} offset:{L_XS}
    ds_read_b128 {q(p(4))}, {vOa} offset:{L_XS+512}
    v_mov_b32_dpp v{Sm}, v{Sm+2} quad_perm:[0,1,0,1] {DPP}
    v_mov_b32_dpp v{Sm+1}, v{Sm+3} quad_perm:[0,1,0,1] {DPP}
    s_waitcnt lgkmcnt(0)
    v_max_f32 v{mx}, v{s_[0]}, v{s_[1]}""")
    for i in range(2,10,2): a(f"v_max3_f32 v{mx}, v{mx}, v{s_[i]}, v{s_[i+1]}")
    a(f"""v_mov_b32 v{tt}, v{mx}
    v_permlane16_swap_b32 v{mx}, v{tt}
    v_max_f32 v{mx}, v{mx}, v{tt}
    v_mov_b32 v{tt}, v{mx}
    v_permlane32_swap_b32 v{mx}, v{tt}
    v_max_f32 v{mx}, v{mx}, v{tt}""")
    for i in range(10): a(f"v_sub_f32 v{s_[i]}, v{s_[i]}, v{mx}\nv_exp_f32 v{s_[i]}, v{s_[i]}")
    for i in range(4): a(cv(PX+i,p(2*i)))
    a(cv(PM,Sm)); a(cv(PM+3,Sm))
    a(mf(DL,q(ONES),q(PX),0)); a(mf(D0,q(VX[0]),q(PX),0)); a(mf(D1,q(VX[1]),q(PX),0))
    a(m16(DL,ONES,PM)); a(m16(D0,VD,PM)); a(m16(D1,VD,PM+2))
    scale_o(False)
    a(f"s_branch {L('smdone')}")
    if SPEC:
        a(f"{L('redo0')}:")
        if cfg.get("cnt"): a("s_add_u32 s84, s84, 1")
        for k in KORDER[:NPRE]: a(mload(k,'sc1'))
        spin_guard(a,fail); E(disturb)
        a(f"s_waitcnt vmcnt(0) lgkmcnt(0)\nv_cmp_eq_u32 vcc, -1, v{m(8)}\ns_cbranch_vccnz {L('redo0')}")
        E(prep_qk); a(f"s_branch {L('top')}")
    for lb,ks,back,ng in late:
        a(f"{lb}:")
        if cfg.get("cnt"): a(f"s_add_u32 s{84+KORDER.index(ks[0])}, s{84+KORDER.index(ks[0])}, 1")
        for k in ks: a(mload(k,'sc1'))
        spin_guard(a,fail)
        E(disturb)
        a("s_waitcnt vmcnt(0)")
        for k in ks[:ng]: a(f"v_cmp_eq_u32 vcc, -1, v{m(k)}\ns_cbranch_vccnz {lb}")
        a(f"s_branch {back}")

def init_comm(a, w, stores=True):
    g0,g1=(GROUPS[w]+[0,0])[:2]
    a(f"""
    s_lshl_b32 {sT0}, {sH}, 6
    s_add_u32 {sPA}, {sT0}, {OFF_P+w*16384}
    s_add_u32 {sPA1}, {sPA}, {65536}
    s_add_u32 {sPB}, {sPA}, {2*65536}
    s_add_u32 {sPB1}, {sPA}, {3*65536}
    s_add_u32 {sPC}, {sT0}, {OFF_P+4*65536+w*8192}
    s_add_u32 {sMst}, {sT0}, {OFF_M+moff(g0)}
    s_add_u32 {sMst1}, {sT0}, {OFF_M+moff(g1)}
    s_and_b32 {sM0}, {sH}, 3
    s_lshl_b32 {sM0}, {sM0}, 11
    s_add_u32 {sM0}, {sM0}, {OFF_M}
    s_mov_b32 {sM1}, {OFF_M+8192}
    s_mov_b32 {sM2}, {OFF_M+12288}
    s_lshl_b32 {sT0}, {sH}, 11
    s_add_u32 {sPld}, {sT0}, {OFF_P+65536*g0}
    s_mov_b32 {sPar}, 0
    s_mov_b32 {sC}, {f2u(128**-0.5*math.log2(math.e))}
    s_mov_b32 {sOne}, 0x3f803f80
    s_mov_b32 {sLlo}, {(127-60)<<23}
    v_mov_b32 v20, -1
    v_mov_b32 v21, -1
    v_mov_b32 v22, -1
    v_mov_b32 v23, -1
    """)
    if len(GROUPS[w])>1: a(f"s_add_u32 {sPld1}, {sPld}, {(g1-g0)*65536}")
    if w<2: a(f"""s_mov_b32 {sSig}, 0
    s_lshl_b32 {sT0}, {sH}, 2
    s_add_u32 {sPubX}, {sT0}, {OFF_H}
    s_and_b32 {sT0}, {sH}, {NREP-1}
    s_lshl_b32 {sT0}, {sT0}, 7
    s_add_u32 {sHint}, {sT0}, {OFF_H}
    s_mov_b64 exec, {(1<<NREP)-1}
    v_mov_b32 v28, 0
    {f"buffer_store_dword v28, {vXr}, {sWS}, {sPubX} offen" if stores else ""}
    buffer_load_dword v24, {vXr}, {sWS}, {sPubX} offen sc1
    s_mov_b64 exec, -1""")
    if g1==4: a(f"s_cmp_ge_u32 {sH}, 16\ns_cselect_b32 {sPld1}, 0x40000000, {sPld1}")
    if w in (0,3): a(f"s_lshl_b32 {sMtc}, {sH}, 9\ns_add_u32 {sMtc}, {sMtc}, {OFF_M+0x8000}")
    for i,g in enumerate(GROUPS[w]):
        for j in range(2):
            if stores: a(f"buffer_store_dwordx4 v[20:23], {vL16}, {sWS}, {(sPld,sPld1)[i]} offen offset:{1024*j}")
            a(f"buffer_load_dwordx4 v[24:27], {vL16}, {sWS}, {(sPld,sPld1)[i]} offen offset:{1024*j} sc1")
        a(f"s_add_u32 {sT0}, {mso(i)}, 0x4000")
        a(f"buffer_load_dword v24, {vMst}, {sWS}, {sT0} offen sc1\nbuffer_load_dword v24, {vMst}, {sWS}, {mso(i)} offen sc1")


def set_layer(a, w, layer):
    a(f"""
    s_mov_b32 {sSeg}, 0
    s_mul_i32 {sT0}, {sH}, {KV_H}
    s_add_u32 {sKV}, {sT0}, {OFF_KV+8192+w*2048}
    s_add_u32 {sK}, {sT0}, {OFF_KV+w*2048}
    s_lshl_b32 {sT0}, {sH}, 6
    s_add_u32 {sT0}, {sT0}, {layer}
    s_add_u32 {sMh}, {sT0}, {OFF_MH+2048*(GROUPS[w]+[0,0])[0]}
    s_add_u32 {sMh1}, {sT0}, {OFF_MH+2048*(GROUPS[w]+[0,0])[1]}
    s_mov_b32 {sCnt}, 0
    """)
```

```python
from asmgen import Asm
from layout import *
import math, struct
def f2u(x): return struct.unpack("<I", struct.pack("<f", x))[0]
def q(base, n=4, k="v"): return f"{k}[{base}:{base+n-1}]"
DPP="row_mask:0xf bank_mask:0xf"
sWS="s[8:11]"; sX="s[12:15]"; sA="s[76:79]"; sB="s[80:83]"; sC_="s[84:87]"; sD="s[88:91]"
sW="s21"; sI="s24"
T0,T1,T2,T3="s60","s61","s62","s63"
P_X,P_MEM,P_WQ,P_WK,P_WV,P_WO,P_BQKV,P_BWO,P_OUT=64,66,68,70,72,74,92,94,96
def srd(a, d, ptr, size, off=0):
    d=int(d[2:d.index(":")])
    if off: a(f"s_add_u32 s{d}, s{ptr}, {off}\ns_addc_u32 s{d+1}, s{ptr+1}, 0")
    else: a(f"s_mov_b32 s{d}, s{ptr}\ns_mov_b32 s{d+1}, s{ptr+1}")
    a(f"s_mov_b32 s{d+2}, {size}\ns_mov_b32 s{d+3}, 0x20000")
def entry(a):
    a(f"""
    s_load_dwordx8 s[64:71], s[0:1], 0
    s_load_dwordx4 s[72:75], s[0:1], 32
    s_load_dwordx4 s[92:95], s[0:1], 64
    s_load_dwordx2 s[96:97], s[0:1], 80
    s_load_dwordx4 s[4:7], s[0:1], 88
    v_lshrrev_b32 v1, 6, v0
    v_readfirstlane_b32 {sW}, v1
    v_and_b32 v0, 63, v0
    s_waitcnt lgkmcnt(0)
    """)
    srd(a,sWS,6,WS_BYTES)
def mf(d,A,B,C): return f"v_mfma_f32_16x16x32_bf16 {d}, {A}, {B}, {C}"
def cv(d,x,y): return f"v_cvt_pk_bf16_f32 v{d}, v{x}, v{y}"

class Frags:
    def __init__(self, vbase, first=0): self.vbase=vbase; self.first=first
    def reg(self,i,n=4):
        b=4*(i+self.first)
        return (("a",b) if b<256 else ("v",self.vbase+b-256))
    def op(self,i):
        k,b=self.reg(i); return f"{k}[{b}:{b+3}]"

def load_blocks(a, blocks, lds_base, vtr, ring=4):
    nd=[len(b[0]) for b in blocks]
    def issue(bi):
        pos=0
        for (va,s,sb,c,bl) in blocks[bi][0]:
            a(f"s_add_u32 {T0}, {sb}, {c}\ns_add_u32 m0, {T3}, {(bi%ring)*4096+pos}")
            a(f"buffer_load_dword{'x4' if bl==16 else ''} {va}, {s}, {T0} offen lds")
            pos+=64*bl
        assert pos<=4096
    n=len(blocks)
    for bi in range(min(ring-1,n)): issue(bi)
    for bi in range(n):
        if bi+ring-1<n:
            a("s_waitcnt lgkmcnt(0)"); issue(bi+ring-1)
        left=sum(nd[bi+1:min(n,bi+ring)])
        a(f"s_waitcnt vmcnt({min(left,63)})")
        for (t,k,rb) in blocks[bi][1]:
            for qd in range(4):
                a(f"ds_read_b64_tr_b16 {k}[{rb+2*qd}:{rb+2*qd+1}], {vtr} offset:{(bi%ring)*4096+t*32+(qd&1)*256+(qd>>1)*2048}")
        if len(blocks[bi])>2 and blocks[bi][2]:
            a("s_waitcnt lgkmcnt(0)")
            for x in blocks[bi][2]: a(x)
    a("s_waitcnt lgkmcnt(0)")
def tr_addr(a, vtr, t0, t1, lds_base, sh=14):
    a(f"""
    s_lshl_b32 {T3}, {sW}, {sh}
    s_add_u32 {T3}, {T3}, {lds_base}
    v_lshrrev_b32 {t0}, 4, v0
    v_bfe_u32 {t1}, v0, 2, 2
    v_lshl_add_u32 {t0}, {t0}, 3, {t1}
    v_lshlrev_b32 {t0}, 6, {t0}
    v_and_b32 {t1}, 3, v0
    v_lshl_add_u32 {t0}, {t1}, 3, {t0}
    v_add_u32 {vtr}, {T3}, {t0}
    """)

XF_T=1088
def xfrag(k,T): return (2*k+T)*XF_T
XF_BYTES=36*XF_T
def ln_consts(a, vSrc, vRaw, vDst, vRd, t0, t1, raw_base, xf_base):
    a(f"""
    v_lshrrev_b32 {t0}, 3, v0
    v_and_b32 {t1}, 7, v0                  ; chunk
    s_lshl_b32 {T0}, {sW}, 3
    v_add_u32 {t0}, {T0}, {t0}             ; token 0..31
    v_mul_u32_u24 {vSrc}, 1152, {t0}
    v_lshl_add_u32 {vSrc}, {t1}, 4, {vSrc}
    s_mul_i32 {T0}, {sW}, 9216
    s_add_u32 {T0}, {T0}, {raw_base}
    v_lshlrev_b32 {vRaw}, 4, v0
    v_add_u32 {vRaw}, {T0}, {vRaw}
    v_and_b32 {vDst}, 15, {t0}
    v_lshlrev_b32 {vDst}, 4, {vDst}
    v_lshrrev_b32 {t0}, 4, {t0}            ; T
    v_lshrrev_b32 {vRd}, 2, {t1}
    v_lshl_add_u32 {t0}, {vRd}, 1, {t0}
    v_mul_u32_u24 {t0}, {XF_T}, {t0}
    v_and_b32 {t1}, 3, {t1}
    v_mul_u32_u24 {t1}, 272, {t1}
    v_add3_u32 {vDst}, {vDst}, {t0}, {t1}
    v_add_u32 {vDst}, {xf_base}, {vDst}
    v_lshrrev_b32 {t0}, 4, v0
    v_mul_u32_u24 {t0}, 272, {t0}
    v_and_b32 {t1}, 15, v0
    v_lshl_add_u32 {t0}, {t1}, 4, {t0}
    v_add_u32 {vRd}, {xf_base}, {t0}
    """)
def ln_fetch(a, vSrc, srd_, sOff, raw_base, fl="sc1", later=None):
    a(f"s_mul_i32 {T1}, {sW}, 9216\ns_add_u32 {T1}, {T1}, {raw_base}")
    ops=[f"s_add_u32 m0, {T1}, {896*i}\ns_nop 0\nbuffer_load_dwordx4 {vSrc}, {srd_}, {sOff} offen offset:{128*i} {fl} lds" for i in range(9)]
    if later is not None: later+=ops
    else:
        for x in ops: a(x)
def ln_stage(a, vRaw, vDst, R, pre_write=None, redo=None):
    for i in range(9): a(f"ds_read_b128 {q(R+4*i)}, {vRaw} offset:{1024*i}")
    s1,s2,s3,s4,one,lo,hi=[R+36+i for i in range(7)]
    a(f"v_mov_b32 v{one}, 0x3f803f80")
    for r in (s1,s2,s3,s4): a(f"v_mov_b32 v{r}, 0")
    for i in range(9):
        a(f"s_waitcnt lgkmcnt({8-i})")
        for j in range(4):
            r=R+4*i+j
            a(f"v_dot2c_f32_bf16 v{(s1,s3)[j&1]}, v{r}, v{one}\nv_dot2c_f32_bf16 v{(s2,s4)[j&1]}, v{r}, v{r}")
    a("s_nop 2")
    a(f"v_add_f32 v{s1}, v{s1}, v{s3}\nv_add_f32 v{s2}, v{s2}, v{s4}")
    if redo: a(f"v_cmp_u_f32 vcc, v{s1}, v{s1}")
    for pat in ("quad_perm:[1,0,3,2]","quad_perm:[2,3,0,1]","row_half_mirror"):
        for r in (s1,s2): a(f"v_add_f32_dpp v{r}, v{r}, v{r} {pat} {DPP}")
    a(f"""
    v_mul_f32 v{s1}, {hex(f2u(1/576))}, v{s1}          ; mean
    v_mul_f32 v{s3}, v{s1}, v{s1}
    v_mul_f32 v{s2}, {hex(f2u(1/576))}, v{s2}
    v_sub_f32 v{s2}, v{s2}, v{s3}
    v_max_f32 v{s2}, 0, v{s2}
    v_add_f32 v{s2}, {hex(f2u(1e-5))}, v{s2}
    v_rsq_f32 v{s2}, v{s2}
    s_nop 0
    v_mul_f32 v{s3}, v{s1}, v{s2}
    v_sub_f32 v{s3}, 0, v{s3}
    """)
    if redo: a(f"s_cbranch_vccnz {redo}")
    if pre_write: pre_write()
    for i in range(9):
        for j in range(4):
            r=R+4*i+j
            t=R+44+2*(j&1)
            a(f"""v_lshlrev_b32 v{t}, 16, v{r}
            v_and_b32 v{t+1}, 0xffff0000, v{r}
            v_pk_fma_f32 v[{t}:{t+1}], v[{t}:{t+1}], v[{s1}:{s2}], v[{s3}:{s4}] op_sel:[0,1,0] op_sel_hi:[1,1,0]""")
            if j&1: a(cv(r-1,t-2,t-1)); a(cv(r,t,t+1))
        a(f"ds_write_b128 {vDst}, {q(R+4*i)} offset:{4*i*XF_T}")

sXc="s3"
def announce(a, t=("v10","v11"), wait="s_waitcnt vmcnt(0)"):
    sk=a.lab("ann")
    a(f"""{wait}
    s_barrier
    s_cmp_eq_u32 {sW}, 0
    s_cbranch_scc0 {sk}
    v_mov_b32 {t[0]}, s2
    v_mov_b32 {t[1]}, {sXc}
    s_mov_b64 exec, 1
    global_store_byte {t[0]}, {t[1]}, s[4:5] sc1
    s_mov_b64 exec, -1
    {sk}:""")
def elect(a, fail, out, t=("v10","v11","v12","v13","v14","v15"), lane="v0", sampled=False):
    lp,wl,wd,ch=a.lab("el"),a.lab("elw"),a.lab("eld"),a.lab("elc")
    ad,dv,b=t[0],t[1],t[2:6]
    a(f"v_lshlrev_b32 {ad}, 2, {lane}\ns_mov_b32 {T3}, 0")
    if sampled: a(f"s_branch {lp}s")
    a(f"{lp}:\nglobal_load_dword {dv}, {ad}, s[4:5] sc1")
    a(f"s_add_u32 {T3}, {T3}, 1\ns_cmp_gt_u32 {T3}, 4000000\ns_cbranch_scc1 {fail}\ns_waitcnt vmcnt(0)\n{lp}s:")
    for i in range(4): a(f"v_bfe_u32 {b[i]}, {dv}, {8*i}, 8")
    a(f"v_min_u32 {dv}, {b[0]}, {b[1]}\nv_min3_u32 {dv}, {dv}, {b[2]}, {b[3]}\nv_cmp_eq_u32 vcc, 0, {dv}\ns_cbranch_vccnz {lp}")
    a(f"s_mov_b32 {T2}, 0\n{wl}:\ns_add_u32 {T2}, {T2}, 1\ns_mov_b32 {T1}, 0")
    for i in range(4): a(f"v_cmp_eq_u32 vcc, {T2}, {b[i]}\ns_bcnt1_i32_b64 {T0}, vcc\ns_add_u32 {T1}, {T1}, {T0}")
    a(f"s_cmp_ge_u32 {T2}, 16\ns_cbranch_scc1 {fail}\ns_cmp_lt_u32 {T1}, 32\ns_cbranch_scc1 {wl}")
    a(f"s_mov_b32 {T1}, 0\ns_mov_b32 {T3}, 0")
    for i in range(4):
        a(f"""v_cmp_gt_u32 vcc, {sXc}, {b[i]}
        s_bcnt1_i32_b64 {T0}, vcc
        s_add_u32 {T3}, {T3}, {T0}
        v_add_u32 {dv}, {i}, {ad}
        v_cmp_gt_u32 s[16:17], s2, {dv}
        v_cmp_eq_u32 vcc, {sXc}, {b[i]}
        s_and_b64 vcc, vcc, s[16:17]
        s_bcnt1_i32_b64 {T0}, vcc
        s_add_u32 {T1}, {T1}, {T0}""")
    a(f"""s_add_u32 {out}, {T1}, {T3}
    s_cmp_gt_u32 {T2}, {sXc}
    s_cselect_b32 {T0}, 32, 0
    s_add_u32 {out}, {out}, {T0}
    s_cmp_lg_u32 {T2}, {sXc}
    s_cbranch_scc1 {wd}
    s_cmp_lt_u32 {T1}, 32
    s_cselect_b32 {out}, {T1}, {out}
    {wd}:""")

sCnt="s38"; SPIN=3000000
def wait_flags(a, so, n, shift, val, fail, every_wave=False, sleep=1, t=("v10","v11"), rows=1):
    lp,ok=a.lab("wf"),a.lab("wfo")
    if not every_wave: a(f"s_cmp_lg_u32 {sW}, 0\ns_cbranch_scc1 {ok}")
    a(f"v_min_u32 {t[0]}, {n-1}, v0\nv_lshlrev_b32 {t[0]}, {shift}, {t[0]}")
    for r in range(rows):
        l2=f"{lp}_{r}"; l3=f"{lp}_{r}f"
        a(f"s_branch {l3}\n{l2}:")
        if sleep: a(f"s_sleep {sleep}")
        a(f"""{l3}:
        buffer_load_dword {t[1]}, {t[0]}, {sWS}, {so} offen offset:{256*r} sc1
        s_add_u32 {sCnt}, {sCnt}, 1
        s_cmp_gt_u32 {sCnt}, {SPIN}
        s_cbranch_scc1 {fail}
        s_waitcnt vmcnt(0)
        v_cmp_gt_u32 vcc, {val}, {t[1]}
        s_cbranch_vccnz {l2}""")
    if not every_wave: a(f"{ok}:\ns_barrier")
def put_flag(a, so, val, t=("v10","v11")):
    a(f"v_mov_b32 {t[0]}, 0\nv_mov_b32 {t[1]}, {val}\ns_mov_b64 exec, 1\nbuffer_store_dword {t[1]}, {t[0]}, {sWS}, {so} offen sc1\ns_mov_b64 exec, -1")
def signal(a, so, val, synced=False, t=("v10","v11")):
    sk=a.lab("sg")
    if not synced: a("s_waitcnt vmcnt(0)\ns_barrier")
    a(f"s_cmp_lg_u32 {sW}, 0\ns_cbranch_scc1 {sk}"); put_flag(a,so,val,t); a(f"{sk}:")

def spoll(a, so, fail, sleep, bad, every_wave=False):
    lp,ok=a.lab("sp"),a.lab("spo")
    if not every_wave: a(f"s_cmp_lg_u32 {sW}, 0\ns_cbranch_scc1 {ok}")
    a(f"""s_branch {lp}f
    {lp}:
    s_sleep {sleep}
    {lp}f:
    s_load_dword s39, s[8:9], {so} glc
    s_add_u32 {sCnt}, {sCnt}, 1
    s_cmp_gt_u32 {sCnt}, {SPIN}
    s_waitcnt lgkmcnt(0)
    s_cbranch_scc1 {fail}
    s_cmp_eq_u32 s39, {bad}
    s_cbranch_scc1 {lp}""")
    if not every_wave: a(f"{ok}:")

PROF={"on":None}
CSR=[0,92,64,66,54,56,58,16,98]
RT=["a2_1","awo","bq","bp","bw","a1"]
def cs(a, tag, k):
    if PROF["on"]==tag: a(f"s_memtime s[{CSR[k]}:{CSR[k]+1}] ; nochk")
    if PROF["on"]=="rt" and tag in RT: a(f"s_memrealtime s[{CSR[k]}:{CSR[k]+1}] ; nochk")
def cs_dump(a, tag, only_rt=False):
    rt=PROF["on"]=="rt" and tag in RT
    if not rt and (only_rt or PROF["on"]!=tag): return
    a(f"s_waitcnt lgkmcnt(0)\ns_lshl_b32 {T0}, {sI}, 2\ns_add_u32 {T0}, {T0}, {sW}\ns_lshl_b32 {T0}, {T0}, 6\ns_add_u32 {T0}, {T0}, {OFF_TS+0x20000+(0x20000*RT.index(tag) if rt else 0)}")
    if rt: a(f"s_lshl_b32 s100, s23, 16\ns_add_u32 {T0}, {T0}, s100")
    a(f"v_mov_b32 v10, {T0}\ns_mov_b64 exec, 1")
    for k in range(9): a(f"v_mov_b32 v11, s{CSR[k]}\nglobal_store_dword v10, v11, s[6:7] offset:{4*k}\ns_nop 1")
    a("s_mov_b64 exec, -1")

def coop_blocks(a, blocks, slot, tmp, wq, hooks={}):
    n=len(blocks); NB=4
    def issue(bi):
        for i,(va,s_,sb,c) in enumerate(blocks[bi][0]):
            a(f"s_add_u32 {T0}, {sb}, {c}")
            a(f"s_add_u32 m0, {wq}, {slot(bi%NB)+1024*i}" if isinstance(wq,str) else f"s_mov_b32 m0, {wq+slot(bi%NB)+1024*i}")
            a(f"buffer_load_dwordx4 {va}, {s_}, {T0} offen lds")
    a("s_barrier")
    for bi in range(min(NB-1,n)): issue(bi)
    for bi in range(n):
        if bi in hooks: hooks[bi]()
        a(f"s_waitcnt vmcnt({4*(min(n,bi+NB-1)-bi-1)}) lgkmcnt(0)\ns_barrier")
        if bi+NB-1<n: issue(bi+NB-1)
        cur={}
        for (vb,k,rb,offs,post) in blocks[bi][1]:
            if vb not in cur:
                cur[vb]=tmp[len(cur)]; a(f"v_add_u32 {cur[vb]}, {slot(bi%NB)}, {vb}")
            for qd in range(4): a(f"ds_read_b64_tr_b16 {k}[{rb+2*qd}:{rb+2*qd+1}], {cur[vb]} offset:{offs[qd]}")
            if post:
                a("s_waitcnt lgkmcnt(0)")
                for x in post: a(x)
    a("s_waitcnt lgkmcnt(0)\ns_barrier")
QKV_OFFS=[(qd&1)*1024+(qd>>1)*8192 for qd in range(4)]
def coop_qkv_addr(a, lane, w4, vchunk, vt0, vt1, t0, t1):
    a(f"""
    v_lshrrev_b32 {t0}, 4, {lane}
    v_and_b32 {t1}, 15, {lane}
    v_lshlrev_b32 {vchunk}, 1, {t0}
    v_xor_b32 {vchunk}, {vchunk}, {t1}
    v_lshlrev_b32 {vchunk}, 4, {vchunk}
    v_bfe_u32 {t1}, {lane}, 2, 3           ; r + 4(g&1)
    v_lshlrev_b32 {t1}, 1, {t1}
    v_bfe_u32 {vt1}, {lane}, 1, 1
    v_add_u32 {vt1}, {w4}, {vt1}
    v_xor_b32 {vt1}, {vt1}, {t1}
    v_lshlrev_b32 {vt1}, 4, {vt1}
    v_and_b32 {t1}, 1, {lane}
    v_lshl_add_u32 {vt1}, {t1}, 3, {vt1}
    v_bfe_u32 {t1}, {lane}, 2, 2
    v_lshl_add_u32 {t0}, {t0}, 3, {t1}
    v_lshl_add_u32 {vt0}, {t0}, 8, {vt1}
    v_xor_b32 {vt1}, 32, {vt0}
    """)

def guard(a, fail): a(f"s_add_u32 {sCnt}, {sCnt}, 64\ns_cmp_gt_u32 {sCnt}, {SPIN}\ns_cbranch_scc1 {fail}")
def flag_if(a, cond, so, t=("v10","v11")):
    a(f"{cond}\ns_cselect_b32 s18, {so}, 0x40000000\ns_cmp_eq_u32 {sW}, 0\ns_cselect_b32 s18, s18, 0x40000000"); put_flag(a,"s18",1,t)

XBUF=0x10000; L_ST=37888; L_CS=L_ST+256
AB=12
def lp_consts(a, vSrc, vRaw, vRd0, vRd1, vN4, vG16, vSw, t0, t1):
    a(f"""
    v_lshrrev_b32 {t0}, 3, v0
    v_and_b32 {t1}, 7, v0
    v_xor_b32 {t1}, {t1}, {t0}
    s_lshl_b32 {T0}, {sW}, 3
    v_add_u32 {t0}, {T0}, {t0}             ; token 0..31
    v_mul_u32_u24 {vSrc}, 1152, {t0}
    v_lshl_add_u32 {vSrc}, {t1}, 4, {vSrc}
    v_lshlrev_b32 {t0}, 2, {t0}
    v_add_u32 {vSw}, {L_ST}, {t0}
    s_mul_i32 {T0}, {sW}, 9216
    v_lshlrev_b32 {vRaw}, 4, v0
    v_add_u32 {vRaw}, {T0}, {vRaw}
    v_lshrrev_b32 {t0}, 4, v0              ; g
    v_lshlrev_b32 {vG16}, 4, {t0}
    v_add_u32 {vG16}, {L_ST}, {vG16}
    v_and_b32 {t1}, 7, v0
    v_xor_b32 {t0}, {t0}, {t1}
    v_lshlrev_b32 {t0}, 4, {t0}
    v_lshl_add_u32 {t0}, {t1}, 7, {t0}
    v_bfe_u32 {t1}, v0, 3, 1
    v_mul_u32_u24 {t1}, 9216, {t1}
    v_add_u32 {vRd0}, {t0}, {t1}
    v_xor_b32 {vRd1}, 64, {vRd0}
    v_and_b32 {t0}, 15, v0
    v_lshlrev_b32 {t0}, 2, {t0}
    v_add_u32 {vN4}, {L_ST}, {t0}
    """)
def lp_frag(vRd0, vRd1, dst, k, T): return f"ds_read_b128 {q(dst)}, {(vRd0,vRd1)[k&1]} offset:{18432*T+1024*(k>>1)}"
def lp_stats(a, vRaw, vSw, R, redo=None):
    for i in range(9): a(f"ds_read_b128 {q(R+4*i)}, {vRaw} offset:{1024*i}")
    s1,s2,s3,s4,one=[R+36+i for i in range(5)]
    a(f"v_mov_b32 v{one}, 0x3f803f80")
    for r in (s1,s2,s3,s4): a(f"v_mov_b32 v{r}, 0")
    for i in range(9):
        a(f"s_waitcnt lgkmcnt({8-i})")
        for j in range(4):
            r=R+4*i+j
            a(f"v_dot2c_f32_bf16 v{(s1,s3)[j&1]}, v{r}, v{one}\nv_dot2c_f32_bf16 v{(s2,s4)[j&1]}, v{r}, v{r}")
    a("s_nop 2")
    a(f"v_add_f32 v{s1}, v{s1}, v{s3}\nv_add_f32 v{s2}, v{s2}, v{s4}")
    if redo: a(f"v_cmp_u_f32 vcc, v{s1}, v{s1}")
    for pat in ("quad_perm:[1,0,3,2]","quad_perm:[2,3,0,1]","row_half_mirror"):
        for r in (s1,s2): a(f"v_add_f32_dpp v{r}, v{r}, v{r} {pat} {DPP}")
    if redo: a(f"s_cbranch_vccnz {redo}")
    a(f"""
    v_mul_f32 v{s1}, {hex(f2u(-1/576))}, v{s1}          ; -mean
    v_mul_f32 v{s3}, v{s1}, v{s1}
    v_mul_f32 v{s2}, {hex(f2u(1/576))}, v{s2}
    v_sub_f32 v{s2}, v{s2}, v{s3}
    v_max_f32 v{s2}, 0, v{s2}
    v_add_f32 v{s2}, {hex(f2u(1e-5))}, v{s2}
    v_rsq_f32 v{s2}, v{s2}
    s_nop 0
    v_mul_f32 v{s3}, v{s1}, v{s2}
    ds_write2_b32 {vSw}, v{s2}, v{s3} offset0:0 offset1:32
    """)
def lp_ab(vN4): return [f"ds_read2_b32 v[{AB}:{AB+1}], {vN4} offset0:0 offset1:16", f"ds_read2_b32 v[{AB+2}:{AB+3}], {vN4} offset0:32 offset1:48"]
def lp_colsum(a, ops, slot0, vN4, R):
    for i in range(4): a(f"v_mov_b32 v{R+i}, 0x3f803f80")
    for k in range(18):
        for t,o in enumerate(ops):
            d=q(R+4+4*t); a(mf(d,q(R),o[k],d if k else 0))
    a(f"s_lshl_b32 {T0}, {sW}, 9\nv_add_u32 v10, {T0}, {vN4}")
    for t in range(len(ops)): a(f"ds_write_b32 v10, v{R+4+4*t} offset:{256+64*(slot0+t)}")
    a("s_waitcnt lgkmcnt(0)")
def lp_addr(vN4, vG16): return [f"s_lshl_b32 {T0}, {sW}, 9", f"v_add_u32 v10, {T0}, {vG16}", f"v_add_u32 v11, {T0}, {vN4}"]
def lp_rd_col(slot, dst): return f"ds_read_b128 {q(dst)}, v10 offset:{256+64*slot}"
def lp_col(a, acc, T, cs_, ab=AB):
    for i in (0,2):
        r=f"v[{acc+i}:{acc+i+1}]"
        a(f"v_pk_mul_f32 {r}, {r}, v[{ab}:{ab+1}] op_sel:[0,{T}] op_sel_hi:[1,{T}]")
    for i in (0,2):
        r=f"v[{acc+i}:{acc+i+1}]"
        a(f"v_pk_fma_f32 {r}, v[{cs_+i}:{cs_+i+1}], v[{ab+2}:{ab+3}], {r} op_sel:[0,{T},0] op_sel_hi:[1,{T},1]")
def lp_rd_row(vG16, dst): return [f"ds_read_b128 {q(dst+8*T+4*j)}, {vG16} offset:{64*T+128*j}" for T in range(2) for j in range(2)]
def lp_row(a, acc, st, cs_, sel):
    for i in (0,2):
        r=f"v[{acc+i}:{acc+i+1}]"
        a(f"v_pk_mul_f32 {r}, {r}, v[{st+i}:{st+i+1}]")
    for i in (0,2):
        r=f"v[{acc+i}:{acc+i+1}]"
        a(f"v_pk_fma_f32 {r}, v[{st+4+i}:{st+5+i}], v[{cs_}:{cs_+1}], {r} op_sel:[0,{sel},0] op_sel_hi:[1,{sel},1]")
```

```python
import sys
from wk import *
import wk, a1, a2p, awo, bqkv, batt, battp, bwo
import chain as C
from stages import compact, KD, CH_CFG
NAME="interleave_layers__memory_aug_recurrent_mem_tr__mha_block__prompt_kernel"
XB_=2048*1152
sLay,sJ,sLo="s23","s22","s20"
NA,NW,NB=3,7,4
def stamp(a, cfg, k, r=10):
    if cfg.get("dbg"):
        if k==9: a("s_memrealtime s[98:99]\ns_waitcnt lgkmcnt(0)\ns_mov_b32 s100, s98\ns_memtime s[98:99]\ns_waitcnt lgkmcnt(0)\ns_mov_b32 s1, s98"); return
        if not ((r in (12,28) and k in (2,3)) or k==8): return
        if k==2: a("s_memrealtime s[98:99]\ns_waitcnt lgkmcnt(0)\ns_sub_u32 s22, s98, s100\ns_memtime s[98:99]\ns_waitcnt lgkmcnt(0)\ns_sub_u32 s43, s98, s1"); return
        sk=a.lab("dg")
        a(f"""s_cmp_lg_u32 {sW}, 0
        s_cbranch_scc1 {sk}
        s_cmp_lg_u32 s101, {0 if k!=8 else 224}
        s_cbranch_scc1 {sk}
        s_memrealtime s[98:99]
        s_lshl_b32 s0, {sLay}, 4
        s_add_u32 s0, s0, {8*(k-2) if k!=8 else 32}
        v_mov_b32 v{r}, s0
        s_waitcnt lgkmcnt(0)
        s_sub_u32 s0, s98, s100
        v_mov_b32 v{r+1}, s0
        s_memtime s[98:99]
        s_mov_b64 exec, 1
        global_store_dword v{r}, v{r+1}, s[4:5]
        s_waitcnt lgkmcnt(0) vmcnt(0)
        s_sub_u32 s0, s98, s1
        v_mov_b32 v{r+1}, s0
        global_store_dword v{r}, v{r+1}, s[4:5] offset:4""")
        if k==3: a(f"v_mov_b32 v{r+2}, s22\nv_mov_b32 v{r+3}, s43\nglobal_store_dwordx2 v{r}, v[{r+2}:{r+3}], s[4:5] offset:-8")
        a(f"""s_mov_b64 exec, -1
        {sk}:""")
        return
    if not cfg.get("ts"): return
    if cfg.get("light") and not (k in (8,9) or (r in (12,28) and k in (2,3))): return
    sk=a.lab("ts")
    a(f"""s_cmp_lg_u32 {sW}, 0
    s_cbranch_scc1 {sk}
    s_memrealtime s[98:99]
    s_lshl_b32 s100, {sLay}, 4
    s_add_u32 s100, s100, {k}
    s_lshl_b32 s100, s100, 8
    s_add_u32 s100, s100, s101
    s_lshl_b32 s100, s100, 2
    s_add_u32 s100, s100, {OFF_TS}
    s_waitcnt lgkmcnt(0)
    v_mov_b32 v{r}, s100
    v_mov_b32 v{r+1}, s98
    s_mov_b64 exec, 1
    global_store_dword v{r}, v{r+1}, s[6:7]
    s_memtime s[98:99]
    v_add_u32 v{r}, 0x8000, v{r}
    s_waitcnt lgkmcnt(0)
    v_mov_b32 v{r+1}, s98
    global_store_dword v{r}, v{r+1}, s[6:7]
    s_mov_b64 exec, -1
    {sk}:""")
sVer="s19"
def verify(a, cfg, fail, cur, r=12, sampled=False):
    ok=a.lab("ver")
    a(f"s_cmp_lg_u32 {sVer}, 0\ns_cbranch_scc1 {ok}\ns_mov_b32 {sVer}, 1\nv_mbcnt_lo_u32_b32 v{r+6}, -1, 0\nv_mbcnt_hi_u32_b32 v{r+6}, -1, v{r+6}")
    elect(a,fail,"s18",t=[f"v{r+i}" for i in range(6)],lane=f"v{r+6}",sampled=sampled)
    a(f"s_sub_u32 {T0}, 255, {sI}" if cur and cfg.get("rev") else f"s_add_u32 {T0}, {sI}, {cur}")
    a(f"s_cmp_eq_u32 {T0}, s18\ns_cbranch_scc1 {ok}\ns_mov_b32 {sI}, s18\ns_mov_b32 s10, {WS_BYTES}\ns_waitcnt vmcnt(0) lgkmcnt(0)\ns_branch k_role\n{ok}:")
def div7(a, dq, dr, x): a(f"s_mul_i32 {dq}, {x}, 9363\ns_lshr_b32 {dq}, {dq}, 16\ns_mul_i32 {T0}, {dq}, 7\ns_sub_u32 {dr}, {x}, {T0}")
def worker(a, cfg):
    F="w_fail"; sTm,sR="s39","s37"
    EF=dict(o=2,x1=30,bq=14,bo=1,x2=17,kv=11); EF.update(cfg.get("ef",{}))
    on=lambda k: EF[k] is not None
    def layer_base(): a(f"s_mul_i32 {T0}, {sLay}, {LAYER_STRIDE}\ns_add_u32 s8, s6, {T0}\ns_addc_u32 s9, s7, 0\ns_mov_b32 s10, {LAYER_SPAN}")
    def next_layer(lbl):
        stamp(a,cfg,8); srd(a,sX,6,XB_,OFF_X2)
        a(f"s_add_u32 {sLay}, {sLay}, 1\ns_cmp_lt_u32 {sLay}, 2\ns_cbranch_scc1 {lbl}\ns_branch {F}")
    a("worker:")
    a(f"s_sub_u32 {sI}, 255, {sI}" if cfg.get("rev") else f"s_sub_u32 {sI}, {sI}, 32")
    a(f"s_mov_b32 {sCnt}, 0\ns_add_u32 s101, {sI}, 32")
    srd(a,sX,P_X,XB_); srd(a,sD,6,WS_BYTES)
    a(f"s_cmp_ge_u32 {sI}, 128\ns_cbranch_scc1 w_pipe")
    a(f"s_lshr_b32 {a1.sHd}, {sI}, 2\ns_and_b32 {sJ}, {sI}, 3")
    a1.load_qkv(a,"kv")
    verify(a,cfg,F,32); stamp(a,cfg,0)
    a("g_layer:"); layer_base()
    a(f"s_mov_b32 {a1.sSeg}, {sJ}\ns_barrier")
    a1.consts(a)
    a(f"s_cmp_eq_u32 {sLay}, 0\ns_cbranch_scc0 g_cs1"); a1.colsum(a,"kv"); a("s_branch g_cs2\ng_cs1:"); a1.cs_restore(a); a("g_cs2:")
    stamp(a,cfg,1)
    def wait_x(sg):
        sk=a.lab("nx")
        a(f"s_cmp_eq_u32 {sLay}, 0\ns_cbranch_scc1 {sk}\ns_lshl_b32 {T3}, {sg}, 12\ns_add_u32 {T3}, {T3}, {F_X2}")
        wait_flags(a,T3,3,7,1,F,every_wave=True); a(f"{sk}:")
    wait_x(a1.sSeg); a("s_mov_b32 s30, 0x40000000\nw_a1r:"); cs(a,"a1",8); a1.fetch(a,a1.sSeg); guard(a,F)
    a("s_waitcnt vmcnt(0)\nw_a1:")
    def nxt(later):
        sk=a.lab("nx")
        a(f"s_add_u32 {T2}, {a1.sSeg}, 4\ns_min_u32 {T2}, {T2}, 63\ns_cmp_ge_u32 {a1.sSeg}, 32\ns_cbranch_scc1 {sk}")
        a(f"s_cmp_lt_u32 {a1.sSeg}, 28\ns_cbranch_scc1 {sk}o\ns_cmp_eq_u32 {sLay}, 0\ns_cbranch_scc1 {sk}\ns_mov_b32 {T3}, {F_X2}")
        for c in range(3):
            wait_flags(a,T3,64,12,1,F,every_wave=True); a(f"s_add_u32 {T3}, {T3}, 128")
        a(f"s_branch {sk}\n{sk}o:")
        if cfg.get("lateq",1): a(f"s_cmp_lt_u32 {a1.sSeg}, 4\ns_cselect_b32 {T2}, 4096, {T2}\ns_cbranch_scc1 {sk}")
        wait_x(T2); a(f"{sk}:"); a1.fetch(a,T2,later)
    def late_q():
        a(f"s_cmp_ge_u32 {a1.sSeg}, 4\ns_cbranch_scc1 a1_hasq"); a1.load_qkv(a,"q",{0:lambda: (a("s_waitcnt vmcnt(12)\ns_barrier"),sig(2))})
        a(f"s_add_u32 {T2}, {a1.sSeg}, 4"); wait_x(T2); a1.fetch(a,T2)
        a(f"s_cmp_eq_u32 {sLay}, 0\ns_cbranch_scc0 g_cs3"); a1.colsum(a,"q"); a("g_cs3:")
        for x in lp_ab(a1.vN4): a(x)
        a("a1_hasq:")
    def sig(i):
        if i==1: signal(a,"s30",2,synced=True)
        else:
            a(f"s_lshl_b32 s30, {a1.sHd}, 6\ns_add_u32 s30, s30, {a1.sSeg}\ns_lshl_b32 s30, s30, 4\ns_add_u32 s30, s30, {F_KV}"); signal(a,"s30",1,synced=i==2,t=("v16","v17") if i==2 else ("v10","v11"))
    a1.segment(a,0,nxt,sig,"w_a1r" if on("x2") else None,EF["kv"],late_q if cfg.get("lateq",1) else None); cs(a,"a1",7)
    if cfg.get("prof")=="rt": a(f"s_cmp_ge_u32 {a1.sSeg}, 4\ns_cbranch_scc1 a1_nd"); cs_dump(a,"a1"); a("a1_nd:")
    a(f"s_add_u32 {a1.sSeg}, {a1.sSeg}, 4\ns_cmp_lt_u32 {a1.sSeg}, 64\ns_cbranch_scc1 w_a1")
    signal(a,"s30",2)
    if cfg.get("prof")=="a1": cs_dump(a,"a1")
    stamp(a,cfg,2)
    def bw_task(idx):
        a(f"s_mul_i32 {bwo.sSeg}, {idx}, 43691\ns_lshr_b32 {bwo.sSeg}, {bwo.sSeg}, 17\ns_mul_i32 {T0}, {bwo.sSeg}, 3\ns_sub_u32 {bwo.sCg}, {idx}, {T0}")
        a(f"s_sub_u32 {T0}, 63, {bwo.sSeg}\ns_cmp_eq_u32 {sLay}, 0\ns_cselect_b32 {bwo.sSeg}, {bwo.sSeg}, {T0}")
    def g_idx(skip): a(f"s_cmp_eq_u32 {sLay}, 0\ns_cbranch_scc1 {skip}\ns_cmp_ge_u32 {sJ}, 2\ns_cbranch_scc1 {skip}\ns_lshr_b32 {T1}, {sI}, 1\ns_add_u32 {T1}, {T1}, {sJ}\ns_add_u32 {T1}, {T1}, 128")
    a1.cs_save(a)
    g_idx("g_att"); bw_task(T1); bwo.load_w(a)
    a(f"g_att:\ns_lshr_b32 {batt.sHd}, {sI}, 2\ns_mov_b32 {batt.sJ}, {sJ}")
    battp.consts(a)
    if on("bo"): battp.poison(a)
    def stored(lo,hi,wait):
        sk=a.lab("st")
        a(f"""s_cmp_eq_u32 {lo}, {hi}
        s_cbranch_scc1 {sk}
        s_lshl_b32 {T3}, {sW}, 2
        s_add_u32 {T3}, {T3}, {sJ}
        s_lshl_b32 {T3}, {T3}, 5
        s_add_u32 {T3}, {T3}, {batt.sHd}
        s_lshl_b32 {T3}, {T3}, 7
        s_add_u32 {T3}, {T3}, {F_BO}
        v_lshlrev_b32 v10, 16, v0
        v_mov_b32 v11, 1
        s_bfm_b64 exec, {hi}, 0
        {"s_waitcnt vmcnt(0)" if wait else ""}
        buffer_store_dword v11, v10, {sWS}, {T3} offen sc1
        s_mov_b64 exec, -1
        {sk}:""")
    battp.run(a,F,cfg.get("lrange",120<<23),stored,cfg.get("sl_batt",2),on("bo"),on("bq"),sLay if cfg.get("defer2",1) else None)
    cs_dump(a,"bp"); stamp(a,cfg,5)
    g_idx("g_next"); bw_task(T1); a("s_branch w_bw0\ng_next:")
    next_layer("g_layer")
    a("w_pipe:")
    for _ in range(cfg.get("pdelay",0)): a("s_sleep 36")
    a(f"""s_sub_u32 {T0}, {sI}, 128
    s_lshr_b32 {T2}, {T0}, 5
    s_and_b32 {T1}, {T0}, 31
    s_mul_i32 {sTm}, {T1}, 58255
    s_lshr_b32 {sTm}, {sTm}, 19
    s_mul_i32 {T0}, {sTm}, 9
    s_sub_u32 {sR}, {T1}, {T0}
    s_cmp_eq_u32 {T2}, 2
    s_cselect_b32 {T0}, 27, 18
    s_cmp_lt_u32 {T1}, {T0}
    s_cbranch_scc1 p_layer""")
    a(f"s_mul_i32 {a1.sHd}, {T2}, 14\ns_add_u32 {a1.sHd}, {a1.sHd}, {T1}\ns_sub_u32 {a1.sHd}, {a1.sHd}, {T0}\ns_min_u32 {a1.sHd}, {a1.sHd}, 31")
    a1.consts(a); a1.load_qkv(a,"kv")
    stamp(a,cfg,1); verify(a,cfg,F,32)
    a(f"s_cmp_lg_u32 {sI}, 223\ns_cbranch_scc1 a2_go\ns_mov_b32 {sLay}, 1"); layer_base(); a(f"s_mov_b32 {T1}, 63\ns_branch w_bwo\na2_go:")
    a2p.consts(a)
    a("a2_layer:"); layer_base()
    def qready(pair):
        a(f"""s_lshr_b32 {T3}, {sW}, 1
        s_add_u32 {T3}, {T3}, {pair}
        s_lshl_b32 {T3}, {T3}, 4
        s_add_u32 {T3}, {T3}, s27""")
        wait_flags(a,T3,1,2,2,F,every_wave=True,sleep=4)
    def ready(pair):
        rdy=a.lab("a2r")
        a(f"""v_cmp_lt_u32 vcc, 1, v7
        s_lshr_b32 {T3}, {sW}, 1
        s_add_u32 {T3}, {T3}, {pair}
        s_cmp_ge_u32 {T3}, 64
        s_cbranch_scc1 {rdy}
        s_bitcmp1_b64 vcc, {T3}
        s_cbranch_scc1 {rdy}""")
        qready(pair); a(f"{rdy}:")
    def flag_prev(back=2):
        a(f"""s_sub_u32 s50, {a1.sSeg}, {back}
        v_add_u32 v10, s50, v0
        v_cmp_gt_u32 vcc, 64, v10
        v_lshlrev_b32 v10, 12, v10
        v_mov_b32 v11, 1
        s_lshl_b32 s50, {a1.sHd}, 7
        s_add_u32 s50, s50, {F_O}
        s_cmp_eq_u32 {sW}, 0
        s_cselect_b32 s50, s50, {a2p.OOB}
        v_cndmask_b32 v10, v8, v10, vcc
        s_mov_b64 exec, 3
        buffer_store_dword v11, v10, {sWS}, s50 offen sc1
        s_mov_b64 exec, -1""")
    a(f"s_mov_b32 {a1.sSeg}, {-1 if cfg.get('odd',0) else 0}\ns_lshl_b32 s27, {a1.sHd}, 10\ns_add_u32 s27, s27, {F_KV}\nv_mov_b32 v8, 0x20000000\nv_mov_b32 v7, 0")
    ready(a1.sSeg)
    O1=cfg.get("ofirst",58)
    if on("o"):
        for p_ in range(O1,64,2): a2p.poison(a,p_)
    def o_early():
        sk=a.lab("oe"); a(f"s_cmp_lt_u32 {a1.sSeg}, {O1}\ns_cbranch_scc1 {sk}"); flag_prev(0); a(f"{sk}:")
    a2p.addrs(a,a1.sSeg)
    for x in a2p.kv_loads(0)+a2p.q_loads(): a(x)
    a("s_waitcnt vmcnt(0)\nw_a2:")
    for vb in range(2):
        a2p.body(a,vb,F,lambda: a(f"buffer_load_dword v7, {a1.vL16}, {sWS}, s27 offen sc1"),flag_prev,ready,cfg.get("vp_sl",1),cfg.get("ahead",0),(EF["o"],o_early) if on("o") else None)
        a(f"s_add_u32 {a1.sSeg}, {a1.sSeg}, 2")
        if vb==(0 if cfg.get('odd',0) else 1): a(f"s_cmp_ge_u32 {a1.sSeg}, 64\ns_cbranch_scc1 w_a2e")
    a("s_branch w_a2\nw_a2e:\ns_waitcnt vmcnt(0)\ns_barrier"); flag_prev()
    cs(a,'a2_0',8); cs_dump(a,'a2_0'); cs_dump(a,'a2_1')
    stamp(a,cfg,3)
    a(f"s_add_u32 {T1}, {a1.sHd}, 64\ns_cmp_lg_u32 {sLay}, 0\ns_cbranch_scc1 w_bwo")
    next_layer("a2_layer")
    a("c_join:")
    if cfg.get("wb"): a("buffer_wbl2 sc1")
    a(f"v_mbcnt_lo_u32_b32 v0, -1, 0\nv_mbcnt_hi_u32_b32 v0, -1, v0\ns_mov_b32 {sCnt}, 0"); layer_base()
    a(f"s_add_u32 {T1}, {sI}, 96\ns_add_u32 {sI}, {sI}, 224\ns_branch w_bwo")
    a(f"p_layer:\ns_cmp_eq_u32 {T2}, 2\ns_cbranch_scc1 w_bqr")
    a(f"s_lshl_b32 s33, {T2}, 1\ns_add_u32 s33, s33, {sTm}\ns_mov_b32 {awo.sCg}, {sR}")
    awo.consts(a); awo.load_w(a)
    stamp(a,cfg,1); verify(a,cfg,F,32)
    a(f"v_and_b32 v7, 7, v0\ns_lshl_b32 {T0}, {sW}, 3\nv_add_u32 v7, {T0}, v7\nv_lshlrev_b32 v7, 7, v7")
    a("aw_layer:"); layer_base(); a(f"s_mov_b32 {awo.sTask}, s33")
    def oflag(dst,task): a(f"s_lshr_b32 {dst}, {task}, 1\ns_lshl_b32 {dst}, {dst}, 12\ns_add_u32 {dst}, {dst}, {F_O}")
    def xsig():
        a(f"s_barrier\ns_cmp_lg_u32 {sW}, 0\ns_cselect_b32 s31, 0x40000000, s31"); put_flag(a,"s31",1)
    if on("x1"): a("s_add_u32 s32, s33, 124"); awo.poison(a,0,"s32"); a("s_add_u32 s32, s33, 120"); awo.poison(a,0,"s32")
    a("w_awo_wait:"); oflag(T3,awo.sTask)
    a(f"s_lshl_b32 {T0}, {sW}, 10\ns_add_u32 {T3}, {T3}, {T0}")
    wait_flags(a,T3,8,7,1,F,every_wave=True,sleep=cfg.get("sl_w",1))
    guard(a,F); cs(a,"awo",0); awo.issue(a)
    a(f"s_mov_b32 s31, 0x40000000"); put_flag(a,"s31",1)
    a(f"w_awo:\ns_add_u32 s32, {awo.sTask}, 4"); oflag("s30","s32")
    a(f"""s_lshr_b32 s31, {awo.sTask}, 1
    s_lshl_b32 s31, s31, 5
    s_and_b32 {T0}, {awo.sTask}, 1
    s_mul_i32 {T0}, {T0}, 9
    s_add_u32 s31, s31, {T0}
    s_add_u32 s31, s31, {awo.sCg}
    s_lshl_b32 s31, s31, 7
    s_add_u32 s31, s31, {F_X1}""")
    awo.task(a,0,1,lambda: a(f"buffer_load_dword v8, v7, {sWS}, s30 offen sc1"),
             (EF["x1"],lambda: flag_if(a,f"s_cmp_ge_u32 {awo.sTask}, 120","s31")) if on("x1") else None,"w_awo_wait" if on("o") else None)
    a(f"""
    s_mov_b32 {awo.sTask}, s32
    v_cmp_eq_u32 vcc, 0, v8
    s_cmp_ge_u32 s32, 128
    s_cbranch_scc1 w_awo_sync
    s_cbranch_vccnz w_awo_sync""")
    cs(a,"awp",0); awo.issue(a); cs(a,"awp",1); a(f"s_waitcnt vmcnt({awo.NI})"); cs(a,"awp",2); xsig(); cs(a,"awp",3); a("s_branch w_awo")
    a("w_awo_sync:")
    if on("x1"): a("s_cmp_lt_u32 s32, 124\ns_cbranch_scc1 w_awo_s1\ns_barrier\ns_branch w_awo_s2\nw_awo_s1:")
    a("s_waitcnt vmcnt(0)"); cs(a,"awo",6); xsig(); a("w_awo_s2:"); cs(a,"awo",7)
    a(f"s_cmp_lt_u32 {awo.sTask}, 128\ns_cbranch_scc1 w_awo_wait")
    cs_dump(a,"awo"); cs_dump(a,"awp"); stamp(a,cfg,3)
    a(f"s_mul_i32 {T1}, s33, 9\ns_add_u32 {T1}, {T1}, {sR}\ns_add_u32 {T1}, {T1}, 27\ns_cmp_lg_u32 {sLay}, 0\ns_cbranch_scc1 w_bwo")
    next_layer("aw_layer")
    def bq_ids():
        a(f"s_mul_i32 {T1}, {sTm}, 9\ns_add_u32 {T1}, {T1}, {sR}"); bw_task(T1)
    a("w_bqr:")
    if cfg.get("warmq"):
        srd(a,sA,P_WQ,4718592)
        a(f"s_lshl_b32 {T0}, {T1}, 2\ns_add_u32 {T0}, {T0}, {sW}\ns_lshl_b32 {T0}, {T0}, 13\nv_lshlrev_b32 v3, 7, v0")
        for i in range(6): a(f"buffer_load_dword v4, v3, {sA}, {T0} offen sc1\ns_add_u32 {T0}, {T0}, {108*8192}")
        a("s_waitcnt vmcnt(0)")
    bq_ids(); bwo.load_w(a)
    a(f"s_mov_b32 {bqkv.sU}, {sR}"); bqkv.load_w(a); a1.consts(a); bqkv.colsum(a)
    stamp(a,cfg,1); verify(a,cfg,F,32)
    a("bq_layer:"); layer_base()
    a(f"s_mov_b32 {a1.sSeg}, {sTm}\ns_mov_b32 {bqkv.sU}, {sR}\ns_lshl_b32 s30, {bqkv.sU}, 8\ns_add_u32 s30, s30, {F_BQ}")
    srd(a,sX,8,XB_,OFF_X1)
    a1.consts(a); bqkv.load_w(a,False)
    if on("bq"):
        a(f"s_add_u32 {T0}, {sTm}, 60\ns_cmp_eq_u32 {sTm}, 0\ns_cselect_b32 {a1.sSeg}, 63, {T0}"); bqkv.stores(a,0,False)
        a(f"s_add_u32 {a1.sSeg}, {sTm}, 60"); bqkv.stores(a,0,False); a(f"s_mov_b32 {a1.sSeg}, {sTm}")
    a(f"w_bq:\ns_lshl_b32 {T3}, {a1.sSeg}, 12\ns_add_u32 {T3}, {T3}, {F_X1}")
    wait_flags(a,T3,18,7,1,F,sleep=cfg.get("sl_w",1))
    a("w_bqf:"); cs(a,"bq",0); a1.fetch(a,a1.sSeg); guard(a,F); cs(a,"bq",1)
    a(f"s_lshl_b32 {T3}, {a1.sSeg}, 2\ns_add_u32 {T3}, {T3}, s30")
    bqkv.segment(a,0,lambda:None,"w_bqf" if on("x1") else None,{EF["bq"]:lambda: flag_if(a,f"s_cmp_ge_u32 {a1.sSeg}, 60",T3,("v58","v59"))}); cs(a,"bq",5)
    if on("bq"): a(f"s_cmp_ge_u32 {a1.sSeg}, 60\ns_cbranch_scc1 w_bqs")
    signal(a,T3,1); a("w_bqs:"); cs(a,"bq",6)
    a(f"s_add_u32 {a1.sSeg}, {a1.sSeg}, 3\ns_cmp_lt_u32 {a1.sSeg}, 64\ns_cbranch_scc1 w_bq")
    cs_dump(a,"bq"); stamp(a,cfg,3)
    bq_ids(); a("s_branch w_bw0")
    a("w_bwo:"); bw_task(T1); a("s_barrier"); bwo.load_w(a)
    a("w_bw0:")
    srd(a,sX,8,XB_,OFF_X1)
    bwo.consts(a)
    srd(a,sB,6,XB_,OFF_X2)
    a(f"s_cmp_eq_u32 {sLay}, 0\ns_cbranch_scc1 w_bw1"); srd(a,sB,P_OUT,XB_)
    a(f"w_bw1:\ns_mov_b32 s10, {LAYER_STRIDE+LAYER_SPAN}")
    stamp(a,cfg,6)
    a(f"s_lshl_b32 {T3}, {bwo.sSeg}, 12\ns_add_u32 {T3}, {T3}, {F_X1}")
    a(f"s_lshl_b32 {T3}, {bwo.sSeg}, 2\ns_add_u32 {T3}, {T3}, {F_BQ}")
    wait_flags(a,T3,1,2,1,F,sleep=8)
    a("w_bw2:"); bwo.resid_loads(a)
    a(f"s_lshl_b32 s29, {sLay}, 6\ns_add_u32 s29, s29, {bwo.sSeg}")
    if on("x2"):
        a(f"s_cmp_ge_u32 s29, 9\ns_cbranch_scc1 w_bwp"); bwo.poison(a,sB,0); a("s_waitcnt vmcnt(0)\nw_bwp:")
    a(f"w_bwr:\ns_lshl_b32 {T3}, {bwo.sSeg}, 12\ns_add_u32 {T3}, {T3}, {F_BO}")
    cs(a,"bw",0); wait_flags(a,T3,32,7,1,F); guard(a,F); cs(a,"bw",1)
    a(f"s_lshl_b32 {T3}, {bwo.sSeg}, 5\ns_add_u32 {T3}, {T3}, {bwo.sCg}\ns_lshl_b32 {T3}, {T3}, 7\ns_add_u32 {T3}, {T3}, {LAYER_STRIDE+F_X2}")
    bwo.task(a,0,sB,0,"sc1","w_bwr" if on("bo") else None,{EF["x2"]:lambda: flag_if(a,"s_cmp_lt_u32 s29, 9",T3,("v9","v11"))}); cs(a,"bw",5)
    a(f"s_cmp_eq_u32 {sLay}, 0\ns_cbranch_scc0 w_bw5")
    signal(a,T3,1)
    a(f"s_cmp_ge_u32 {bwo.sSeg}, 9\ns_cbranch_scc1 w_bw4"); stamp(a,cfg,7); cs_dump(a,"bw",True)
    a(f"w_bw4:\ns_add_u32 {bwo.sSeg}, {bwo.sSeg}, 9\ns_cmp_lt_u32 {bwo.sSeg}, 64\ns_cbranch_scc1 w_bw2\nw_bw5:")
    if cfg.get("prof")=="rt": a(f"s_cmp_eq_u32 {sLay}, 0\ns_cbranch_scc1 w_bw6")
    cs_dump(a,"bw"); a("w_bw6:")
    next_layer("bq_layer")
    a(f"{F}:\ns_waitcnt vmcnt(0) lgkmcnt(0)\ns_endpgm")

def chain(a, cfg):
    cc=dict(CH_CFG); cc["prepoison"]=1; cc.update(cfg.get("chain",{}))
    sLo_,sFk="s52","s53"; RDY="s[50:51]"
    srd(a,sX,P_MEM,9216); srd(a,sA,P_WQ,4718592); srd(a,sB,P_WK,4718592); srd(a,sC_,P_WV,4718592); srd(a,sD,P_WO,4718592)
    a(f"s_mov_b32 {sLo_}, 0\ns_mov_b32 {C.sCnt}, 0")
    for w in (1,2,3): a(f"s_cmp_eq_u32 {sW}, {w}\ns_cbranch_scc1 c_w{w}")
    for w in range(4):
        pre=f"ch{w}"; F=f"{pre}_fail"
        a(f"c_w{w}:")
        C.prologue_consts(a,w)
        vb=cfg.get("vblock",14)
        def ask():
            a("v_lshlrev_b32 v40, 2, v10\nglobal_load_dword v41, v40, s[4:5] sc1"); C.fetch_mem0(a,w,sX,"v10")
        def check():
            verify(a,cfg,F,0,40,True); stamp(a,cfg,0,48)
            C.init_comm(a,w,False); C.store_mem0(a,w,[C.held(0),"v10"])
        li=cfg.get("lateinit",0)
        def late_init():
            sk=a.lab("li"); a(f"s_cmp_lg_u32 {sVer}, 0\ns_cbranch_scc1 {sk}\nv_add_u32 v54, {1024*w}, {C.vL16}"); init_ws(a,52); a(f"{sk}:")
        C.load_weights(a,w,{"q":sA,"k":sB,"v":sC_,"o":sD},{li or -1:late_init,3+li:lambda: announce(a,("v40","v41"),"s_nop 0"),vb-4:ask,vb:check},cfg.get('worder'))
        stamp(a,cfg,1,12)
        a(f"v_mov_b32 v11, v10\n{pre}_layer:")
        C.set_layer(a,w,sLo_)
        fload=f"buffer_load_dword v11, {C.vL16}, {sWS}, {sFk} offen sc1"
        def kvwait(lbl, back, bit, sleep):
            a(f"{lbl}:"); a(fload); C.spin_guard(a,F)
            if sleep: a(f"s_sleep {sleep}")
            a(f"s_waitcnt vmcnt(0)\nv_cmp_ne_u32 {RDY}, 0, v11\ns_nop 0\ns_bitcmp1_b64 {RDY}, {bit}\ns_cbranch_scc0 {lbl}")
            if back: a(f"s_branch {back}")
        def entry_wait():
            if w==3:
                a(f"s_lshl_b32 {sFk}, {C.sH}, 10\ns_add_u32 {sFk}, {sFk}, {sLo_}\ns_add_u32 {sFk}, {sFk}, {F_KV}")
                kvwait(f"{pre}_kv0",None,cfg.get("kv0",0),cfg.get("sl_kv",1))
            a("s_barrier")
            stamp(a,cfg,2,28)
        def qk(w):
            if w==3: return [(2,(None,f"s_add_u32 {C.sT1}, {C.sSeg}, 1")),(2,(None,"v_cmp_ne_u32 s[16:17], 0, v11")),(8,(None,f"s_or_b64 {RDY}, {RDY}, s[16:17]")),
                             (8,(None,f"s_add_u32 s33, {C.sSeg}, {cfg.get('look',4)}")),(12,(None,"s_min_u32 s33, s33, 63")),(14,(None,f"s_bitcmp1_b64 {RDY}, s33")),(14,(None,f"s_cselect_b32 s33, 0x40000000, {sFk}")),
                             (18,(None,f"s_bitcmp1_b64 {RDY}, {C.sT1}")),(20,(None,f"s_cbranch_scc0 {pre}_kvw\n{pre}_kvok:"))]
            return []
        hooks=dict(mid=lambda w:[], end=lambda a,w: a(f"s_cmp_eq_u32 {C.sSeg}, 63\ns_cbranch_scc1 {pre}_done"), qk=qk, pre_k=lambda w:[], sal=lambda w:(["s_memrealtime s[98:99]\ns_waitcnt lgkmcnt(0)\ns_mov_b32 m0, "+C.sSeg+"\nv_writelane_b32 "+C.vAux+", s98, m0"] if (w==0 and cfg.get("ts") and not cfg.get("light")) else []), prefix=pre, entry_wait=entry_wait, after_touch=[fload.replace(sFk,'s33')])
        C.step_loop(a,w,cc,hooks)
        if w==3: kvwait(f"{pre}_kvw",f"{pre}_kvok",C.sT1,0)
        a(f"{pre}_done:")
        for i in range(len(C.GROUPS[w])): a(C.publish(i))
        a("s_waitcnt vmcnt(0) lgkmcnt(0)")
        if w==0 and cfg.get("ts"):
            a(f"s_lshl_b32 {T0}, {sLay}, 5\ns_add_u32 {T0}, {T0}, {C.sH}\ns_lshl_b32 {T0}, {T0}, 8\ns_add_u32 {T0}, {T0}, {OFF_TS+0x10000}\nv_lshrrev_b32 v12, 2, {C.vL16}\nbuffer_store_dword {C.vAux}, v12, {sWS}, {T0} offen")
        stamp(a,cfg,3,12)
        if cfg.get("stop_after_a1"): a(f"s_branch {F}")
        a(f"s_cmp_lg_u32 {sLo_}, 0\ns_cbranch_scc1 c_join\ns_mov_b32 {sLo_}, {LAYER_STRIDE}\ns_mov_b32 {sLay}, 1")
        for i,g in enumerate(C.GROUPS[w]):
            a(f"s_add_u32 {C.sT1}, {C.mso(i)}, 0x8000\nbuffer_load_dword v21, {C.vMst}, {sWS}, {C.sT1} offen sc1")
        for x in C.next_slots(w): a(x)
        a(f"v_lshrrev_b32 v18, 4, {C.vL16}"); C.fetch_mem0(a,w,sX,"v18"); a("s_waitcnt vmcnt(0)"); C.store_mem0(a,w,[C.held(0),C.held(1)])
        a(f"s_mov_b32 {T3}, {F_BQ+4*63}\nv_mov_b32 v12, 0\n{pre}_idle:\ns_sleep 16\nbuffer_load_dword v13, v12, {sWS}, {T3} offen sc1"); C.spin_guard(a,F)
        a(f"s_waitcnt vmcnt(0)\nv_cmp_eq_u32 vcc, 0, v13\ns_cbranch_vccnz {pre}_idle")
        a(f"s_branch {pre}_layer\n{F}:\ns_waitcnt vmcnt(0) lgkmcnt(0)\ns_endpgm")

def init_ws(a, R):
    a(f"""s_lshr_b32 {T0}, s2, 7
    s_mul_i32 {T0}, {T0}, {LAYER_STRIDE}
    s_and_b32 {T1}, s2, 127
    s_lshl_b32 {T2}, {T1}, 11
    s_add_u32 {T2}, {T2}, {T0}
    s_add_u32 {T2}, {T2}, {OFF_F}
    s_lshl_b32 {T1}, {T1}, 13
    s_add_u32 {T1}, {T1}, {T0}
    s_add_u32 {T1}, {T1}, {OFF_MH}
    s_add_u32 {T0}, {T1}, 4096
    v_lshrrev_b32 v{R+3}, 1, v{R+2}
    v_mov_b32 v{R+4}, -1
    v_mov_b32 v{R+5}, -1
    v_mov_b32 v{R+6}, -1
    v_mov_b32 v{R+7}, -1
    v_mov_b32 v{R+8}, 0
    v_mov_b32 v{R+9}, 0
    buffer_store_dwordx2 v[{R+8}:{R+9}], v{R+3}, {sWS}, {T2} offen sc1
    buffer_store_dwordx4 v[{R+4}:{R+7}], v{R+2}, {sWS}, {T1} offen sc1
    buffer_store_dwordx4 v[{R+4}:{R+7}], v{R+2}, {sWS}, {T0} offen sc1
    s_add_u32 {T1}, {T1}, {OFF_FL-OFF_MH}
    v_lshlrev_b32 v{R+3}, 1, v{R+2}
    s_mov_b32 exec_lo, 0x11111111
    s_mov_b32 exec_hi, 0x11111111
    buffer_store_dword v{R+8}, v{R+3}, {sWS}, {T1} offen sc1
    s_mov_b64 exec, -1
    s_lshl_b32 {T1}, s2, 11
    s_add_u32 {T1}, {T1}, {OFF_P}
    v_lshrrev_b32 v{R+3}, 1, v{R+2}
    buffer_store_dwordx2 v[{R+4}:{R+5}], v{R+3}, {sWS}, {T1} offen sc1
    s_lshl_b32 {T1}, s2, 13
    s_add_u32 {T1}, {T1}, {OFF_M}
    s_add_u32 {T0}, {T1}, 4096
    buffer_store_dwordx4 v[{R+4}:{R+7}], v{R+2}, {sWS}, {T1} offen sc1
    buffer_store_dwordx4 v[{R+4}:{R+7}], v{R+2}, {sWS}, {T0} offen sc1""")
def gen(cfg={}):
    cfg=dict(dict(rev=1,xmap='32570146',icode=1,worder='kqv',warmq=1,vblock=11),**cfg)
    xm=cfg['xmap']; assert sorted(xm)==list('01234567'); tab=sum(xm.index(str(x))<<(4*x) for x in range(8))
    a=Asm(); wk.PROF['on']=cfg.get('prof')
    a(f"{NAME}:\ns_cmp_lt_u32 s2, 256\ns_cbranch_scc1 k_go\nk_end:\ns_endpgm\nk_go:\ns_getreg_b32 {sXc}, hwreg(HW_REG_XCC_ID, 0, 3)\ns_lshl_b32 {sXc}, {sXc}, 2\ns_lshr_b32 {sXc}, {hex(tab)}, {sXc}\ns_and_b32 {sXc}, {sXc}, 7\ns_add_u32 {sXc}, {sXc}, 1\nv_lshlrev_b32 v2, 4, v0")
    if cfg.get("icode",0):
        a(f"""s_getpc_b64 s[16:17]
        k_pc:
        s_lshr_b32 s18, s2, 3
        s_lshl_b32 s18, s18, 5
        v_add_u32 v4, s18, v0
        v_lshlrev_b32 v4, 7, v4
        v_cmp_gt_u32 vcc, 32, v0
        v_min_u32 v4, k_last-k_pc, v4
        v_mov_b32 v7, s17
        s_and_saveexec_b64 s[18:19], vcc
        s_cbranch_execz k_pc2
        v_add_co_u32 v6, vcc, s16, v4
        v_addc_co_u32 v7, vcc, 0, v7, vcc
        global_load_dword v20, v[6:7], off sc1
        k_pc2:
        s_mov_b64 exec, s[18:19]""")
    entry(a)
    a(f"s_mov_b32 {sLay}, 0\ns_mov_b32 s101, s2")
    stamp(a,cfg,9)
    if cfg.get("noinit"): a(f"s_cmp_eq_u32 {sXc}, 1\ns_cselect_b32 s10, 0, s10")
    if not cfg.get('lateinit'): init_ws(a,0)
    a(f"""s_sub_u32 {T0}, {sXc}, 1
    s_and_b32 {T0}, {T0}, 7
    s_lshl_b32 {T0}, {T0}, 5
    s_lshr_b32 {sI}, s2, 3
    s_add_u32 {sI}, {sI}, {T0}
    s_mov_b32 {sVer}, 0
    {"s_waitcnt vmcnt(7)" if cfg.get("icode") else ""}
    s_mov_b32 s10, {WS_BYTES}
    s_cmp_lt_u32 {sI}, 32
    s_cbranch_scc1 k_role""")
    if cfg.get('lateinit'): init_ws(a,0)
    if cfg.get("warm",0):
        a(f"s_sub_u32 {T0}, {sI}, 32\ns_mul_i32 {T0}, {T0}, {165*128}\nv_lshlrev_b32 v3, 3, v2\nv_mov_b32 v5, 0x40000000\nv_cmp_gt_u32 vcc, {165*128}, v3\nv_cndmask_b32 v3, v5, v3, vcc")
        for c_ in cfg["warm"]:
            if c_=="|": a("s_waitcnt vmcnt(0)"); continue
            srd(a,sA,dict(q=P_WQ,k=P_WK,v=P_WV,o=P_WO)[c_],4718592); a(f"buffer_load_dword v4, v3, {sA}, {T0} offen sc1")
    announce(a)
    a(f"""k_role:
    s_mov_b32 s101, {sI}
    v_mbcnt_lo_u32_b32 v0, -1, 0
    v_mbcnt_hi_u32_b32 v0, -1, v0
    s_barrier
    s_cmp_lt_u32 {sI}, 32
    s_cbranch_scc1 chain""")
    worker(a,cfg)
    a("chain:")
    chain(a,cfg)
    a("k_last:\ns_endpgm")
    body=compact(a.finish())
    return f'; @launch grid=(256,1,1) block=(256,1,1) lds=163840\n.amdgcn_target "amdgcn-amd-amdhsa--gfx950"\n.text\n.globl {NAME}\n.p2align 8\n.type {NAME},@function\n'+body+KD.format(name=NAME)
if __name__=="__main__":
    import json
    t=gen(json.loads(sys.argv[2]) if len(sys.argv)>2 else {})
    ref=open("interleave_layers__memory_aug_recurrent_mem_tr__mha_block__prompt.s.ref").read()
    hdr="".join(l+"\n" for l in ref.split("\n")[:14])
    out=sys.argv[1] if len(sys.argv)>1 else "mega.s"
    open(out,"w").write(hdr+t)
    import subprocess
    print(len(t), subprocess.run(f"clang -x assembler -target amdgcn-amd-amdhsa -mcpu=gfx950 {out} -o mega.co && python3 cdna_unwritten_srd_check.py mega.co; llvm-readelf -S mega.co | grep text",shell=True,capture_output=True,text=True))
```
